```python
import torch

def _softmax(x, axis=-1):
    return torch.softmax(x, dim=axis)
def _gelu(x):
    return torch.nn.functional.gelu(x, approximate="tanh")
def _silu(x):
    return torch.nn.functional.silu(x)
def _sigmoid(x):
    return torch.sigmoid(x)
def _layernorm(x, axis=-1, eps=1e-5):
    m = x.mean(dim=axis, keepdim=True)
    v = x.var(dim=axis, keepdim=True, unbiased=False)
    return (x - m) / torch.sqrt(v + eps)
def _scatter_add(tgt, idx, src, axis=0):
    return tgt.clone().index_add_(axis, idx, src)
def _segment_sum(src, seg, n):
    out = torch.zeros((n,) + src.shape[1:], dtype=src.dtype)
    return out.index_add_(0, seg, src)
def _pad(x, pw):
    flat = tuple(v for pair in reversed(pw) for v in pair)
    return torch.nn.functional.pad(x, flat)

kernel_name = 'standalone__channel_attn_se__vision'

def setup_inputs():

    _w = (lambda a: (lambda t: t.to(torch.bfloat16) if t.is_floating_point() else t)(torch.as_tensor(a)))
    H = W = 512
    C = 192
    r = max(C // 16, 4)
    return {
        "x": _w((lambda *s: torch.randn(*s, dtype=torch.bfloat16) * 3.2)(1, H, W, C)),
        "w_down": _w((lambda *s: torch.randn(*s, dtype=torch.bfloat16) * 3.2)(C, r)),
        "w_up": _w((lambda *s: torch.randn(*s, dtype=torch.bfloat16) * 3.2)(r, C)),
    }

def reference(x, w_down, w_up):
    s = x.mean(axis=(1, 2))
    h = _silu(torch.einsum('bc,cr->br', s, w_down))
    g = _sigmoid(torch.einsum('br,rc->bc', h, w_up))
    return x * g[:, None, None, :]
```

```python
import sys, argparse

HEADER = """; Kernarg layout for this problem (48 bytes, ptrs only, base s[0:1]):
"""

NAME = "standalone__channel_attn_se__vision_kernel"
XBYTES = 100663296
MAGIC = 0x5BD1E995

L_M = 0
L_HP = 6144
L_P = 6400
L_G = 6656
L_WU = 8192
LDS = 20480
EPOCH = 65536
DIAG = 1 << 20
WS_BYTES = 2 << 20
BLK = 12288
STEP = 256 * BLK


def gen(ld="nt", st="sc0 sc1", diag=False, sleep=0, spin=400000, pubf="sc1", pollf="sc1", sbar=2,
        lvm=4, flex=2, swz=1, par=0, masked=1, svm=-1, probe=0):
    o = []
    e = o.append
    ldf = (" " + ld) if ld else ""
    stf = (" " + st) if st else ""
    F = flex
    C = 32 - F
    NX = 2 * F
    D0 = 32
    SO = 44
    ST = 78
    e(HEADER.rstrip())
    e(f"; @launch grid=(256,1,1) block=(768,1,1) lds={LDS}")
    e('.amdgcn_target "amdgcn-amd-amdhsa--gfx950"')
    e(".text")
    e(f".globl {NAME}")
    e(".p2align 8")
    e(f".type {NAME},@function")
    e(f"{NAME}:")

    def stamp(i):
        if diag:
            e(f"    s_memrealtime s[{ST+2*i}:{ST+1+2*i}]")

    def dreg(slot):
        return D0 + 4 * slot

    def load(slot):
        d = dreg(slot)
        e(f"    buffer_load_dwordx4 v[{d}:{d+3}], v5, s[16:19], s{SO+slot} offen{ldf}")

    def acc(slot):
        for i in range(4):
            d = dreg(slot) + i
            e(f"    v_lshlrev_b32 v{16+2*i}, 16, v{d}")
            e(f"    v_and_b32 v{17+2*i}, s30, v{d}")
        for i in range(4):
            e(f"    v_pk_add_f32 v[{8+2*i}:{9+2*i}], v[{8+2*i}:{9+2*i}], v[{16+2*i}:{17+2*i}]")

    e("    s_cmp_ge_u32 s2, 256")
    e("    s_cbranch_scc1 L_exit")
    e("    s_load_dwordx4 s[4:7], s[0:1], 0")
    e("    s_load_dwordx4 s[8:11], s[0:1], 16")
    e("    s_load_dwordx4 s[12:15], s[0:1], 32")
    if diag:
        for i in range(12):
            e(f"    s_mov_b64 s[{ST+2*i}:{ST+1+2*i}], 0")
    stamp(0)
    e("    v_lshrrev_b32 v1, 6, v0")
    e("    v_and_b32 v2, 63, v0                 ; lane")
    e("    v_readfirstlane_b32 s3, v1")
    e("    v_lshrrev_b32 v3, 4, v2              ; q (row)")
    e("    v_and_b32 v4, 15, v2                 ; n")
    e("    s_mul_i32 s40, s3, 11")
    e("    s_lshr_b32 s40, s40, 5")
    e("    s_mul_i32 s41, s40, 3")
    e("    s_sub_u32 s41, s3, s41               ; seg = wave%3")
    e("    s_and_b32 s31, s2, 0xf8")
    e(f"    s_mul_i32 s31, s31, {BLK}")
    e("    s_mul_i32 s43, s40, 3072")
    e("    s_add_u32 s42, s31, s43")
    e("    s_lshl_b32 s43, s41, 8")
    e("    s_add_u32 s42, s42, s43")
    e("    v_mul_u32_u24 v5, 768, v3")
    e("    v_lshl_add_u32 v5, v4, 4, v5")
    e("    v_add_u32 v5, s42, v5")
    e("    s_mov_b32 s18, %d" % XBYTES)
    e("    s_mov_b32 s19, 0x00020000")
    e("    s_mov_b32 s30, 0xffff0000")
    if NX:
        e("    s_lshr_b32 s42, s2, 1")
        e(f"    s_mul_i32 s42, s42, {BLK}")
        e("    s_sub_u32 s42, s42, s31")
        for i in range(NX):
            e(f"    s_add_u32 s{SO+i}, s42, {(C*256 + i*128)*BLK}")
    e("    s_and_b32 s43, s2, 7")
    for j in range(C):
        r = SO + NX + j
        if j < 8:
            if swz:
                e(f"    s_xor_b32 s42, s43, {j}")
                e(f"    s_mul_i32 s42, s42, {BLK}")
            elif j == 0:
                e(f"    s_mul_i32 s42, s43, {BLK}")
            e(f"    s_add_u32 s{r}, s42, {j*STEP}")
        else:
            e(f"    s_add_u32 s{r}, s{r-8}, {8*STEP}")
    for i in range(8):
        e(f"    v_mov_b32 v{8+i}, 0")
    e("    s_waitcnt lgkmcnt(0)")
    e("    s_mov_b32 s16, s4")
    e("    s_mov_b32 s17, s5")
    if NX:
        e("    s_bitcmp1_b32 s2, 0")
        e(f"    s_cbranch_scc{1-par} L_short")
        for s in range(lvm):
            load(s)
        for s in range(NX):
            e(f"    s_waitcnt vmcnt({lvm-1})")
            load(s + lvm)
            acc(s)
        e("    s_branch L_common")
        e("L_short:")
    for s in range(lvm):
        load(NX + s)
    e("L_common:")
    if probe:
        e("    s_cmp_lg_u32 s3, 0")
        e("    s_cbranch_scc1 L_noprobe")
        e("    s_bitcmp0_b32 s2, 5")
        e("    s_cselect_b32 s20, s4, s10")
        e("    s_cselect_b32 s21, s5, s11")
        e("    s_lshr_b32 s42, s2, 3")
        e("    s_and_b32 s42, s42, 3")
        e("    s_add_u32 s42, s42, 2                ; region")
        e("    s_lshl_b32 s42, s42, 24")
        e("    s_and_b32 s43, s2, 3")
        e("    s_lshr_b32 s22, s2, 7")
        e("    s_lshl_b32 s22, s22, 2")
        e("    s_add_u32 s43, s43, s22")
        e("    s_lshl_b32 s43, s43, 21")
        e("    s_add_u32 s42, s42, s43")
        e("    s_lshr_b32 s43, s2, 2")
        e("    s_and_b32 s43, s43, 1")
        e("    s_lshr_b32 s22, s2, 5")
        e("    s_and_b32 s22, s22, 2")
        e("    s_add_u32 s43, s43, s22")
        e("    s_lshl_b32 s43, s43, 17              ; *128 KiB")
        e("    s_add_u32 s42, s42, s43")
        e("    s_add_u32 s20, s20, s42")
        e("    s_addc_u32 s21, s21, 0")
        e("    s_load_dword s22, s[20:21], 4096")
        e("    s_waitcnt lgkmcnt(0)")
        offs = [0, 8192, 24576+256, 16384+256, 32768+512, 40960+512]
        for i, of in enumerate(offs):
            e("    s_memtime s[24:25]")
            e("    s_waitcnt lgkmcnt(0)")
            e(f"    s_load_dword s22, s[20:21], {of}")
            e("    s_waitcnt lgkmcnt(0)")
            e("    s_memtime s[26:27]")
            e("    s_waitcnt lgkmcnt(0)")
            e(f"    s_sub_u32 s{ST+16+i}, s26, s24")
        stamp(1)
        if probe == 2:
            L = ST + 16
            e("    s_mov_b32 s42, 0")
            for (bi, ai) in ((1, 0), (2, 3), (5, 4)):
                e(f"    s_cmp_gt_u32 s{L+bi}, s{L+ai}")
                e("    s_cselect_b32 s43, 1, -1")
                e("    s_add_i32 s42, s42, s43")
            e("    s_lshr_b32 s43, s2, 2")
            e("    s_xor_b32 s43, s43, s2")
            e("    s_bitcmp1_b32 s43, 0")
            e("    s_cselect_b32 s43, -1, 1")
            e("    s_mul_i32 s42, s42, s43")
            e("    s_mov_b32 s20, s12")
            e("    s_mov_b32 s21, s13")
            e("    s_mov_b32 s22, 256")
            e("    s_mov_b32 s23, 0x00020000")
            e("    s_lshr_b32 s43, s2, 3")
            e("    s_and_b32 s43, s43, 7")
            e("    s_lshl_b32 s43, s43, 2")
            e("    v_mov_b32 v28, s42")
            e("    v_mov_b32 v29, s43")
            e("    s_mov_b64 exec, 1")
            e("    buffer_atomic_add v28, v29, s[20:23], 0 offen")
            e("    s_mov_b64 exec, -1")
            e("    s_waitcnt vmcnt(0)")
        e("L_noprobe:")
    e(f"    s_load_dword s28, s[14:15], {EPOCH}")
    e("    s_mov_b32 s22, %d" % XBYTES)
    e("    s_mov_b32 s23, 0x00020000")
    e("    s_mov_b32 s26, %d" % WS_BYTES)
    e("    s_mov_b32 s27, 0x00020000")
    e("    s_mov_b32 s34, 4608")
    e("    s_mov_b32 s35, 0x00020000")
    e("    s_mov_b32 s38, 4608")
    e("    s_mov_b32 s39, 0x00020000")
    e("    s_mov_b32 s31, %d" % spin)
    e("    s_mov_b32 s20, s10")
    e("    s_mov_b32 s21, s11")
    e("    s_mov_b32 s24, s14")
    e("    s_mov_b32 s25, s15")
    e("    s_mov_b32 s32, s6")
    e("    s_mov_b32 s33, s7")
    e("    s_mov_b32 s36, s8")
    e("    s_mov_b32 s37, s9")
    e("    s_mul_i32 s42, s41, 1536")
    e("    s_mul_i32 s43, s40, 6")
    e("    s_add_u32 s42, s42, s43")
    e("    v_mul_u32_u24 v1, 24, v2")
    e("    v_add_u32 v1, s42, v1")
    e("    s_lshl_b32 s42, s3, 10")
    e(f"    s_add_u32 s42, s42, {L_WU}")
    e("    s_mov_b32 m0, s42")
    e("    v_lshlrev_b32 v27, 4, v0")
    e("    buffer_load_ushort v24, v1, s[32:35], 0 offen")
    e("    buffer_load_ushort v25, v1, s[32:35], 0 offen offset:2")
    e("    buffer_load_ushort v26, v1, s[32:35], 0 offen offset:4")
    e("    buffer_load_dwordx4 v27, s[36:39], 0 offen lds")
    NW = 4
    e("    s_mul_i32 s42, s40, 1536")
    e("    s_lshl_b32 s43, s41, 9")
    e("    s_add_u32 s42, s42, s43")
    e("    v_lshlrev_b32 v6, 5, v4")
    e("    v_lshl_add_u32 v6, v3, 3, v6")
    e("    v_add_u32 v6, s42, v6")
    e("    s_lshl_b32 s43, s41, 7")
    e("    v_lshlrev_b32 v7, 3, v4")
    e("    v_add_u32 v7, s43, v7")
    e("    v_subrev_u32 v1, 192, v7")
    e("    v_min_u32 v7, v7, v1")
    e("    v_lshlrev_b32 v7, 2, v7")
    e("    v_and_b32 v1, 1, v3")
    e("    v_lshrrev_b32 v31, 1, v3")
    e("    v_lshl_add_u32 v31, v1, 1, v31")
    e("    v_lshlrev_b32 v31, 2, v31")
    e("    s_lshl_b32 s42, s41, 6")
    e("    s_lshl_b32 s43, s40, 4")
    e("    s_add_u32 s42, s42, s43")
    e("    v_add_u32 v4, s42, v31")
    e("    s_lshl_b32 s42, s41, 8")
    e("    v_lshlrev_b32 v3, 2, v2")
    e("    v_add_u32 v3, s42, v3")
    for j in range(C):
        last = min(j + lvm - 1, C - 1)
        younger = (last - j) + (NW if j < lvm else 0)
        e(f"    s_waitcnt vmcnt({younger})")
        if j + lvm < C:
            load(NX + j + lvm)
            if j + lvm == C - 1 and not probe:
                stamp(1)
        acc(NX + j)
        if j == lvm:
            for r in (24, 25, 26):
                e(f"    v_lshlrev_b32 v{r}, 16, v{r}")
            e("    s_waitcnt lgkmcnt(0)")
            e("    s_add_u32 s28, s28, 1                ; epoch + 1")
            e("    s_xor_b32 s29, s28, 0x%08x           ; tag key" % MAGIC)
    stamp(2)
    e("    s_nop 1")
    for i in range(4):
        e(f"    v_permlane32_swap_b32 v{8+i}, v{12+i}")
    for i in range(4):
        e(f"    v_add_f32 v{8+i}, v{8+i}, v{12+i}")
    e("    s_nop 0")
    e("    v_permlane16_swap_b32 v8, v10")
    e("    v_permlane16_swap_b32 v9, v11")
    e("    v_add_f32 v8, v8, v10")
    e("    v_add_f32 v9, v9, v11")
    e(f"    ds_write_b64 v6, v[8:9] offset:{L_M}")
    e("    s_waitcnt lgkmcnt(0)")
    e("    s_barrier")
    stamp(3)
    for k in range(4):
        e(f"    ds_read2st64_b32 v[{16+2*k}:{17+2*k}], v3 offset0:{6*k} offset1:{6*k+3}")
    e("    s_waitcnt lgkmcnt(2)")
    e("    v_pk_add_f32 v[16:17], v[16:17], v[18:19]")
    e("    s_waitcnt lgkmcnt(0)")
    e("    v_pk_add_f32 v[20:21], v[20:21], v[22:23]")
    e("    v_pk_add_f32 v[16:17], v[16:17], v[20:21]")
    e("    v_add_f32 v16, v16, v17")
    e("    v_mul_f32 v10, v16, v26")
    e("    v_mul_f32 v11, v16, v26")
    e("    v_mul_f32 v8, v16, v24")
    e("    v_mul_f32 v9, v16, v25")
    e("    v_permlane32_swap_b32 v10, v11")
    e("    s_nop 0")
    e("    v_permlane32_swap_b32 v8, v9")
    e("    v_add_f32 v10, v10, v11              ; [c | c]")
    e("    v_add_f32 v8, v8, v9                 ; [a | b]")
    e("    s_nop 1")
    e("    v_permlane16_swap_b32 v8, v10")
    e("    v_add_f32 v8, v8, v10                ; rows: a, c, b, c")
    e("    s_nop 1")
    e("    v_add_f32_dpp v9, v8, v8 row_shr:1 row_mask:0xf bank_mask:0xf bound_ctrl:0")
    e("    v_add_f32_dpp v9, v8, v9 row_shr:2 row_mask:0xf bank_mask:0xf bound_ctrl:0")
    e("    v_add_f32_dpp v9, v8, v9 row_shr:3 row_mask:0xf bank_mask:0xf bound_ctrl:0")
    e("    s_nop 1")
    e("    v_add_f32_dpp v9, v9, v9 row_shr:4 row_mask:0xf bank_mask:0xf bound_ctrl:0")
    e("    s_nop 1")
    e("    v_add_f32_dpp v9, v9, v9 row_shr:8 row_mask:0xf bank_mask:0xf bound_ctrl:0")
    e("    s_mov_b32 exec_lo, 0x80008000")
    e("    s_mov_b32 exec_hi, 0x00008000")
    e(f"    ds_write_b32 v4, v9 offset:{L_HP}")
    e("    s_mov_b64 exec, -1")
    e("    v_lshlrev_b32 v1, 4, v2              ; lane*16")
    e("    s_lshl_b32 s42, s2, 6")
    e("    s_cmp_lg_u32 s3, 4")
    e("    s_waitcnt lgkmcnt(0)")
    e("    s_barrier")
    e("    s_cbranch_scc1 L_notpub")
    e("    s_mov_b64 exec, 15")
    e(f"    ds_read_b128 v[8:11], v1 offset:{L_HP}")
    e(f"    ds_read_b128 v[12:15], v1 offset:{L_HP+64}")
    e(f"    ds_read_b128 v[16:19], v1 offset:{L_HP+128}")
    e("    s_waitcnt lgkmcnt(1)")
    e("    v_pk_add_f32 v[8:9], v[8:9], v[12:13]")
    e("    v_add_f32 v10, v10, v14")
    e("    s_waitcnt lgkmcnt(0)")
    e("    v_pk_add_f32 v[8:9], v[8:9], v[16:17]")
    e("    v_add_f32 v10, v10, v18")
    e("    v_bitop3_b32 v11, v8, v9, s29 bitop3:0x96")
    e("    v_xor_b32 v11, v11, v10")
    e(f"    buffer_store_dwordx4 v[8:11], v1, s[24:27], s42 offen {pubf}")
    e("    s_mov_b64 exec, -1")
    if diag:
        stamp(7)
        e("    s_waitcnt vmcnt(0)")
        stamp(8)
    e("    s_branch L_b3")
    e("L_notpub:")
    e("    s_cmp_lt_u32 s3, 4")
    e("    s_cbranch_scc1 L_poll_start")
    e("    s_cmp_gt_u32 s3, 7")
    e("    s_cbranch_scc1 L_b3")
    e("    v_subrev_u32 v1, 320, v0")
    e("    v_lshlrev_b32 v21, 2, v1")
    e("    v_lshlrev_b32 v1, 1, v1")
    for r in range(12):
        e(f"    ds_read_u16 v{8+r}, v1 offset:{L_WU+384*r}")
    e("    v_and_b32 v20, 15, v2")
    e("    v_lshlrev_b32 v20, 2, v20")
    e(f"    v_add_u32 v20, {L_P}, v20")
    e("    s_waitcnt lgkmcnt(0)")
    for r in range(12):
        e(f"    v_lshlrev_b32 v{8+r}, 16, v{8+r}")
    e("    s_barrier")
    stamp(4)
    e("    ds_read2_b32 v[22:23], v20 offset0:0 offset1:16")
    e("    ds_read2_b32 v[24:25], v20 offset0:32 offset1:48")
    e("    s_waitcnt lgkmcnt(0)")
    e("    v_pk_add_f32 v[22:23], v[22:23], v[24:25]")
    e("    v_add_f32 v22, v22, v23")
    e("    v_mul_f32 v22, 0x36800000, v22       ; * 2^-18")
    e("    v_cvt_pk_bf16_f32 v22, v22, v22")
    e("    v_lshlrev_b32 v22, 16, v22")
    e("    v_mul_f32 v23, 0xbfb8aa3b, v22       ; -log2e * x")
    e("    v_exp_f32 v23, v23")
    e("    s_nop 0")
    e("    v_add_f32 v23, 1.0, v23")
    e("    v_rcp_f32 v23, v23")
    e("    s_nop 0")
    e("    v_mul_f32 v22, v22, v23")
    e("    v_cvt_pk_bf16_f32 v22, v22, v22")
    e("    v_lshlrev_b32 v22, 16, v22")
    e("    s_nop 1")
    for r in range(12):
        a = 23 + (r % 3)
        op = "v_mul_f32_dpp" if r < 3 else "v_fmac_f32_dpp"
        e(f"    {op} v{a}, v22, v{8+r} row_newbcast:{r} row_mask:0xf bank_mask:0xf")
    e("    v_add_f32 v23, v23, v24")
    e("    v_add_f32 v23, v23, v25")
    e("    v_cvt_pk_bf16_f32 v23, v23, v23")
    e("    v_lshlrev_b32 v23, 16, v23")
    e("    v_mul_f32 v23, 0xbfb8aa3b, v23")
    e("    v_exp_f32 v23, v23")
    e("    s_nop 0")
    e("    v_add_f32 v23, 1.0, v23")
    e("    v_rcp_f32 v23, v23")
    e("    s_nop 0")
    e("    v_cvt_pk_bf16_f32 v23, v23, v23")
    e("    v_lshlrev_b32 v23, 16, v23")
    e(f"    ds_write_b32 v21, v23 offset:{L_G}")
    e("    s_waitcnt lgkmcnt(0)")
    e("    s_branch L_b4")

    e("L_poll_start:")
    e("    s_lshl_b32 s42, s3, 12")
    e("    v_and_b32 v27, 3, v2")
    e("    v_mul_u32_u24 v27, 12, v27")
    e("    s_lshl_b32 s43, s3, 6")
    e("    v_add3_u32 v31, v31, v27, s43")
    regs = (8, 12, 16, 20)
    if masked:
        for k in range(4):
            e(f"    s_mov_b64 s[{4+2*k}:{5+2*k}], -1")
    e("L_poll:")
    if masked:
        for k in range(4):
            e(f"    s_mov_b64 exec, s[{4+2*k}:{5+2*k}]")
            e(f"    s_cbranch_execz L_skip{k}")
            e(f"    buffer_load_dwordx4 v[{regs[k]}:{regs[k]+3}], v1, s[24:27], s42 offen offset:{1024*k} {pollf}")
            e(f"L_skip{k}:")
        e("    s_mov_b64 exec, -1")
        e("    s_waitcnt vmcnt(0)")
        for k in range(4):
            r = regs[k]
            e(f"    v_bitop3_b32 v{27+k}, v{r}, v{r+1}, s29 bitop3:0x96")
        for k in range(4):
            r = regs[k]
            e(f"    v_bitop3_b32 v{27+k}, v{27+k}, v{r+2}, v{r+3} bitop3:0x96")
        for k in range(4):
            e(f"    v_cmp_ne_u32 s[{4+2*k}:{5+2*k}], 0, v{27+k}")
        e("    s_or_b64 s[12:13], s[4:5], s[6:7]")
        e("    s_or_b64 vcc, s[8:9], s[10:11]")
        e("    s_or_b64 s[12:13], s[12:13], vcc")
        e("    s_cbranch_scc0 L_poll_ok")
    else:
        for k in range(4):
            e(f"    buffer_load_dwordx4 v[{regs[k]}:{regs[k]+3}], v1, s[24:27], s42 offen offset:{1024*k} {pollf}")
        for k in range(4):
            r = regs[k]
            e(f"    s_waitcnt vmcnt({3-k})")
            e(f"    v_bitop3_b32 v{27+k}, v{r}, v{r+1}, s29 bitop3:0x96")
            e(f"    v_bitop3_b32 v{27+k}, v{27+k}, v{r+2}, v{r+3} bitop3:0x96")
        e("    v_or3_b32 v27, v27, v28, v29")
        e("    v_or_b32 v27, v27, v30")
        e("    v_cmp_ne_u32 vcc, 0, v27")
        e("    s_cbranch_vccz L_poll_ok")
    e("    s_sub_u32 s31, s31, 1")
    e("    s_cbranch_scc1 L_poll_ok")
    if sleep:
        e(f"    s_sleep {sleep}")
    e("    s_branch L_poll")
    e("L_poll_ok:")
    stamp(7)
    e("    v_add_f32 v10, v10, v14")
    e("    v_add_f32 v18, v18, v22")
    e("    v_pk_add_f32 v[8:9], v[8:9], v[12:13]")
    e("    v_pk_add_f32 v[16:17], v[16:17], v[20:21]")
    e("    v_add_f32 v11, v10, v18")
    e("    v_add_f32 v10, v10, v18")
    e("    v_pk_add_f32 v[8:9], v[8:9], v[16:17]")
    e("    s_nop 0")
    e("    v_permlane32_swap_b32 v10, v11")
    e("    v_permlane32_swap_b32 v8, v9")
    e("    v_add_f32 v10, v10, v11              ; [c | c]")
    e("    v_add_f32 v8, v8, v9                 ; [a | b]")
    e("    s_nop 1")
    e("    v_permlane16_swap_b32 v8, v10")
    e("    v_add_f32 v8, v8, v10                ; rows: a, c, b, c")
    e("    s_nop 1")
    e("    v_add_f32_dpp v8, v8, v8 row_shr:4 row_mask:0xf bank_mask:0xf bound_ctrl:0")
    e("    s_nop 1")
    e("    v_add_f32_dpp v8, v8, v8 row_shr:8 row_mask:0xf bank_mask:0xf bound_ctrl:0")
    e("    s_mov_b32 exec_lo, 0xf000f000")
    e("    s_mov_b32 exec_hi, 0x0000f000")
    e(f"    ds_write_b32 v31, v8 offset:{L_P}")
    e("    s_mov_b64 exec, -1")
    e("    s_waitcnt lgkmcnt(0)")
    e("L_b3:")
    e("    s_barrier")
    stamp(4)
    e("L_b4:")
    e("    s_barrier")
    e(f"    ds_read_b128 v[8:11], v7 offset:{L_G}")
    e(f"    ds_read_b128 v[12:15], v7 offset:{L_G+16}")

    cnt = [0]

    def scale_store(slot, first=False):
        t = 16 + 8 * (cnt[0] & 1)
        cnt[0] += 1
        for i in range(4):
            d = dreg(slot) + i
            e(f"    v_lshlrev_b32 v{t+2*i}, 16, v{d}")
            e(f"    v_and_b32 v{t+1+2*i}, s30, v{d}")
        if first:
            e("    s_waitcnt lgkmcnt(0)")
            stamp(5)
        for i in range(4):
            e(f"    v_pk_mul_f32 v[{t+2*i}:{t+1+2*i}], v[{t+2*i}:{t+1+2*i}], v[{8+2*i}:{9+2*i}]")
        for i in range(4):
            d = dreg(slot) + i
            e(f"    v_cvt_pk_bf16_f32 v{d}, v{t+2*i}, v{t+1+2*i}")
        d = dreg(slot)
        e(f"    buffer_store_dwordx4 v[{d}:{d+3}], v5, s[20:23], s{SO+slot} offen{stf}")

    for j in range(C):
        scale_store(NX + j, first=(j == 0))
        if svm >= 0 and j >= svm:
            e(f"    s_waitcnt vmcnt({svm})")
        if sbar and (j + 1) % sbar == 0 and j != C - 1:
            e("    s_barrier")
    if NX:
        e("    s_bitcmp1_b32 s2, 0")
        e(f"    s_cbranch_scc{1-par} L_stdone")
        for s in range(NX):
            if sbar and s % sbar == 0:
                e("    s_barrier")
            scale_store(s)
            if svm >= 0:
                e(f"    s_waitcnt vmcnt({svm})")
        e("L_stdone:")
    e("    s_cmp_lg_u32 s2, 1")
    e("    s_cbranch_scc1 L_noep")
    e("    s_cmp_lg_u32 s3, 11")
    e("    s_cbranch_scc1 L_noep")
    e(f"    v_mov_b32 v1, {EPOCH}")
    e("    v_mov_b32 v3, s28")
    e("    s_mov_b64 exec, 1")
    e("    buffer_store_dword v3, v1, s[24:27], 0 offen sc1")
    e("    s_mov_b64 exec, -1")
    e("L_noep:")
    if diag:
        e("    s_waitcnt vmcnt(0)")
        stamp(6)
        e(f"    s_getreg_b32 s{ST+22}, hwreg(HW_REG_XCC_ID)")
        e(f"    s_mov_b32 s{ST+23}, s31")
        e("    s_waitcnt lgkmcnt(0)")
        e("    s_mul_i32 s42, s2, 12")
        e("    s_add_u32 s42, s42, s3")
        e("    s_lshl_b32 s42, s42, 7")
        e(f"    s_add_u32 s42, s42, {DIAG}")
        e("    v_mov_b32 v1, s42")
        e("    s_mov_b64 exec, 1")
        for k in range(6):
            for i in range(4):
                e(f"    v_mov_b32 v{16+i}, s{ST+4*k+i}")
            e(f"    buffer_store_dwordx4 v[16:19], v1, s[24:27], 0 offen offset:{16*k}")
            e("    s_nop 2")
    e("L_exit:")
    e("    s_endpgm")
    e('.section .rodata,"a"')
    e(".p2align 6")
    e(f".amdhsa_kernel {NAME}")
    e("  .amdhsa_next_free_vgpr 168")
    e("  .amdhsa_next_free_sgpr 102")
    e("  .amdhsa_accum_offset 168")
    e("  .amdhsa_group_segment_fixed_size 0")
    e("  .amdhsa_kernarg_size 48")
    e("  .amdhsa_user_sgpr_count 2")
    e("  .amdhsa_user_sgpr_kernarg_segment_ptr 1")
    e("  .amdhsa_system_sgpr_workgroup_id_x 1")
    e("  .amdhsa_float_denorm_mode_32 3")
    e(".end_amdhsa_kernel")
    return "\n".join(o) + "\n"


if __name__ == "__main__":
    ap = argparse.ArgumentParser()
    ap.add_argument("-o", default="-")
    ap.add_argument("--ld", default="nt")
    ap.add_argument("--st", default="sc0 sc1")
    ap.add_argument("--diag", action="store_true")
    for name, dv in (("sleep", 0), ("sbar", 2), ("lvm", 4), ("flex", 2), ("swz", 1), ("par", 0), ("masked", 1), ("svm", -1), ("probe", 0)):
        ap.add_argument("--" + name, type=int, default=dv)
    ap.add_argument("--pubf", default="sc1")
    ap.add_argument("--pollf", default="sc1")
    a = ap.parse_args()
    kw = vars(a).copy()
    out = kw.pop("o")
    s = gen(**kw)
    if out == "-":
        sys.stdout.write(s)
    else:
        open(out, "w").write(s)
```

```python
import sys, argparse

HEADER = """; Kernarg layout for this problem (48 bytes, ptrs only, base s[0:1]):
"""

NAME = "standalone__channel_attn_se__vision_kernel"
XBYTES = 100663296
MAGIC = 0x5BD1E995
MAGIC2 = 0x2C1B3C6D

L_M = 0
L_HP = 6144
L_P = 6400
L_G = 6656
L_DEC = 7424
L_WU = 8192
LDS = 20480
VOTE = 32768
EPOCH = 65536
DIAG = 1 << 20
WS_BYTES = 2 << 20
SB = 49152
WIN = 128 * SB


def gen(ld="nt", st="sc0 sc1", diag=False, sleep=0, spin=400000, pubf="sc1", pollf="sc1", sbar=2,
        lvm=3, ns=8, pre=9, pairs=2, thr=14, numa=1, dbgout=0, evw=-1):
    o = []
    e = o.append
    ldf = (" " + ld) if ld else ""
    stf = (" " + st) if st else ""
    D0 = 40
    SO = 44
    ST = 90
    na = 16 - ns
    adaptive = []
    for i in range(na):
        adaptive.append((15 - i // 2) if i % 2 == 0 else (9 - i // 2))
    adaptive = adaptive[::-1]
    static = [pp for pp in range(16) if pp not in adaptive]
    lorder = static + adaptive
    sorder = []
    si, ai = 0, 0
    for k in range(16):
        if ai < na and (ai + 1) * 16 <= (k + 1) * na + (16 - na) // 2 * 0 + 0 or si >= len(static):
            sorder.append(adaptive[ai]); ai += 1
        else:
            sorder.append(static[si]); si += 1
    assert sorted(sorder) == list(range(16))
    region = lambda pp: 0 if pp < 10 else 1
    A0 = 2 * ns
    G = A0 - lvm - 1
    e(HEADER.rstrip())
    e(f"; @launch grid=(256,1,1) block=(768,1,1) lds={LDS}")
    e('.amdgcn_target "amdgcn-amd-amdhsa--gfx950"')
    e(".text")
    e(f".globl {NAME}")
    e(".p2align 8")
    e(f".type {NAME},@function")
    e(f"{NAME}:")
    smap = {0: 0, 1: 1, 3: 2, 5: 3, 6: 4, 7: 5}

    def stamp(i):
        if diag and i in smap:
            k = smap[i]
            e(f"    s_memrealtime s[{ST+2*k}:{ST+1+2*k}]")

    def dreg(slot):
        return D0 + 4 * slot

    def load(slot):
        d = dreg(slot)
        e(f"    buffer_load_dwordx4 v[{d}:{d+3}], v5, s[16:19], s{SO+slot} offen{ldf}")

    def acc(slot):
        for i in range(4):
            d = dreg(slot) + i
            if slot == 0:
                e(f"    v_lshlrev_b32 v{8+2*i}, 16, v{d}")
                e(f"    v_and_b32 v{9+2*i}, s30, v{d}")
            else:
                e(f"    v_lshlrev_b32 v{16+2*i}, 16, v{d}")
                e(f"    v_and_b32 v{17+2*i}, s30, v{d}")
        if slot:
            for i in range(4):
                e(f"    v_pk_add_f32 v[{8+2*i}:{9+2*i}], v[{8+2*i}:{9+2*i}], v[{16+2*i}:{17+2*i}]")

    e("    s_cmp_ge_u32 s2, 256")
    e("    s_cbranch_scc1 L_exit")
    e("    s_load_dwordx4 s[4:7], s[0:1], 0")
    e("    s_load_dwordx4 s[8:11], s[0:1], 16")
    e("    s_load_dwordx4 s[12:15], s[0:1], 32")
    if diag:
        for i in range(6):
            e(f"    s_mov_b64 s[{ST+2*i}:{ST+1+2*i}], 0")
    stamp(0)
    e("    v_lshrrev_b32 v1, 6, v0")
    e("    v_and_b32 v2, 63, v0                 ; lane")
    e("    v_readfirstlane_b32 s3, v1")
    e("    v_lshrrev_b32 v3, 4, v2              ; q (row)")
    e("    v_and_b32 v4, 15, v2                 ; n")
    e("    s_mul_i32 s40, s3, 11")
    e("    s_lshr_b32 s40, s40, 5")
    e("    s_mul_i32 s41, s40, 3")
    e("    s_sub_u32 s41, s3, s41               ; seg = wave%3")
    e("    s_lshl_b32 s43, s41, 8")
    e("    v_mul_u32_u24 v5, 768, v3")
    e("    v_lshl_add_u32 v5, v4, 4, v5")
    e("    v_add_u32 v5, s43, v5                ; v5 = q*768 + seg*256 + n*16")
    e("    s_mov_b32 s18, %d" % XBYTES)
    e("    s_mov_b32 s19, 0x00020000")
    e("    s_mov_b32 s30, 0xffff0000")
    e("    s_lshr_b32 s42, s2, 3")
    e("    s_lshl_b32 s42, s42, 2")
    e("    s_and_b32 s43, s2, 3")
    e("    s_add_u32 s42, s42, s43")
    e(f"    s_mul_i32 s76, s42, {SB}")
    e("    s_lshl_b32 s43, s40, 2")
    e("    s_lshr_b32 s78, 0x5210, s43")
    e("    s_and_b32 s78, s78, 15")
    e("    s_lshr_b32 s79, 0xcb76, s43")
    e("    s_and_b32 s79, s79, 15")
    e("    s_mul_i32 s78, s78, 3072")
    e("    s_mul_i32 s79, s79, 3072")
    e("    s_sub_u32 s80, 46080, s78")
    e("    s_sub_u32 s81, 46080, s79")
    for r in (78, 79, 80, 81):
        e(f"    s_add_u32 s{r}, s{r}, s76")
    e("    s_add_u32 s77, s76, 24576")
    e("    s_lshr_b32 s77, s77, 19")
    e("    s_xor_b32 s77, s77, s2")
    e("    s_lshr_b32 s42, s2, 1")
    e("    s_xor_b32 s42, s42, s77")
    e("    s_bitcmp1_b32 s42, 2")
    e("    s_cselect_b32 s82, s80, s78          ; E0")
    e("    s_cselect_b32 s83, s81, s79          ; E1")
    e("    s_cselect_b32 s84, s78, s80          ; O0")
    e("    s_cselect_b32 s85, s79, s81          ; O1")
    seen = [0, 0]
    for k, pp in enumerate(lorder):
        u = seen[region(pp)] & 1
        seen[region(pp)] += 1
        b = 84 if ((pp ^ u) & 1) else 82
        e(f"    s_add_u32 s{SO+2*k}, s{b}, {pp*WIN}")
        e(f"    s_add_u32 s{SO+2*k+1}, s{b+1}, {pp*WIN}")
    e("    s_and_b32 s86, s2, 1")
    e("    s_add_u32 s86, s86, 1")
    e("    s_cmp_eq_u32 s3, 0")
    e("    s_cselect_b32 s86, s86, 0")
    e("    s_waitcnt lgkmcnt(0)")
    e("    s_mov_b32 s16, s4")
    e("    s_mov_b32 s17, s5")
    for s in range(lvm):
        load(s)
    e(f"    s_load_dword s28, s[14:15], {EPOCH}")
    e("    s_mov_b32 s24, s14")
    e("    s_mov_b32 s25, s15")
    e("    s_mov_b32 s26, %d" % WS_BYTES)
    e("    s_mov_b32 s27, 0x00020000")
    if numa:
        e("    s_cmp_lg_u32 s86, 1")
        e("    s_cbranch_scc1 L_noprobe")
        e("    s_bfe_u32 s42, s2, 0x10001           ; r = bit1")
        e("    s_add_u32 s42, s42, 1")
        e(f"    s_mul_i32 s42, s42, {40<<20}")
        e("    s_bfe_u32 s43, s2, 0x30003           ; i & 7")
        e("    s_lshl_b32 s43, s43, 21")
        e("    s_add_u32 s42, s42, s43")
        e("    s_lshr_b32 s43, s2, 6")
        e("    s_lshl_b32 s43, s43, 18")
        e("    s_add_u32 s42, s42, s43")
        e("    s_bfe_u32 s43, s2, 0x10002           ; L")
        e("    s_lshl_b32 s43, s43, 17")
        e("    s_add_u32 s42, s42, s43")
        e("    s_add_u32 s20, s10, s42")
        e("    s_addc_u32 s21, s11, 0")
        e("    s_load_dword s22, s[20:21], 4096")
        for s in range(lvm, pre):
            load(s)
        e("    s_waitcnt lgkmcnt(0)")
        offs = [0, 8192, 24576 + 256, 16384 + 256, 32768 + 512, 40960 + 512][:2 * pairs]
        e("    s_memtime s[32:33]")
        e("    s_waitcnt lgkmcnt(0)")
        for i, of in enumerate(offs):
            a, b = (32, 34) if i % 2 == 0 else (34, 32)
            e(f"    s_load_dword s22, s[20:21], {of}")
            e("    s_waitcnt lgkmcnt(0)")
            e(f"    s_memtime s[{b}:{b+1}]")
            e("    s_waitcnt lgkmcnt(0)")
            e(f"    s_sub_u32 s{36+(i&1)}, s{b}, s{a}")
            if i % 2 == 1:
                if (i // 2) % 2 == 0:
                    e("    s_cmp_gt_u32 s37, s36")
                else:
                    e("    s_cmp_gt_u32 s36, s37")
                if i == 1:
                    e("    s_cselect_b32 s38, 1, -1")
                else:
                    e("    s_cselect_b32 s39, 1, -1")
                    e("    s_add_i32 s38, s38, s39")
        e("    s_lshr_b32 s42, s2, 1")
        e("    s_xor_b32 s42, s42, s2")
        e("    s_sub_i32 s39, 0, s38")
        e("    s_bitcmp1_b32 s42, 2")
        e("    s_cselect_b32 s38, s39, s38")
        e("    s_add_u32 s39, s28, 1")
        e("    s_xor_b32 s39, s39, 0x%08x" % MAGIC2)
        e("    s_xor_b32 s39, s39, s38")
        e("    s_bfe_u32 s42, s2, 0x10001")
        e("    s_lshl_b32 s42, s42, 6")
        e("    s_lshr_b32 s43, s2, 2                ; i*2 + L")
        e("    s_add_u32 s42, s42, s43")
        e("    s_lshl_b32 s42, s42, 3")
        e(f"    s_add_u32 s42, s42, {VOTE}")
        e("    v_mov_b32 v32, s38")
        e("    v_mov_b32 v33, s39")
        e("    v_mov_b32 v34, s42")
        e("    s_mov_b64 exec, 1")
        e("    buffer_store_dwordx2 v[32:33], v34, s[24:27], 0 offen sc1")
        e("    s_mov_b64 exec, -1")
        stamp(1)
        e("L_noprobe:")
    e("    s_mov_b32 s20, s10")
    e("    s_mov_b32 s21, s11")
    e("    s_mov_b32 s22, %d" % XBYTES)
    e("    s_mov_b32 s23, 0x00020000")
    e("    s_mov_b32 s32, s6")
    e("    s_mov_b32 s33, s7")
    e("    s_mov_b32 s34, 4608")
    e("    s_mov_b32 s35, 0x00020000")
    e("    s_mov_b32 s36, s8")
    e("    s_mov_b32 s37, s9")
    e("    s_mov_b32 s38, 4608")
    e("    s_mov_b32 s39, 0x00020000")
    e("    s_mov_b32 s31, %d" % spin)
    e("    s_mul_i32 s42, s41, 1536")
    e("    s_mul_i32 s43, s40, 6")
    e("    s_add_u32 s42, s42, s43")
    e("    v_mul_u32_u24 v1, 24, v2")
    e("    v_add_u32 v1, s42, v1")
    e("    s_lshl_b32 s42, s3, 10")
    e(f"    s_add_u32 s42, s42, {L_WU}")
    e("    s_mov_b32 m0, s42")
    e("    v_lshlrev_b32 v27, 4, v0")
    e("    buffer_load_ushort v24, v1, s[32:35], 0 offen")
    e("    buffer_load_ushort v25, v1, s[32:35], 0 offen offset:2")
    e("    buffer_load_ushort v26, v1, s[32:35], 0 offen offset:4")
    e("    buffer_load_dwordx4 v27, s[36:39], 0 offen lds")
    NW = 4
    e("    s_mul_i32 s42, s40, 1536")
    e("    s_lshl_b32 s43, s41, 9")
    e("    s_add_u32 s42, s42, s43")
    e("    v_lshlrev_b32 v6, 5, v4")
    e("    v_lshl_add_u32 v6, v3, 3, v6")
    e("    v_add_u32 v6, s42, v6")
    e("    s_lshl_b32 s43, s41, 7")
    e("    v_lshlrev_b32 v7, 3, v4")
    e("    v_add_u32 v7, s43, v7")
    e("    v_subrev_u32 v1, 192, v7")
    e("    v_min_u32 v7, v7, v1")
    e("    v_lshlrev_b32 v7, 2, v7")
    e("    v_and_b32 v1, 1, v3")
    e("    v_lshrrev_b32 v31, 1, v3")
    e("    v_lshl_add_u32 v31, v1, 1, v31")
    e("    v_lshlrev_b32 v31, 2, v31            ; i(row)*4")
    e("    s_lshl_b32 s42, s41, 6")
    e("    s_lshl_b32 s43, s40, 4")
    e("    s_add_u32 s42, s42, s43")
    e("    v_add_u32 v4, s42, v31")
    e("    s_lshl_b32 s42, s41, 8")
    e("    v_lshlrev_b32 v3, 2, v2")
    e("    v_add_u32 v3, s42, v3")
    e("    v_lshlrev_b32 v1, 4, v2              ; lane*16")
    e(f"    s_mov_b32 s87, {VOTE}")
    for j in range(32):
        last = min(j + lvm - 1, 31)
        younger = (last - j) + (NW if j < lvm else 0)
        e(f"    s_waitcnt vmcnt({younger})")
        if j == lvm:
            e("    s_waitcnt lgkmcnt(0)")
            e("    s_add_u32 s28, s28, 1                ; epoch + 1")
            e("    s_xor_b32 s29, s28, 0x%08x           ; tag key" % MAGIC)
            e("    s_xor_b32 s88, s28, 0x%08x           ; vote key" % MAGIC2)
        if numa and j == A0 - lvm:
            e("    s_bitcmp1_b32 s2, 0")
            e("    s_cbranch_scc0 L_nodec")
            e("    s_cmp_lg_u32 s86, 2")
            e("    s_cbranch_scc1 L_decbar")
            e("L_vchk:")
            e("    v_bitop3_b32 v36, v32, v33, s88 bitop3:0x96")
            e("    v_bitop3_b32 v37, v34, v35, s88 bitop3:0x96")
            e("    v_or_b32 v36, v36, v37")
            e("    v_cmp_ne_u32 vcc, 0, v36")
            e("    s_cbranch_vccz L_vok")
            e("    s_sub_u32 s31, s31, 1")
            e("    s_cbranch_scc1 L_vok")
            e("    buffer_load_dwordx4 v[32:35], v1, s[24:27], s87 offen sc1")
            e("    s_waitcnt vmcnt(0)")
            e("    s_branch L_vchk")
            e("L_vok:")
            e("    v_add_u32 v36, v32, v34")
            for sh in (1, 2, 4, 8):
                e("    s_nop 1")
                e(f"    v_add_u32_dpp v36, v36, v36 row_shr:{sh} row_mask:0xf bank_mask:0xf bound_ctrl:0")
            e("    s_nop 1")
            e("    v_add_u32_dpp v36, v36, v36 row_bcast:15 row_mask:0xa bank_mask:0xf")
            e("    v_lshrrev_b32 v37, 3, v2")
            e("    v_and_b32 v37, 4, v37                ; (lane>=32)*4")
            e("    s_mov_b32 exec_lo, 0x80000000")
            e("    s_mov_b32 exec_hi, 0x80000000")
            e(f"    ds_write_b32 v37, v36 offset:{L_DEC}")
            e("    s_mov_b64 exec, -1")
            e("    s_waitcnt lgkmcnt(0)")
            stamp(1)
            e("L_decbar:")
            e("    s_barrier")
            e("    v_mov_b32 v36, 0")
            e(f"    ds_read_b64 v[36:37], v36 offset:{L_DEC}")
            e("    s_waitcnt lgkmcnt(0)")
            e("    v_readfirstlane_b32 s4, v36")
            e("    v_readfirstlane_b32 s5, v37")
            for r in range(2):
                wins = [(k, pp) for k, pp in enumerate(lorder) if pp in adaptive and region(pp) == r]
                if not wins:
                    continue
                e(f"    s_abs_i32 s42, s{4+r}")
                e(f"    s_cmp_lt_u32 s42, {thr}")
                e(f"    s_cbranch_scc1 L_keep{r}")
                e(f"    s_lshr_b32 s42, s{4+r}, 29")
                e("    s_xor_b32 s42, s42, s77")
                e("    s_bitcmp1_b32 s42, 2")
                e("    s_cselect_b32 s82, s80, s78")
                e("    s_cselect_b32 s83, s81, s79")
                e("    s_cselect_b32 s84, s78, s80")
                e("    s_cselect_b32 s85, s79, s81")
                for k, pp in wins:
                    b = 84 if (pp & 1) else 82
                    e(f"    s_add_u32 s{SO+2*k}, s{b}, {pp*WIN}")
                    e(f"    s_add_u32 s{SO+2*k+1}, s{b+1}, {pp*WIN}")
                e(f"L_keep{r}:")
            if dbgout:
                e("    s_mov_b32 s76, s4")
                e("    s_mov_b32 s89, s5")
            e("L_nodec:")
        if j + lvm < 32:
            k = j + lvm
            if evw >= 0 and j >= lvm and k >= pre:
                e("    s_bitcmp1_b32 s2, 0")
                e(f"    s_cbranch_scc1 L_ev{k}")
                e(f"    s_waitcnt vmcnt({evw})")
                e(f"L_ev{k}:")
            if numa and k < pre:
                e("    s_cmp_eq_u32 s86, 1")
                e(f"    s_cbranch_scc1 L_sk{k}")
                load(k)
                e(f"L_sk{k}:")
            else:
                load(k)
            if numa and k == G:
                e("    s_cmp_lg_u32 s86, 2")
                e("    s_cbranch_scc1 L_nog")
                e("    buffer_load_dwordx4 v[32:35], v1, s[24:27], s87 offen sc1")
                e("L_nog:")
        acc(j)
        if j == 20:
            for r in (24, 25, 26):
                e(f"    v_lshlrev_b32 v{r}, 16, v{r}")
    e("    s_nop 1")
    for i in range(4):
        e(f"    v_permlane32_swap_b32 v{8+i}, v{12+i}")
    for i in range(4):
        e(f"    v_add_f32 v{8+i}, v{8+i}, v{12+i}")
    e("    s_nop 0")
    e("    v_permlane16_swap_b32 v8, v10")
    e("    v_permlane16_swap_b32 v9, v11")
    e("    v_add_f32 v8, v8, v10")
    e("    v_add_f32 v9, v9, v11")
    e(f"    ds_write_b64 v6, v[8:9] offset:{L_M}")
    e("    s_waitcnt lgkmcnt(0)")
    e("    s_barrier")
    stamp(3)
    for k in range(4):
        e(f"    ds_read2st64_b32 v[{16+2*k}:{17+2*k}], v3 offset0:{6*k} offset1:{6*k+3}")
    e("    s_waitcnt lgkmcnt(2)" if not diag else "    s_waitcnt lgkmcnt(0)")
    e("    v_pk_add_f32 v[16:17], v[16:17], v[18:19]")
    e("    s_waitcnt lgkmcnt(0)")
    e("    v_pk_add_f32 v[20:21], v[20:21], v[22:23]")
    e("    v_pk_add_f32 v[16:17], v[16:17], v[20:21]")
    e("    v_add_f32 v16, v16, v17")
    e("    v_mul_f32 v10, v16, v26")
    e("    v_mul_f32 v11, v16, v26")
    e("    v_mul_f32 v8, v16, v24")
    e("    v_mul_f32 v9, v16, v25")
    e("    v_permlane32_swap_b32 v10, v11")
    e("    s_nop 0")
    e("    v_permlane32_swap_b32 v8, v9")
    e("    v_add_f32 v10, v10, v11              ; [c | c]")
    e("    v_add_f32 v8, v8, v9                 ; [a | b]")
    e("    s_nop 1")
    e("    v_permlane16_swap_b32 v8, v10")
    e("    v_add_f32 v8, v8, v10                ; rows: a, c, b, c")
    e("    s_nop 1")
    e("    v_add_f32_dpp v9, v8, v8 row_shr:1 row_mask:0xf bank_mask:0xf bound_ctrl:0")
    e("    v_add_f32_dpp v9, v8, v9 row_shr:2 row_mask:0xf bank_mask:0xf bound_ctrl:0")
    e("    v_add_f32_dpp v9, v8, v9 row_shr:3 row_mask:0xf bank_mask:0xf bound_ctrl:0")
    e("    s_nop 1")
    e("    v_add_f32_dpp v9, v9, v9 row_shr:4 row_mask:0xf bank_mask:0xf bound_ctrl:0")
    e("    s_nop 1")
    e("    v_add_f32_dpp v9, v9, v9 row_shr:8 row_mask:0xf bank_mask:0xf bound_ctrl:0")
    e("    s_mov_b32 exec_lo, 0x80008000")
    e("    s_mov_b32 exec_hi, 0x00008000")
    e(f"    ds_write_b32 v4, v9 offset:{L_HP}")
    e("    s_mov_b64 exec, -1")
    e("    s_lshl_b32 s42, s2, 6")
    e("    s_cmp_lg_u32 s3, 4")
    e("    s_waitcnt lgkmcnt(0)")
    e("    s_barrier")
    e("    s_cbranch_scc1 L_notpub")
    e("    s_mov_b64 exec, 15")
    e(f"    ds_read_b128 v[8:11], v1 offset:{L_HP}")
    e(f"    ds_read_b128 v[12:15], v1 offset:{L_HP+64}")
    e(f"    ds_read_b128 v[16:19], v1 offset:{L_HP+128}")
    e("    s_waitcnt lgkmcnt(1)")
    e("    v_pk_add_f32 v[8:9], v[8:9], v[12:13]")
    e("    v_add_f32 v10, v10, v14")
    e("    s_waitcnt lgkmcnt(0)")
    e("    v_pk_add_f32 v[8:9], v[8:9], v[16:17]")
    e("    v_add_f32 v10, v10, v18")
    e("    v_bitop3_b32 v11, v8, v9, s29 bitop3:0x96")
    e("    v_xor_b32 v11, v11, v10")
    e(f"    buffer_store_dwordx4 v[8:11], v1, s[24:27], s42 offen {pubf}")
    e("    s_mov_b64 exec, -1")
    stamp(7)
    e("    s_branch L_b3")
    e("L_notpub:")
    e("    s_cmp_lt_u32 s3, 4")
    e("    s_cbranch_scc1 L_poll_start")
    e("    s_cmp_gt_u32 s3, 7")
    e("    s_cbranch_scc1 L_b3")
    e("    v_subrev_u32 v1, 320, v0")
    e("    v_lshlrev_b32 v21, 2, v1")
    e("    v_lshlrev_b32 v1, 1, v1")
    for r in range(12):
        e(f"    ds_read_u16 v{8+r}, v1 offset:{L_WU+384*r}")
    e("    v_and_b32 v20, 15, v2")
    e("    v_lshlrev_b32 v20, 2, v20")
    e(f"    v_add_u32 v20, {L_P}, v20")
    e("    s_waitcnt lgkmcnt(0)")
    for r in range(12):
        e(f"    v_lshlrev_b32 v{8+r}, 16, v{8+r}")
    e("    s_barrier")
    e("    ds_read2_b32 v[22:23], v20 offset0:0 offset1:16")
    e("    ds_read2_b32 v[24:25], v20 offset0:32 offset1:48")
    e("    s_waitcnt lgkmcnt(0)")
    e("    v_pk_add_f32 v[22:23], v[22:23], v[24:25]")
    e("    v_add_f32 v22, v22, v23")
    e("    v_mul_f32 v22, 0x36800000, v22       ; * 2^-18")
    e("    v_cvt_pk_bf16_f32 v22, v22, v22")
    e("    v_lshlrev_b32 v22, 16, v22")
    e("    v_mul_f32 v23, 0xbfb8aa3b, v22       ; -log2e * x")
    e("    v_exp_f32 v23, v23")
    e("    s_nop 0")
    e("    v_add_f32 v23, 1.0, v23")
    e("    v_rcp_f32 v23, v23")
    e("    s_nop 0")
    e("    v_mul_f32 v22, v22, v23")
    e("    v_cvt_pk_bf16_f32 v22, v22, v22")
    e("    v_lshlrev_b32 v22, 16, v22")
    e("    s_nop 1")
    for r in range(12):
        a = 23 + (r % 3)
        op = "v_mul_f32_dpp" if r < 3 else "v_fmac_f32_dpp"
        e(f"    {op} v{a}, v22, v{8+r} row_newbcast:{r} row_mask:0xf bank_mask:0xf")
    e("    v_add_f32 v23, v23, v24")
    e("    v_add_f32 v23, v23, v25")
    e("    v_cvt_pk_bf16_f32 v23, v23, v23")
    e("    v_lshlrev_b32 v23, 16, v23")
    e("    v_mul_f32 v23, 0xbfb8aa3b, v23")
    e("    v_exp_f32 v23, v23")
    e("    s_nop 0")
    e("    v_add_f32 v23, 1.0, v23")
    e("    v_rcp_f32 v23, v23")
    e("    s_nop 0")
    e("    v_cvt_pk_bf16_f32 v23, v23, v23")
    e("    v_lshlrev_b32 v23, 16, v23")
    e(f"    ds_write_b32 v21, v23 offset:{L_G}")
    e("    s_waitcnt lgkmcnt(0)")
    e("    s_branch L_b4")

    e("L_poll_start:")
    e("    s_lshl_b32 s42, s3, 12")
    e("    v_and_b32 v27, 3, v2")
    e("    v_mul_u32_u24 v27, 12, v27")
    e("    s_lshl_b32 s43, s3, 6")
    e("    v_add3_u32 v31, v31, v27, s43")
    regs = (8, 12, 16, 20)
    for k in range(4):
        e(f"    s_mov_b64 s[{4+2*k}:{5+2*k}], -1")
    e("L_poll:")
    for k in range(4):
        e(f"    s_mov_b64 exec, s[{4+2*k}:{5+2*k}]")
        e(f"    s_cbranch_execz L_skip{k}")
        e(f"    buffer_load_dwordx4 v[{regs[k]}:{regs[k]+3}], v1, s[24:27], s42 offen offset:{1024*k} {pollf}")
        e(f"L_skip{k}:")
    e("    s_mov_b64 exec, -1")
    e("    s_waitcnt vmcnt(0)")
    for k in range(4):
        r = regs[k]
        e(f"    v_bitop3_b32 v{27+k}, v{r}, v{r+1}, s29 bitop3:0x96")
    for k in range(4):
        r = regs[k]
        e(f"    v_bitop3_b32 v{27+k}, v{27+k}, v{r+2}, v{r+3} bitop3:0x96")
    for k in range(4):
        e(f"    v_cmp_ne_u32 s[{4+2*k}:{5+2*k}], 0, v{27+k}")
    e("    s_or_b64 s[82:83], s[4:5], s[6:7]")
    e("    s_or_b64 vcc, s[8:9], s[10:11]")
    e("    s_or_b64 s[82:83], s[82:83], vcc")
    e("    s_cbranch_scc0 L_poll_ok")
    e("    s_sub_u32 s31, s31, 1")
    e("    s_cbranch_scc1 L_poll_ok")
    if sleep:
        e(f"    s_sleep {sleep}")
    e("    s_branch L_poll")
    e("L_poll_ok:")
    stamp(7)
    e("    v_add_f32 v10, v10, v14")
    e("    v_add_f32 v18, v18, v22")
    e("    v_pk_add_f32 v[8:9], v[8:9], v[12:13]")
    e("    v_pk_add_f32 v[16:17], v[16:17], v[20:21]")
    e("    v_add_f32 v11, v10, v18")
    e("    v_add_f32 v10, v10, v18")
    e("    v_pk_add_f32 v[8:9], v[8:9], v[16:17]")
    e("    s_nop 0")
    e("    v_permlane32_swap_b32 v10, v11")
    e("    v_permlane32_swap_b32 v8, v9")
    e("    v_add_f32 v10, v10, v11              ; [c | c]")
    e("    v_add_f32 v8, v8, v9                 ; [a | b]")
    e("    s_nop 1")
    e("    v_permlane16_swap_b32 v8, v10")
    e("    v_add_f32 v8, v8, v10                ; rows: a, c, b, c")
    e("    s_nop 1")
    e("    v_add_f32_dpp v8, v8, v8 row_shr:4 row_mask:0xf bank_mask:0xf bound_ctrl:0")
    e("    s_nop 1")
    e("    v_add_f32_dpp v8, v8, v8 row_shr:8 row_mask:0xf bank_mask:0xf bound_ctrl:0")
    e("    s_mov_b32 exec_lo, 0xf000f000")
    e("    s_mov_b32 exec_hi, 0x0000f000")
    e(f"    ds_write_b32 v31, v8 offset:{L_P}")
    e("    s_mov_b64 exec, -1")
    e("    s_waitcnt lgkmcnt(0)")
    e("L_b3:")
    e("    s_barrier")
    e("L_b4:")
    e("    s_barrier")
    e(f"    ds_read_b128 v[8:11], v7 offset:{L_G}")
    e(f"    ds_read_b128 v[12:15], v7 offset:{L_G+16}")

    cnt = [0]

    def scale_store(slot, first=False):
        t = 16 + 8 * (cnt[0] & 1)
        cnt[0] += 1
        for i in range(4):
            d = dreg(slot) + i
            e(f"    v_lshlrev_b32 v{t+2*i}, 16, v{d}")
            e(f"    v_and_b32 v{t+1+2*i}, s30, v{d}")
        if first:
            e("    s_waitcnt lgkmcnt(0)")
            stamp(5)
        for i in range(4):
            e(f"    v_pk_mul_f32 v[{t+2*i}:{t+1+2*i}], v[{t+2*i}:{t+1+2*i}], v[{8+2*i}:{9+2*i}]")
        for i in range(4):
            d = dreg(slot) + i
            e(f"    v_cvt_pk_bf16_f32 v{d}, v{t+2*i}, v{t+1+2*i}")
        d = dreg(slot)
        e(f"    buffer_store_dwordx4 v[{d}:{d+3}], v5, s[20:23], s{SO+slot} offen{stf}")

    sslots = []
    for pp in sorder:
        k = lorder.index(pp)
        sslots += [2 * k, 2 * k + 1]
    for j in range(32):
        scale_store(sslots[j], first=(j == 0))
        if sbar and (j + 1) % sbar == 0 and j != 31:
            e("    s_barrier")
    e("    s_cmp_lg_u32 s2, 1")
    e("    s_cbranch_scc1 L_noep")
    e("    s_cmp_lg_u32 s3, 11")
    e("    s_cbranch_scc1 L_noep")
    e(f"    v_mov_b32 v1, {EPOCH}")
    e("    v_mov_b32 v3, s28")
    e("    s_mov_b64 exec, 1")
    e("    buffer_store_dword v3, v1, s[24:27], 0 offen sc1")
    if dbgout:
        e("    s_mov_b32 s32, s12")
        e("    s_mov_b32 s33, s13")
        e("    s_mov_b32 s34, 256")
        e("    v_mov_b32 v16, s76")
        e("    v_mov_b32 v17, s89")
        e("    v_mov_b32 v1, 0")
        e("    buffer_store_dwordx2 v[16:17], v1, s[32:35], 0 offen")
    e("    s_mov_b64 exec, -1")
    e("L_noep:")
    if diag:
        e("    s_waitcnt vmcnt(0)")
        stamp(6)
        e("    s_waitcnt lgkmcnt(0)")
        e("    s_mul_i32 s42, s2, 12")
        e("    s_add_u32 s42, s42, s3")
        e("    s_lshl_b32 s42, s42, 7")
        e(f"    s_add_u32 s42, s42, {DIAG}")
        e("    v_mov_b32 v1, s42")
        e("    s_mov_b64 exec, 1")
        inv = {v: k for k, v in smap.items()}
        for k in range(6):
            e(f"    v_mov_b32 v16, s{ST+2*k}")
            e(f"    v_mov_b32 v17, s{ST+2*k+1}")
            e(f"    buffer_store_dwordx2 v[16:17], v1, s[24:27], 0 offen offset:{8*inv[k]}")
            e("    s_nop 2")
        e("    v_mov_b32 v16, 0")
        e("    v_mov_b32 v17, s31")
        e("    buffer_store_dwordx2 v[16:17], v1, s[24:27], 0 offen offset:88")
    e("L_exit:")
    e("    s_endpgm")
    e('.section .rodata,"a"')
    e(".p2align 6")
    e(f".amdhsa_kernel {NAME}")
    e("  .amdhsa_next_free_vgpr 168")
    e("  .amdhsa_next_free_sgpr 102")
    e("  .amdhsa_accum_offset 168")
    e("  .amdhsa_group_segment_fixed_size 0")
    e("  .amdhsa_kernarg_size 48")
    e("  .amdhsa_user_sgpr_count 2")
    e("  .amdhsa_user_sgpr_kernarg_segment_ptr 1")
    e("  .amdhsa_system_sgpr_workgroup_id_x 1")
    e("  .amdhsa_float_denorm_mode_32 3")
    e(".end_amdhsa_kernel")
    sys.stderr.write(f"lorder {lorder} sorder {sorder} A0 {A0} G {G}\n")
    return "\n".join(o) + "\n"


if __name__ == "__main__":
    ap = argparse.ArgumentParser()
    ap.add_argument("-o", default="-")
    ap.add_argument("--ld", default="nt")
    ap.add_argument("--st", default="sc0 sc1")
    ap.add_argument("--diag", action="store_true")
    for name, dv in (("sleep", 0), ("sbar", 2), ("lvm", 3), ("ns", 8), ("pre", 9), ("pairs", 2), ("thr", 14), ("numa", 1), ("dbgout", 0), ("evw", -1)):
        ap.add_argument("--" + name, type=int, default=dv)
    ap.add_argument("--pubf", default="sc1")
    ap.add_argument("--pollf", default="sc1")
    a = ap.parse_args()
    kw = vars(a).copy()
    out = kw.pop("o")
    s = gen(**kw)
    if out == "-":
        sys.stdout.write(s)
    else:
        open(out, "w").write(s)
```

```python
import sys, argparse

HEADER = """; Kernarg layout for this problem (48 bytes, ptrs only, base s[0:1]):
"""

NAME = "standalone__channel_attn_se__vision_kernel"
XBYTES = 100663296
MAGIC = 0x5BD1E995
MAGIC2 = 0x2C1B3C6D

L_M = 0
L_HP = 6144
L_P = 6400
L_G = 6656
L_DEC = 7424
L_WU = 8192
LDS = 20480
VOTE = 32768
EPOCH = 65536
DIAG = 1 << 20
WS_BYTES = 2 << 20
SB = 49152
WIN = 128 * SB


def gen(ld="nt", st="sc0 sc1", diag=False, sleep=0, spin=400000, pubf="sc1", pollf="sc1", sbar=2,
        lvm=3, ns=8, pre=9, pairs=2, thr=14, numa=1, dbgout=0, evw=-1, enc=0):
    o = []
    e = o.append
    ldf = (" " + ld) if ld else ""
    stf = (" " + st) if st else ""
    D0 = 40
    SO = 44
    ST = 90
    na = 16 - ns
    adaptive = []
    for i in range(na):
        adaptive.append((15 - i // 2) if i % 2 == 0 else (9 - i // 2))
    adaptive = adaptive[::-1]
    static = [pp for pp in range(16) if pp not in adaptive]
    lorder = static + adaptive
    sorder = []
    si, ai = 0, 0
    for k in range(16):
        if ai < na and (ai + 1) * 16 <= (k + 1) * na + (16 - na) // 2 * 0 + 0 or si >= len(static):
            sorder.append(adaptive[ai]); ai += 1
        else:
            sorder.append(static[si]); si += 1
    assert sorted(sorder) == list(range(16))
    region = lambda pp: 0 if pp < 10 else 1
    A0 = 2 * ns
    G = A0 - lvm - 1
    e(HEADER.rstrip())
    e(f"; @launch grid=(256,1,1) block=(768,1,1) lds={LDS}")
    e('.amdgcn_target "amdgcn-amd-amdhsa--gfx950"')
    e(".text")
    e(f".globl {NAME}")
    e(".p2align 8")
    e(f".type {NAME},@function")
    e(f"{NAME}:")
    smap = {0: 0, 1: 1, 3: 2, 5: 3, 6: 4, 7: 5}

    def stamp(i):
        if (diag or enc) and i in smap:
            k = smap[i]
            e(f"    s_memrealtime s[{ST+2*k}:{ST+1+2*k}]")

    def dreg(slot):
        return D0 + 4 * slot

    def load(slot):
        d = dreg(slot)
        e(f"    buffer_load_dwordx4 v[{d}:{d+3}], v5, s[16:19], s{SO+slot} offen{ldf}")

    def acc(slot):
        for i in range(4):
            d = dreg(slot) + i
            if slot == 0:
                e(f"    v_lshlrev_b32 v{8+2*i}, 16, v{d}")
                e(f"    v_and_b32 v{9+2*i}, s30, v{d}")
            else:
                e(f"    v_lshlrev_b32 v{16+2*i}, 16, v{d}")
                e(f"    v_and_b32 v{17+2*i}, s30, v{d}")
        if slot:
            for i in range(4):
                e(f"    v_pk_add_f32 v[{8+2*i}:{9+2*i}], v[{8+2*i}:{9+2*i}], v[{16+2*i}:{17+2*i}]")

    e("    s_cmp_ge_u32 s2, 256")
    e("    s_cbranch_scc1 L_exit")
    e("    s_load_dwordx4 s[4:7], s[0:1], 0")
    e("    s_load_dwordx4 s[8:11], s[0:1], 16")
    e("    s_load_dwordx4 s[12:15], s[0:1], 32")
    if diag:
        for i in range(6):
            e(f"    s_mov_b64 s[{ST+2*i}:{ST+1+2*i}], 0")
    stamp(0)
    e("    v_lshrrev_b32 v1, 6, v0")
    e("    v_and_b32 v2, 63, v0                 ; lane")
    e("    v_readfirstlane_b32 s3, v1")
    e("    v_lshrrev_b32 v3, 4, v2              ; q (row)")
    e("    v_and_b32 v4, 15, v2                 ; n")
    e("    s_mul_i32 s40, s3, 11")
    e("    s_lshr_b32 s40, s40, 5")
    e("    s_mul_i32 s41, s40, 3")
    e("    s_sub_u32 s41, s3, s41               ; seg = wave%3")
    e("    s_lshl_b32 s43, s41, 8")
    e("    v_mul_u32_u24 v5, 768, v3")
    e("    v_lshl_add_u32 v5, v4, 4, v5")
    e("    v_add_u32 v5, s43, v5                ; v5 = q*768 + seg*256 + n*16")
    e("    s_mov_b32 s18, %d" % XBYTES)
    e("    s_mov_b32 s19, 0x00020000")
    e("    s_mov_b32 s30, 0xffff0000")
    e("    s_lshr_b32 s42, s2, 3")
    e("    s_lshl_b32 s42, s42, 2")
    e("    s_and_b32 s43, s2, 3")
    e("    s_add_u32 s42, s42, s43")
    e(f"    s_mul_i32 s76, s42, {SB}")
    e("    s_lshl_b32 s43, s40, 2")
    e("    s_lshr_b32 s78, 0x5210, s43")
    e("    s_and_b32 s78, s78, 15")
    e("    s_lshr_b32 s79, 0xcb76, s43")
    e("    s_and_b32 s79, s79, 15")
    e("    s_mul_i32 s78, s78, 3072")
    e("    s_mul_i32 s79, s79, 3072")
    e("    s_sub_u32 s80, 46080, s78")
    e("    s_sub_u32 s81, 46080, s79")
    for r in (78, 79, 80, 81):
        e(f"    s_add_u32 s{r}, s{r}, s76")
    e("    s_add_u32 s77, s76, 24576")
    e("    s_lshr_b32 s77, s77, 19")
    e("    s_xor_b32 s77, s77, s2")
    e("    s_lshr_b32 s42, s2, 1")
    e("    s_xor_b32 s42, s42, s77")
    e("    s_bitcmp1_b32 s42, 2")
    e("    s_cselect_b32 s82, s80, s78          ; E0")
    e("    s_cselect_b32 s83, s81, s79          ; E1")
    e("    s_cselect_b32 s84, s78, s80          ; O0")
    e("    s_cselect_b32 s85, s79, s81          ; O1")
    seen = [0, 0]
    for k, pp in enumerate(lorder):
        u = seen[region(pp)] & 1
        seen[region(pp)] += 1
        b = 84 if ((pp ^ u) & 1) else 82
        e(f"    s_add_u32 s{SO+2*k}, s{b}, {pp*WIN}")
        e(f"    s_add_u32 s{SO+2*k+1}, s{b+1}, {pp*WIN}")
    e("    s_and_b32 s86, s2, 1")
    e("    s_add_u32 s86, s86, 1")
    e("    s_cmp_eq_u32 s3, 0")
    e("    s_cselect_b32 s86, s86, 0")
    e("    s_waitcnt lgkmcnt(0)")
    e("    s_mov_b32 s16, s4")
    e("    s_mov_b32 s17, s5")
    for s in range(lvm):
        load(s)
    e(f"    s_load_dword s28, s[14:15], {EPOCH}")
    e("    s_mov_b32 s24, s14")
    e("    s_mov_b32 s25, s15")
    e("    s_mov_b32 s26, %d" % WS_BYTES)
    e("    s_mov_b32 s27, 0x00020000")
    if numa:
        e("    s_cmp_lg_u32 s86, 1")
        e("    s_cbranch_scc1 L_noprobe")
        e("    s_bfe_u32 s42, s2, 0x10001           ; r = bit1")
        e("    s_add_u32 s42, s42, 1")
        e(f"    s_mul_i32 s42, s42, {40<<20}")
        e("    s_bfe_u32 s43, s2, 0x30003           ; i & 7")
        e("    s_lshl_b32 s43, s43, 21")
        e("    s_add_u32 s42, s42, s43")
        e("    s_lshr_b32 s43, s2, 6")
        e("    s_lshl_b32 s43, s43, 18")
        e("    s_add_u32 s42, s42, s43")
        e("    s_bfe_u32 s43, s2, 0x10002           ; L")
        e("    s_lshl_b32 s43, s43, 17")
        e("    s_add_u32 s42, s42, s43")
        e("    s_add_u32 s20, s10, s42")
        e("    s_addc_u32 s21, s11, 0")
        e("    s_load_dword s22, s[20:21], 4096")
        for s in range(lvm, pre):
            load(s)
        e("    s_waitcnt lgkmcnt(0)")
        offs = [0, 8192, 24576 + 256, 16384 + 256, 32768 + 512, 40960 + 512][:2 * pairs]
        e("    s_memtime s[32:33]")
        e("    s_waitcnt lgkmcnt(0)")
        for i, of in enumerate(offs):
            a, b = (32, 34) if i % 2 == 0 else (34, 32)
            e(f"    s_load_dword s22, s[20:21], {of}")
            e("    s_waitcnt lgkmcnt(0)")
            e(f"    s_memtime s[{b}:{b+1}]")
            e("    s_waitcnt lgkmcnt(0)")
            e(f"    s_sub_u32 s{36+(i&1)}, s{b}, s{a}")
            if i % 2 == 1:
                if (i // 2) % 2 == 0:
                    e("    s_cmp_gt_u32 s37, s36")
                else:
                    e("    s_cmp_gt_u32 s36, s37")
                if i == 1:
                    e("    s_cselect_b32 s38, 1, -1")
                else:
                    e("    s_cselect_b32 s39, 1, -1")
                    e("    s_add_i32 s38, s38, s39")
        e("    s_lshr_b32 s42, s2, 1")
        e("    s_xor_b32 s42, s42, s2")
        e("    s_sub_i32 s39, 0, s38")
        e("    s_bitcmp1_b32 s42, 2")
        e("    s_cselect_b32 s38, s39, s38")
        e("    s_add_u32 s39, s28, 1")
        e("    s_xor_b32 s39, s39, 0x%08x" % MAGIC2)
        e("    s_xor_b32 s39, s39, s38")
        e("    s_bfe_u32 s42, s2, 0x10001")
        e("    s_lshl_b32 s42, s42, 6")
        e("    s_lshr_b32 s43, s2, 2                ; i*2 + L")
        e("    s_add_u32 s42, s42, s43")
        e("    s_lshl_b32 s42, s42, 3")
        e(f"    s_add_u32 s42, s42, {VOTE}")
        e("    v_mov_b32 v32, s38")
        e("    v_mov_b32 v33, s39")
        e("    v_mov_b32 v34, s42")
        e("    s_mov_b64 exec, 1")
        e("    buffer_store_dwordx2 v[32:33], v34, s[24:27], 0 offen sc1")
        e("    s_mov_b64 exec, -1")
        stamp(1)
        e("L_noprobe:")
    e("    s_mov_b32 s20, s10")
    e("    s_mov_b32 s21, s11")
    e("    s_mov_b32 s22, %d" % XBYTES)
    e("    s_mov_b32 s23, 0x00020000")
    e("    s_mov_b32 s32, s6")
    e("    s_mov_b32 s33, s7")
    e("    s_mov_b32 s34, 4608")
    e("    s_mov_b32 s35, 0x00020000")
    e("    s_mov_b32 s36, s8")
    e("    s_mov_b32 s37, s9")
    e("    s_mov_b32 s38, 4608")
    e("    s_mov_b32 s39, 0x00020000")
    e("    s_mov_b32 s31, %d" % spin)
    e("    s_mul_i32 s42, s41, 1536")
    e("    s_mul_i32 s43, s40, 6")
    e("    s_add_u32 s42, s42, s43")
    e("    v_mul_u32_u24 v1, 24, v2")
    e("    v_add_u32 v1, s42, v1")
    e("    s_lshl_b32 s42, s3, 10")
    e(f"    s_add_u32 s42, s42, {L_WU}")
    e("    s_mov_b32 m0, s42")
    e("    v_lshlrev_b32 v27, 4, v0")
    e("    buffer_load_ushort v24, v1, s[32:35], 0 offen")
    e("    buffer_load_ushort v25, v1, s[32:35], 0 offen offset:2")
    e("    buffer_load_ushort v26, v1, s[32:35], 0 offen offset:4")
    e("    buffer_load_dwordx4 v27, s[36:39], 0 offen lds")
    NW = 4
    e("    s_mul_i32 s42, s40, 1536")
    e("    s_lshl_b32 s43, s41, 9")
    e("    s_add_u32 s42, s42, s43")
    e("    v_lshlrev_b32 v6, 5, v4")
    e("    v_lshl_add_u32 v6, v3, 3, v6")
    e("    v_add_u32 v6, s42, v6")
    e("    s_lshl_b32 s43, s41, 7")
    e("    v_lshlrev_b32 v7, 3, v4")
    e("    v_add_u32 v7, s43, v7")
    e("    v_subrev_u32 v1, 192, v7")
    e("    v_min_u32 v7, v7, v1")
    e("    v_lshlrev_b32 v7, 2, v7")
    e("    v_and_b32 v1, 1, v3")
    e("    v_lshrrev_b32 v31, 1, v3")
    e("    v_lshl_add_u32 v31, v1, 1, v31")
    e("    v_lshlrev_b32 v31, 2, v31            ; i(row)*4")
    e("    s_lshl_b32 s42, s41, 6")
    e("    s_lshl_b32 s43, s40, 4")
    e("    s_add_u32 s42, s42, s43")
    e("    v_add_u32 v4, s42, v31")
    e("    s_lshl_b32 s42, s41, 8")
    e("    v_lshlrev_b32 v3, 2, v2")
    e("    v_add_u32 v3, s42, v3")
    e("    v_lshlrev_b32 v1, 4, v2              ; lane*16")
    e(f"    s_mov_b32 s87, {VOTE}")
    for j in range(32):
        last = min(j + lvm - 1, 31)
        younger = (last - j) + (NW if j < lvm else 0)
        e(f"    s_waitcnt vmcnt({younger})")
        if j == lvm:
            e("    s_waitcnt lgkmcnt(0)")
            e("    s_add_u32 s28, s28, 1                ; epoch + 1")
            e("    s_xor_b32 s29, s28, 0x%08x           ; tag key" % MAGIC)
            e("    s_xor_b32 s88, s28, 0x%08x           ; vote key" % MAGIC2)
        if numa and j == A0 - lvm:
            e("    s_bitcmp1_b32 s2, 0")
            e("    s_cbranch_scc0 L_nodec")
            e("    s_cmp_lg_u32 s86, 2")
            e("    s_cbranch_scc1 L_decbar")
            e("L_vchk:")
            e("    v_bitop3_b32 v36, v32, v33, s88 bitop3:0x96")
            e("    v_bitop3_b32 v37, v34, v35, s88 bitop3:0x96")
            e("    v_or_b32 v36, v36, v37")
            e("    v_cmp_ne_u32 vcc, 0, v36")
            e("    s_cbranch_vccz L_vok")
            e("    s_sub_u32 s31, s31, 1")
            e("    s_cbranch_scc1 L_vok")
            e("    buffer_load_dwordx4 v[32:35], v1, s[24:27], s87 offen sc1")
            e("    s_waitcnt vmcnt(0)")
            e("    s_branch L_vchk")
            e("L_vok:")
            e("    v_add_u32 v36, v32, v34")
            for sh in (1, 2, 4, 8):
                e("    s_nop 1")
                e(f"    v_add_u32_dpp v36, v36, v36 row_shr:{sh} row_mask:0xf bank_mask:0xf bound_ctrl:0")
            e("    s_nop 1")
            e("    v_add_u32_dpp v36, v36, v36 row_bcast:15 row_mask:0xa bank_mask:0xf")
            e("    v_lshrrev_b32 v37, 3, v2")
            e("    v_and_b32 v37, 4, v37                ; (lane>=32)*4")
            e("    s_mov_b32 exec_lo, 0x80000000")
            e("    s_mov_b32 exec_hi, 0x80000000")
            e(f"    ds_write_b32 v37, v36 offset:{L_DEC}")
            e("    s_mov_b64 exec, -1")
            e("    s_waitcnt lgkmcnt(0)")
            stamp(1)
            e("L_decbar:")
            e("    s_barrier")
            e("    v_mov_b32 v36, 0")
            e(f"    ds_read_b64 v[36:37], v36 offset:{L_DEC}")
            e("    s_waitcnt lgkmcnt(0)")
            e("    v_readfirstlane_b32 s4, v36")
            e("    v_readfirstlane_b32 s5, v37")
            for r in range(2):
                wins = [(k, pp) for k, pp in enumerate(lorder) if pp in adaptive and region(pp) == r]
                if not wins:
                    continue
                e(f"    s_abs_i32 s42, s{4+r}")
                e(f"    s_cmp_lt_u32 s42, {thr}")
                e(f"    s_cbranch_scc1 L_keep{r}")
                e(f"    s_lshr_b32 s42, s{4+r}, 29")
                e("    s_xor_b32 s42, s42, s77")
                e("    s_bitcmp1_b32 s42, 2")
                e("    s_cselect_b32 s82, s80, s78")
                e("    s_cselect_b32 s83, s81, s79")
                e("    s_cselect_b32 s84, s78, s80")
                e("    s_cselect_b32 s85, s79, s81")
                for k, pp in wins:
                    b = 84 if (pp & 1) else 82
                    e(f"    s_add_u32 s{SO+2*k}, s{b}, {pp*WIN}")
                    e(f"    s_add_u32 s{SO+2*k+1}, s{b+1}, {pp*WIN}")
                e(f"L_keep{r}:")
            if dbgout:
                e("    s_mov_b32 s76, s4")
                e("    s_mov_b32 s89, s5")
            e("L_nodec:")
        if j + lvm < 32:
            k = j + lvm
            if evw >= 0 and j >= lvm and k >= pre:
                e("    s_bitcmp1_b32 s2, 0")
                e(f"    s_cbranch_scc1 L_ev{k}")
                e(f"    s_waitcnt vmcnt({evw})")
                e(f"L_ev{k}:")
            if numa and k < pre:
                e("    s_cmp_eq_u32 s86, 1")
                e(f"    s_cbranch_scc1 L_sk{k}")
                load(k)
                e(f"L_sk{k}:")
            else:
                load(k)
            if numa and k == G:
                e("    s_cmp_lg_u32 s86, 2")
                e("    s_cbranch_scc1 L_nog")
                e("    buffer_load_dwordx4 v[32:35], v1, s[24:27], s87 offen sc1")
                e("L_nog:")
        acc(j)
        if j == 20:
            for r in (24, 25, 26):
                e(f"    v_lshlrev_b32 v{r}, 16, v{r}")
    e("    s_nop 1")
    for i in range(4):
        e(f"    v_permlane32_swap_b32 v{8+i}, v{12+i}")
    for i in range(4):
        e(f"    v_add_f32 v{8+i}, v{8+i}, v{12+i}")
    e("    s_nop 0")
    e("    v_permlane16_swap_b32 v8, v10")
    e("    v_permlane16_swap_b32 v9, v11")
    e("    v_add_f32 v8, v8, v10")
    e("    v_add_f32 v9, v9, v11")
    e(f"    ds_write_b64 v6, v[8:9] offset:{L_M}")
    e("    s_waitcnt lgkmcnt(0)")
    e("    s_barrier")
    stamp(3)
    for k in range(4):
        e(f"    ds_read2st64_b32 v[{16+2*k}:{17+2*k}], v3 offset0:{6*k} offset1:{6*k+3}")
    e("    s_waitcnt lgkmcnt(2)" if not (diag or enc) else "    s_waitcnt lgkmcnt(0)")
    e("    v_pk_add_f32 v[16:17], v[16:17], v[18:19]")
    e("    s_waitcnt lgkmcnt(0)")
    e("    v_pk_add_f32 v[20:21], v[20:21], v[22:23]")
    e("    v_pk_add_f32 v[16:17], v[16:17], v[20:21]")
    e("    v_add_f32 v16, v16, v17")
    e("    v_mul_f32 v10, v16, v26")
    e("    v_mul_f32 v11, v16, v26")
    e("    v_mul_f32 v8, v16, v24")
    e("    v_mul_f32 v9, v16, v25")
    e("    v_permlane32_swap_b32 v10, v11")
    e("    s_nop 0")
    e("    v_permlane32_swap_b32 v8, v9")
    e("    v_add_f32 v10, v10, v11              ; [c | c]")
    e("    v_add_f32 v8, v8, v9                 ; [a | b]")
    e("    s_nop 1")
    e("    v_permlane16_swap_b32 v8, v10")
    e("    v_add_f32 v8, v8, v10                ; rows: a, c, b, c")
    e("    s_nop 1")
    e("    v_add_f32_dpp v9, v8, v8 row_shr:1 row_mask:0xf bank_mask:0xf bound_ctrl:0")
    e("    v_add_f32_dpp v9, v8, v9 row_shr:2 row_mask:0xf bank_mask:0xf bound_ctrl:0")
    e("    v_add_f32_dpp v9, v8, v9 row_shr:3 row_mask:0xf bank_mask:0xf bound_ctrl:0")
    e("    s_nop 1")
    e("    v_add_f32_dpp v9, v9, v9 row_shr:4 row_mask:0xf bank_mask:0xf bound_ctrl:0")
    e("    s_nop 1")
    e("    v_add_f32_dpp v9, v9, v9 row_shr:8 row_mask:0xf bank_mask:0xf bound_ctrl:0")
    e("    s_mov_b32 exec_lo, 0x80008000")
    e("    s_mov_b32 exec_hi, 0x00008000")
    e(f"    ds_write_b32 v4, v9 offset:{L_HP}")
    e("    s_mov_b64 exec, -1")
    e("    s_lshl_b32 s42, s2, 6")
    e("    s_cmp_lg_u32 s3, 4")
    e("    s_waitcnt lgkmcnt(0)")
    e("    s_barrier")
    e("    s_cbranch_scc1 L_notpub")
    e("    s_mov_b64 exec, 15")
    e(f"    ds_read_b128 v[8:11], v1 offset:{L_HP}")
    e(f"    ds_read_b128 v[12:15], v1 offset:{L_HP+64}")
    e(f"    ds_read_b128 v[16:19], v1 offset:{L_HP+128}")
    e("    s_waitcnt lgkmcnt(1)")
    e("    v_pk_add_f32 v[8:9], v[8:9], v[12:13]")
    e("    v_add_f32 v10, v10, v14")
    e("    s_waitcnt lgkmcnt(0)")
    e("    v_pk_add_f32 v[8:9], v[8:9], v[16:17]")
    e("    v_add_f32 v10, v10, v18")
    e("    v_bitop3_b32 v11, v8, v9, s29 bitop3:0x96")
    e("    v_xor_b32 v11, v11, v10")
    e(f"    buffer_store_dwordx4 v[8:11], v1, s[24:27], s42 offen {pubf}")
    e("    s_mov_b64 exec, -1")
    stamp(7)
    e("    s_branch L_b3")
    e("L_notpub:")
    e("    s_cmp_lt_u32 s3, 4")
    e("    s_cbranch_scc1 L_poll_start")
    e("    s_cmp_gt_u32 s3, 7")
    e("    s_cbranch_scc1 L_b3")
    e("    v_subrev_u32 v1, 320, v0")
    e("    v_lshlrev_b32 v21, 2, v1")
    e("    v_lshlrev_b32 v1, 1, v1")
    for r in range(12):
        e(f"    ds_read_u16 v{8+r}, v1 offset:{L_WU+384*r}")
    e("    v_and_b32 v20, 15, v2")
    e("    v_lshlrev_b32 v20, 2, v20")
    e(f"    v_add_u32 v20, {L_P}, v20")
    e("    s_waitcnt lgkmcnt(0)")
    for r in range(12):
        e(f"    v_lshlrev_b32 v{8+r}, 16, v{8+r}")
    e("    s_barrier")
    e("    ds_read2_b32 v[22:23], v20 offset0:0 offset1:16")
    e("    ds_read2_b32 v[24:25], v20 offset0:32 offset1:48")
    e("    s_waitcnt lgkmcnt(0)")
    e("    v_pk_add_f32 v[22:23], v[22:23], v[24:25]")
    e("    v_add_f32 v22, v22, v23")
    e("    v_mul_f32 v22, 0x36800000, v22       ; * 2^-18")
    e("    v_cvt_pk_bf16_f32 v22, v22, v22")
    e("    v_lshlrev_b32 v22, 16, v22")
    e("    v_mul_f32 v23, 0xbfb8aa3b, v22       ; -log2e * x")
    e("    v_exp_f32 v23, v23")
    e("    s_nop 0")
    e("    v_add_f32 v23, 1.0, v23")
    e("    v_rcp_f32 v23, v23")
    e("    s_nop 0")
    e("    v_mul_f32 v22, v22, v23")
    e("    v_cvt_pk_bf16_f32 v22, v22, v22")
    e("    v_lshlrev_b32 v22, 16, v22")
    e("    s_nop 1")
    for r in range(12):
        a = 23 + (r % 3)
        op = "v_mul_f32_dpp" if r < 3 else "v_fmac_f32_dpp"
        e(f"    {op} v{a}, v22, v{8+r} row_newbcast:{r} row_mask:0xf bank_mask:0xf")
    e("    v_add_f32 v23, v23, v24")
    e("    v_add_f32 v23, v23, v25")
    e("    v_cvt_pk_bf16_f32 v23, v23, v23")
    e("    v_lshlrev_b32 v23, 16, v23")
    e("    v_mul_f32 v23, 0xbfb8aa3b, v23")
    e("    v_exp_f32 v23, v23")
    e("    s_nop 0")
    e("    v_add_f32 v23, 1.0, v23")
    e("    v_rcp_f32 v23, v23")
    e("    s_nop 0")
    e("    v_cvt_pk_bf16_f32 v23, v23, v23")
    e("    v_lshlrev_b32 v23, 16, v23")
    e(f"    ds_write_b32 v21, v23 offset:{L_G}")
    e("    s_waitcnt lgkmcnt(0)")
    e("    s_branch L_b4")

    e("L_poll_start:")
    e("    s_lshl_b32 s42, s3, 12")
    e("    v_and_b32 v27, 3, v2")
    e("    v_mul_u32_u24 v27, 12, v27")
    e("    s_lshl_b32 s43, s3, 6")
    e("    v_add3_u32 v31, v31, v27, s43")
    regs = (8, 12, 16, 20)
    for k in range(4):
        e(f"    s_mov_b64 s[{4+2*k}:{5+2*k}], -1")
    e("L_poll:")
    for k in range(4):
        e(f"    s_mov_b64 exec, s[{4+2*k}:{5+2*k}]")
        e(f"    s_cbranch_execz L_skip{k}")
        e(f"    buffer_load_dwordx4 v[{regs[k]}:{regs[k]+3}], v1, s[24:27], s42 offen offset:{1024*k} {pollf}")
        e(f"L_skip{k}:")
    e("    s_mov_b64 exec, -1")
    e("    s_waitcnt vmcnt(0)")
    for k in range(4):
        r = regs[k]
        e(f"    v_bitop3_b32 v{27+k}, v{r}, v{r+1}, s29 bitop3:0x96")
    for k in range(4):
        r = regs[k]
        e(f"    v_bitop3_b32 v{27+k}, v{27+k}, v{r+2}, v{r+3} bitop3:0x96")
    for k in range(4):
        e(f"    v_cmp_ne_u32 s[{4+2*k}:{5+2*k}], 0, v{27+k}")
    e("    s_or_b64 s[82:83], s[4:5], s[6:7]")
    e("    s_or_b64 vcc, s[8:9], s[10:11]")
    e("    s_or_b64 s[82:83], s[82:83], vcc")
    e("    s_cbranch_scc0 L_poll_ok")
    e("    s_sub_u32 s31, s31, 1")
    e("    s_cbranch_scc1 L_poll_ok")
    if sleep:
        e(f"    s_sleep {sleep}")
    e("    s_branch L_poll")
    e("L_poll_ok:")
    stamp(7)
    e("    v_add_f32 v10, v10, v14")
    e("    v_add_f32 v18, v18, v22")
    e("    v_pk_add_f32 v[8:9], v[8:9], v[12:13]")
    e("    v_pk_add_f32 v[16:17], v[16:17], v[20:21]")
    e("    v_add_f32 v11, v10, v18")
    e("    v_add_f32 v10, v10, v18")
    e("    v_pk_add_f32 v[8:9], v[8:9], v[16:17]")
    e("    s_nop 0")
    e("    v_permlane32_swap_b32 v10, v11")
    e("    v_permlane32_swap_b32 v8, v9")
    e("    v_add_f32 v10, v10, v11              ; [c | c]")
    e("    v_add_f32 v8, v8, v9                 ; [a | b]")
    e("    s_nop 1")
    e("    v_permlane16_swap_b32 v8, v10")
    e("    v_add_f32 v8, v8, v10                ; rows: a, c, b, c")
    e("    s_nop 1")
    e("    v_add_f32_dpp v8, v8, v8 row_shr:4 row_mask:0xf bank_mask:0xf bound_ctrl:0")
    e("    s_nop 1")
    e("    v_add_f32_dpp v8, v8, v8 row_shr:8 row_mask:0xf bank_mask:0xf bound_ctrl:0")
    e("    s_mov_b32 exec_lo, 0xf000f000")
    e("    s_mov_b32 exec_hi, 0x0000f000")
    e(f"    ds_write_b32 v31, v8 offset:{L_P}")
    e("    s_mov_b64 exec, -1")
    e("    s_waitcnt lgkmcnt(0)")
    e("L_b3:")
    e("    s_barrier")
    e("L_b4:")
    e("    s_barrier")
    e(f"    ds_read_b128 v[8:11], v7 offset:{L_G}")
    e(f"    ds_read_b128 v[12:15], v7 offset:{L_G+16}")

    cnt = [0]

    def scale_store(slot, first=False):
        t = 16 + 8 * (cnt[0] & 1)
        cnt[0] += 1
        for i in range(4):
            d = dreg(slot) + i
            e(f"    v_lshlrev_b32 v{t+2*i}, 16, v{d}")
            e(f"    v_and_b32 v{t+1+2*i}, s30, v{d}")
        if first:
            e("    s_waitcnt lgkmcnt(0)")
            stamp(5)
        for i in range(4):
            e(f"    v_pk_mul_f32 v[{t+2*i}:{t+1+2*i}], v[{t+2*i}:{t+1+2*i}], v[{8+2*i}:{9+2*i}]")
        for i in range(4):
            d = dreg(slot) + i
            e(f"    v_cvt_pk_bf16_f32 v{d}, v{t+2*i}, v{t+1+2*i}")
        d = dreg(slot)
        e(f"    buffer_store_dwordx4 v[{d}:{d+3}], v5, s[20:23], s{SO+slot} offen{stf}")

    sslots = []
    for pp in sorder:
        k = lorder.index(pp)
        sslots += [2 * k, 2 * k + 1]
    for j in range(32):
        scale_store(sslots[j], first=(j == 0))
        if sbar and (j + 1) % sbar == 0 and j != 31:
            e("    s_barrier")
    e("    s_cmp_lg_u32 s2, 1")
    e("    s_cbranch_scc1 L_noep")
    e("    s_cmp_lg_u32 s3, 11")
    e("    s_cbranch_scc1 L_noep")
    e(f"    v_mov_b32 v1, {EPOCH}")
    e("    v_mov_b32 v3, s28")
    e("    s_mov_b64 exec, 1")
    e("    buffer_store_dword v3, v1, s[24:27], 0 offen sc1")
    if dbgout:
        e("    s_mov_b32 s32, s12")
        e("    s_mov_b32 s33, s13")
        e("    s_mov_b32 s34, 256")
        e("    v_mov_b32 v16, s76")
        e("    v_mov_b32 v17, s89")
        e("    v_mov_b32 v1, 0")
        e("    buffer_store_dwordx2 v[16:17], v1, s[32:35], 0 offen")
    e("    s_mov_b64 exec, -1")
    e("L_noep:")
    if enc:
        e("    s_waitcnt vmcnt(0)")
        stamp(6)
        e("    s_waitcnt lgkmcnt(0)")
        a, b = {1: (0, 0), 2: (0, 3), 3: (0, 5), 4: (5, 6), 5: (0, 6)}[enc]
        e(f"    s_sub_u32 s42, s{ST+2*smap[b]}, s{ST+2*smap[a]}")
        e("L_enc:")
        e("    s_memrealtime s[4:5]")
        e("    s_waitcnt lgkmcnt(0)")
        e(f"    s_sub_u32 s43, s4, s{ST+2*smap[6]}")
        e("    s_cmp_lt_u32 s43, s42")
        e("    s_cbranch_scc1 L_enc")
    if diag:
        e("    s_waitcnt vmcnt(0)")
        stamp(6)
        e("    s_waitcnt lgkmcnt(0)")
        e("    s_mul_i32 s42, s2, 12")
        e("    s_add_u32 s42, s42, s3")
        e("    s_lshl_b32 s42, s42, 7")
        e(f"    s_add_u32 s42, s42, {DIAG}")
        e("    v_mov_b32 v1, s42")
        e("    s_mov_b64 exec, 1")
        inv = {v: k for k, v in smap.items()}
        for k in range(6):
            e(f"    v_mov_b32 v16, s{ST+2*k}")
            e(f"    v_mov_b32 v17, s{ST+2*k+1}")
            e(f"    buffer_store_dwordx2 v[16:17], v1, s[24:27], 0 offen offset:{8*inv[k]}")
            e("    s_nop 2")
        e("    v_mov_b32 v16, 0")
        e("    v_mov_b32 v17, s31")
        e("    buffer_store_dwordx2 v[16:17], v1, s[24:27], 0 offen offset:88")
    e("L_exit:")
    e("    s_endpgm")
    e('.section .rodata,"a"')
    e(".p2align 6")
    e(f".amdhsa_kernel {NAME}")
    e("  .amdhsa_next_free_vgpr 168")
    e("  .amdhsa_next_free_sgpr 102")
    e("  .amdhsa_accum_offset 168")
    e("  .amdhsa_group_segment_fixed_size 0")
    e("  .amdhsa_kernarg_size 48")
    e("  .amdhsa_user_sgpr_count 2")
    e("  .amdhsa_user_sgpr_kernarg_segment_ptr 1")
    e("  .amdhsa_system_sgpr_workgroup_id_x 1")
    e("  .amdhsa_float_denorm_mode_32 3")
    e(".end_amdhsa_kernel")
    sys.stderr.write(f"lorder {lorder} sorder {sorder} A0 {A0} G {G}\n")
    return "\n".join(o) + "\n"


if __name__ == "__main__":
    ap = argparse.ArgumentParser()
    ap.add_argument("-o", default="-")
    ap.add_argument("--ld", default="nt")
    ap.add_argument("--st", default="sc0 sc1")
    ap.add_argument("--diag", action="store_true")
    for name, dv in (("sleep", 0), ("sbar", 2), ("lvm", 3), ("ns", 8), ("pre", 9), ("pairs", 2), ("thr", 14), ("numa", 1), ("dbgout", 0), ("evw", -1), ("enc", 0)):
        ap.add_argument("--" + name, type=int, default=dv)
    ap.add_argument("--pubf", default="sc1")
    ap.add_argument("--pollf", default="sc1")
    a = ap.parse_args()
    kw = vars(a).copy()
    out = kw.pop("o")
    s = gen(**kw)
    if out == "-":
        sys.stdout.write(s)
    else:
        open(out, "w").write(s)
```

```python
import sys, argparse

HEADER = """; Kernarg layout for this problem (48 bytes, ptrs only, base s[0:1]):
"""

NAME = "standalone__channel_attn_se__vision_kernel"
XBYTES = 100663296
MAGIC = 0x5BD1E995
MAGIC2 = 0x2C1B3C6D

L_M = 0
L_HP = 6144
L_P = 6400
L_G = 6656
L_DEC = 7424
L_WU = 8192
LDS = 20480
VOTE = 32768
EPOCH = 65536
DIAG = 1 << 20
WS_BYTES = 2 << 20
SB = 49152
WIN = 128 * SB


def gen(ld="nt", st="sc0 sc1", diag=False, sleep=0, spin=400000, pubf="sc1", pollf="sc1", sbar=2,
        lvm=3, ns=8, pre=9, pairs=2, thr=14, numa=1, dbgout=0, evw=-1, enc=0, encpar=-1):
    o = []
    e = o.append
    ldf = (" " + ld) if ld else ""
    stf = (" " + st) if st else ""
    D0 = 40
    SO = 44
    ST = 90
    na = 16 - ns
    adaptive = []
    for i in range(na):
        adaptive.append((15 - i // 2) if i % 2 == 0 else (9 - i // 2))
    adaptive = adaptive[::-1]
    static = [pp for pp in range(16) if pp not in adaptive]
    lorder = static + adaptive
    sorder = []
    si, ai = 0, 0
    for k in range(16):
        if ai < na and (ai + 1) * 16 <= (k + 1) * na + (16 - na) // 2 * 0 + 0 or si >= len(static):
            sorder.append(adaptive[ai]); ai += 1
        else:
            sorder.append(static[si]); si += 1
    assert sorted(sorder) == list(range(16))
    region = lambda pp: 0 if pp < 10 else 1
    A0 = 2 * ns
    G = A0 - lvm - 1
    e(HEADER.rstrip())
    e(f"; @launch grid=(256,1,1) block=(768,1,1) lds={LDS}")
    e('.amdgcn_target "amdgcn-amd-amdhsa--gfx950"')
    e(".text")
    e(f".globl {NAME}")
    e(".p2align 8")
    e(f".type {NAME},@function")
    e(f"{NAME}:")
    smap = {0: 0, 1: 1, 3: 2, 5: 3, 6: 4, 7: 5}

    def stamp(i):
        if (diag or enc) and i in smap:
            k = smap[i]
            if enc >= 6 and i in (0, 3, 5):
                e(f"    s_memtime s[{ST+2*k}:{ST+1+2*k}]")
            elif enc >= 6 and i in (1, 7):
                pass
            else:
                e(f"    s_memrealtime s[{ST+2*k}:{ST+1+2*k}]")
                if enc >= 6 and i == 6:
                    e(f"    s_memtime s[{ST+2*smap[7]}:{ST+1+2*smap[7]}]")

    def dreg(slot):
        return D0 + 4 * slot

    def load(slot):
        d = dreg(slot)
        e(f"    buffer_load_dwordx4 v[{d}:{d+3}], v5, s[16:19], s{SO+slot} offen{ldf}")

    def acc(slot):
        for i in range(4):
            d = dreg(slot) + i
            if slot == 0:
                e(f"    v_lshlrev_b32 v{8+2*i}, 16, v{d}")
                e(f"    v_and_b32 v{9+2*i}, s30, v{d}")
            else:
                e(f"    v_lshlrev_b32 v{16+2*i}, 16, v{d}")
                e(f"    v_and_b32 v{17+2*i}, s30, v{d}")
        if slot:
            for i in range(4):
                e(f"    v_pk_add_f32 v[{8+2*i}:{9+2*i}], v[{8+2*i}:{9+2*i}], v[{16+2*i}:{17+2*i}]")

    e("    s_cmp_ge_u32 s2, 256")
    e("    s_cbranch_scc1 L_exit")
    e("    s_load_dwordx4 s[4:7], s[0:1], 0")
    e("    s_load_dwordx4 s[8:11], s[0:1], 16")
    e("    s_load_dwordx4 s[12:15], s[0:1], 32")
    if diag:
        for i in range(6):
            e(f"    s_mov_b64 s[{ST+2*i}:{ST+1+2*i}], 0")
    stamp(0)
    e("    v_lshrrev_b32 v1, 6, v0")
    e("    v_and_b32 v2, 63, v0                 ; lane")
    e("    v_readfirstlane_b32 s3, v1")
    e("    v_lshrrev_b32 v3, 4, v2              ; q (row)")
    e("    v_and_b32 v4, 15, v2                 ; n")
    e("    s_mul_i32 s40, s3, 11")
    e("    s_lshr_b32 s40, s40, 5")
    e("    s_mul_i32 s41, s40, 3")
    e("    s_sub_u32 s41, s3, s41               ; seg = wave%3")
    e("    s_lshl_b32 s43, s41, 8")
    e("    v_mul_u32_u24 v5, 768, v3")
    e("    v_lshl_add_u32 v5, v4, 4, v5")
    e("    v_add_u32 v5, s43, v5                ; v5 = q*768 + seg*256 + n*16")
    e("    s_mov_b32 s18, %d" % XBYTES)
    e("    s_mov_b32 s19, 0x00020000")
    e("    s_mov_b32 s30, 0xffff0000")
    e("    s_lshr_b32 s42, s2, 3")
    e("    s_lshl_b32 s42, s42, 2")
    e("    s_and_b32 s43, s2, 3")
    e("    s_add_u32 s42, s42, s43")
    e(f"    s_mul_i32 s76, s42, {SB}")
    e("    s_lshl_b32 s43, s40, 2")
    e("    s_lshr_b32 s78, 0x5210, s43")
    e("    s_and_b32 s78, s78, 15")
    e("    s_lshr_b32 s79, 0xcb76, s43")
    e("    s_and_b32 s79, s79, 15")
    e("    s_mul_i32 s78, s78, 3072")
    e("    s_mul_i32 s79, s79, 3072")
    e("    s_sub_u32 s80, 46080, s78")
    e("    s_sub_u32 s81, 46080, s79")
    for r in (78, 79, 80, 81):
        e(f"    s_add_u32 s{r}, s{r}, s76")
    e("    s_add_u32 s77, s76, 24576")
    e("    s_lshr_b32 s77, s77, 19")
    e("    s_xor_b32 s77, s77, s2")
    e("    s_lshr_b32 s42, s2, 1")
    e("    s_xor_b32 s42, s42, s77")
    e("    s_bitcmp1_b32 s42, 2")
    e("    s_cselect_b32 s82, s80, s78          ; E0")
    e("    s_cselect_b32 s83, s81, s79          ; E1")
    e("    s_cselect_b32 s84, s78, s80          ; O0")
    e("    s_cselect_b32 s85, s79, s81          ; O1")
    seen = [0, 0]
    for k, pp in enumerate(lorder):
        u = seen[region(pp)] & 1
        seen[region(pp)] += 1
        b = 84 if ((pp ^ u) & 1) else 82
        e(f"    s_add_u32 s{SO+2*k}, s{b}, {pp*WIN}")
        e(f"    s_add_u32 s{SO+2*k+1}, s{b+1}, {pp*WIN}")
    e("    s_and_b32 s86, s2, 1")
    e("    s_add_u32 s86, s86, 1")
    e("    s_cmp_eq_u32 s3, 0")
    e("    s_cselect_b32 s86, s86, 0")
    e("    s_waitcnt lgkmcnt(0)")
    e("    s_mov_b32 s16, s4")
    e("    s_mov_b32 s17, s5")
    for s in range(lvm):
        load(s)
    e(f"    s_load_dword s28, s[14:15], {EPOCH}")
    e("    s_mov_b32 s24, s14")
    e("    s_mov_b32 s25, s15")
    e("    s_mov_b32 s26, %d" % WS_BYTES)
    e("    s_mov_b32 s27, 0x00020000")
    if numa:
        e("    s_cmp_lg_u32 s86, 1")
        e("    s_cbranch_scc1 L_noprobe")
        e("    s_bfe_u32 s42, s2, 0x10001           ; r = bit1")
        e("    s_add_u32 s42, s42, 1")
        e(f"    s_mul_i32 s42, s42, {40<<20}")
        e("    s_bfe_u32 s43, s2, 0x30003           ; i & 7")
        e("    s_lshl_b32 s43, s43, 21")
        e("    s_add_u32 s42, s42, s43")
        e("    s_lshr_b32 s43, s2, 6")
        e("    s_lshl_b32 s43, s43, 18")
        e("    s_add_u32 s42, s42, s43")
        e("    s_bfe_u32 s43, s2, 0x10002           ; L")
        e("    s_lshl_b32 s43, s43, 17")
        e("    s_add_u32 s42, s42, s43")
        e("    s_add_u32 s20, s10, s42")
        e("    s_addc_u32 s21, s11, 0")
        e("    s_load_dword s22, s[20:21], 4096")
        for s in range(lvm, pre):
            load(s)
        e("    s_waitcnt lgkmcnt(0)")
        offs = [0, 8192, 24576 + 256, 16384 + 256, 32768 + 512, 40960 + 512][:2 * pairs]
        e("    s_memtime s[32:33]")
        e("    s_waitcnt lgkmcnt(0)")
        for i, of in enumerate(offs):
            a, b = (32, 34) if i % 2 == 0 else (34, 32)
            e(f"    s_load_dword s22, s[20:21], {of}")
            e("    s_waitcnt lgkmcnt(0)")
            e(f"    s_memtime s[{b}:{b+1}]")
            e("    s_waitcnt lgkmcnt(0)")
            e(f"    s_sub_u32 s{36+(i&1)}, s{b}, s{a}")
            if i % 2 == 1:
                if (i // 2) % 2 == 0:
                    e("    s_cmp_gt_u32 s37, s36")
                else:
                    e("    s_cmp_gt_u32 s36, s37")
                if i == 1:
                    e("    s_cselect_b32 s38, 1, -1")
                else:
                    e("    s_cselect_b32 s39, 1, -1")
                    e("    s_add_i32 s38, s38, s39")
        e("    s_lshr_b32 s42, s2, 1")
        e("    s_xor_b32 s42, s42, s2")
        e("    s_sub_i32 s39, 0, s38")
        e("    s_bitcmp1_b32 s42, 2")
        e("    s_cselect_b32 s38, s39, s38")
        e("    s_add_u32 s39, s28, 1")
        e("    s_xor_b32 s39, s39, 0x%08x" % MAGIC2)
        e("    s_xor_b32 s39, s39, s38")
        e("    s_bfe_u32 s42, s2, 0x10001")
        e("    s_lshl_b32 s42, s42, 6")
        e("    s_lshr_b32 s43, s2, 2                ; i*2 + L")
        e("    s_add_u32 s42, s42, s43")
        e("    s_lshl_b32 s42, s42, 3")
        e(f"    s_add_u32 s42, s42, {VOTE}")
        e("    v_mov_b32 v32, s38")
        e("    v_mov_b32 v33, s39")
        e("    v_mov_b32 v34, s42")
        e("    s_mov_b64 exec, 1")
        e("    buffer_store_dwordx2 v[32:33], v34, s[24:27], 0 offen sc1")
        e("    s_mov_b64 exec, -1")
        stamp(1)
        e("L_noprobe:")
    e("    s_mov_b32 s20, s10")
    e("    s_mov_b32 s21, s11")
    e("    s_mov_b32 s22, %d" % XBYTES)
    e("    s_mov_b32 s23, 0x00020000")
    e("    s_mov_b32 s32, s6")
    e("    s_mov_b32 s33, s7")
    e("    s_mov_b32 s34, 4608")
    e("    s_mov_b32 s35, 0x00020000")
    e("    s_mov_b32 s36, s8")
    e("    s_mov_b32 s37, s9")
    e("    s_mov_b32 s38, 4608")
    e("    s_mov_b32 s39, 0x00020000")
    e("    s_mov_b32 s31, %d" % spin)
    e("    s_mul_i32 s42, s41, 1536")
    e("    s_mul_i32 s43, s40, 6")
    e("    s_add_u32 s42, s42, s43")
    e("    v_mul_u32_u24 v1, 24, v2")
    e("    v_add_u32 v1, s42, v1")
    e("    s_lshl_b32 s42, s3, 10")
    e(f"    s_add_u32 s42, s42, {L_WU}")
    e("    s_mov_b32 m0, s42")
    e("    v_lshlrev_b32 v27, 4, v0")
    e("    buffer_load_ushort v24, v1, s[32:35], 0 offen")
    e("    buffer_load_ushort v25, v1, s[32:35], 0 offen offset:2")
    e("    buffer_load_ushort v26, v1, s[32:35], 0 offen offset:4")
    e("    buffer_load_dwordx4 v27, s[36:39], 0 offen lds")
    NW = 4
    e("    s_mul_i32 s42, s40, 1536")
    e("    s_lshl_b32 s43, s41, 9")
    e("    s_add_u32 s42, s42, s43")
    e("    v_lshlrev_b32 v6, 5, v4")
    e("    v_lshl_add_u32 v6, v3, 3, v6")
    e("    v_add_u32 v6, s42, v6")
    e("    s_lshl_b32 s43, s41, 7")
    e("    v_lshlrev_b32 v7, 3, v4")
    e("    v_add_u32 v7, s43, v7")
    e("    v_subrev_u32 v1, 192, v7")
    e("    v_min_u32 v7, v7, v1")
    e("    v_lshlrev_b32 v7, 2, v7")
    e("    v_and_b32 v1, 1, v3")
    e("    v_lshrrev_b32 v31, 1, v3")
    e("    v_lshl_add_u32 v31, v1, 1, v31")
    e("    v_lshlrev_b32 v31, 2, v31            ; i(row)*4")
    e("    s_lshl_b32 s42, s41, 6")
    e("    s_lshl_b32 s43, s40, 4")
    e("    s_add_u32 s42, s42, s43")
    e("    v_add_u32 v4, s42, v31")
    e("    s_lshl_b32 s42, s41, 8")
    e("    v_lshlrev_b32 v3, 2, v2")
    e("    v_add_u32 v3, s42, v3")
    e("    v_lshlrev_b32 v1, 4, v2              ; lane*16")
    e(f"    s_mov_b32 s87, {VOTE}")
    for j in range(32):
        last = min(j + lvm - 1, 31)
        younger = (last - j) + (NW if j < lvm else 0)
        e(f"    s_waitcnt vmcnt({younger})")
        if j == lvm:
            e("    s_waitcnt lgkmcnt(0)")
            e("    s_add_u32 s28, s28, 1                ; epoch + 1")
            e("    s_xor_b32 s29, s28, 0x%08x           ; tag key" % MAGIC)
            e("    s_xor_b32 s88, s28, 0x%08x           ; vote key" % MAGIC2)
        if numa and j == A0 - lvm:
            e("    s_bitcmp1_b32 s2, 0")
            e("    s_cbranch_scc0 L_nodec")
            e("    s_cmp_lg_u32 s86, 2")
            e("    s_cbranch_scc1 L_decbar")
            e("L_vchk:")
            e("    v_bitop3_b32 v36, v32, v33, s88 bitop3:0x96")
            e("    v_bitop3_b32 v37, v34, v35, s88 bitop3:0x96")
            e("    v_or_b32 v36, v36, v37")
            e("    v_cmp_ne_u32 vcc, 0, v36")
            e("    s_cbranch_vccz L_vok")
            e("    s_sub_u32 s31, s31, 1")
            e("    s_cbranch_scc1 L_vok")
            e("    buffer_load_dwordx4 v[32:35], v1, s[24:27], s87 offen sc1")
            e("    s_waitcnt vmcnt(0)")
            e("    s_branch L_vchk")
            e("L_vok:")
            e("    v_add_u32 v36, v32, v34")
            for sh in (1, 2, 4, 8):
                e("    s_nop 1")
                e(f"    v_add_u32_dpp v36, v36, v36 row_shr:{sh} row_mask:0xf bank_mask:0xf bound_ctrl:0")
            e("    s_nop 1")
            e("    v_add_u32_dpp v36, v36, v36 row_bcast:15 row_mask:0xa bank_mask:0xf")
            e("    v_lshrrev_b32 v37, 3, v2")
            e("    v_and_b32 v37, 4, v37                ; (lane>=32)*4")
            e("    s_mov_b32 exec_lo, 0x80000000")
            e("    s_mov_b32 exec_hi, 0x80000000")
            e(f"    ds_write_b32 v37, v36 offset:{L_DEC}")
            e("    s_mov_b64 exec, -1")
            e("    s_waitcnt lgkmcnt(0)")
            stamp(1)
            e("L_decbar:")
            e("    s_barrier")
            e("    v_mov_b32 v36, 0")
            e(f"    ds_read_b64 v[36:37], v36 offset:{L_DEC}")
            e("    s_waitcnt lgkmcnt(0)")
            e("    v_readfirstlane_b32 s4, v36")
            e("    v_readfirstlane_b32 s5, v37")
            for r in range(2):
                wins = [(k, pp) for k, pp in enumerate(lorder) if pp in adaptive and region(pp) == r]
                if not wins:
                    continue
                e(f"    s_abs_i32 s42, s{4+r}")
                e(f"    s_cmp_lt_u32 s42, {thr}")
                e(f"    s_cbranch_scc1 L_keep{r}")
                e(f"    s_lshr_b32 s42, s{4+r}, 29")
                e("    s_xor_b32 s42, s42, s77")
                e("    s_bitcmp1_b32 s42, 2")
                e("    s_cselect_b32 s82, s80, s78")
                e("    s_cselect_b32 s83, s81, s79")
                e("    s_cselect_b32 s84, s78, s80")
                e("    s_cselect_b32 s85, s79, s81")
                for k, pp in wins:
                    b = 84 if (pp & 1) else 82
                    e(f"    s_add_u32 s{SO+2*k}, s{b}, {pp*WIN}")
                    e(f"    s_add_u32 s{SO+2*k+1}, s{b+1}, {pp*WIN}")
                e(f"L_keep{r}:")
            if dbgout:
                e("    s_mov_b32 s76, s4")
                e("    s_mov_b32 s89, s5")
            e("L_nodec:")
        if j + lvm < 32:
            k = j + lvm
            if evw >= 0 and j >= lvm and k >= pre:
                e("    s_bitcmp1_b32 s2, 0")
                e(f"    s_cbranch_scc1 L_ev{k}")
                e(f"    s_waitcnt vmcnt({evw})")
                e(f"L_ev{k}:")
            if numa and k < pre:
                e("    s_cmp_eq_u32 s86, 1")
                e(f"    s_cbranch_scc1 L_sk{k}")
                load(k)
                e(f"L_sk{k}:")
            else:
                load(k)
            if numa and k == G:
                e("    s_cmp_lg_u32 s86, 2")
                e("    s_cbranch_scc1 L_nog")
                e("    buffer_load_dwordx4 v[32:35], v1, s[24:27], s87 offen sc1")
                e("L_nog:")
        acc(j)
        if j == 20:
            for r in (24, 25, 26):
                e(f"    v_lshlrev_b32 v{r}, 16, v{r}")
    e("    s_nop 1")
    for i in range(4):
        e(f"    v_permlane32_swap_b32 v{8+i}, v{12+i}")
    for i in range(4):
        e(f"    v_add_f32 v{8+i}, v{8+i}, v{12+i}")
    e("    s_nop 0")
    e("    v_permlane16_swap_b32 v8, v10")
    e("    v_permlane16_swap_b32 v9, v11")
    e("    v_add_f32 v8, v8, v10")
    e("    v_add_f32 v9, v9, v11")
    e(f"    ds_write_b64 v6, v[8:9] offset:{L_M}")
    e("    s_waitcnt lgkmcnt(0)")
    e("    s_barrier")
    stamp(3)
    for k in range(4):
        e(f"    ds_read2st64_b32 v[{16+2*k}:{17+2*k}], v3 offset0:{6*k} offset1:{6*k+3}")
    e("    s_waitcnt lgkmcnt(2)" if not (diag or enc) else "    s_waitcnt lgkmcnt(0)")
    e("    v_pk_add_f32 v[16:17], v[16:17], v[18:19]")
    e("    s_waitcnt lgkmcnt(0)")
    e("    v_pk_add_f32 v[20:21], v[20:21], v[22:23]")
    e("    v_pk_add_f32 v[16:17], v[16:17], v[20:21]")
    e("    v_add_f32 v16, v16, v17")
    e("    v_mul_f32 v10, v16, v26")
    e("    v_mul_f32 v11, v16, v26")
    e("    v_mul_f32 v8, v16, v24")
    e("    v_mul_f32 v9, v16, v25")
    e("    v_permlane32_swap_b32 v10, v11")
    e("    s_nop 0")
    e("    v_permlane32_swap_b32 v8, v9")
    e("    v_add_f32 v10, v10, v11              ; [c | c]")
    e("    v_add_f32 v8, v8, v9                 ; [a | b]")
    e("    s_nop 1")
    e("    v_permlane16_swap_b32 v8, v10")
    e("    v_add_f32 v8, v8, v10                ; rows: a, c, b, c")
    e("    s_nop 1")
    e("    v_add_f32_dpp v9, v8, v8 row_shr:1 row_mask:0xf bank_mask:0xf bound_ctrl:0")
    e("    v_add_f32_dpp v9, v8, v9 row_shr:2 row_mask:0xf bank_mask:0xf bound_ctrl:0")
    e("    v_add_f32_dpp v9, v8, v9 row_shr:3 row_mask:0xf bank_mask:0xf bound_ctrl:0")
    e("    s_nop 1")
    e("    v_add_f32_dpp v9, v9, v9 row_shr:4 row_mask:0xf bank_mask:0xf bound_ctrl:0")
    e("    s_nop 1")
    e("    v_add_f32_dpp v9, v9, v9 row_shr:8 row_mask:0xf bank_mask:0xf bound_ctrl:0")
    e("    s_mov_b32 exec_lo, 0x80008000")
    e("    s_mov_b32 exec_hi, 0x00008000")
    e(f"    ds_write_b32 v4, v9 offset:{L_HP}")
    e("    s_mov_b64 exec, -1")
    e("    s_lshl_b32 s42, s2, 6")
    e("    s_cmp_lg_u32 s3, 4")
    e("    s_waitcnt lgkmcnt(0)")
    e("    s_barrier")
    e("    s_cbranch_scc1 L_notpub")
    e("    s_mov_b64 exec, 15")
    e(f"    ds_read_b128 v[8:11], v1 offset:{L_HP}")
    e(f"    ds_read_b128 v[12:15], v1 offset:{L_HP+64}")
    e(f"    ds_read_b128 v[16:19], v1 offset:{L_HP+128}")
    e("    s_waitcnt lgkmcnt(1)")
    e("    v_pk_add_f32 v[8:9], v[8:9], v[12:13]")
    e("    v_add_f32 v10, v10, v14")
    e("    s_waitcnt lgkmcnt(0)")
    e("    v_pk_add_f32 v[8:9], v[8:9], v[16:17]")
    e("    v_add_f32 v10, v10, v18")
    e("    v_bitop3_b32 v11, v8, v9, s29 bitop3:0x96")
    e("    v_xor_b32 v11, v11, v10")
    e(f"    buffer_store_dwordx4 v[8:11], v1, s[24:27], s42 offen {pubf}")
    e("    s_mov_b64 exec, -1")
    stamp(7)
    e("    s_branch L_b3")
    e("L_notpub:")
    e("    s_cmp_lt_u32 s3, 4")
    e("    s_cbranch_scc1 L_poll_start")
    e("    s_cmp_gt_u32 s3, 7")
    e("    s_cbranch_scc1 L_b3")
    e("    v_subrev_u32 v1, 320, v0")
    e("    v_lshlrev_b32 v21, 2, v1")
    e("    v_lshlrev_b32 v1, 1, v1")
    for r in range(12):
        e(f"    ds_read_u16 v{8+r}, v1 offset:{L_WU+384*r}")
    e("    v_and_b32 v20, 15, v2")
    e("    v_lshlrev_b32 v20, 2, v20")
    e(f"    v_add_u32 v20, {L_P}, v20")
    e("    s_waitcnt lgkmcnt(0)")
    for r in range(12):
        e(f"    v_lshlrev_b32 v{8+r}, 16, v{8+r}")
    e("    s_barrier")
    e("    ds_read2_b32 v[22:23], v20 offset0:0 offset1:16")
    e("    ds_read2_b32 v[24:25], v20 offset0:32 offset1:48")
    e("    s_waitcnt lgkmcnt(0)")
    e("    v_pk_add_f32 v[22:23], v[22:23], v[24:25]")
    e("    v_add_f32 v22, v22, v23")
    e("    v_mul_f32 v22, 0x36800000, v22       ; * 2^-18")
    e("    v_cvt_pk_bf16_f32 v22, v22, v22")
    e("    v_lshlrev_b32 v22, 16, v22")
    e("    v_mul_f32 v23, 0xbfb8aa3b, v22       ; -log2e * x")
    e("    v_exp_f32 v23, v23")
    e("    s_nop 0")
    e("    v_add_f32 v23, 1.0, v23")
    e("    v_rcp_f32 v23, v23")
    e("    s_nop 0")
    e("    v_mul_f32 v22, v22, v23")
    e("    v_cvt_pk_bf16_f32 v22, v22, v22")
    e("    v_lshlrev_b32 v22, 16, v22")
    e("    s_nop 1")
    for r in range(12):
        a = 23 + (r % 3)
        op = "v_mul_f32_dpp" if r < 3 else "v_fmac_f32_dpp"
        e(f"    {op} v{a}, v22, v{8+r} row_newbcast:{r} row_mask:0xf bank_mask:0xf")
    e("    v_add_f32 v23, v23, v24")
    e("    v_add_f32 v23, v23, v25")
    e("    v_cvt_pk_bf16_f32 v23, v23, v23")
    e("    v_lshlrev_b32 v23, 16, v23")
    e("    v_mul_f32 v23, 0xbfb8aa3b, v23")
    e("    v_exp_f32 v23, v23")
    e("    s_nop 0")
    e("    v_add_f32 v23, 1.0, v23")
    e("    v_rcp_f32 v23, v23")
    e("    s_nop 0")
    e("    v_cvt_pk_bf16_f32 v23, v23, v23")
    e("    v_lshlrev_b32 v23, 16, v23")
    e(f"    ds_write_b32 v21, v23 offset:{L_G}")
    e("    s_waitcnt lgkmcnt(0)")
    e("    s_branch L_b4")

    e("L_poll_start:")
    e("    s_lshl_b32 s42, s3, 12")
    e("    v_and_b32 v27, 3, v2")
    e("    v_mul_u32_u24 v27, 12, v27")
    e("    s_lshl_b32 s43, s3, 6")
    e("    v_add3_u32 v31, v31, v27, s43")
    regs = (8, 12, 16, 20)
    for k in range(4):
        e(f"    s_mov_b64 s[{4+2*k}:{5+2*k}], -1")
    e("L_poll:")
    for k in range(4):
        e(f"    s_mov_b64 exec, s[{4+2*k}:{5+2*k}]")
        e(f"    s_cbranch_execz L_skip{k}")
        e(f"    buffer_load_dwordx4 v[{regs[k]}:{regs[k]+3}], v1, s[24:27], s42 offen offset:{1024*k} {pollf}")
        e(f"L_skip{k}:")
    e("    s_mov_b64 exec, -1")
    e("    s_waitcnt vmcnt(0)")
    for k in range(4):
        r = regs[k]
        e(f"    v_bitop3_b32 v{27+k}, v{r}, v{r+1}, s29 bitop3:0x96")
    for k in range(4):
        r = regs[k]
        e(f"    v_bitop3_b32 v{27+k}, v{27+k}, v{r+2}, v{r+3} bitop3:0x96")
    for k in range(4):
        e(f"    v_cmp_ne_u32 s[{4+2*k}:{5+2*k}], 0, v{27+k}")
    e("    s_or_b64 s[82:83], s[4:5], s[6:7]")
    e("    s_or_b64 vcc, s[8:9], s[10:11]")
    e("    s_or_b64 s[82:83], s[82:83], vcc")
    e("    s_cbranch_scc0 L_poll_ok")
    e("    s_sub_u32 s31, s31, 1")
    e("    s_cbranch_scc1 L_poll_ok")
    if sleep:
        e(f"    s_sleep {sleep}")
    e("    s_branch L_poll")
    e("L_poll_ok:")
    stamp(7)
    e("    v_add_f32 v10, v10, v14")
    e("    v_add_f32 v18, v18, v22")
    e("    v_pk_add_f32 v[8:9], v[8:9], v[12:13]")
    e("    v_pk_add_f32 v[16:17], v[16:17], v[20:21]")
    e("    v_add_f32 v11, v10, v18")
    e("    v_add_f32 v10, v10, v18")
    e("    v_pk_add_f32 v[8:9], v[8:9], v[16:17]")
    e("    s_nop 0")
    e("    v_permlane32_swap_b32 v10, v11")
    e("    v_permlane32_swap_b32 v8, v9")
    e("    v_add_f32 v10, v10, v11              ; [c | c]")
    e("    v_add_f32 v8, v8, v9                 ; [a | b]")
    e("    s_nop 1")
    e("    v_permlane16_swap_b32 v8, v10")
    e("    v_add_f32 v8, v8, v10                ; rows: a, c, b, c")
    e("    s_nop 1")
    e("    v_add_f32_dpp v8, v8, v8 row_shr:4 row_mask:0xf bank_mask:0xf bound_ctrl:0")
    e("    s_nop 1")
    e("    v_add_f32_dpp v8, v8, v8 row_shr:8 row_mask:0xf bank_mask:0xf bound_ctrl:0")
    e("    s_mov_b32 exec_lo, 0xf000f000")
    e("    s_mov_b32 exec_hi, 0x0000f000")
    e(f"    ds_write_b32 v31, v8 offset:{L_P}")
    e("    s_mov_b64 exec, -1")
    e("    s_waitcnt lgkmcnt(0)")
    e("L_b3:")
    e("    s_barrier")
    e("L_b4:")
    e("    s_barrier")
    e(f"    ds_read_b128 v[8:11], v7 offset:{L_G}")
    e(f"    ds_read_b128 v[12:15], v7 offset:{L_G+16}")

    cnt = [0]

    def scale_store(slot, first=False):
        t = 16 + 8 * (cnt[0] & 1)
        cnt[0] += 1
        for i in range(4):
            d = dreg(slot) + i
            e(f"    v_lshlrev_b32 v{t+2*i}, 16, v{d}")
            e(f"    v_and_b32 v{t+1+2*i}, s30, v{d}")
        if first:
            e("    s_waitcnt lgkmcnt(0)")
            stamp(5)
        for i in range(4):
            e(f"    v_pk_mul_f32 v[{t+2*i}:{t+1+2*i}], v[{t+2*i}:{t+1+2*i}], v[{8+2*i}:{9+2*i}]")
        for i in range(4):
            d = dreg(slot) + i
            e(f"    v_cvt_pk_bf16_f32 v{d}, v{t+2*i}, v{t+1+2*i}")
        d = dreg(slot)
        e(f"    buffer_store_dwordx4 v[{d}:{d+3}], v5, s[20:23], s{SO+slot} offen{stf}")

    sslots = []
    for pp in sorder:
        k = lorder.index(pp)
        sslots += [2 * k, 2 * k + 1]
    for j in range(32):
        scale_store(sslots[j], first=(j == 0))
        if sbar and (j + 1) % sbar == 0 and j != 31:
            e("    s_barrier")
    e("    s_cmp_lg_u32 s2, 1")
    e("    s_cbranch_scc1 L_noep")
    e("    s_cmp_lg_u32 s3, 11")
    e("    s_cbranch_scc1 L_noep")
    e(f"    v_mov_b32 v1, {EPOCH}")
    e("    v_mov_b32 v3, s28")
    e("    s_mov_b64 exec, 1")
    e("    buffer_store_dword v3, v1, s[24:27], 0 offen sc1")
    if dbgout:
        e("    s_mov_b32 s32, s12")
        e("    s_mov_b32 s33, s13")
        e("    s_mov_b32 s34, 256")
        e("    v_mov_b32 v16, s76")
        e("    v_mov_b32 v17, s89")
        e("    v_mov_b32 v1, 0")
        e("    buffer_store_dwordx2 v[16:17], v1, s[32:35], 0 offen")
    e("    s_mov_b64 exec, -1")
    e("L_noep:")
    if enc:
        e("    s_waitcnt vmcnt(0)")
        stamp(6)
        e("    s_waitcnt lgkmcnt(0)")
        a, b = {1: (0, 0), 2: (0, 3), 3: (0, 5), 4: (5, 6), 5: (0, 6), 6: (5, 7), 7: (0, 5)}[enc]
        e(f"    s_sub_u32 s42, s{ST+2*smap[b]}, s{ST+2*smap[a]}")
        if enc >= 6:
            e("    s_lshr_b32 s42, s42, 4")
        if encpar >= 0:
            e("    s_bitcmp1_b32 s2, 0")
            e(f"    s_cselect_b32 s42, s42, 0" if encpar == 1 else "    s_cselect_b32 s42, 0, s42")
        e("L_enc:")
        e("    s_memrealtime s[4:5]")
        e("    s_waitcnt lgkmcnt(0)")
        e(f"    s_sub_u32 s43, s4, s{ST+2*smap[6]}")
        e("    s_cmp_lt_u32 s43, s42")
        e("    s_cbranch_scc1 L_enc")
    if diag:
        e("    s_waitcnt vmcnt(0)")
        stamp(6)
        e("    s_waitcnt lgkmcnt(0)")
        e("    s_mul_i32 s42, s2, 12")
        e("    s_add_u32 s42, s42, s3")
        e("    s_lshl_b32 s42, s42, 7")
        e(f"    s_add_u32 s42, s42, {DIAG}")
        e("    v_mov_b32 v1, s42")
        e("    s_mov_b64 exec, 1")
        inv = {v: k for k, v in smap.items()}
        for k in range(6):
            e(f"    v_mov_b32 v16, s{ST+2*k}")
            e(f"    v_mov_b32 v17, s{ST+2*k+1}")
            e(f"    buffer_store_dwordx2 v[16:17], v1, s[24:27], 0 offen offset:{8*inv[k]}")
            e("    s_nop 2")
        e("    v_mov_b32 v16, 0")
        e("    v_mov_b32 v17, s31")
        e("    buffer_store_dwordx2 v[16:17], v1, s[24:27], 0 offen offset:88")
    e("L_exit:")
    e("    s_endpgm")
    e('.section .rodata,"a"')
    e(".p2align 6")
    e(f".amdhsa_kernel {NAME}")
    e("  .amdhsa_next_free_vgpr 168")
    e("  .amdhsa_next_free_sgpr 102")
    e("  .amdhsa_accum_offset 168")
    e("  .amdhsa_group_segment_fixed_size 0")
    e("  .amdhsa_kernarg_size 48")
    e("  .amdhsa_user_sgpr_count 2")
    e("  .amdhsa_user_sgpr_kernarg_segment_ptr 1")
    e("  .amdhsa_system_sgpr_workgroup_id_x 1")
    e("  .amdhsa_float_denorm_mode_32 3")
    e(".end_amdhsa_kernel")
    sys.stderr.write(f"lorder {lorder} sorder {sorder} A0 {A0} G {G}\n")
    return "\n".join(o) + "\n"


if __name__ == "__main__":
    ap = argparse.ArgumentParser()
    ap.add_argument("-o", default="-")
    ap.add_argument("--ld", default="nt")
    ap.add_argument("--st", default="sc0 sc1")
    ap.add_argument("--diag", action="store_true")
    for name, dv in (("sleep", 0), ("sbar", 2), ("lvm", 3), ("ns", 8), ("pre", 9), ("pairs", 2), ("thr", 14), ("numa", 1), ("dbgout", 0), ("evw", -1), ("enc", 0), ("encpar", -1)):
        ap.add_argument("--" + name, type=int, default=dv)
    ap.add_argument("--pubf", default="sc1")
    ap.add_argument("--pollf", default="sc1")
    a = ap.parse_args()
    kw = vars(a).copy()
    out = kw.pop("o")
    s = gen(**kw)
    if out == "-":
        sys.stdout.write(s)
    else:
        open(out, "w").write(s)
```

```python
import sys, argparse

HEADER = """; Kernarg layout for this problem (48 bytes, ptrs only, base s[0:1]):
"""

NAME = "standalone__channel_attn_se__vision_kernel"
XBYTES = 100663296
MAGIC = 0x5BD1E995
MAGIC2 = 0x2C1B3C6D

L_M = 0
L_HP = 6144
L_P = 6400
L_G = 6656
L_DEC = 7424
L_WU = 8192
LDS = 20480
VOTE = 32768
EPOCH = 65536
DIAG = 1 << 20
WS_BYTES = 2 << 20
SB = 49152
WIN = 128 * SB


def gen(ld="nt", st="sc0 sc1", diag=False, sleep=0, spin=400000, pubf="sc1", pollf="sc1", sbar=2,
        lvm=3, ns=8, pre=9, pairs=2, thr=14, numa=1, dbgout=0, evw=-1, enc=0, encpar=-1, tlbx=0, tlbo=0, tstep=8):
    o = []
    e = o.append
    ldf = (" " + ld) if ld else ""
    stf = (" " + st) if st else ""
    D0 = 40
    SO = 44
    ST = 90
    na = 16 - ns
    adaptive = []
    for i in range(na):
        adaptive.append((15 - i // 2) if i % 2 == 0 else (9 - i // 2))
    adaptive = adaptive[::-1]
    static = [pp for pp in range(16) if pp not in adaptive]
    lorder = static + adaptive
    sorder = []
    si, ai = 0, 0
    for k in range(16):
        if ai < na and (ai + 1) * 16 <= (k + 1) * na + (16 - na) // 2 * 0 + 0 or si >= len(static):
            sorder.append(adaptive[ai]); ai += 1
        else:
            sorder.append(static[si]); si += 1
    assert sorted(sorder) == list(range(16))
    region = lambda pp: 0 if pp < 10 else 1
    A0 = 2 * ns
    G = A0 - lvm - 1
    e(HEADER.rstrip())
    e(f"; @launch grid=(256,1,1) block=(768,1,1) lds={LDS}")
    e('.amdgcn_target "amdgcn-amd-amdhsa--gfx950"')
    e(".text")
    e(f".globl {NAME}")
    e(".p2align 8")
    e(f".type {NAME},@function")
    e(f"{NAME}:")
    smap = {0: 0, 1: 1, 3: 2, 5: 3, 6: 4, 7: 5}

    def stamp(i):
        if (diag or enc) and i in smap:
            k = smap[i]
            if enc >= 6 and i in (0, 3, 5):
                e(f"    s_memtime s[{ST+2*k}:{ST+1+2*k}]")
            elif enc >= 6 and i in (1, 7):
                pass
            else:
                e(f"    s_memrealtime s[{ST+2*k}:{ST+1+2*k}]")
                if enc >= 6 and i == 6:
                    e(f"    s_memtime s[{ST+2*smap[7]}:{ST+1+2*smap[7]}]")

    def dreg(slot):
        return D0 + 4 * slot

    def load(slot):
        d = dreg(slot)
        e(f"    buffer_load_dwordx4 v[{d}:{d+3}], v5, s[16:19], s{SO+slot} offen{ldf}")

    def acc(slot):
        for i in range(4):
            d = dreg(slot) + i
            if slot == 0:
                e(f"    v_lshlrev_b32 v{8+2*i}, 16, v{d}")
                e(f"    v_and_b32 v{9+2*i}, s30, v{d}")
            else:
                e(f"    v_lshlrev_b32 v{16+2*i}, 16, v{d}")
                e(f"    v_and_b32 v{17+2*i}, s30, v{d}")
        if slot:
            for i in range(4):
                e(f"    v_pk_add_f32 v[{8+2*i}:{9+2*i}], v[{8+2*i}:{9+2*i}], v[{16+2*i}:{17+2*i}]")

    e("    s_cmp_ge_u32 s2, 256")
    e("    s_cbranch_scc1 L_exit")
    e("    s_load_dwordx4 s[4:7], s[0:1], 0")
    e("    s_load_dwordx4 s[8:11], s[0:1], 16")
    e("    s_load_dwordx4 s[12:15], s[0:1], 32")
    if diag:
        for i in range(6):
            e(f"    s_mov_b64 s[{ST+2*i}:{ST+1+2*i}], 0")
    stamp(0)
    e("    v_lshrrev_b32 v1, 6, v0")
    e("    v_and_b32 v2, 63, v0                 ; lane")
    e("    v_readfirstlane_b32 s3, v1")
    e("    v_lshrrev_b32 v3, 4, v2              ; q (row)")
    e("    v_and_b32 v4, 15, v2                 ; n")
    e("    s_mul_i32 s40, s3, 11")
    e("    s_lshr_b32 s40, s40, 5")
    e("    s_mul_i32 s41, s40, 3")
    e("    s_sub_u32 s41, s3, s41               ; seg = wave%3")
    e("    s_lshl_b32 s43, s41, 8")
    e("    v_mul_u32_u24 v5, 768, v3")
    e("    v_lshl_add_u32 v5, v4, 4, v5")
    e("    v_add_u32 v5, s43, v5                ; v5 = q*768 + seg*256 + n*16")
    e("    s_mov_b32 s18, %d" % XBYTES)
    e("    s_mov_b32 s19, 0x00020000")
    e("    s_mov_b32 s30, 0xffff0000")
    e("    s_lshr_b32 s42, s2, 3")
    e("    s_lshl_b32 s42, s42, 2")
    e("    s_and_b32 s43, s2, 3")
    e("    s_add_u32 s42, s42, s43")
    e(f"    s_mul_i32 s76, s42, {SB}")
    e("    s_lshl_b32 s43, s40, 2")
    e("    s_lshr_b32 s78, 0x5210, s43")
    e("    s_and_b32 s78, s78, 15")
    e("    s_lshr_b32 s79, 0xcb76, s43")
    e("    s_and_b32 s79, s79, 15")
    e("    s_mul_i32 s78, s78, 3072")
    e("    s_mul_i32 s79, s79, 3072")
    e("    s_sub_u32 s80, 46080, s78")
    e("    s_sub_u32 s81, 46080, s79")
    for r in (78, 79, 80, 81):
        e(f"    s_add_u32 s{r}, s{r}, s76")
    e("    s_add_u32 s77, s76, 24576")
    e("    s_lshr_b32 s77, s77, 19")
    e("    s_xor_b32 s77, s77, s2")
    e("    s_lshr_b32 s42, s2, 1")
    e("    s_xor_b32 s42, s42, s77")
    e("    s_bitcmp1_b32 s42, 2")
    e("    s_cselect_b32 s82, s80, s78          ; E0")
    e("    s_cselect_b32 s83, s81, s79          ; E1")
    e("    s_cselect_b32 s84, s78, s80          ; O0")
    e("    s_cselect_b32 s85, s79, s81          ; O1")
    seen = [0, 0]
    for k, pp in enumerate(lorder):
        u = seen[region(pp)] & 1
        seen[region(pp)] += 1
        b = 84 if ((pp ^ u) & 1) else 82
        e(f"    s_add_u32 s{SO+2*k}, s{b}, {pp*WIN}")
        e(f"    s_add_u32 s{SO+2*k+1}, s{b+1}, {pp*WIN}")
    e("    s_and_b32 s86, s2, 1")
    e("    s_add_u32 s86, s86, 1")
    e("    s_cmp_eq_u32 s3, 0")
    e("    s_cselect_b32 s86, s86, 0")
    e("    s_waitcnt lgkmcnt(0)")
    e("    s_mov_b32 s16, s4")
    e("    s_mov_b32 s17, s5")
    for s in range(lvm):
        load(s)
    if tlbx or tlbo:
        e("    s_lshl_b32 s42, s3, 23")
        e("    v_lshlrev_b32 v39, %d, v2" % (21 if max(tlbx, tlbo) == 1 else 20))
        e("    v_add_u32 v39, s42, v39")
    if tlbx:
        e("    s_mov_b64 exec, %d" % (15 if tlbx == 1 else 255))
        e("    buffer_load_dword v38, v39, s[16:19], 0 offen")
        e("    s_mov_b64 exec, -1")
    e(f"    s_load_dword s28, s[14:15], {EPOCH}")
    e("    s_mov_b32 s24, s14")
    e("    s_mov_b32 s25, s15")
    e("    s_mov_b32 s26, %d" % WS_BYTES)
    e("    s_mov_b32 s27, 0x00020000")
    if numa:
        e("    s_cmp_lg_u32 s86, 1")
        e("    s_cbranch_scc1 L_noprobe")
        e("    s_bfe_u32 s42, s2, 0x10001           ; r = bit1")
        e("    s_add_u32 s42, s42, 1")
        e(f"    s_mul_i32 s42, s42, {40<<20}")
        e("    s_bfe_u32 s43, s2, 0x30003           ; i & 7")
        e("    s_lshl_b32 s43, s43, 21")
        e("    s_add_u32 s42, s42, s43")
        e("    s_lshr_b32 s43, s2, 6")
        e("    s_lshl_b32 s43, s43, 18")
        e("    s_add_u32 s42, s42, s43")
        e("    s_bfe_u32 s43, s2, 0x10002           ; L")
        e("    s_lshl_b32 s43, s43, 17")
        e("    s_add_u32 s42, s42, s43")
        e("    s_add_u32 s20, s10, s42")
        e("    s_addc_u32 s21, s11, 0")
        e("    s_load_dword s22, s[20:21], 4096")
        for s in range(lvm, pre):
            load(s)
        e("    s_waitcnt lgkmcnt(0)")
        offs = [0, 8192, 24576 + 256, 16384 + 256, 32768 + 512, 40960 + 512][:2 * pairs]
        e("    s_memtime s[32:33]")
        e("    s_waitcnt lgkmcnt(0)")
        for i, of in enumerate(offs):
            a, b = (32, 34) if i % 2 == 0 else (34, 32)
            e(f"    s_load_dword s22, s[20:21], {of}")
            e("    s_waitcnt lgkmcnt(0)")
            e(f"    s_memtime s[{b}:{b+1}]")
            e("    s_waitcnt lgkmcnt(0)")
            e(f"    s_sub_u32 s{36+(i&1)}, s{b}, s{a}")
            if i % 2 == 1:
                if (i // 2) % 2 == 0:
                    e("    s_cmp_gt_u32 s37, s36")
                else:
                    e("    s_cmp_gt_u32 s36, s37")
                if i == 1:
                    e("    s_cselect_b32 s38, 1, -1")
                else:
                    e("    s_cselect_b32 s39, 1, -1")
                    e("    s_add_i32 s38, s38, s39")
        e("    s_lshr_b32 s42, s2, 1")
        e("    s_xor_b32 s42, s42, s2")
        e("    s_sub_i32 s39, 0, s38")
        e("    s_bitcmp1_b32 s42, 2")
        e("    s_cselect_b32 s38, s39, s38")
        e("    s_add_u32 s39, s28, 1")
        e("    s_xor_b32 s39, s39, 0x%08x" % MAGIC2)
        e("    s_xor_b32 s39, s39, s38")
        e("    s_bfe_u32 s42, s2, 0x10001")
        e("    s_lshl_b32 s42, s42, 6")
        e("    s_lshr_b32 s43, s2, 2                ; i*2 + L")
        e("    s_add_u32 s42, s42, s43")
        e("    s_lshl_b32 s42, s42, 3")
        e(f"    s_add_u32 s42, s42, {VOTE}")
        e("    v_mov_b32 v32, s38")
        e("    v_mov_b32 v33, s39")
        e("    v_mov_b32 v34, s42")
        e("    s_mov_b64 exec, 1")
        e("    buffer_store_dwordx2 v[32:33], v34, s[24:27], 0 offen sc1")
        e("    s_mov_b64 exec, -1")
        stamp(1)
        e("L_noprobe:")
    e("    s_mov_b32 s20, s10")
    e("    s_mov_b32 s21, s11")
    e("    s_mov_b32 s22, %d" % XBYTES)
    e("    s_mov_b32 s23, 0x00020000")
    e("    s_mov_b32 s32, s6")
    e("    s_mov_b32 s33, s7")
    e("    s_mov_b32 s34, 4608")
    e("    s_mov_b32 s35, 0x00020000")
    e("    s_mov_b32 s36, s8")
    e("    s_mov_b32 s37, s9")
    e("    s_mov_b32 s38, 4608")
    e("    s_mov_b32 s39, 0x00020000")
    e("    s_mov_b32 s31, %d" % spin)
    e("    s_mul_i32 s42, s41, 1536")
    e("    s_mul_i32 s43, s40, 6")
    e("    s_add_u32 s42, s42, s43")
    e("    v_mul_u32_u24 v1, 24, v2")
    e("    v_add_u32 v1, s42, v1")
    e("    s_lshl_b32 s42, s3, 10")
    e(f"    s_add_u32 s42, s42, {L_WU}")
    e("    s_mov_b32 m0, s42")
    e("    v_lshlrev_b32 v27, 4, v0")
    e("    buffer_load_ushort v24, v1, s[32:35], 0 offen")
    e("    buffer_load_ushort v25, v1, s[32:35], 0 offen offset:2")
    e("    buffer_load_ushort v26, v1, s[32:35], 0 offen offset:4")
    e("    buffer_load_dwordx4 v27, s[36:39], 0 offen lds")
    NW = 4
    e("    s_mul_i32 s42, s40, 1536")
    e("    s_lshl_b32 s43, s41, 9")
    e("    s_add_u32 s42, s42, s43")
    e("    v_lshlrev_b32 v6, 5, v4")
    e("    v_lshl_add_u32 v6, v3, 3, v6")
    e("    v_add_u32 v6, s42, v6")
    e("    s_lshl_b32 s43, s41, 7")
    e("    v_lshlrev_b32 v7, 3, v4")
    e("    v_add_u32 v7, s43, v7")
    e("    v_subrev_u32 v1, 192, v7")
    e("    v_min_u32 v7, v7, v1")
    e("    v_lshlrev_b32 v7, 2, v7")
    e("    v_and_b32 v1, 1, v3")
    e("    v_lshrrev_b32 v31, 1, v3")
    e("    v_lshl_add_u32 v31, v1, 1, v31")
    e("    v_lshlrev_b32 v31, 2, v31            ; i(row)*4")
    e("    s_lshl_b32 s42, s41, 6")
    e("    s_lshl_b32 s43, s40, 4")
    e("    s_add_u32 s42, s42, s43")
    e("    v_add_u32 v4, s42, v31")
    e("    s_lshl_b32 s42, s41, 8")
    e("    v_lshlrev_b32 v3, 2, v2")
    e("    v_add_u32 v3, s42, v3")
    e("    v_lshlrev_b32 v1, 4, v2              ; lane*16")
    e(f"    s_mov_b32 s87, {VOTE}")
    for j in range(32):
        last = min(j + lvm - 1, 31)
        younger = (last - j) + (NW if j < lvm else 0)
        e(f"    s_waitcnt vmcnt({younger})")
        if j == lvm:
            e("    s_waitcnt lgkmcnt(0)")
            e("    s_add_u32 s28, s28, 1                ; epoch + 1")
            e("    s_xor_b32 s29, s28, 0x%08x           ; tag key" % MAGIC)
            e("    s_xor_b32 s88, s28, 0x%08x           ; vote key" % MAGIC2)
        if numa and j == A0 - lvm:
            e("    s_bitcmp1_b32 s2, 0")
            e("    s_cbranch_scc0 L_nodec")
            e("    s_cmp_lg_u32 s86, 2")
            e("    s_cbranch_scc1 L_decbar")
            e("L_vchk:")
            e("    v_bitop3_b32 v36, v32, v33, s88 bitop3:0x96")
            e("    v_bitop3_b32 v37, v34, v35, s88 bitop3:0x96")
            e("    v_or_b32 v36, v36, v37")
            e("    v_cmp_ne_u32 vcc, 0, v36")
            e("    s_cbranch_vccz L_vok")
            e("    s_sub_u32 s31, s31, 1")
            e("    s_cbranch_scc1 L_vok")
            e("    buffer_load_dwordx4 v[32:35], v1, s[24:27], s87 offen sc1")
            e("    s_waitcnt vmcnt(0)")
            e("    s_branch L_vchk")
            e("L_vok:")
            e("    v_add_u32 v36, v32, v34")
            for sh in (1, 2, 4, 8):
                e("    s_nop 1")
                e(f"    v_add_u32_dpp v36, v36, v36 row_shr:{sh} row_mask:0xf bank_mask:0xf bound_ctrl:0")
            e("    s_nop 1")
            e("    v_add_u32_dpp v36, v36, v36 row_bcast:15 row_mask:0xa bank_mask:0xf")
            e("    v_lshrrev_b32 v37, 3, v2")
            e("    v_and_b32 v37, 4, v37                ; (lane>=32)*4")
            e("    s_mov_b32 exec_lo, 0x80000000")
            e("    s_mov_b32 exec_hi, 0x80000000")
            e(f"    ds_write_b32 v37, v36 offset:{L_DEC}")
            e("    s_mov_b64 exec, -1")
            e("    s_waitcnt lgkmcnt(0)")
            stamp(1)
            e("L_decbar:")
            e("    s_barrier")
            e("    v_mov_b32 v36, 0")
            e(f"    ds_read_b64 v[36:37], v36 offset:{L_DEC}")
            e("    s_waitcnt lgkmcnt(0)")
            e("    v_readfirstlane_b32 s4, v36")
            e("    v_readfirstlane_b32 s5, v37")
            for r in range(2):
                wins = [(k, pp) for k, pp in enumerate(lorder) if pp in adaptive and region(pp) == r]
                if not wins:
                    continue
                e(f"    s_abs_i32 s42, s{4+r}")
                e(f"    s_cmp_lt_u32 s42, {thr}")
                e(f"    s_cbranch_scc1 L_keep{r}")
                e(f"    s_lshr_b32 s42, s{4+r}, 29")
                e("    s_xor_b32 s42, s42, s77")
                e("    s_bitcmp1_b32 s42, 2")
                e("    s_cselect_b32 s82, s80, s78")
                e("    s_cselect_b32 s83, s81, s79")
                e("    s_cselect_b32 s84, s78, s80")
                e("    s_cselect_b32 s85, s79, s81")
                for k, pp in wins:
                    b = 84 if (pp & 1) else 82
                    e(f"    s_add_u32 s{SO+2*k}, s{b}, {pp*WIN}")
                    e(f"    s_add_u32 s{SO+2*k+1}, s{b+1}, {pp*WIN}")
                e(f"L_keep{r}:")
            if dbgout:
                e("    s_mov_b32 s76, s4")
                e("    s_mov_b32 s89, s5")
            e("L_nodec:")
        if j + lvm < 32:
            k = j + lvm
            if evw >= 0 and j >= lvm and k >= pre:
                e("    s_bitcmp1_b32 s2, 0")
                e(f"    s_cbranch_scc1 L_ev{k}")
                e(f"    s_waitcnt vmcnt({evw})")
                e(f"L_ev{k}:")
            if numa and k < pre:
                e("    s_cmp_eq_u32 s86, 1")
                e(f"    s_cbranch_scc1 L_sk{k}")
                load(k)
                e(f"L_sk{k}:")
            else:
                load(k)
            if numa and k == G:
                e("    s_cmp_lg_u32 s86, 2")
                e("    s_cbranch_scc1 L_nog")
                e("    buffer_load_dwordx4 v[32:35], v1, s[24:27], s87 offen sc1")
                e("L_nog:")
        if tlbo and j == tstep:
            e("    s_mov_b64 exec, %d" % (15 if tlbo == 1 else 255))
            e("    buffer_load_dword v38, v39, s[20:23], 0 offen")
            e("    s_mov_b64 exec, -1")
        acc(j)
        if j == 20:
            for r in (24, 25, 26):
                e(f"    v_lshlrev_b32 v{r}, 16, v{r}")
    e("    s_nop 1")
    for i in range(4):
        e(f"    v_permlane32_swap_b32 v{8+i}, v{12+i}")
    for i in range(4):
        e(f"    v_add_f32 v{8+i}, v{8+i}, v{12+i}")
    e("    s_nop 0")
    e("    v_permlane16_swap_b32 v8, v10")
    e("    v_permlane16_swap_b32 v9, v11")
    e("    v_add_f32 v8, v8, v10")
    e("    v_add_f32 v9, v9, v11")
    e(f"    ds_write_b64 v6, v[8:9] offset:{L_M}")
    e("    s_waitcnt lgkmcnt(0)")
    e("    s_barrier")
    stamp(3)
    for k in range(4):
        e(f"    ds_read2st64_b32 v[{16+2*k}:{17+2*k}], v3 offset0:{6*k} offset1:{6*k+3}")
    e("    s_waitcnt lgkmcnt(2)" if not (diag or enc) else "    s_waitcnt lgkmcnt(0)")
    e("    v_pk_add_f32 v[16:17], v[16:17], v[18:19]")
    e("    s_waitcnt lgkmcnt(0)")
    e("    v_pk_add_f32 v[20:21], v[20:21], v[22:23]")
    e("    v_pk_add_f32 v[16:17], v[16:17], v[20:21]")
    e("    v_add_f32 v16, v16, v17")
    e("    v_mul_f32 v10, v16, v26")
    e("    v_mul_f32 v11, v16, v26")
    e("    v_mul_f32 v8, v16, v24")
    e("    v_mul_f32 v9, v16, v25")
    e("    v_permlane32_swap_b32 v10, v11")
    e("    s_nop 0")
    e("    v_permlane32_swap_b32 v8, v9")
    e("    v_add_f32 v10, v10, v11              ; [c | c]")
    e("    v_add_f32 v8, v8, v9                 ; [a | b]")
    e("    s_nop 1")
    e("    v_permlane16_swap_b32 v8, v10")
    e("    v_add_f32 v8, v8, v10                ; rows: a, c, b, c")
    e("    s_nop 1")
    e("    v_add_f32_dpp v9, v8, v8 row_shr:1 row_mask:0xf bank_mask:0xf bound_ctrl:0")
    e("    v_add_f32_dpp v9, v8, v9 row_shr:2 row_mask:0xf bank_mask:0xf bound_ctrl:0")
    e("    v_add_f32_dpp v9, v8, v9 row_shr:3 row_mask:0xf bank_mask:0xf bound_ctrl:0")
    e("    s_nop 1")
    e("    v_add_f32_dpp v9, v9, v9 row_shr:4 row_mask:0xf bank_mask:0xf bound_ctrl:0")
    e("    s_nop 1")
    e("    v_add_f32_dpp v9, v9, v9 row_shr:8 row_mask:0xf bank_mask:0xf bound_ctrl:0")
    e("    s_mov_b32 exec_lo, 0x80008000")
    e("    s_mov_b32 exec_hi, 0x00008000")
    e(f"    ds_write_b32 v4, v9 offset:{L_HP}")
    e("    s_mov_b64 exec, -1")
    e("    s_lshl_b32 s42, s2, 6")
    e("    s_cmp_lg_u32 s3, 4")
    e("    s_waitcnt lgkmcnt(0)")
    e("    s_barrier")
    e("    s_cbranch_scc1 L_notpub")
    e("    s_mov_b64 exec, 15")
    e(f"    ds_read_b128 v[8:11], v1 offset:{L_HP}")
    e(f"    ds_read_b128 v[12:15], v1 offset:{L_HP+64}")
    e(f"    ds_read_b128 v[16:19], v1 offset:{L_HP+128}")
    e("    s_waitcnt lgkmcnt(1)")
    e("    v_pk_add_f32 v[8:9], v[8:9], v[12:13]")
    e("    v_add_f32 v10, v10, v14")
    e("    s_waitcnt lgkmcnt(0)")
    e("    v_pk_add_f32 v[8:9], v[8:9], v[16:17]")
    e("    v_add_f32 v10, v10, v18")
    e("    v_bitop3_b32 v11, v8, v9, s29 bitop3:0x96")
    e("    v_xor_b32 v11, v11, v10")
    e(f"    buffer_store_dwordx4 v[8:11], v1, s[24:27], s42 offen {pubf}")
    e("    s_mov_b64 exec, -1")
    stamp(7)
    e("    s_branch L_b3")
    e("L_notpub:")
    e("    s_cmp_lt_u32 s3, 4")
    e("    s_cbranch_scc1 L_poll_start")
    e("    s_cmp_gt_u32 s3, 7")
    e("    s_cbranch_scc1 L_b3")
    e("    v_subrev_u32 v1, 320, v0")
    e("    v_lshlrev_b32 v21, 2, v1")
    e("    v_lshlrev_b32 v1, 1, v1")
    for r in range(12):
        e(f"    ds_read_u16 v{8+r}, v1 offset:{L_WU+384*r}")
    e("    v_and_b32 v20, 15, v2")
    e("    v_lshlrev_b32 v20, 2, v20")
    e(f"    v_add_u32 v20, {L_P}, v20")
    e("    s_waitcnt lgkmcnt(0)")
    for r in range(12):
        e(f"    v_lshlrev_b32 v{8+r}, 16, v{8+r}")
    e("    s_barrier")
    e("    ds_read2_b32 v[22:23], v20 offset0:0 offset1:16")
    e("    ds_read2_b32 v[24:25], v20 offset0:32 offset1:48")
    e("    s_waitcnt lgkmcnt(0)")
    e("    v_pk_add_f32 v[22:23], v[22:23], v[24:25]")
    e("    v_add_f32 v22, v22, v23")
    e("    v_mul_f32 v22, 0x36800000, v22       ; * 2^-18")
    e("    v_cvt_pk_bf16_f32 v22, v22, v22")
    e("    v_lshlrev_b32 v22, 16, v22")
    e("    v_mul_f32 v23, 0xbfb8aa3b, v22       ; -log2e * x")
    e("    v_exp_f32 v23, v23")
    e("    s_nop 0")
    e("    v_add_f32 v23, 1.0, v23")
    e("    v_rcp_f32 v23, v23")
    e("    s_nop 0")
    e("    v_mul_f32 v22, v22, v23")
    e("    v_cvt_pk_bf16_f32 v22, v22, v22")
    e("    v_lshlrev_b32 v22, 16, v22")
    e("    s_nop 1")
    for r in range(12):
        a = 23 + (r % 3)
        op = "v_mul_f32_dpp" if r < 3 else "v_fmac_f32_dpp"
        e(f"    {op} v{a}, v22, v{8+r} row_newbcast:{r} row_mask:0xf bank_mask:0xf")
    e("    v_add_f32 v23, v23, v24")
    e("    v_add_f32 v23, v23, v25")
    e("    v_cvt_pk_bf16_f32 v23, v23, v23")
    e("    v_lshlrev_b32 v23, 16, v23")
    e("    v_mul_f32 v23, 0xbfb8aa3b, v23")
    e("    v_exp_f32 v23, v23")
    e("    s_nop 0")
    e("    v_add_f32 v23, 1.0, v23")
    e("    v_rcp_f32 v23, v23")
    e("    s_nop 0")
    e("    v_cvt_pk_bf16_f32 v23, v23, v23")
    e("    v_lshlrev_b32 v23, 16, v23")
    e(f"    ds_write_b32 v21, v23 offset:{L_G}")
    e("    s_waitcnt lgkmcnt(0)")
    e("    s_branch L_b4")

    e("L_poll_start:")
    e("    s_lshl_b32 s42, s3, 12")
    e("    v_and_b32 v27, 3, v2")
    e("    v_mul_u32_u24 v27, 12, v27")
    e("    s_lshl_b32 s43, s3, 6")
    e("    v_add3_u32 v31, v31, v27, s43")
    regs = (8, 12, 16, 20)
    for k in range(4):
        e(f"    s_mov_b64 s[{4+2*k}:{5+2*k}], -1")
    e("L_poll:")
    for k in range(4):
        e(f"    s_mov_b64 exec, s[{4+2*k}:{5+2*k}]")
        e(f"    s_cbranch_execz L_skip{k}")
        e(f"    buffer_load_dwordx4 v[{regs[k]}:{regs[k]+3}], v1, s[24:27], s42 offen offset:{1024*k} {pollf}")
        e(f"L_skip{k}:")
    e("    s_mov_b64 exec, -1")
    e("    s_waitcnt vmcnt(0)")
    for k in range(4):
        r = regs[k]
        e(f"    v_bitop3_b32 v{27+k}, v{r}, v{r+1}, s29 bitop3:0x96")
    for k in range(4):
        r = regs[k]
        e(f"    v_bitop3_b32 v{27+k}, v{27+k}, v{r+2}, v{r+3} bitop3:0x96")
    for k in range(4):
        e(f"    v_cmp_ne_u32 s[{4+2*k}:{5+2*k}], 0, v{27+k}")
    e("    s_or_b64 s[82:83], s[4:5], s[6:7]")
    e("    s_or_b64 vcc, s[8:9], s[10:11]")
    e("    s_or_b64 s[82:83], s[82:83], vcc")
    e("    s_cbranch_scc0 L_poll_ok")
    e("    s_sub_u32 s31, s31, 1")
    e("    s_cbranch_scc1 L_poll_ok")
    if sleep:
        e(f"    s_sleep {sleep}")
    e("    s_branch L_poll")
    e("L_poll_ok:")
    stamp(7)
    e("    v_add_f32 v10, v10, v14")
    e("    v_add_f32 v18, v18, v22")
    e("    v_pk_add_f32 v[8:9], v[8:9], v[12:13]")
    e("    v_pk_add_f32 v[16:17], v[16:17], v[20:21]")
    e("    v_add_f32 v11, v10, v18")
    e("    v_add_f32 v10, v10, v18")
    e("    v_pk_add_f32 v[8:9], v[8:9], v[16:17]")
    e("    s_nop 0")
    e("    v_permlane32_swap_b32 v10, v11")
    e("    v_permlane32_swap_b32 v8, v9")
    e("    v_add_f32 v10, v10, v11              ; [c | c]")
    e("    v_add_f32 v8, v8, v9                 ; [a | b]")
    e("    s_nop 1")
    e("    v_permlane16_swap_b32 v8, v10")
    e("    v_add_f32 v8, v8, v10                ; rows: a, c, b, c")
    e("    s_nop 1")
    e("    v_add_f32_dpp v8, v8, v8 row_shr:4 row_mask:0xf bank_mask:0xf bound_ctrl:0")
    e("    s_nop 1")
    e("    v_add_f32_dpp v8, v8, v8 row_shr:8 row_mask:0xf bank_mask:0xf bound_ctrl:0")
    e("    s_mov_b32 exec_lo, 0xf000f000")
    e("    s_mov_b32 exec_hi, 0x0000f000")
    e(f"    ds_write_b32 v31, v8 offset:{L_P}")
    e("    s_mov_b64 exec, -1")
    e("    s_waitcnt lgkmcnt(0)")
    e("L_b3:")
    e("    s_barrier")
    e("L_b4:")
    e("    s_barrier")
    e(f"    ds_read_b128 v[8:11], v7 offset:{L_G}")
    e(f"    ds_read_b128 v[12:15], v7 offset:{L_G+16}")

    cnt = [0]

    def scale_store(slot, first=False):
        t = 16 + 8 * (cnt[0] & 1)
        cnt[0] += 1
        for i in range(4):
            d = dreg(slot) + i
            e(f"    v_lshlrev_b32 v{t+2*i}, 16, v{d}")
            e(f"    v_and_b32 v{t+1+2*i}, s30, v{d}")
        if first:
            e("    s_waitcnt lgkmcnt(0)")
            stamp(5)
        for i in range(4):
            e(f"    v_pk_mul_f32 v[{t+2*i}:{t+1+2*i}], v[{t+2*i}:{t+1+2*i}], v[{8+2*i}:{9+2*i}]")
        for i in range(4):
            d = dreg(slot) + i
            e(f"    v_cvt_pk_bf16_f32 v{d}, v{t+2*i}, v{t+1+2*i}")
        d = dreg(slot)
        e(f"    buffer_store_dwordx4 v[{d}:{d+3}], v5, s[20:23], s{SO+slot} offen{stf}")

    sslots = []
    for pp in sorder:
        k = lorder.index(pp)
        sslots += [2 * k, 2 * k + 1]
    for j in range(32):
        scale_store(sslots[j], first=(j == 0))
        if sbar and (j + 1) % sbar == 0 and j != 31:
            e("    s_barrier")
    e("    s_cmp_lg_u32 s2, 1")
    e("    s_cbranch_scc1 L_noep")
    e("    s_cmp_lg_u32 s3, 11")
    e("    s_cbranch_scc1 L_noep")
    e(f"    v_mov_b32 v1, {EPOCH}")
    e("    v_mov_b32 v3, s28")
    e("    s_mov_b64 exec, 1")
    e("    buffer_store_dword v3, v1, s[24:27], 0 offen sc1")
    if dbgout:
        e("    s_mov_b32 s32, s12")
        e("    s_mov_b32 s33, s13")
        e("    s_mov_b32 s34, 256")
        e("    v_mov_b32 v16, s76")
        e("    v_mov_b32 v17, s89")
        e("    v_mov_b32 v1, 0")
        e("    buffer_store_dwordx2 v[16:17], v1, s[32:35], 0 offen")
    e("    s_mov_b64 exec, -1")
    e("L_noep:")
    if enc:
        e("    s_waitcnt vmcnt(0)")
        stamp(6)
        e("    s_waitcnt lgkmcnt(0)")
        a, b = {1: (0, 0), 2: (0, 3), 3: (0, 5), 4: (5, 6), 5: (0, 6), 6: (5, 7), 7: (0, 5)}[enc]
        e(f"    s_sub_u32 s42, s{ST+2*smap[b]}, s{ST+2*smap[a]}")
        if enc >= 6:
            e("    s_lshr_b32 s42, s42, 4")
        if encpar >= 0:
            e("    s_bitcmp1_b32 s2, 0")
            e(f"    s_cselect_b32 s42, s42, 0" if encpar == 1 else "    s_cselect_b32 s42, 0, s42")
        e("L_enc:")
        e("    s_memrealtime s[4:5]")
        e("    s_waitcnt lgkmcnt(0)")
        e(f"    s_sub_u32 s43, s4, s{ST+2*smap[6]}")
        e("    s_cmp_lt_u32 s43, s42")
        e("    s_cbranch_scc1 L_enc")
    if diag:
        e("    s_waitcnt vmcnt(0)")
        stamp(6)
        e("    s_waitcnt lgkmcnt(0)")
        e("    s_mul_i32 s42, s2, 12")
        e("    s_add_u32 s42, s42, s3")
        e("    s_lshl_b32 s42, s42, 7")
        e(f"    s_add_u32 s42, s42, {DIAG}")
        e("    v_mov_b32 v1, s42")
        e("    s_mov_b64 exec, 1")
        inv = {v: k for k, v in smap.items()}
        for k in range(6):
            e(f"    v_mov_b32 v16, s{ST+2*k}")
            e(f"    v_mov_b32 v17, s{ST+2*k+1}")
            e(f"    buffer_store_dwordx2 v[16:17], v1, s[24:27], 0 offen offset:{8*inv[k]}")
            e("    s_nop 2")
        e("    v_mov_b32 v16, 0")
        e("    v_mov_b32 v17, s31")
        e("    buffer_store_dwordx2 v[16:17], v1, s[24:27], 0 offen offset:88")
    e("L_exit:")
    e("    s_endpgm")
    e('.section .rodata,"a"')
    e(".p2align 6")
    e(f".amdhsa_kernel {NAME}")
    e("  .amdhsa_next_free_vgpr 168")
    e("  .amdhsa_next_free_sgpr 102")
    e("  .amdhsa_accum_offset 168")
    e("  .amdhsa_group_segment_fixed_size 0")
    e("  .amdhsa_kernarg_size 48")
    e("  .amdhsa_user_sgpr_count 2")
    e("  .amdhsa_user_sgpr_kernarg_segment_ptr 1")
    e("  .amdhsa_system_sgpr_workgroup_id_x 1")
    e("  .amdhsa_float_denorm_mode_32 3")
    e(".end_amdhsa_kernel")
    sys.stderr.write(f"lorder {lorder} sorder {sorder} A0 {A0} G {G}\n")
    return "\n".join(o) + "\n"


if __name__ == "__main__":
    ap = argparse.ArgumentParser()
    ap.add_argument("-o", default="-")
    ap.add_argument("--ld", default="nt")
    ap.add_argument("--st", default="sc0 sc1")
    ap.add_argument("--diag", action="store_true")
    for name, dv in (("sleep", 0), ("sbar", 2), ("lvm", 3), ("ns", 8), ("pre", 9), ("pairs", 2), ("thr", 14), ("numa", 1), ("dbgout", 0), ("evw", -1), ("enc", 0), ("encpar", -1), ("tlbx", 0), ("tlbo", 0), ("tstep", 8)):
        ap.add_argument("--" + name, type=int, default=dv)
    ap.add_argument("--pubf", default="sc1")
    ap.add_argument("--pollf", default="sc1")
    a = ap.parse_args()
    kw = vars(a).copy()
    out = kw.pop("o")
    s = gen(**kw)
    if out == "-":
        sys.stdout.write(s)
    else:
        open(out, "w").write(s)
```

```python
import sys, argparse

HEADER = """; Kernarg layout for this problem (48 bytes, ptrs only, base s[0:1]):
"""

NAME = "standalone__channel_attn_se__vision_kernel"
XBYTES = 100663296
MAGIC = 0x5BD1E995
MAGIC2 = 0x2C1B3C6D

L_M = 0
L_HP = 6144
L_P = 6400
L_G = 6656
L_DEC = 7424
L_WU = 8192
LDS = 20480
VOTE = 32768
EPOCH = 65536
DIAG = 1 << 20
WS_BYTES = 2 << 20
SB = 49152
WIN = 128 * SB


def gen(ld="nt", st="sc0 sc1", diag=False, sleep=0, spin=400000, pubf="sc1", pollf="sc1", sbar=2,
        lvm=3, ns=8, pre=9, pairs=2, thr=14, numa=1, dbgout=0, evw=-1, enc=0, encpar=-1, tlbx=0, tlbo=0, tstep=8):
    o = []
    e = o.append
    ldf = (" " + ld) if ld else ""
    stf = (" " + st) if st else ""
    D0 = 40
    SO = 44
    ST = 90
    na = 16 - ns
    adaptive = []
    for i in range(na):
        adaptive.append((15 - i // 2) if i % 2 == 0 else (9 - i // 2))
    adaptive = adaptive[::-1]
    static = [pp for pp in range(16) if pp not in adaptive]
    lorder = static + adaptive
    sorder = []
    si, ai = 0, 0
    for k in range(16):
        if ai < na and (ai + 1) * 16 <= (k + 1) * na + (16 - na) // 2 * 0 + 0 or si >= len(static):
            sorder.append(adaptive[ai]); ai += 1
        else:
            sorder.append(static[si]); si += 1
    assert sorted(sorder) == list(range(16))
    region = lambda pp: 0 if pp < 10 else 1
    A0 = 2 * ns
    G = A0 - lvm - 1
    e(HEADER.rstrip())
    e(f"; @launch grid=(256,1,1) block=(768,1,1) lds={LDS}")
    e('.amdgcn_target "amdgcn-amd-amdhsa--gfx950"')
    e(".text")
    e(f".globl {NAME}")
    e(".p2align 8")
    e(f".type {NAME},@function")
    e(f"{NAME}:")
    smap = {0: 0, 1: 1, 3: 2, 5: 3, 6: 4, 7: 5}

    def stamp(i):
        if (diag or enc) and i in smap:
            k = smap[i]
            if enc >= 6 and i in (0, 3, 5):
                e(f"    s_memtime s[{ST+2*k}:{ST+1+2*k}]")
            elif enc >= 6 and i in (1, 7):
                pass
            else:
                e(f"    s_memrealtime s[{ST+2*k}:{ST+1+2*k}]")
                if enc >= 6 and i == 6:
                    e(f"    s_memtime s[{ST+2*smap[7]}:{ST+1+2*smap[7]}]")

    def dreg(slot):
        return D0 + 4 * slot

    def load(slot):
        d = dreg(slot)
        e(f"    buffer_load_dwordx4 v[{d}:{d+3}], v5, s[16:19], s{SO+slot} offen{ldf}")

    def acc(slot):
        for i in range(4):
            d = dreg(slot) + i
            if slot == 0:
                e(f"    v_lshlrev_b32 v{8+2*i}, 16, v{d}")
                e(f"    v_and_b32 v{9+2*i}, s30, v{d}")
            else:
                e(f"    v_lshlrev_b32 v{16+2*i}, 16, v{d}")
                e(f"    v_and_b32 v{17+2*i}, s30, v{d}")
        if slot:
            for i in range(4):
                e(f"    v_pk_add_f32 v[{8+2*i}:{9+2*i}], v[{8+2*i}:{9+2*i}], v[{16+2*i}:{17+2*i}]")

    e("    s_cmp_ge_u32 s2, 256")
    e("    s_cbranch_scc1 L_exit")
    e("    s_load_dwordx4 s[4:7], s[0:1], 0")
    e("    s_load_dwordx4 s[8:11], s[0:1], 16")
    e("    s_load_dwordx4 s[12:15], s[0:1], 32")
    if diag or enc:
        for i in range(6):
            e(f"    s_mov_b64 s[{ST+2*i}:{ST+1+2*i}], 0")
    stamp(0)
    e("    v_lshrrev_b32 v1, 6, v0")
    e("    v_and_b32 v2, 63, v0                 ; lane")
    e("    v_readfirstlane_b32 s3, v1")
    e("    v_lshrrev_b32 v3, 4, v2              ; q (row)")
    e("    v_and_b32 v4, 15, v2                 ; n")
    e("    s_mul_i32 s40, s3, 11")
    e("    s_lshr_b32 s40, s40, 5")
    e("    s_mul_i32 s41, s40, 3")
    e("    s_sub_u32 s41, s3, s41               ; seg = wave%3")
    e("    s_lshl_b32 s43, s41, 8")
    e("    v_mul_u32_u24 v5, 768, v3")
    e("    v_lshl_add_u32 v5, v4, 4, v5")
    e("    v_add_u32 v5, s43, v5                ; v5 = q*768 + seg*256 + n*16")
    e("    s_mov_b32 s18, %d" % XBYTES)
    e("    s_mov_b32 s19, 0x00020000")
    e("    s_mov_b32 s30, 0xffff0000")
    e("    s_lshr_b32 s42, s2, 3")
    e("    s_lshl_b32 s42, s42, 2")
    e("    s_and_b32 s43, s2, 3")
    e("    s_add_u32 s42, s42, s43")
    e(f"    s_mul_i32 s76, s42, {SB}")
    e("    s_lshl_b32 s43, s40, 2")
    e("    s_lshr_b32 s78, 0x5210, s43")
    e("    s_and_b32 s78, s78, 15")
    e("    s_lshr_b32 s79, 0xcb76, s43")
    e("    s_and_b32 s79, s79, 15")
    e("    s_mul_i32 s78, s78, 3072")
    e("    s_mul_i32 s79, s79, 3072")
    e("    s_sub_u32 s80, 46080, s78")
    e("    s_sub_u32 s81, 46080, s79")
    for r in (78, 79, 80, 81):
        e(f"    s_add_u32 s{r}, s{r}, s76")
    e("    s_add_u32 s77, s76, 24576")
    e("    s_lshr_b32 s77, s77, 19")
    e("    s_xor_b32 s77, s77, s2")
    e("    s_lshr_b32 s42, s2, 1")
    e("    s_xor_b32 s42, s42, s77")
    e("    s_bitcmp1_b32 s42, 2")
    e("    s_cselect_b32 s82, s80, s78          ; E0")
    e("    s_cselect_b32 s83, s81, s79          ; E1")
    e("    s_cselect_b32 s84, s78, s80          ; O0")
    e("    s_cselect_b32 s85, s79, s81          ; O1")
    seen = [0, 0]
    for k, pp in enumerate(lorder):
        u = seen[region(pp)] & 1
        seen[region(pp)] += 1
        b = 84 if ((pp ^ u) & 1) else 82
        e(f"    s_add_u32 s{SO+2*k}, s{b}, {pp*WIN}")
        e(f"    s_add_u32 s{SO+2*k+1}, s{b+1}, {pp*WIN}")
    e("    s_and_b32 s86, s2, 1")
    e("    s_add_u32 s86, s86, 1")
    e("    s_cmp_eq_u32 s3, 0")
    e("    s_cselect_b32 s86, s86, 0")
    e("    s_waitcnt lgkmcnt(0)")
    e("    s_mov_b32 s16, s4")
    e("    s_mov_b32 s17, s5")
    for s in range(lvm):
        load(s)
    if tlbx or tlbo:
        e("    s_lshl_b32 s42, s3, 23")
        e("    v_lshlrev_b32 v39, %d, v2" % (21 if max(tlbx, tlbo) == 1 else 20))
        e("    v_add_u32 v39, s42, v39")
    if tlbx:
        e("    s_mov_b64 exec, %d" % (15 if tlbx == 1 else 255))
        e("    buffer_load_dword v38, v39, s[16:19], 0 offen")
        e("    s_mov_b64 exec, -1")
    e(f"    s_load_dword s28, s[14:15], {EPOCH}")
    e("    s_mov_b32 s24, s14")
    e("    s_mov_b32 s25, s15")
    e("    s_mov_b32 s26, %d" % WS_BYTES)
    e("    s_mov_b32 s27, 0x00020000")
    if numa:
        e("    s_cmp_lg_u32 s86, 1")
        e("    s_cbranch_scc1 L_noprobe")
        e("    s_bfe_u32 s42, s2, 0x10001           ; r = bit1")
        e("    s_add_u32 s42, s42, 1")
        e(f"    s_mul_i32 s42, s42, {40<<20}")
        e("    s_bfe_u32 s43, s2, 0x30003           ; i & 7")
        e("    s_lshl_b32 s43, s43, 21")
        e("    s_add_u32 s42, s42, s43")
        e("    s_lshr_b32 s43, s2, 6")
        e("    s_lshl_b32 s43, s43, 18")
        e("    s_add_u32 s42, s42, s43")
        e("    s_bfe_u32 s43, s2, 0x10002           ; L")
        e("    s_lshl_b32 s43, s43, 17")
        e("    s_add_u32 s42, s42, s43")
        e("    s_add_u32 s20, s10, s42")
        e("    s_addc_u32 s21, s11, 0")
        e("    s_load_dword s22, s[20:21], 4096")
        for s in range(lvm, pre):
            load(s)
        e("    s_waitcnt lgkmcnt(0)")
        offs = [0, 8192, 24576 + 256, 16384 + 256, 32768 + 512, 40960 + 512][:2 * pairs]
        e("    s_memtime s[32:33]")
        e("    s_waitcnt lgkmcnt(0)")
        for i, of in enumerate(offs):
            a, b = (32, 34) if i % 2 == 0 else (34, 32)
            e(f"    s_load_dword s22, s[20:21], {of}")
            e("    s_waitcnt lgkmcnt(0)")
            e(f"    s_memtime s[{b}:{b+1}]")
            e("    s_waitcnt lgkmcnt(0)")
            e(f"    s_sub_u32 s{36+(i&1)}, s{b}, s{a}")
            if i % 2 == 1:
                if (i // 2) % 2 == 0:
                    e("    s_cmp_gt_u32 s37, s36")
                else:
                    e("    s_cmp_gt_u32 s36, s37")
                if i == 1:
                    e("    s_cselect_b32 s38, 1, -1")
                else:
                    e("    s_cselect_b32 s39, 1, -1")
                    e("    s_add_i32 s38, s38, s39")
        e("    s_lshr_b32 s42, s2, 1")
        e("    s_xor_b32 s42, s42, s2")
        e("    s_sub_i32 s39, 0, s38")
        e("    s_bitcmp1_b32 s42, 2")
        e("    s_cselect_b32 s38, s39, s38")
        e("    s_add_u32 s39, s28, 1")
        e("    s_xor_b32 s39, s39, 0x%08x" % MAGIC2)
        e("    s_xor_b32 s39, s39, s38")
        e("    s_bfe_u32 s42, s2, 0x10001")
        e("    s_lshl_b32 s42, s42, 6")
        e("    s_lshr_b32 s43, s2, 2                ; i*2 + L")
        e("    s_add_u32 s42, s42, s43")
        e("    s_lshl_b32 s42, s42, 3")
        e(f"    s_add_u32 s42, s42, {VOTE}")
        e("    v_mov_b32 v32, s38")
        e("    v_mov_b32 v33, s39")
        e("    v_mov_b32 v34, s42")
        e("    s_mov_b64 exec, 1")
        e("    buffer_store_dwordx2 v[32:33], v34, s[24:27], 0 offen sc1")
        e("    s_mov_b64 exec, -1")
        stamp(1)
        e("L_noprobe:")
    e("    s_mov_b32 s20, s10")
    e("    s_mov_b32 s21, s11")
    e("    s_mov_b32 s22, %d" % XBYTES)
    e("    s_mov_b32 s23, 0x00020000")
    e("    s_mov_b32 s32, s6")
    e("    s_mov_b32 s33, s7")
    e("    s_mov_b32 s34, 4608")
    e("    s_mov_b32 s35, 0x00020000")
    e("    s_mov_b32 s36, s8")
    e("    s_mov_b32 s37, s9")
    e("    s_mov_b32 s38, 4608")
    e("    s_mov_b32 s39, 0x00020000")
    e("    s_mov_b32 s31, %d" % spin)
    e("    s_mul_i32 s42, s41, 1536")
    e("    s_mul_i32 s43, s40, 6")
    e("    s_add_u32 s42, s42, s43")
    e("    v_mul_u32_u24 v1, 24, v2")
    e("    v_add_u32 v1, s42, v1")
    e("    s_lshl_b32 s42, s3, 10")
    e(f"    s_add_u32 s42, s42, {L_WU}")
    e("    s_mov_b32 m0, s42")
    e("    v_lshlrev_b32 v27, 4, v0")
    e("    buffer_load_ushort v24, v1, s[32:35], 0 offen")
    e("    buffer_load_ushort v25, v1, s[32:35], 0 offen offset:2")
    e("    buffer_load_ushort v26, v1, s[32:35], 0 offen offset:4")
    e("    buffer_load_dwordx4 v27, s[36:39], 0 offen lds")
    NW = 4
    e("    s_mul_i32 s42, s40, 1536")
    e("    s_lshl_b32 s43, s41, 9")
    e("    s_add_u32 s42, s42, s43")
    e("    v_lshlrev_b32 v6, 5, v4")
    e("    v_lshl_add_u32 v6, v3, 3, v6")
    e("    v_add_u32 v6, s42, v6")
    e("    s_lshl_b32 s43, s41, 7")
    e("    v_lshlrev_b32 v7, 3, v4")
    e("    v_add_u32 v7, s43, v7")
    e("    v_subrev_u32 v1, 192, v7")
    e("    v_min_u32 v7, v7, v1")
    e("    v_lshlrev_b32 v7, 2, v7")
    e("    v_and_b32 v1, 1, v3")
    e("    v_lshrrev_b32 v31, 1, v3")
    e("    v_lshl_add_u32 v31, v1, 1, v31")
    e("    v_lshlrev_b32 v31, 2, v31            ; i(row)*4")
    e("    s_lshl_b32 s42, s41, 6")
    e("    s_lshl_b32 s43, s40, 4")
    e("    s_add_u32 s42, s42, s43")
    e("    v_add_u32 v4, s42, v31")
    e("    s_lshl_b32 s42, s41, 8")
    e("    v_lshlrev_b32 v3, 2, v2")
    e("    v_add_u32 v3, s42, v3")
    e("    v_lshlrev_b32 v1, 4, v2              ; lane*16")
    e(f"    s_mov_b32 s87, {VOTE}")
    for j in range(32):
        last = min(j + lvm - 1, 31)
        younger = (last - j) + (NW if j < lvm else 0)
        e(f"    s_waitcnt vmcnt({younger})")
        if j == lvm:
            e("    s_waitcnt lgkmcnt(0)")
            e("    s_add_u32 s28, s28, 1                ; epoch + 1")
            e("    s_xor_b32 s29, s28, 0x%08x           ; tag key" % MAGIC)
            e("    s_xor_b32 s88, s28, 0x%08x           ; vote key" % MAGIC2)
        if numa and j == A0 - lvm:
            e("    s_bitcmp1_b32 s2, 0")
            e("    s_cbranch_scc0 L_nodec")
            e("    s_cmp_lg_u32 s86, 2")
            e("    s_cbranch_scc1 L_decbar")
            e("L_vchk:")
            e("    v_bitop3_b32 v36, v32, v33, s88 bitop3:0x96")
            e("    v_bitop3_b32 v37, v34, v35, s88 bitop3:0x96")
            e("    v_or_b32 v36, v36, v37")
            e("    v_cmp_ne_u32 vcc, 0, v36")
            e("    s_cbranch_vccz L_vok")
            e("    s_sub_u32 s31, s31, 1")
            e("    s_cbranch_scc1 L_vok")
            e("    buffer_load_dwordx4 v[32:35], v1, s[24:27], s87 offen sc1")
            e("    s_waitcnt vmcnt(0)")
            e("    s_branch L_vchk")
            e("L_vok:")
            e("    v_add_u32 v36, v32, v34")
            for sh in (1, 2, 4, 8):
                e("    s_nop 1")
                e(f"    v_add_u32_dpp v36, v36, v36 row_shr:{sh} row_mask:0xf bank_mask:0xf bound_ctrl:0")
            e("    s_nop 1")
            e("    v_add_u32_dpp v36, v36, v36 row_bcast:15 row_mask:0xa bank_mask:0xf")
            e("    v_lshrrev_b32 v37, 3, v2")
            e("    v_and_b32 v37, 4, v37                ; (lane>=32)*4")
            e("    s_mov_b32 exec_lo, 0x80000000")
            e("    s_mov_b32 exec_hi, 0x80000000")
            e(f"    ds_write_b32 v37, v36 offset:{L_DEC}")
            e("    s_mov_b64 exec, -1")
            e("    s_waitcnt lgkmcnt(0)")
            stamp(1)
            e("L_decbar:")
            e("    s_barrier")
            e("    v_mov_b32 v36, 0")
            e(f"    ds_read_b64 v[36:37], v36 offset:{L_DEC}")
            e("    s_waitcnt lgkmcnt(0)")
            e("    v_readfirstlane_b32 s4, v36")
            e("    v_readfirstlane_b32 s5, v37")
            for r in range(2):
                wins = [(k, pp) for k, pp in enumerate(lorder) if pp in adaptive and region(pp) == r]
                if not wins:
                    continue
                e(f"    s_abs_i32 s42, s{4+r}")
                e(f"    s_cmp_lt_u32 s42, {thr}")
                e(f"    s_cbranch_scc1 L_keep{r}")
                e(f"    s_lshr_b32 s42, s{4+r}, 29")
                e("    s_xor_b32 s42, s42, s77")
                e("    s_bitcmp1_b32 s42, 2")
                e("    s_cselect_b32 s82, s80, s78")
                e("    s_cselect_b32 s83, s81, s79")
                e("    s_cselect_b32 s84, s78, s80")
                e("    s_cselect_b32 s85, s79, s81")
                for k, pp in wins:
                    b = 84 if (pp & 1) else 82
                    e(f"    s_add_u32 s{SO+2*k}, s{b}, {pp*WIN}")
                    e(f"    s_add_u32 s{SO+2*k+1}, s{b+1}, {pp*WIN}")
                e(f"L_keep{r}:")
            if dbgout:
                e("    s_mov_b32 s76, s4")
                e("    s_mov_b32 s89, s5")
            e("L_nodec:")
        if j + lvm < 32:
            k = j + lvm
            if evw >= 0 and j >= lvm and k >= pre:
                e("    s_bitcmp1_b32 s2, 0")
                e(f"    s_cbranch_scc1 L_ev{k}")
                e(f"    s_waitcnt vmcnt({evw})")
                e(f"L_ev{k}:")
            if numa and k < pre:
                e("    s_cmp_eq_u32 s86, 1")
                e(f"    s_cbranch_scc1 L_sk{k}")
                load(k)
                e(f"L_sk{k}:")
            else:
                load(k)
            if numa and k == G:
                e("    s_cmp_lg_u32 s86, 2")
                e("    s_cbranch_scc1 L_nog")
                e("    buffer_load_dwordx4 v[32:35], v1, s[24:27], s87 offen sc1")
                e("L_nog:")
        if tlbo and j == tstep:
            e("    s_mov_b64 exec, %d" % (15 if tlbo == 1 else 255))
            e("    buffer_load_dword v38, v39, s[20:23], 0 offen")
            e("    s_mov_b64 exec, -1")
        acc(j)
        if j == 20:
            for r in (24, 25, 26):
                e(f"    v_lshlrev_b32 v{r}, 16, v{r}")
    e("    s_nop 1")
    for i in range(4):
        e(f"    v_permlane32_swap_b32 v{8+i}, v{12+i}")
    for i in range(4):
        e(f"    v_add_f32 v{8+i}, v{8+i}, v{12+i}")
    e("    s_nop 0")
    e("    v_permlane16_swap_b32 v8, v10")
    e("    v_permlane16_swap_b32 v9, v11")
    e("    v_add_f32 v8, v8, v10")
    e("    v_add_f32 v9, v9, v11")
    e(f"    ds_write_b64 v6, v[8:9] offset:{L_M}")
    e("    s_waitcnt lgkmcnt(0)")
    e("    s_barrier")
    stamp(3)
    for k in range(4):
        e(f"    ds_read2st64_b32 v[{16+2*k}:{17+2*k}], v3 offset0:{6*k} offset1:{6*k+3}")
    e("    s_waitcnt lgkmcnt(2)" if not (diag or enc) else "    s_waitcnt lgkmcnt(0)")
    e("    v_pk_add_f32 v[16:17], v[16:17], v[18:19]")
    e("    s_waitcnt lgkmcnt(0)")
    e("    v_pk_add_f32 v[20:21], v[20:21], v[22:23]")
    e("    v_pk_add_f32 v[16:17], v[16:17], v[20:21]")
    e("    v_add_f32 v16, v16, v17")
    e("    v_mul_f32 v10, v16, v26")
    e("    v_mul_f32 v11, v16, v26")
    e("    v_mul_f32 v8, v16, v24")
    e("    v_mul_f32 v9, v16, v25")
    e("    v_permlane32_swap_b32 v10, v11")
    e("    s_nop 0")
    e("    v_permlane32_swap_b32 v8, v9")
    e("    v_add_f32 v10, v10, v11              ; [c | c]")
    e("    v_add_f32 v8, v8, v9                 ; [a | b]")
    e("    s_nop 1")
    e("    v_permlane16_swap_b32 v8, v10")
    e("    v_add_f32 v8, v8, v10                ; rows: a, c, b, c")
    e("    s_nop 1")
    e("    v_add_f32_dpp v9, v8, v8 row_shr:1 row_mask:0xf bank_mask:0xf bound_ctrl:0")
    e("    v_add_f32_dpp v9, v8, v9 row_shr:2 row_mask:0xf bank_mask:0xf bound_ctrl:0")
    e("    v_add_f32_dpp v9, v8, v9 row_shr:3 row_mask:0xf bank_mask:0xf bound_ctrl:0")
    e("    s_nop 1")
    e("    v_add_f32_dpp v9, v9, v9 row_shr:4 row_mask:0xf bank_mask:0xf bound_ctrl:0")
    e("    s_nop 1")
    e("    v_add_f32_dpp v9, v9, v9 row_shr:8 row_mask:0xf bank_mask:0xf bound_ctrl:0")
    e("    s_mov_b32 exec_lo, 0x80008000")
    e("    s_mov_b32 exec_hi, 0x00008000")
    e(f"    ds_write_b32 v4, v9 offset:{L_HP}")
    e("    s_mov_b64 exec, -1")
    e("    s_lshl_b32 s42, s2, 6")
    e("    s_cmp_lg_u32 s3, 4")
    e("    s_waitcnt lgkmcnt(0)")
    e("    s_barrier")
    e("    s_cbranch_scc1 L_notpub")
    e("    s_mov_b64 exec, 15")
    e(f"    ds_read_b128 v[8:11], v1 offset:{L_HP}")
    e(f"    ds_read_b128 v[12:15], v1 offset:{L_HP+64}")
    e(f"    ds_read_b128 v[16:19], v1 offset:{L_HP+128}")
    e("    s_waitcnt lgkmcnt(1)")
    e("    v_pk_add_f32 v[8:9], v[8:9], v[12:13]")
    e("    v_add_f32 v10, v10, v14")
    e("    s_waitcnt lgkmcnt(0)")
    e("    v_pk_add_f32 v[8:9], v[8:9], v[16:17]")
    e("    v_add_f32 v10, v10, v18")
    e("    v_bitop3_b32 v11, v8, v9, s29 bitop3:0x96")
    e("    v_xor_b32 v11, v11, v10")
    e(f"    buffer_store_dwordx4 v[8:11], v1, s[24:27], s42 offen {pubf}")
    e("    s_mov_b64 exec, -1")
    stamp(7)
    e("    s_branch L_b3")
    e("L_notpub:")
    e("    s_cmp_lt_u32 s3, 4")
    e("    s_cbranch_scc1 L_poll_start")
    e("    s_cmp_gt_u32 s3, 7")
    e("    s_cbranch_scc1 L_b3")
    e("    v_subrev_u32 v1, 320, v0")
    e("    v_lshlrev_b32 v21, 2, v1")
    e("    v_lshlrev_b32 v1, 1, v1")
    for r in range(12):
        e(f"    ds_read_u16 v{8+r}, v1 offset:{L_WU+384*r}")
    e("    v_and_b32 v20, 15, v2")
    e("    v_lshlrev_b32 v20, 2, v20")
    e(f"    v_add_u32 v20, {L_P}, v20")
    e("    s_waitcnt lgkmcnt(0)")
    for r in range(12):
        e(f"    v_lshlrev_b32 v{8+r}, 16, v{8+r}")
    e("    s_barrier")
    e("    ds_read2_b32 v[22:23], v20 offset0:0 offset1:16")
    e("    ds_read2_b32 v[24:25], v20 offset0:32 offset1:48")
    e("    s_waitcnt lgkmcnt(0)")
    e("    v_pk_add_f32 v[22:23], v[22:23], v[24:25]")
    e("    v_add_f32 v22, v22, v23")
    e("    v_mul_f32 v22, 0x36800000, v22       ; * 2^-18")
    e("    v_cvt_pk_bf16_f32 v22, v22, v22")
    e("    v_lshlrev_b32 v22, 16, v22")
    e("    v_mul_f32 v23, 0xbfb8aa3b, v22       ; -log2e * x")
    e("    v_exp_f32 v23, v23")
    e("    s_nop 0")
    e("    v_add_f32 v23, 1.0, v23")
    e("    v_rcp_f32 v23, v23")
    e("    s_nop 0")
    e("    v_mul_f32 v22, v22, v23")
    e("    v_cvt_pk_bf16_f32 v22, v22, v22")
    e("    v_lshlrev_b32 v22, 16, v22")
    e("    s_nop 1")
    for r in range(12):
        a = 23 + (r % 3)
        op = "v_mul_f32_dpp" if r < 3 else "v_fmac_f32_dpp"
        e(f"    {op} v{a}, v22, v{8+r} row_newbcast:{r} row_mask:0xf bank_mask:0xf")
    e("    v_add_f32 v23, v23, v24")
    e("    v_add_f32 v23, v23, v25")
    e("    v_cvt_pk_bf16_f32 v23, v23, v23")
    e("    v_lshlrev_b32 v23, 16, v23")
    e("    v_mul_f32 v23, 0xbfb8aa3b, v23")
    e("    v_exp_f32 v23, v23")
    e("    s_nop 0")
    e("    v_add_f32 v23, 1.0, v23")
    e("    v_rcp_f32 v23, v23")
    e("    s_nop 0")
    e("    v_cvt_pk_bf16_f32 v23, v23, v23")
    e("    v_lshlrev_b32 v23, 16, v23")
    e(f"    ds_write_b32 v21, v23 offset:{L_G}")
    e("    s_waitcnt lgkmcnt(0)")
    e("    s_branch L_b4")

    e("L_poll_start:")
    e("    s_lshl_b32 s42, s3, 12")
    e("    v_and_b32 v27, 3, v2")
    e("    v_mul_u32_u24 v27, 12, v27")
    e("    s_lshl_b32 s43, s3, 6")
    e("    v_add3_u32 v31, v31, v27, s43")
    regs = (8, 12, 16, 20)
    for k in range(4):
        e(f"    s_mov_b64 s[{4+2*k}:{5+2*k}], -1")
    e("L_poll:")
    for k in range(4):
        e(f"    s_mov_b64 exec, s[{4+2*k}:{5+2*k}]")
        e(f"    s_cbranch_execz L_skip{k}")
        e(f"    buffer_load_dwordx4 v[{regs[k]}:{regs[k]+3}], v1, s[24:27], s42 offen offset:{1024*k} {pollf}")
        e(f"L_skip{k}:")
    e("    s_mov_b64 exec, -1")
    e("    s_waitcnt vmcnt(0)")
    for k in range(4):
        r = regs[k]
        e(f"    v_bitop3_b32 v{27+k}, v{r}, v{r+1}, s29 bitop3:0x96")
    for k in range(4):
        r = regs[k]
        e(f"    v_bitop3_b32 v{27+k}, v{27+k}, v{r+2}, v{r+3} bitop3:0x96")
    for k in range(4):
        e(f"    v_cmp_ne_u32 s[{4+2*k}:{5+2*k}], 0, v{27+k}")
    e("    s_or_b64 s[82:83], s[4:5], s[6:7]")
    e("    s_or_b64 vcc, s[8:9], s[10:11]")
    e("    s_or_b64 s[82:83], s[82:83], vcc")
    e("    s_cbranch_scc0 L_poll_ok")
    e("    s_sub_u32 s31, s31, 1")
    e("    s_cbranch_scc1 L_poll_ok")
    if sleep:
        e(f"    s_sleep {sleep}")
    e("    s_branch L_poll")
    e("L_poll_ok:")
    stamp(7)
    e("    v_add_f32 v10, v10, v14")
    e("    v_add_f32 v18, v18, v22")
    e("    v_pk_add_f32 v[8:9], v[8:9], v[12:13]")
    e("    v_pk_add_f32 v[16:17], v[16:17], v[20:21]")
    e("    v_add_f32 v11, v10, v18")
    e("    v_add_f32 v10, v10, v18")
    e("    v_pk_add_f32 v[8:9], v[8:9], v[16:17]")
    e("    s_nop 0")
    e("    v_permlane32_swap_b32 v10, v11")
    e("    v_permlane32_swap_b32 v8, v9")
    e("    v_add_f32 v10, v10, v11              ; [c | c]")
    e("    v_add_f32 v8, v8, v9                 ; [a | b]")
    e("    s_nop 1")
    e("    v_permlane16_swap_b32 v8, v10")
    e("    v_add_f32 v8, v8, v10                ; rows: a, c, b, c")
    e("    s_nop 1")
    e("    v_add_f32_dpp v8, v8, v8 row_shr:4 row_mask:0xf bank_mask:0xf bound_ctrl:0")
    e("    s_nop 1")
    e("    v_add_f32_dpp v8, v8, v8 row_shr:8 row_mask:0xf bank_mask:0xf bound_ctrl:0")
    e("    s_mov_b32 exec_lo, 0xf000f000")
    e("    s_mov_b32 exec_hi, 0x0000f000")
    e(f"    ds_write_b32 v31, v8 offset:{L_P}")
    e("    s_mov_b64 exec, -1")
    e("    s_waitcnt lgkmcnt(0)")
    e("L_b3:")
    e("    s_barrier")
    e("L_b4:")
    e("    s_barrier")
    e(f"    ds_read_b128 v[8:11], v7 offset:{L_G}")
    e(f"    ds_read_b128 v[12:15], v7 offset:{L_G+16}")

    cnt = [0]

    def scale_store(slot, first=False):
        t = 16 + 8 * (cnt[0] & 1)
        cnt[0] += 1
        for i in range(4):
            d = dreg(slot) + i
            e(f"    v_lshlrev_b32 v{t+2*i}, 16, v{d}")
            e(f"    v_and_b32 v{t+1+2*i}, s30, v{d}")
        if first:
            e("    s_waitcnt lgkmcnt(0)")
            stamp(5)
        for i in range(4):
            e(f"    v_pk_mul_f32 v[{t+2*i}:{t+1+2*i}], v[{t+2*i}:{t+1+2*i}], v[{8+2*i}:{9+2*i}]")
        for i in range(4):
            d = dreg(slot) + i
            e(f"    v_cvt_pk_bf16_f32 v{d}, v{t+2*i}, v{t+1+2*i}")
        d = dreg(slot)
        e(f"    buffer_store_dwordx4 v[{d}:{d+3}], v5, s[20:23], s{SO+slot} offen{stf}")

    sslots = []
    for pp in sorder:
        k = lorder.index(pp)
        sslots += [2 * k, 2 * k + 1]
    for j in range(32):
        scale_store(sslots[j], first=(j == 0))
        if sbar and (j + 1) % sbar == 0 and j != 31:
            e("    s_barrier")
    e("    s_cmp_lg_u32 s2, 1")
    e("    s_cbranch_scc1 L_noep")
    e("    s_cmp_lg_u32 s3, 11")
    e("    s_cbranch_scc1 L_noep")
    e(f"    v_mov_b32 v1, {EPOCH}")
    e("    v_mov_b32 v3, s28")
    e("    s_mov_b64 exec, 1")
    e("    buffer_store_dword v3, v1, s[24:27], 0 offen sc1")
    if dbgout:
        e("    s_mov_b32 s32, s12")
        e("    s_mov_b32 s33, s13")
        e("    s_mov_b32 s34, 256")
        e("    v_mov_b32 v16, s76")
        e("    v_mov_b32 v17, s89")
        e("    v_mov_b32 v1, 0")
        e("    buffer_store_dwordx2 v[16:17], v1, s[32:35], 0 offen")
    e("    s_mov_b64 exec, -1")
    e("L_noep:")
    if enc:
        e("    s_waitcnt vmcnt(0)")
        stamp(6)
        e("    s_waitcnt lgkmcnt(0)")
        a, b = {1: (0, 0), 2: (0, 3), 3: (0, 5), 4: (5, 6), 5: (0, 6), 6: (5, 7), 7: (0, 5), -1: (0, 1)}[enc]
        e(f"    s_sub_u32 s42, s{ST+2*smap[b]}, s{ST+2*smap[a]}")
        if enc >= 6:
            e("    s_lshr_b32 s42, s42, 4")
        if enc == -1:
            e("    s_cmp_eq_u32 s3, 0")
            e("    s_cselect_b32 s42, s42, 0")
        if encpar >= 0:
            e("    s_bitcmp1_b32 s2, 0")
            e(f"    s_cselect_b32 s42, s42, 0" if encpar == 1 else "    s_cselect_b32 s42, 0, s42")
        e("L_enc:")
        e("    s_memrealtime s[4:5]")
        e("    s_waitcnt lgkmcnt(0)")
        e(f"    s_sub_u32 s43, s4, s{ST+2*smap[6]}")
        e("    s_cmp_lt_u32 s43, s42")
        e("    s_cbranch_scc1 L_enc")
    if diag:
        e("    s_waitcnt vmcnt(0)")
        stamp(6)
        e("    s_waitcnt lgkmcnt(0)")
        e("    s_mul_i32 s42, s2, 12")
        e("    s_add_u32 s42, s42, s3")
        e("    s_lshl_b32 s42, s42, 7")
        e(f"    s_add_u32 s42, s42, {DIAG}")
        e("    v_mov_b32 v1, s42")
        e("    s_mov_b64 exec, 1")
        inv = {v: k for k, v in smap.items()}
        for k in range(6):
            e(f"    v_mov_b32 v16, s{ST+2*k}")
            e(f"    v_mov_b32 v17, s{ST+2*k+1}")
            e(f"    buffer_store_dwordx2 v[16:17], v1, s[24:27], 0 offen offset:{8*inv[k]}")
            e("    s_nop 2")
        e("    v_mov_b32 v16, 0")
        e("    v_mov_b32 v17, s31")
        e("    buffer_store_dwordx2 v[16:17], v1, s[24:27], 0 offen offset:88")
    e("L_exit:")
    e("    s_endpgm")
    e('.section .rodata,"a"')
    e(".p2align 6")
    e(f".amdhsa_kernel {NAME}")
    e("  .amdhsa_next_free_vgpr 168")
    e("  .amdhsa_next_free_sgpr 102")
    e("  .amdhsa_accum_offset 168")
    e("  .amdhsa_group_segment_fixed_size 0")
    e("  .amdhsa_kernarg_size 48")
    e("  .amdhsa_user_sgpr_count 2")
    e("  .amdhsa_user_sgpr_kernarg_segment_ptr 1")
    e("  .amdhsa_system_sgpr_workgroup_id_x 1")
    e("  .amdhsa_float_denorm_mode_32 3")
    e(".end_amdhsa_kernel")
    sys.stderr.write(f"lorder {lorder} sorder {sorder} A0 {A0} G {G}\n")
    return "\n".join(o) + "\n"


if __name__ == "__main__":
    ap = argparse.ArgumentParser()
    ap.add_argument("-o", default="-")
    ap.add_argument("--ld", default="nt")
    ap.add_argument("--st", default="sc0 sc1")
    ap.add_argument("--diag", action="store_true")
    for name, dv in (("sleep", 0), ("sbar", 2), ("lvm", 3), ("ns", 8), ("pre", 9), ("pairs", 2), ("thr", 14), ("numa", 1), ("dbgout", 0), ("evw", -1), ("enc", 0), ("encpar", -1), ("tlbx", 0), ("tlbo", 0), ("tstep", 8)):
        ap.add_argument("--" + name, type=int, default=dv)
    ap.add_argument("--pubf", default="sc1")
    ap.add_argument("--pollf", default="sc1")
    a = ap.parse_args()
    kw = vars(a).copy()
    out = kw.pop("o")
    s = gen(**kw)
    if out == "-":
        sys.stdout.write(s)
    else:
        open(out, "w").write(s)
```

```python
import sys, argparse

HEADER = """; Kernarg layout for this problem (48 bytes, ptrs only, base s[0:1]):
"""

NAME = "standalone__channel_attn_se__vision_kernel"
XBYTES = 100663296
MAGIC = 0x5BD1E995
MAGIC2 = 0x2C1B3C6D

L_M = 0
L_HP = 6144
L_P = 6400
L_G = 6656
L_DEC = 7424
L_WU = 8192
LDS = 20480
VOTE = 32768
EPOCH = 65536
DIAG = 1 << 20
WS_BYTES = 2 << 20
SB = 49152
WIN = 128 * SB


def gen(ld="nt", st="sc0 sc1", diag=False, sleep=0, spin=400000, pubf="sc1", pollf="sc1", sbar=2,
        lvm=3, ns=8, pre=9, pairs=2, thr=14, numa=1, dbgout=0, evw=-1, enc=0, encpar=-1, tlbx=0, tlbo=0, tstep=8, encv=0):
    o = []
    e = o.append
    ldf = (" " + ld) if ld else ""
    stf = (" " + st) if st else ""
    D0 = 40
    SO = 44
    ST = 90
    na = 16 - ns
    adaptive = []
    for i in range(na):
        adaptive.append((15 - i // 2) if i % 2 == 0 else (9 - i // 2))
    adaptive = adaptive[::-1]
    static = [pp for pp in range(16) if pp not in adaptive]
    lorder = static + adaptive
    sorder = []
    si, ai = 0, 0
    for k in range(16):
        if ai < na and (ai + 1) * 16 <= (k + 1) * na + (16 - na) // 2 * 0 + 0 or si >= len(static):
            sorder.append(adaptive[ai]); ai += 1
        else:
            sorder.append(static[si]); si += 1
    assert sorted(sorder) == list(range(16))
    region = lambda pp: 0 if pp < 10 else 1
    A0 = 2 * ns
    G = A0 - lvm - 1
    e(HEADER.rstrip())
    e(f"; @launch grid=(256,1,1) block=(768,1,1) lds={LDS}")
    e('.amdgcn_target "amdgcn-amd-amdhsa--gfx950"')
    e(".text")
    e(f".globl {NAME}")
    e(".p2align 8")
    e(f".type {NAME},@function")
    e(f"{NAME}:")
    smap = {0: 0, 1: 1, 3: 2, 5: 3, 6: 4, 7: 5}

    def stamp(i):
        if (diag or enc) and i in smap:
            k = smap[i]
            if enc >= 6 and i in (0, 3, 5):
                e(f"    s_memtime s[{ST+2*k}:{ST+1+2*k}]")
            elif enc >= 6 and i in (1, 7):
                pass
            else:
                e(f"    s_memrealtime s[{ST+2*k}:{ST+1+2*k}]")
                if enc >= 6 and i == 6:
                    e(f"    s_memtime s[{ST+2*smap[7]}:{ST+1+2*smap[7]}]")

    def dreg(slot):
        return D0 + 4 * slot

    def load(slot):
        d = dreg(slot)
        e(f"    buffer_load_dwordx4 v[{d}:{d+3}], v5, s[16:19], s{SO+slot} offen{ldf}")

    def acc(slot):
        for i in range(4):
            d = dreg(slot) + i
            if slot == 0:
                e(f"    v_lshlrev_b32 v{8+2*i}, 16, v{d}")
                e(f"    v_and_b32 v{9+2*i}, s30, v{d}")
            else:
                e(f"    v_lshlrev_b32 v{16+2*i}, 16, v{d}")
                e(f"    v_and_b32 v{17+2*i}, s30, v{d}")
        if slot:
            for i in range(4):
                e(f"    v_pk_add_f32 v[{8+2*i}:{9+2*i}], v[{8+2*i}:{9+2*i}], v[{16+2*i}:{17+2*i}]")

    e("    s_cmp_ge_u32 s2, 256")
    e("    s_cbranch_scc1 L_exit")
    e("    s_load_dwordx4 s[4:7], s[0:1], 0")
    e("    s_load_dwordx4 s[8:11], s[0:1], 16")
    e("    s_load_dwordx4 s[12:15], s[0:1], 32")
    if diag or enc:
        for i in range(6):
            e(f"    s_mov_b64 s[{ST+2*i}:{ST+1+2*i}], 0")
    stamp(0)
    e("    v_lshrrev_b32 v1, 6, v0")
    e("    v_and_b32 v2, 63, v0                 ; lane")
    e("    v_readfirstlane_b32 s3, v1")
    e("    v_lshrrev_b32 v3, 4, v2              ; q (row)")
    e("    v_and_b32 v4, 15, v2                 ; n")
    e("    s_mul_i32 s40, s3, 11")
    e("    s_lshr_b32 s40, s40, 5")
    e("    s_mul_i32 s41, s40, 3")
    e("    s_sub_u32 s41, s3, s41               ; seg = wave%3")
    e("    s_lshl_b32 s43, s41, 8")
    e("    v_mul_u32_u24 v5, 768, v3")
    e("    v_lshl_add_u32 v5, v4, 4, v5")
    e("    v_add_u32 v5, s43, v5                ; v5 = q*768 + seg*256 + n*16")
    e("    s_mov_b32 s18, %d" % XBYTES)
    e("    s_mov_b32 s19, 0x00020000")
    e("    s_mov_b32 s30, 0xffff0000")
    e("    s_lshr_b32 s42, s2, 3")
    e("    s_lshl_b32 s42, s42, 2")
    e("    s_and_b32 s43, s2, 3")
    e("    s_add_u32 s42, s42, s43")
    e(f"    s_mul_i32 s76, s42, {SB}")
    e("    s_lshl_b32 s43, s40, 2")
    e("    s_lshr_b32 s78, 0x5210, s43")
    e("    s_and_b32 s78, s78, 15")
    e("    s_lshr_b32 s79, 0xcb76, s43")
    e("    s_and_b32 s79, s79, 15")
    e("    s_mul_i32 s78, s78, 3072")
    e("    s_mul_i32 s79, s79, 3072")
    e("    s_sub_u32 s80, 46080, s78")
    e("    s_sub_u32 s81, 46080, s79")
    for r in (78, 79, 80, 81):
        e(f"    s_add_u32 s{r}, s{r}, s76")
    e("    s_add_u32 s77, s76, 24576")
    e("    s_lshr_b32 s77, s77, 19")
    e("    s_xor_b32 s77, s77, s2")
    e("    s_lshr_b32 s42, s2, 1")
    e("    s_xor_b32 s42, s42, s77")
    e("    s_bitcmp1_b32 s42, 2")
    e("    s_cselect_b32 s82, s80, s78          ; E0")
    e("    s_cselect_b32 s83, s81, s79          ; E1")
    e("    s_cselect_b32 s84, s78, s80          ; O0")
    e("    s_cselect_b32 s85, s79, s81          ; O1")
    seen = [0, 0]
    for k, pp in enumerate(lorder):
        u = seen[region(pp)] & 1
        seen[region(pp)] += 1
        b = 84 if ((pp ^ u) & 1) else 82
        e(f"    s_add_u32 s{SO+2*k}, s{b}, {pp*WIN}")
        e(f"    s_add_u32 s{SO+2*k+1}, s{b+1}, {pp*WIN}")
    e("    s_and_b32 s86, s2, 1")
    e("    s_add_u32 s86, s86, 1")
    e("    s_cmp_eq_u32 s3, 0")
    e("    s_cselect_b32 s86, s86, 0")
    e("    s_waitcnt lgkmcnt(0)")
    e("    s_mov_b32 s16, s4")
    e("    s_mov_b32 s17, s5")
    for s in range(lvm):
        load(s)
    if tlbx or tlbo:
        e("    s_lshl_b32 s42, s3, 23")
        e("    v_lshlrev_b32 v39, %d, v2" % (21 if max(tlbx, tlbo) == 1 else 20))
        e("    v_add_u32 v39, s42, v39")
    if tlbx:
        e("    s_mov_b64 exec, %d" % (15 if tlbx == 1 else 255))
        e("    buffer_load_dword v38, v39, s[16:19], 0 offen")
        e("    s_mov_b64 exec, -1")
    e(f"    s_load_dword s28, s[14:15], {EPOCH}")
    e("    s_mov_b32 s24, s14")
    e("    s_mov_b32 s25, s15")
    e("    s_mov_b32 s26, %d" % WS_BYTES)
    e("    s_mov_b32 s27, 0x00020000")
    if numa:
        e("    s_cmp_lg_u32 s86, 1")
        e("    s_cbranch_scc1 L_noprobe")
        e("    s_bfe_u32 s42, s2, 0x10001           ; r = bit1")
        e("    s_add_u32 s42, s42, 1")
        e(f"    s_mul_i32 s42, s42, {40<<20}")
        e("    s_bfe_u32 s43, s2, 0x30003           ; i & 7")
        e("    s_lshl_b32 s43, s43, 21")
        e("    s_add_u32 s42, s42, s43")
        e("    s_lshr_b32 s43, s2, 6")
        e("    s_lshl_b32 s43, s43, 18")
        e("    s_add_u32 s42, s42, s43")
        e("    s_bfe_u32 s43, s2, 0x10002           ; L")
        e("    s_lshl_b32 s43, s43, 17")
        e("    s_add_u32 s42, s42, s43")
        e("    s_add_u32 s20, s10, s42")
        e("    s_addc_u32 s21, s11, 0")
        e("    s_load_dword s22, s[20:21], 4096")
        for s in range(lvm, pre):
            load(s)
        e("    s_waitcnt lgkmcnt(0)")
        offs = [0, 8192, 24576 + 256, 16384 + 256, 32768 + 512, 40960 + 512][:2 * pairs]
        e("    s_memtime s[32:33]")
        e("    s_waitcnt lgkmcnt(0)")
        for i, of in enumerate(offs):
            a, b = (32, 34) if i % 2 == 0 else (34, 32)
            e(f"    s_load_dword s22, s[20:21], {of}")
            e("    s_waitcnt lgkmcnt(0)")
            e(f"    s_memtime s[{b}:{b+1}]")
            e("    s_waitcnt lgkmcnt(0)")
            e(f"    s_sub_u32 s{36+(i&1)}, s{b}, s{a}")
            if i % 2 == 1:
                if (i // 2) % 2 == 0:
                    e("    s_cmp_gt_u32 s37, s36")
                else:
                    e("    s_cmp_gt_u32 s36, s37")
                if i == 1:
                    e("    s_cselect_b32 s38, 1, -1")
                else:
                    e("    s_cselect_b32 s39, 1, -1")
                    e("    s_add_i32 s38, s38, s39")
        e("    s_lshr_b32 s42, s2, 1")
        e("    s_xor_b32 s42, s42, s2")
        e("    s_sub_i32 s39, 0, s38")
        e("    s_bitcmp1_b32 s42, 2")
        e("    s_cselect_b32 s38, s39, s38")
        e("    s_add_u32 s39, s28, 1")
        e("    s_xor_b32 s39, s39, 0x%08x" % MAGIC2)
        e("    s_xor_b32 s39, s39, s38")
        e("    s_bfe_u32 s42, s2, 0x10001")
        e("    s_lshl_b32 s42, s42, 6")
        e("    s_lshr_b32 s43, s2, 2                ; i*2 + L")
        e("    s_add_u32 s42, s42, s43")
        e("    s_lshl_b32 s42, s42, 3")
        e(f"    s_add_u32 s42, s42, {VOTE}")
        e("    v_mov_b32 v32, s38")
        e("    v_mov_b32 v33, s39")
        e("    v_mov_b32 v34, s42")
        e("    s_mov_b64 exec, 1")
        e("    buffer_store_dwordx2 v[32:33], v34, s[24:27], 0 offen sc1")
        e("    s_mov_b64 exec, -1")
        stamp(1)
        e("L_noprobe:")
    e("    s_mov_b32 s20, s10")
    e("    s_mov_b32 s21, s11")
    e("    s_mov_b32 s22, %d" % XBYTES)
    e("    s_mov_b32 s23, 0x00020000")
    e("    s_mov_b32 s32, s6")
    e("    s_mov_b32 s33, s7")
    e("    s_mov_b32 s34, 4608")
    e("    s_mov_b32 s35, 0x00020000")
    e("    s_mov_b32 s36, s8")
    e("    s_mov_b32 s37, s9")
    e("    s_mov_b32 s38, 4608")
    e("    s_mov_b32 s39, 0x00020000")
    e("    s_mov_b32 s31, %d" % spin)
    e("    s_mul_i32 s42, s41, 1536")
    e("    s_mul_i32 s43, s40, 6")
    e("    s_add_u32 s42, s42, s43")
    e("    v_mul_u32_u24 v1, 24, v2")
    e("    v_add_u32 v1, s42, v1")
    e("    s_lshl_b32 s42, s3, 10")
    e(f"    s_add_u32 s42, s42, {L_WU}")
    e("    s_mov_b32 m0, s42")
    e("    v_lshlrev_b32 v27, 4, v0")
    e("    buffer_load_ushort v24, v1, s[32:35], 0 offen")
    e("    buffer_load_ushort v25, v1, s[32:35], 0 offen offset:2")
    e("    buffer_load_ushort v26, v1, s[32:35], 0 offen offset:4")
    e("    buffer_load_dwordx4 v27, s[36:39], 0 offen lds")
    NW = 4
    e("    s_mul_i32 s42, s40, 1536")
    e("    s_lshl_b32 s43, s41, 9")
    e("    s_add_u32 s42, s42, s43")
    e("    v_lshlrev_b32 v6, 5, v4")
    e("    v_lshl_add_u32 v6, v3, 3, v6")
    e("    v_add_u32 v6, s42, v6")
    e("    s_lshl_b32 s43, s41, 7")
    e("    v_lshlrev_b32 v7, 3, v4")
    e("    v_add_u32 v7, s43, v7")
    e("    v_subrev_u32 v1, 192, v7")
    e("    v_min_u32 v7, v7, v1")
    e("    v_lshlrev_b32 v7, 2, v7")
    e("    v_and_b32 v1, 1, v3")
    e("    v_lshrrev_b32 v31, 1, v3")
    e("    v_lshl_add_u32 v31, v1, 1, v31")
    e("    v_lshlrev_b32 v31, 2, v31            ; i(row)*4")
    e("    s_lshl_b32 s42, s41, 6")
    e("    s_lshl_b32 s43, s40, 4")
    e("    s_add_u32 s42, s42, s43")
    e("    v_add_u32 v4, s42, v31")
    e("    s_lshl_b32 s42, s41, 8")
    e("    v_lshlrev_b32 v3, 2, v2")
    e("    v_add_u32 v3, s42, v3")
    e("    v_lshlrev_b32 v1, 4, v2              ; lane*16")
    e(f"    s_mov_b32 s87, {VOTE}")
    for j in range(32):
        last = min(j + lvm - 1, 31)
        younger = (last - j) + (NW if j < lvm else 0)
        e(f"    s_waitcnt vmcnt({younger})")
        if j == lvm:
            e("    s_waitcnt lgkmcnt(0)")
            e("    s_add_u32 s28, s28, 1                ; epoch + 1")
            e("    s_xor_b32 s29, s28, 0x%08x           ; tag key" % MAGIC)
            e("    s_xor_b32 s88, s28, 0x%08x           ; vote key" % MAGIC2)
        if numa and j == A0 - lvm:
            e("    s_bitcmp1_b32 s2, 0")
            e("    s_cbranch_scc0 L_nodec")
            e("    s_cmp_lg_u32 s86, 2")
            e("    s_cbranch_scc1 L_decbar")
            e("L_vchk:")
            e("    v_bitop3_b32 v36, v32, v33, s88 bitop3:0x96")
            e("    v_bitop3_b32 v37, v34, v35, s88 bitop3:0x96")
            e("    v_or_b32 v36, v36, v37")
            e("    v_cmp_ne_u32 vcc, 0, v36")
            e("    s_cbranch_vccz L_vok")
            e("    s_sub_u32 s31, s31, 1")
            e("    s_cbranch_scc1 L_vok")
            e("    buffer_load_dwordx4 v[32:35], v1, s[24:27], s87 offen sc1")
            e("    s_waitcnt vmcnt(0)")
            e("    s_branch L_vchk")
            e("L_vok:")
            e("    v_add_u32 v36, v32, v34")
            for sh in (1, 2, 4, 8):
                e("    s_nop 1")
                e(f"    v_add_u32_dpp v36, v36, v36 row_shr:{sh} row_mask:0xf bank_mask:0xf bound_ctrl:0")
            e("    s_nop 1")
            e("    v_add_u32_dpp v36, v36, v36 row_bcast:15 row_mask:0xa bank_mask:0xf")
            e("    v_lshrrev_b32 v37, 3, v2")
            e("    v_and_b32 v37, 4, v37                ; (lane>=32)*4")
            e("    s_mov_b32 exec_lo, 0x80000000")
            e("    s_mov_b32 exec_hi, 0x80000000")
            e(f"    ds_write_b32 v37, v36 offset:{L_DEC}")
            e("    s_mov_b64 exec, -1")
            e("    s_waitcnt lgkmcnt(0)")
            stamp(1)
            e("L_decbar:")
            e("    s_barrier")
            e("    v_mov_b32 v36, 0")
            e(f"    ds_read_b64 v[36:37], v36 offset:{L_DEC}")
            e("    s_waitcnt lgkmcnt(0)")
            e("    v_readfirstlane_b32 s4, v36")
            e("    v_readfirstlane_b32 s5, v37")
            for r in range(2):
                wins = [(k, pp) for k, pp in enumerate(lorder) if pp in adaptive and region(pp) == r]
                if not wins:
                    continue
                e(f"    s_abs_i32 s42, s{4+r}")
                e(f"    s_cmp_lt_u32 s42, {thr}")
                e(f"    s_cbranch_scc1 L_keep{r}")
                e(f"    s_lshr_b32 s42, s{4+r}, 29")
                e("    s_xor_b32 s42, s42, s77")
                e("    s_bitcmp1_b32 s42, 2")
                e("    s_cselect_b32 s82, s80, s78")
                e("    s_cselect_b32 s83, s81, s79")
                e("    s_cselect_b32 s84, s78, s80")
                e("    s_cselect_b32 s85, s79, s81")
                for k, pp in wins:
                    b = 84 if (pp & 1) else 82
                    e(f"    s_add_u32 s{SO+2*k}, s{b}, {pp*WIN}")
                    e(f"    s_add_u32 s{SO+2*k+1}, s{b+1}, {pp*WIN}")
                e(f"L_keep{r}:")
            if dbgout:
                e("    s_mov_b32 s76, s4")
                e("    s_mov_b32 s89, s5")
            e("L_nodec:")
        if j + lvm < 32:
            k = j + lvm
            if evw >= 0 and j >= lvm and k >= pre:
                e("    s_bitcmp1_b32 s2, 0")
                e(f"    s_cbranch_scc1 L_ev{k}")
                e(f"    s_waitcnt vmcnt({evw})")
                e(f"L_ev{k}:")
            if numa and k < pre:
                e("    s_cmp_eq_u32 s86, 1")
                e(f"    s_cbranch_scc1 L_sk{k}")
                load(k)
                e(f"L_sk{k}:")
            else:
                load(k)
            if numa and k == G:
                e("    s_cmp_lg_u32 s86, 2")
                e("    s_cbranch_scc1 L_nog")
                e("    buffer_load_dwordx4 v[32:35], v1, s[24:27], s87 offen sc1")
                e("L_nog:")
        if tlbo and j == tstep:
            e("    s_mov_b64 exec, %d" % (15 if tlbo == 1 else 255))
            e("    buffer_load_dword v38, v39, s[20:23], 0 offen")
            e("    s_mov_b64 exec, -1")
        acc(j)
        if j == 20:
            for r in (24, 25, 26):
                e(f"    v_lshlrev_b32 v{r}, 16, v{r}")
    e("    s_nop 1")
    for i in range(4):
        e(f"    v_permlane32_swap_b32 v{8+i}, v{12+i}")
    for i in range(4):
        e(f"    v_add_f32 v{8+i}, v{8+i}, v{12+i}")
    e("    s_nop 0")
    e("    v_permlane16_swap_b32 v8, v10")
    e("    v_permlane16_swap_b32 v9, v11")
    e("    v_add_f32 v8, v8, v10")
    e("    v_add_f32 v9, v9, v11")
    e(f"    ds_write_b64 v6, v[8:9] offset:{L_M}")
    e("    s_waitcnt lgkmcnt(0)")
    e("    s_barrier")
    stamp(3)
    for k in range(4):
        e(f"    ds_read2st64_b32 v[{16+2*k}:{17+2*k}], v3 offset0:{6*k} offset1:{6*k+3}")
    e("    s_waitcnt lgkmcnt(2)" if not (diag or enc) else "    s_waitcnt lgkmcnt(0)")
    e("    v_pk_add_f32 v[16:17], v[16:17], v[18:19]")
    e("    s_waitcnt lgkmcnt(0)")
    e("    v_pk_add_f32 v[20:21], v[20:21], v[22:23]")
    e("    v_pk_add_f32 v[16:17], v[16:17], v[20:21]")
    e("    v_add_f32 v16, v16, v17")
    e("    v_mul_f32 v10, v16, v26")
    e("    v_mul_f32 v11, v16, v26")
    e("    v_mul_f32 v8, v16, v24")
    e("    v_mul_f32 v9, v16, v25")
    e("    v_permlane32_swap_b32 v10, v11")
    e("    s_nop 0")
    e("    v_permlane32_swap_b32 v8, v9")
    e("    v_add_f32 v10, v10, v11              ; [c | c]")
    e("    v_add_f32 v8, v8, v9                 ; [a | b]")
    e("    s_nop 1")
    e("    v_permlane16_swap_b32 v8, v10")
    e("    v_add_f32 v8, v8, v10                ; rows: a, c, b, c")
    e("    s_nop 1")
    e("    v_add_f32_dpp v9, v8, v8 row_shr:1 row_mask:0xf bank_mask:0xf bound_ctrl:0")
    e("    v_add_f32_dpp v9, v8, v9 row_shr:2 row_mask:0xf bank_mask:0xf bound_ctrl:0")
    e("    v_add_f32_dpp v9, v8, v9 row_shr:3 row_mask:0xf bank_mask:0xf bound_ctrl:0")
    e("    s_nop 1")
    e("    v_add_f32_dpp v9, v9, v9 row_shr:4 row_mask:0xf bank_mask:0xf bound_ctrl:0")
    e("    s_nop 1")
    e("    v_add_f32_dpp v9, v9, v9 row_shr:8 row_mask:0xf bank_mask:0xf bound_ctrl:0")
    e("    s_mov_b32 exec_lo, 0x80008000")
    e("    s_mov_b32 exec_hi, 0x00008000")
    e(f"    ds_write_b32 v4, v9 offset:{L_HP}")
    e("    s_mov_b64 exec, -1")
    e("    s_lshl_b32 s42, s2, 6")
    e("    s_cmp_lg_u32 s3, 4")
    e("    s_waitcnt lgkmcnt(0)")
    e("    s_barrier")
    e("    s_cbranch_scc1 L_notpub")
    e("    s_mov_b64 exec, 15")
    e(f"    ds_read_b128 v[8:11], v1 offset:{L_HP}")
    e(f"    ds_read_b128 v[12:15], v1 offset:{L_HP+64}")
    e(f"    ds_read_b128 v[16:19], v1 offset:{L_HP+128}")
    e("    s_waitcnt lgkmcnt(1)")
    e("    v_pk_add_f32 v[8:9], v[8:9], v[12:13]")
    e("    v_add_f32 v10, v10, v14")
    e("    s_waitcnt lgkmcnt(0)")
    e("    v_pk_add_f32 v[8:9], v[8:9], v[16:17]")
    e("    v_add_f32 v10, v10, v18")
    e("    v_bitop3_b32 v11, v8, v9, s29 bitop3:0x96")
    e("    v_xor_b32 v11, v11, v10")
    e(f"    buffer_store_dwordx4 v[8:11], v1, s[24:27], s42 offen {pubf}")
    e("    s_mov_b64 exec, -1")
    stamp(7)
    e("    s_branch L_b3")
    e("L_notpub:")
    e("    s_cmp_lt_u32 s3, 4")
    e("    s_cbranch_scc1 L_poll_start")
    e("    s_cmp_gt_u32 s3, 7")
    e("    s_cbranch_scc1 L_b3")
    e("    v_subrev_u32 v1, 320, v0")
    e("    v_lshlrev_b32 v21, 2, v1")
    e("    v_lshlrev_b32 v1, 1, v1")
    for r in range(12):
        e(f"    ds_read_u16 v{8+r}, v1 offset:{L_WU+384*r}")
    e("    v_and_b32 v20, 15, v2")
    e("    v_lshlrev_b32 v20, 2, v20")
    e(f"    v_add_u32 v20, {L_P}, v20")
    e("    s_waitcnt lgkmcnt(0)")
    for r in range(12):
        e(f"    v_lshlrev_b32 v{8+r}, 16, v{8+r}")
    e("    s_barrier")
    e("    ds_read2_b32 v[22:23], v20 offset0:0 offset1:16")
    e("    ds_read2_b32 v[24:25], v20 offset0:32 offset1:48")
    e("    s_waitcnt lgkmcnt(0)")
    e("    v_pk_add_f32 v[22:23], v[22:23], v[24:25]")
    e("    v_add_f32 v22, v22, v23")
    e("    v_mul_f32 v22, 0x36800000, v22       ; * 2^-18")
    e("    v_cvt_pk_bf16_f32 v22, v22, v22")
    e("    v_lshlrev_b32 v22, 16, v22")
    e("    v_mul_f32 v23, 0xbfb8aa3b, v22       ; -log2e * x")
    e("    v_exp_f32 v23, v23")
    e("    s_nop 0")
    e("    v_add_f32 v23, 1.0, v23")
    e("    v_rcp_f32 v23, v23")
    e("    s_nop 0")
    e("    v_mul_f32 v22, v22, v23")
    e("    v_cvt_pk_bf16_f32 v22, v22, v22")
    e("    v_lshlrev_b32 v22, 16, v22")
    e("    s_nop 1")
    for r in range(12):
        a = 23 + (r % 3)
        op = "v_mul_f32_dpp" if r < 3 else "v_fmac_f32_dpp"
        e(f"    {op} v{a}, v22, v{8+r} row_newbcast:{r} row_mask:0xf bank_mask:0xf")
    e("    v_add_f32 v23, v23, v24")
    e("    v_add_f32 v23, v23, v25")
    e("    v_cvt_pk_bf16_f32 v23, v23, v23")
    e("    v_lshlrev_b32 v23, 16, v23")
    e("    v_mul_f32 v23, 0xbfb8aa3b, v23")
    e("    v_exp_f32 v23, v23")
    e("    s_nop 0")
    e("    v_add_f32 v23, 1.0, v23")
    e("    v_rcp_f32 v23, v23")
    e("    s_nop 0")
    e("    v_cvt_pk_bf16_f32 v23, v23, v23")
    e("    v_lshlrev_b32 v23, 16, v23")
    e(f"    ds_write_b32 v21, v23 offset:{L_G}")
    e("    s_waitcnt lgkmcnt(0)")
    e("    s_branch L_b4")

    e("L_poll_start:")
    e("    s_lshl_b32 s42, s3, 12")
    e("    v_and_b32 v27, 3, v2")
    e("    v_mul_u32_u24 v27, 12, v27")
    e("    s_lshl_b32 s43, s3, 6")
    e("    v_add3_u32 v31, v31, v27, s43")
    regs = (8, 12, 16, 20)
    for k in range(4):
        e(f"    s_mov_b64 s[{4+2*k}:{5+2*k}], -1")
    e("L_poll:")
    for k in range(4):
        e(f"    s_mov_b64 exec, s[{4+2*k}:{5+2*k}]")
        e(f"    s_cbranch_execz L_skip{k}")
        e(f"    buffer_load_dwordx4 v[{regs[k]}:{regs[k]+3}], v1, s[24:27], s42 offen offset:{1024*k} {pollf}")
        e(f"L_skip{k}:")
    e("    s_mov_b64 exec, -1")
    e("    s_waitcnt vmcnt(0)")
    for k in range(4):
        r = regs[k]
        e(f"    v_bitop3_b32 v{27+k}, v{r}, v{r+1}, s29 bitop3:0x96")
    for k in range(4):
        r = regs[k]
        e(f"    v_bitop3_b32 v{27+k}, v{27+k}, v{r+2}, v{r+3} bitop3:0x96")
    for k in range(4):
        e(f"    v_cmp_ne_u32 s[{4+2*k}:{5+2*k}], 0, v{27+k}")
    e("    s_or_b64 s[82:83], s[4:5], s[6:7]")
    e("    s_or_b64 vcc, s[8:9], s[10:11]")
    e("    s_or_b64 s[82:83], s[82:83], vcc")
    e("    s_cbranch_scc0 L_poll_ok")
    e("    s_sub_u32 s31, s31, 1")
    e("    s_cbranch_scc1 L_poll_ok")
    if sleep:
        e(f"    s_sleep {sleep}")
    e("    s_branch L_poll")
    e("L_poll_ok:")
    stamp(7)
    e("    v_add_f32 v10, v10, v14")
    e("    v_add_f32 v18, v18, v22")
    e("    v_pk_add_f32 v[8:9], v[8:9], v[12:13]")
    e("    v_pk_add_f32 v[16:17], v[16:17], v[20:21]")
    e("    v_add_f32 v11, v10, v18")
    e("    v_add_f32 v10, v10, v18")
    e("    v_pk_add_f32 v[8:9], v[8:9], v[16:17]")
    e("    s_nop 0")
    e("    v_permlane32_swap_b32 v10, v11")
    e("    v_permlane32_swap_b32 v8, v9")
    e("    v_add_f32 v10, v10, v11              ; [c | c]")
    e("    v_add_f32 v8, v8, v9                 ; [a | b]")
    e("    s_nop 1")
    e("    v_permlane16_swap_b32 v8, v10")
    e("    v_add_f32 v8, v8, v10                ; rows: a, c, b, c")
    e("    s_nop 1")
    e("    v_add_f32_dpp v8, v8, v8 row_shr:4 row_mask:0xf bank_mask:0xf bound_ctrl:0")
    e("    s_nop 1")
    e("    v_add_f32_dpp v8, v8, v8 row_shr:8 row_mask:0xf bank_mask:0xf bound_ctrl:0")
    e("    s_mov_b32 exec_lo, 0xf000f000")
    e("    s_mov_b32 exec_hi, 0x0000f000")
    e(f"    ds_write_b32 v31, v8 offset:{L_P}")
    e("    s_mov_b64 exec, -1")
    e("    s_waitcnt lgkmcnt(0)")
    e("L_b3:")
    e("    s_barrier")
    e("L_b4:")
    e("    s_barrier")
    e(f"    ds_read_b128 v[8:11], v7 offset:{L_G}")
    e(f"    ds_read_b128 v[12:15], v7 offset:{L_G+16}")

    cnt = [0]

    def scale_store(slot, first=False):
        t = 16 + 8 * (cnt[0] & 1)
        cnt[0] += 1
        for i in range(4):
            d = dreg(slot) + i
            e(f"    v_lshlrev_b32 v{t+2*i}, 16, v{d}")
            e(f"    v_and_b32 v{t+1+2*i}, s30, v{d}")
        if first:
            e("    s_waitcnt lgkmcnt(0)")
            stamp(5)
        for i in range(4):
            e(f"    v_pk_mul_f32 v[{t+2*i}:{t+1+2*i}], v[{t+2*i}:{t+1+2*i}], v[{8+2*i}:{9+2*i}]")
        for i in range(4):
            d = dreg(slot) + i
            e(f"    v_cvt_pk_bf16_f32 v{d}, v{t+2*i}, v{t+1+2*i}")
        d = dreg(slot)
        e(f"    buffer_store_dwordx4 v[{d}:{d+3}], v5, s[20:23], s{SO+slot} offen{stf}")

    sslots = []
    for pp in sorder:
        k = lorder.index(pp)
        sslots += [2 * k, 2 * k + 1]
    for j in range(32):
        scale_store(sslots[j], first=(j == 0))
        if sbar and (j + 1) % sbar == 0 and j != 31:
            e("    s_barrier")
    e("    s_cmp_lg_u32 s2, 1")
    e("    s_cbranch_scc1 L_noep")
    e("    s_cmp_lg_u32 s3, 11")
    e("    s_cbranch_scc1 L_noep")
    e(f"    v_mov_b32 v1, {EPOCH}")
    e("    v_mov_b32 v3, s28")
    e("    s_mov_b64 exec, 1")
    e("    buffer_store_dword v3, v1, s[24:27], 0 offen sc1")
    if dbgout:
        e("    s_mov_b32 s32, s12")
        e("    s_mov_b32 s33, s13")
        e("    s_mov_b32 s34, 256")
        e("    v_mov_b32 v16, s76")
        e("    v_mov_b32 v17, s89")
        e("    v_mov_b32 v1, 0")
        e("    buffer_store_dwordx2 v[16:17], v1, s[32:35], 0 offen")
    e("    s_mov_b64 exec, -1")
    e("L_noep:")
    if enc:
        e("    s_waitcnt vmcnt(0)")
        stamp(6)
        e("    s_waitcnt lgkmcnt(0)")
        a, b = {1: (0, 0), 2: (0, 3), 3: (0, 5), 4: (5, 6), 5: (0, 6), 6: (5, 7), 7: (0, 5), -1: (0, 1)}[enc]
        e(f"    s_sub_u32 s42, s{ST+2*smap[b]}, s{ST+2*smap[a]}")
        if enc >= 6:
            e("    s_lshr_b32 s42, s42, 4")
        if encv:
            e(f"    s_abs_i32 s42, s{76 if encv == 1 else 89}")
            e("    s_mul_i32 s42, s42, 10")
        if enc == -1:
            e("    s_cmp_eq_u32 s3, 0")
            e("    s_cselect_b32 s42, s42, 0")
        if encpar >= 0:
            e("    s_bitcmp1_b32 s2, 0")
            e(f"    s_cselect_b32 s42, s42, 0" if encpar == 1 else "    s_cselect_b32 s42, 0, s42")
        e("L_enc:")
        e("    s_memrealtime s[4:5]")
        e("    s_waitcnt lgkmcnt(0)")
        e(f"    s_sub_u32 s43, s4, s{ST+2*smap[6]}")
        e("    s_cmp_lt_u32 s43, s42")
        e("    s_cbranch_scc1 L_enc")
    if diag:
        e("    s_waitcnt vmcnt(0)")
        stamp(6)
        e("    s_waitcnt lgkmcnt(0)")
        e("    s_mul_i32 s42, s2, 12")
        e("    s_add_u32 s42, s42, s3")
        e("    s_lshl_b32 s42, s42, 7")
        e(f"    s_add_u32 s42, s42, {DIAG}")
        e("    v_mov_b32 v1, s42")
        e("    s_mov_b64 exec, 1")
        inv = {v: k for k, v in smap.items()}
        for k in range(6):
            e(f"    v_mov_b32 v16, s{ST+2*k}")
            e(f"    v_mov_b32 v17, s{ST+2*k+1}")
            e(f"    buffer_store_dwordx2 v[16:17], v1, s[24:27], 0 offen offset:{8*inv[k]}")
            e("    s_nop 2")
        e("    v_mov_b32 v16, 0")
        e("    v_mov_b32 v17, s31")
        e("    buffer_store_dwordx2 v[16:17], v1, s[24:27], 0 offen offset:88")
    e("L_exit:")
    e("    s_endpgm")
    e('.section .rodata,"a"')
    e(".p2align 6")
    e(f".amdhsa_kernel {NAME}")
    e("  .amdhsa_next_free_vgpr 168")
    e("  .amdhsa_next_free_sgpr 102")
    e("  .amdhsa_accum_offset 168")
    e("  .amdhsa_group_segment_fixed_size 0")
    e("  .amdhsa_kernarg_size 48")
    e("  .amdhsa_user_sgpr_count 2")
    e("  .amdhsa_user_sgpr_kernarg_segment_ptr 1")
    e("  .amdhsa_system_sgpr_workgroup_id_x 1")
    e("  .amdhsa_float_denorm_mode_32 3")
    e(".end_amdhsa_kernel")
    sys.stderr.write(f"lorder {lorder} sorder {sorder} A0 {A0} G {G}\n")
    return "\n".join(o) + "\n"


if __name__ == "__main__":
    ap = argparse.ArgumentParser()
    ap.add_argument("-o", default="-")
    ap.add_argument("--ld", default="nt")
    ap.add_argument("--st", default="sc0 sc1")
    ap.add_argument("--diag", action="store_true")
    for name, dv in (("sleep", 0), ("sbar", 2), ("lvm", 3), ("ns", 8), ("pre", 9), ("pairs", 2), ("thr", 14), ("numa", 1), ("dbgout", 0), ("evw", -1), ("enc", 0), ("encpar", -1), ("tlbx", 0), ("tlbo", 0), ("tstep", 8), ("encv", 0)):
        ap.add_argument("--" + name, type=int, default=dv)
    ap.add_argument("--pubf", default="sc1")
    ap.add_argument("--pollf", default="sc1")
    a = ap.parse_args()
    kw = vars(a).copy()
    out = kw.pop("o")
    s = gen(**kw)
    if out == "-":
        sys.stdout.write(s)
    else:
        open(out, "w").write(s)
```

```python
import sys, argparse

HEADER = """; Kernarg layout for this problem (48 bytes, ptrs only, base s[0:1]):
"""

NAME = "standalone__channel_attn_se__vision_kernel"
XBYTES = 100663296
MAGIC = 0x5BD1E995
MAGIC2 = 0x2C1B3C6D

L_M = 0
L_HP = 6144
L_P = 6400
L_G = 6656
L_DEC = 7424
L_WU = 8192
LDS = 20480
VOTE = 32768
EPOCH = 65536
DIAG = 1 << 20
WS_BYTES = 2 << 20
SB = 49152
WIN = 128 * SB


def gen(ld="nt", st="sc0 sc1", diag=False, sleep=0, spin=400000, pubf="sc1", pollf="sc1", sbar=2,
        lvm=3, ns=8, pre=9, pairs=2, thr=14, numa=1, dbgout=0, evw=-1, enc=0, encpar=-1, tlbx=0, tlbo=0, tstep=8, encv=0, ndf=0, dff="", dfpos=0, inv=""):
    o = []
    e = o.append
    ldf = (" " + ld) if ld else ""
    stf = (" " + st) if st else ""
    D0 = 40
    SO = 44
    ST = 90
    na = 16 - ns
    adaptive = []
    for i in range(na):
        adaptive.append((15 - i // 2) if i % 2 == 0 else (9 - i // 2))
    adaptive = adaptive[::-1]
    static = [pp for pp in range(16) if pp not in adaptive]
    lorder = static + adaptive
    sorder = []
    si, ai = 0, 0
    for k in range(16):
        if ai < na and (ai + 1) * 16 <= (k + 1) * na + (16 - na) // 2 * 0 + 0 or si >= len(static):
            sorder.append(adaptive[ai]); ai += 1
        else:
            sorder.append(static[si]); si += 1
    assert sorted(sorder) == list(range(16))
    region = lambda pp: 0 if pp < 10 else 1
    A0 = 2 * ns
    G = A0 - lvm - 1
    e(HEADER.rstrip())
    e(f"; @launch grid=(256,1,1) block=(768,1,1) lds={LDS}")
    e('.amdgcn_target "amdgcn-amd-amdhsa--gfx950"')
    e(".text")
    e(f".globl {NAME}")
    e(".p2align 8")
    e(f".type {NAME},@function")
    e(f"{NAME}:")
    smap = {0: 0, 1: 1, 3: 2, 5: 3, 6: 4, 7: 5}

    def stamp(i):
        if (diag or enc) and i in smap:
            k = smap[i]
            if enc >= 6 and i in (0, 3, 5):
                e(f"    s_memtime s[{ST+2*k}:{ST+1+2*k}]")
            elif enc >= 6 and i in (1, 7):
                pass
            else:
                e(f"    s_memrealtime s[{ST+2*k}:{ST+1+2*k}]")
                if enc >= 6 and i == 6:
                    e(f"    s_memtime s[{ST+2*smap[7]}:{ST+1+2*smap[7]}]")

    def dreg(slot):
        return D0 + 4 * slot

    def load(slot):
        d = dreg(slot)
        fl = ldf
        if dfpos <= slot < dfpos + ndf:
            fl = (" " + dff) if dff else ""
        e(f"    buffer_load_dwordx4 v[{d}:{d+3}], v5, s[16:19], s{SO+slot} offen{fl}")

    def acc(slot):
        for i in range(4):
            d = dreg(slot) + i
            if slot == 0:
                e(f"    v_lshlrev_b32 v{8+2*i}, 16, v{d}")
                e(f"    v_and_b32 v{9+2*i}, s30, v{d}")
            else:
                e(f"    v_lshlrev_b32 v{16+2*i}, 16, v{d}")
                e(f"    v_and_b32 v{17+2*i}, s30, v{d}")
        if slot:
            for i in range(4):
                e(f"    v_pk_add_f32 v[{8+2*i}:{9+2*i}], v[{8+2*i}:{9+2*i}], v[{16+2*i}:{17+2*i}]")

    e("    s_cmp_ge_u32 s2, 256")
    e("    s_cbranch_scc1 L_exit")
    e("    s_load_dwordx4 s[4:7], s[0:1], 0")
    e("    s_load_dwordx4 s[8:11], s[0:1], 16")
    e("    s_load_dwordx4 s[12:15], s[0:1], 32")
    if diag or enc:
        for i in range(6):
            e(f"    s_mov_b64 s[{ST+2*i}:{ST+1+2*i}], 0")
    stamp(0)
    e("    v_lshrrev_b32 v1, 6, v0")
    e("    v_and_b32 v2, 63, v0                 ; lane")
    e("    v_readfirstlane_b32 s3, v1")
    e("    v_lshrrev_b32 v3, 4, v2              ; q (row)")
    e("    v_and_b32 v4, 15, v2                 ; n")
    e("    s_mul_i32 s40, s3, 11")
    e("    s_lshr_b32 s40, s40, 5")
    e("    s_mul_i32 s41, s40, 3")
    e("    s_sub_u32 s41, s3, s41               ; seg = wave%3")
    e("    s_lshl_b32 s43, s41, 8")
    e("    v_mul_u32_u24 v5, 768, v3")
    e("    v_lshl_add_u32 v5, v4, 4, v5")
    e("    v_add_u32 v5, s43, v5                ; v5 = q*768 + seg*256 + n*16")
    e("    s_mov_b32 s18, %d" % XBYTES)
    e("    s_mov_b32 s19, 0x00020000")
    e("    s_mov_b32 s30, 0xffff0000")
    e("    s_lshr_b32 s42, s2, 3")
    e("    s_lshl_b32 s42, s42, 2")
    e("    s_and_b32 s43, s2, 3")
    e("    s_add_u32 s42, s42, s43")
    e(f"    s_mul_i32 s76, s42, {SB}")
    e("    s_lshl_b32 s43, s40, 2")
    e("    s_lshr_b32 s78, 0x5210, s43")
    e("    s_and_b32 s78, s78, 15")
    e("    s_lshr_b32 s79, 0xcb76, s43")
    e("    s_and_b32 s79, s79, 15")
    e("    s_mul_i32 s78, s78, 3072")
    e("    s_mul_i32 s79, s79, 3072")
    e("    s_sub_u32 s80, 46080, s78")
    e("    s_sub_u32 s81, 46080, s79")
    for r in (78, 79, 80, 81):
        e(f"    s_add_u32 s{r}, s{r}, s76")
    e("    s_add_u32 s77, s76, 24576")
    e("    s_lshr_b32 s77, s77, 19")
    e("    s_xor_b32 s77, s77, s2")
    e("    s_lshr_b32 s42, s2, 1")
    e("    s_xor_b32 s42, s42, s77")
    e("    s_bitcmp1_b32 s42, 2")
    e("    s_cselect_b32 s82, s80, s78          ; E0")
    e("    s_cselect_b32 s83, s81, s79          ; E1")
    e("    s_cselect_b32 s84, s78, s80          ; O0")
    e("    s_cselect_b32 s85, s79, s81          ; O1")
    seen = [0, 0]
    for k, pp in enumerate(lorder):
        u = seen[region(pp)] & 1
        seen[region(pp)] += 1
        b = 84 if ((pp ^ u) & 1) else 82
        e(f"    s_add_u32 s{SO+2*k}, s{b}, {pp*WIN}")
        e(f"    s_add_u32 s{SO+2*k+1}, s{b+1}, {pp*WIN}")
    e("    s_and_b32 s86, s2, 1")
    e("    s_add_u32 s86, s86, 1")
    e("    s_cmp_eq_u32 s3, 0")
    e("    s_cselect_b32 s86, s86, 0")
    if inv:
        e("    s_cmp_lg_u32 s3, 11")
        e("    s_cbranch_scc1 L_noinv")
        e(f"    buffer_inv {inv}")
        e("L_noinv:")
    e("    s_waitcnt lgkmcnt(0)")
    e("    s_mov_b32 s16, s4")
    e("    s_mov_b32 s17, s5")
    for s in range(lvm):
        load(s)
    if tlbx or tlbo:
        e("    s_lshl_b32 s42, s3, 23")
        e("    v_lshlrev_b32 v39, %d, v2" % (21 if max(tlbx, tlbo) == 1 else 20))
        e("    v_add_u32 v39, s42, v39")
    if tlbx:
        e("    s_mov_b64 exec, %d" % (15 if tlbx == 1 else 255))
        e("    buffer_load_dword v38, v39, s[16:19], 0 offen")
        e("    s_mov_b64 exec, -1")
    e(f"    s_load_dword s28, s[14:15], {EPOCH}")
    e("    s_mov_b32 s24, s14")
    e("    s_mov_b32 s25, s15")
    e("    s_mov_b32 s26, %d" % WS_BYTES)
    e("    s_mov_b32 s27, 0x00020000")
    if numa:
        e("    s_cmp_lg_u32 s86, 1")
        e("    s_cbranch_scc1 L_noprobe")
        e("    s_bfe_u32 s42, s2, 0x10001           ; r = bit1")
        e("    s_add_u32 s42, s42, 1")
        e(f"    s_mul_i32 s42, s42, {40<<20}")
        e("    s_bfe_u32 s43, s2, 0x30003           ; i & 7")
        e("    s_lshl_b32 s43, s43, 21")
        e("    s_add_u32 s42, s42, s43")
        e("    s_lshr_b32 s43, s2, 6")
        e("    s_lshl_b32 s43, s43, 18")
        e("    s_add_u32 s42, s42, s43")
        e("    s_bfe_u32 s43, s2, 0x10002           ; L")
        e("    s_lshl_b32 s43, s43, 17")
        e("    s_add_u32 s42, s42, s43")
        e("    s_add_u32 s20, s10, s42")
        e("    s_addc_u32 s21, s11, 0")
        e("    s_load_dword s22, s[20:21], 4096")
        for s in range(lvm, pre):
            load(s)
        e("    s_waitcnt lgkmcnt(0)")
        offs = [0, 8192, 24576 + 256, 16384 + 256, 32768 + 512, 40960 + 512][:2 * pairs]
        e("    s_memtime s[32:33]")
        e("    s_waitcnt lgkmcnt(0)")
        for i, of in enumerate(offs):
            a, b = (32, 34) if i % 2 == 0 else (34, 32)
            e(f"    s_load_dword s22, s[20:21], {of}")
            e("    s_waitcnt lgkmcnt(0)")
            e(f"    s_memtime s[{b}:{b+1}]")
            e("    s_waitcnt lgkmcnt(0)")
            e(f"    s_sub_u32 s{36+(i&1)}, s{b}, s{a}")
            if i % 2 == 1:
                if (i // 2) % 2 == 0:
                    e("    s_cmp_gt_u32 s37, s36")
                else:
                    e("    s_cmp_gt_u32 s36, s37")
                if i == 1:
                    e("    s_cselect_b32 s38, 1, -1")
                else:
                    e("    s_cselect_b32 s39, 1, -1")
                    e("    s_add_i32 s38, s38, s39")
        e("    s_lshr_b32 s42, s2, 1")
        e("    s_xor_b32 s42, s42, s2")
        e("    s_sub_i32 s39, 0, s38")
        e("    s_bitcmp1_b32 s42, 2")
        e("    s_cselect_b32 s38, s39, s38")
        e("    s_add_u32 s39, s28, 1")
        e("    s_xor_b32 s39, s39, 0x%08x" % MAGIC2)
        e("    s_xor_b32 s39, s39, s38")
        e("    s_bfe_u32 s42, s2, 0x10001")
        e("    s_lshl_b32 s42, s42, 6")
        e("    s_lshr_b32 s43, s2, 2                ; i*2 + L")
        e("    s_add_u32 s42, s42, s43")
        e("    s_lshl_b32 s42, s42, 3")
        e(f"    s_add_u32 s42, s42, {VOTE}")
        e("    v_mov_b32 v32, s38")
        e("    v_mov_b32 v33, s39")
        e("    v_mov_b32 v34, s42")
        e("    s_mov_b64 exec, 1")
        e("    buffer_store_dwordx2 v[32:33], v34, s[24:27], 0 offen sc1")
        e("    s_mov_b64 exec, -1")
        stamp(1)
        e("L_noprobe:")
    e("    s_mov_b32 s20, s10")
    e("    s_mov_b32 s21, s11")
    e("    s_mov_b32 s22, %d" % XBYTES)
    e("    s_mov_b32 s23, 0x00020000")
    e("    s_mov_b32 s32, s6")
    e("    s_mov_b32 s33, s7")
    e("    s_mov_b32 s34, 4608")
    e("    s_mov_b32 s35, 0x00020000")
    e("    s_mov_b32 s36, s8")
    e("    s_mov_b32 s37, s9")
    e("    s_mov_b32 s38, 4608")
    e("    s_mov_b32 s39, 0x00020000")
    e("    s_mov_b32 s31, %d" % spin)
    e("    s_mul_i32 s42, s41, 1536")
    e("    s_mul_i32 s43, s40, 6")
    e("    s_add_u32 s42, s42, s43")
    e("    v_mul_u32_u24 v1, 24, v2")
    e("    v_add_u32 v1, s42, v1")
    e("    s_lshl_b32 s42, s3, 10")
    e(f"    s_add_u32 s42, s42, {L_WU}")
    e("    s_mov_b32 m0, s42")
    e("    v_lshlrev_b32 v27, 4, v0")
    e("    buffer_load_ushort v24, v1, s[32:35], 0 offen")
    e("    buffer_load_ushort v25, v1, s[32:35], 0 offen offset:2")
    e("    buffer_load_ushort v26, v1, s[32:35], 0 offen offset:4")
    e("    buffer_load_dwordx4 v27, s[36:39], 0 offen lds")
    NW = 4
    e("    s_mul_i32 s42, s40, 1536")
    e("    s_lshl_b32 s43, s41, 9")
    e("    s_add_u32 s42, s42, s43")
    e("    v_lshlrev_b32 v6, 5, v4")
    e("    v_lshl_add_u32 v6, v3, 3, v6")
    e("    v_add_u32 v6, s42, v6")
    e("    s_lshl_b32 s43, s41, 7")
    e("    v_lshlrev_b32 v7, 3, v4")
    e("    v_add_u32 v7, s43, v7")
    e("    v_subrev_u32 v1, 192, v7")
    e("    v_min_u32 v7, v7, v1")
    e("    v_lshlrev_b32 v7, 2, v7")
    e("    v_and_b32 v1, 1, v3")
    e("    v_lshrrev_b32 v31, 1, v3")
    e("    v_lshl_add_u32 v31, v1, 1, v31")
    e("    v_lshlrev_b32 v31, 2, v31            ; i(row)*4")
    e("    s_lshl_b32 s42, s41, 6")
    e("    s_lshl_b32 s43, s40, 4")
    e("    s_add_u32 s42, s42, s43")
    e("    v_add_u32 v4, s42, v31")
    e("    s_lshl_b32 s42, s41, 8")
    e("    v_lshlrev_b32 v3, 2, v2")
    e("    v_add_u32 v3, s42, v3")
    e("    v_lshlrev_b32 v1, 4, v2              ; lane*16")
    e(f"    s_mov_b32 s87, {VOTE}")
    for j in range(32):
        last = min(j + lvm - 1, 31)
        younger = (last - j) + (NW if j < lvm else 0)
        e(f"    s_waitcnt vmcnt({younger})")
        if j == lvm:
            e("    s_waitcnt lgkmcnt(0)")
            e("    s_add_u32 s28, s28, 1                ; epoch + 1")
            e("    s_xor_b32 s29, s28, 0x%08x           ; tag key" % MAGIC)
            e("    s_xor_b32 s88, s28, 0x%08x           ; vote key" % MAGIC2)
        if numa and j == A0 - lvm:
            e("    s_bitcmp1_b32 s2, 0")
            e("    s_cbranch_scc0 L_nodec")
            e("    s_cmp_lg_u32 s86, 2")
            e("    s_cbranch_scc1 L_decbar")
            e("L_vchk:")
            e("    v_bitop3_b32 v36, v32, v33, s88 bitop3:0x96")
            e("    v_bitop3_b32 v37, v34, v35, s88 bitop3:0x96")
            e("    v_or_b32 v36, v36, v37")
            e("    v_cmp_ne_u32 vcc, 0, v36")
            e("    s_cbranch_vccz L_vok")
            e("    s_sub_u32 s31, s31, 1")
            e("    s_cbranch_scc1 L_vok")
            e("    buffer_load_dwordx4 v[32:35], v1, s[24:27], s87 offen sc1")
            e("    s_waitcnt vmcnt(0)")
            e("    s_branch L_vchk")
            e("L_vok:")
            e("    v_add_u32 v36, v32, v34")
            for sh in (1, 2, 4, 8):
                e("    s_nop 1")
                e(f"    v_add_u32_dpp v36, v36, v36 row_shr:{sh} row_mask:0xf bank_mask:0xf bound_ctrl:0")
            e("    s_nop 1")
            e("    v_add_u32_dpp v36, v36, v36 row_bcast:15 row_mask:0xa bank_mask:0xf")
            e("    v_lshrrev_b32 v37, 3, v2")
            e("    v_and_b32 v37, 4, v37                ; (lane>=32)*4")
            e("    s_mov_b32 exec_lo, 0x80000000")
            e("    s_mov_b32 exec_hi, 0x80000000")
            e(f"    ds_write_b32 v37, v36 offset:{L_DEC}")
            e("    s_mov_b64 exec, -1")
            e("    s_waitcnt lgkmcnt(0)")
            stamp(1)
            e("L_decbar:")
            e("    s_barrier")
            e("    v_mov_b32 v36, 0")
            e(f"    ds_read_b64 v[36:37], v36 offset:{L_DEC}")
            e("    s_waitcnt lgkmcnt(0)")
            e("    v_readfirstlane_b32 s4, v36")
            e("    v_readfirstlane_b32 s5, v37")
            for r in range(2):
                wins = [(k, pp) for k, pp in enumerate(lorder) if pp in adaptive and region(pp) == r]
                if not wins:
                    continue
                e(f"    s_abs_i32 s42, s{4+r}")
                e(f"    s_cmp_lt_u32 s42, {thr}")
                e(f"    s_cbranch_scc1 L_keep{r}")
                e(f"    s_lshr_b32 s42, s{4+r}, 29")
                e("    s_xor_b32 s42, s42, s77")
                e("    s_bitcmp1_b32 s42, 2")
                e("    s_cselect_b32 s82, s80, s78")
                e("    s_cselect_b32 s83, s81, s79")
                e("    s_cselect_b32 s84, s78, s80")
                e("    s_cselect_b32 s85, s79, s81")
                for k, pp in wins:
                    b = 84 if (pp & 1) else 82
                    e(f"    s_add_u32 s{SO+2*k}, s{b}, {pp*WIN}")
                    e(f"    s_add_u32 s{SO+2*k+1}, s{b+1}, {pp*WIN}")
                e(f"L_keep{r}:")
            if dbgout:
                e("    s_mov_b32 s76, s4")
                e("    s_mov_b32 s89, s5")
            e("L_nodec:")
        if j + lvm < 32:
            k = j + lvm
            if evw >= 0 and j >= lvm and k >= pre:
                e("    s_bitcmp1_b32 s2, 0")
                e(f"    s_cbranch_scc1 L_ev{k}")
                e(f"    s_waitcnt vmcnt({evw})")
                e(f"L_ev{k}:")
            if numa and k < pre:
                e("    s_cmp_eq_u32 s86, 1")
                e(f"    s_cbranch_scc1 L_sk{k}")
                load(k)
                e(f"L_sk{k}:")
            else:
                load(k)
            if numa and k == G:
                e("    s_cmp_lg_u32 s86, 2")
                e("    s_cbranch_scc1 L_nog")
                e("    buffer_load_dwordx4 v[32:35], v1, s[24:27], s87 offen sc1")
                e("L_nog:")
        if tlbo and j == tstep:
            e("    s_mov_b64 exec, %d" % (15 if tlbo == 1 else 255))
            e("    buffer_load_dword v38, v39, s[20:23], 0 offen")
            e("    s_mov_b64 exec, -1")
        acc(j)
        if j == 20:
            for r in (24, 25, 26):
                e(f"    v_lshlrev_b32 v{r}, 16, v{r}")
    e("    s_nop 1")
    for i in range(4):
        e(f"    v_permlane32_swap_b32 v{8+i}, v{12+i}")
    for i in range(4):
        e(f"    v_add_f32 v{8+i}, v{8+i}, v{12+i}")
    e("    s_nop 0")
    e("    v_permlane16_swap_b32 v8, v10")
    e("    v_permlane16_swap_b32 v9, v11")
    e("    v_add_f32 v8, v8, v10")
    e("    v_add_f32 v9, v9, v11")
    e(f"    ds_write_b64 v6, v[8:9] offset:{L_M}")
    e("    s_waitcnt lgkmcnt(0)")
    e("    s_barrier")
    stamp(3)
    for k in range(4):
        e(f"    ds_read2st64_b32 v[{16+2*k}:{17+2*k}], v3 offset0:{6*k} offset1:{6*k+3}")
    e("    s_waitcnt lgkmcnt(2)" if not (diag or enc) else "    s_waitcnt lgkmcnt(0)")
    e("    v_pk_add_f32 v[16:17], v[16:17], v[18:19]")
    e("    s_waitcnt lgkmcnt(0)")
    e("    v_pk_add_f32 v[20:21], v[20:21], v[22:23]")
    e("    v_pk_add_f32 v[16:17], v[16:17], v[20:21]")
    e("    v_add_f32 v16, v16, v17")
    e("    v_mul_f32 v10, v16, v26")
    e("    v_mul_f32 v11, v16, v26")
    e("    v_mul_f32 v8, v16, v24")
    e("    v_mul_f32 v9, v16, v25")
    e("    v_permlane32_swap_b32 v10, v11")
    e("    s_nop 0")
    e("    v_permlane32_swap_b32 v8, v9")
    e("    v_add_f32 v10, v10, v11              ; [c | c]")
    e("    v_add_f32 v8, v8, v9                 ; [a | b]")
    e("    s_nop 1")
    e("    v_permlane16_swap_b32 v8, v10")
    e("    v_add_f32 v8, v8, v10                ; rows: a, c, b, c")
    e("    s_nop 1")
    e("    v_add_f32_dpp v9, v8, v8 row_shr:1 row_mask:0xf bank_mask:0xf bound_ctrl:0")
    e("    v_add_f32_dpp v9, v8, v9 row_shr:2 row_mask:0xf bank_mask:0xf bound_ctrl:0")
    e("    v_add_f32_dpp v9, v8, v9 row_shr:3 row_mask:0xf bank_mask:0xf bound_ctrl:0")
    e("    s_nop 1")
    e("    v_add_f32_dpp v9, v9, v9 row_shr:4 row_mask:0xf bank_mask:0xf bound_ctrl:0")
    e("    s_nop 1")
    e("    v_add_f32_dpp v9, v9, v9 row_shr:8 row_mask:0xf bank_mask:0xf bound_ctrl:0")
    e("    s_mov_b32 exec_lo, 0x80008000")
    e("    s_mov_b32 exec_hi, 0x00008000")
    e(f"    ds_write_b32 v4, v9 offset:{L_HP}")
    e("    s_mov_b64 exec, -1")
    e("    s_lshl_b32 s42, s2, 6")
    e("    s_cmp_lg_u32 s3, 4")
    e("    s_waitcnt lgkmcnt(0)")
    e("    s_barrier")
    e("    s_cbranch_scc1 L_notpub")
    e("    s_mov_b64 exec, 15")
    e(f"    ds_read_b128 v[8:11], v1 offset:{L_HP}")
    e(f"    ds_read_b128 v[12:15], v1 offset:{L_HP+64}")
    e(f"    ds_read_b128 v[16:19], v1 offset:{L_HP+128}")
    e("    s_waitcnt lgkmcnt(1)")
    e("    v_pk_add_f32 v[8:9], v[8:9], v[12:13]")
    e("    v_add_f32 v10, v10, v14")
    e("    s_waitcnt lgkmcnt(0)")
    e("    v_pk_add_f32 v[8:9], v[8:9], v[16:17]")
    e("    v_add_f32 v10, v10, v18")
    e("    v_bitop3_b32 v11, v8, v9, s29 bitop3:0x96")
    e("    v_xor_b32 v11, v11, v10")
    e(f"    buffer_store_dwordx4 v[8:11], v1, s[24:27], s42 offen {pubf}")
    e("    s_mov_b64 exec, -1")
    stamp(7)
    e("    s_branch L_b3")
    e("L_notpub:")
    e("    s_cmp_lt_u32 s3, 4")
    e("    s_cbranch_scc1 L_poll_start")
    e("    s_cmp_gt_u32 s3, 7")
    e("    s_cbranch_scc1 L_b3")
    e("    v_subrev_u32 v1, 320, v0")
    e("    v_lshlrev_b32 v21, 2, v1")
    e("    v_lshlrev_b32 v1, 1, v1")
    for r in range(12):
        e(f"    ds_read_u16 v{8+r}, v1 offset:{L_WU+384*r}")
    e("    v_and_b32 v20, 15, v2")
    e("    v_lshlrev_b32 v20, 2, v20")
    e(f"    v_add_u32 v20, {L_P}, v20")
    e("    s_waitcnt lgkmcnt(0)")
    for r in range(12):
        e(f"    v_lshlrev_b32 v{8+r}, 16, v{8+r}")
    e("    s_barrier")
    e("    ds_read2_b32 v[22:23], v20 offset0:0 offset1:16")
    e("    ds_read2_b32 v[24:25], v20 offset0:32 offset1:48")
    e("    s_waitcnt lgkmcnt(0)")
    e("    v_pk_add_f32 v[22:23], v[22:23], v[24:25]")
    e("    v_add_f32 v22, v22, v23")
    e("    v_mul_f32 v22, 0x36800000, v22       ; * 2^-18")
    e("    v_cvt_pk_bf16_f32 v22, v22, v22")
    e("    v_lshlrev_b32 v22, 16, v22")
    e("    v_mul_f32 v23, 0xbfb8aa3b, v22       ; -log2e * x")
    e("    v_exp_f32 v23, v23")
    e("    s_nop 0")
    e("    v_add_f32 v23, 1.0, v23")
    e("    v_rcp_f32 v23, v23")
    e("    s_nop 0")
    e("    v_mul_f32 v22, v22, v23")
    e("    v_cvt_pk_bf16_f32 v22, v22, v22")
    e("    v_lshlrev_b32 v22, 16, v22")
    e("    s_nop 1")
    for r in range(12):
        a = 23 + (r % 3)
        op = "v_mul_f32_dpp" if r < 3 else "v_fmac_f32_dpp"
        e(f"    {op} v{a}, v22, v{8+r} row_newbcast:{r} row_mask:0xf bank_mask:0xf")
    e("    v_add_f32 v23, v23, v24")
    e("    v_add_f32 v23, v23, v25")
    e("    v_cvt_pk_bf16_f32 v23, v23, v23")
    e("    v_lshlrev_b32 v23, 16, v23")
    e("    v_mul_f32 v23, 0xbfb8aa3b, v23")
    e("    v_exp_f32 v23, v23")
    e("    s_nop 0")
    e("    v_add_f32 v23, 1.0, v23")
    e("    v_rcp_f32 v23, v23")
    e("    s_nop 0")
    e("    v_cvt_pk_bf16_f32 v23, v23, v23")
    e("    v_lshlrev_b32 v23, 16, v23")
    e(f"    ds_write_b32 v21, v23 offset:{L_G}")
    e("    s_waitcnt lgkmcnt(0)")
    e("    s_branch L_b4")

    e("L_poll_start:")
    e("    s_lshl_b32 s42, s3, 12")
    e("    v_and_b32 v27, 3, v2")
    e("    v_mul_u32_u24 v27, 12, v27")
    e("    s_lshl_b32 s43, s3, 6")
    e("    v_add3_u32 v31, v31, v27, s43")
    regs = (8, 12, 16, 20)
    for k in range(4):
        e(f"    s_mov_b64 s[{4+2*k}:{5+2*k}], -1")
    e("L_poll:")
    for k in range(4):
        e(f"    s_mov_b64 exec, s[{4+2*k}:{5+2*k}]")
        e(f"    s_cbranch_execz L_skip{k}")
        e(f"    buffer_load_dwordx4 v[{regs[k]}:{regs[k]+3}], v1, s[24:27], s42 offen offset:{1024*k} {pollf}")
        e(f"L_skip{k}:")
    e("    s_mov_b64 exec, -1")
    e("    s_waitcnt vmcnt(0)")
    for k in range(4):
        r = regs[k]
        e(f"    v_bitop3_b32 v{27+k}, v{r}, v{r+1}, s29 bitop3:0x96")
    for k in range(4):
        r = regs[k]
        e(f"    v_bitop3_b32 v{27+k}, v{27+k}, v{r+2}, v{r+3} bitop3:0x96")
    for k in range(4):
        e(f"    v_cmp_ne_u32 s[{4+2*k}:{5+2*k}], 0, v{27+k}")
    e("    s_or_b64 s[82:83], s[4:5], s[6:7]")
    e("    s_or_b64 vcc, s[8:9], s[10:11]")
    e("    s_or_b64 s[82:83], s[82:83], vcc")
    e("    s_cbranch_scc0 L_poll_ok")
    e("    s_sub_u32 s31, s31, 1")
    e("    s_cbranch_scc1 L_poll_ok")
    if sleep:
        e(f"    s_sleep {sleep}")
    e("    s_branch L_poll")
    e("L_poll_ok:")
    stamp(7)
    e("    v_add_f32 v10, v10, v14")
    e("    v_add_f32 v18, v18, v22")
    e("    v_pk_add_f32 v[8:9], v[8:9], v[12:13]")
    e("    v_pk_add_f32 v[16:17], v[16:17], v[20:21]")
    e("    v_add_f32 v11, v10, v18")
    e("    v_add_f32 v10, v10, v18")
    e("    v_pk_add_f32 v[8:9], v[8:9], v[16:17]")
    e("    s_nop 0")
    e("    v_permlane32_swap_b32 v10, v11")
    e("    v_permlane32_swap_b32 v8, v9")
    e("    v_add_f32 v10, v10, v11              ; [c | c]")
    e("    v_add_f32 v8, v8, v9                 ; [a | b]")
    e("    s_nop 1")
    e("    v_permlane16_swap_b32 v8, v10")
    e("    v_add_f32 v8, v8, v10                ; rows: a, c, b, c")
    e("    s_nop 1")
    e("    v_add_f32_dpp v8, v8, v8 row_shr:4 row_mask:0xf bank_mask:0xf bound_ctrl:0")
    e("    s_nop 1")
    e("    v_add_f32_dpp v8, v8, v8 row_shr:8 row_mask:0xf bank_mask:0xf bound_ctrl:0")
    e("    s_mov_b32 exec_lo, 0xf000f000")
    e("    s_mov_b32 exec_hi, 0x0000f000")
    e(f"    ds_write_b32 v31, v8 offset:{L_P}")
    e("    s_mov_b64 exec, -1")
    e("    s_waitcnt lgkmcnt(0)")
    e("L_b3:")
    e("    s_barrier")
    e("L_b4:")
    e("    s_barrier")
    e(f"    ds_read_b128 v[8:11], v7 offset:{L_G}")
    e(f"    ds_read_b128 v[12:15], v7 offset:{L_G+16}")

    cnt = [0]

    def scale_store(slot, first=False):
        t = 16 + 8 * (cnt[0] & 1)
        cnt[0] += 1
        for i in range(4):
            d = dreg(slot) + i
            e(f"    v_lshlrev_b32 v{t+2*i}, 16, v{d}")
            e(f"    v_and_b32 v{t+1+2*i}, s30, v{d}")
        if first:
            e("    s_waitcnt lgkmcnt(0)")
            stamp(5)
        for i in range(4):
            e(f"    v_pk_mul_f32 v[{t+2*i}:{t+1+2*i}], v[{t+2*i}:{t+1+2*i}], v[{8+2*i}:{9+2*i}]")
        for i in range(4):
            d = dreg(slot) + i
            e(f"    v_cvt_pk_bf16_f32 v{d}, v{t+2*i}, v{t+1+2*i}")
        d = dreg(slot)
        e(f"    buffer_store_dwordx4 v[{d}:{d+3}], v5, s[20:23], s{SO+slot} offen{stf}")

    sslots = []
    for pp in sorder:
        k = lorder.index(pp)
        sslots += [2 * k, 2 * k + 1]
    for j in range(32):
        scale_store(sslots[j], first=(j == 0))
        if sbar and (j + 1) % sbar == 0 and j != 31:
            e("    s_barrier")
    e("    s_cmp_lg_u32 s2, 1")
    e("    s_cbranch_scc1 L_noep")
    e("    s_cmp_lg_u32 s3, 11")
    e("    s_cbranch_scc1 L_noep")
    e(f"    v_mov_b32 v1, {EPOCH}")
    e("    v_mov_b32 v3, s28")
    e("    s_mov_b64 exec, 1")
    e("    buffer_store_dword v3, v1, s[24:27], 0 offen sc1")
    if dbgout:
        e("    s_mov_b32 s32, s12")
        e("    s_mov_b32 s33, s13")
        e("    s_mov_b32 s34, 256")
        e("    v_mov_b32 v16, s76")
        e("    v_mov_b32 v17, s89")
        e("    v_mov_b32 v1, 0")
        e("    buffer_store_dwordx2 v[16:17], v1, s[32:35], 0 offen")
    e("    s_mov_b64 exec, -1")
    e("L_noep:")
    if enc:
        e("    s_waitcnt vmcnt(0)")
        stamp(6)
        e("    s_waitcnt lgkmcnt(0)")
        a, b = {1: (0, 0), 2: (0, 3), 3: (0, 5), 4: (5, 6), 5: (0, 6), 6: (5, 7), 7: (0, 5), -1: (0, 1)}[enc]
        e(f"    s_sub_u32 s42, s{ST+2*smap[b]}, s{ST+2*smap[a]}")
        if enc >= 6:
            e("    s_lshr_b32 s42, s42, 4")
        if encv:
            e(f"    s_abs_i32 s42, s{76 if encv == 1 else 89}")
            e("    s_mul_i32 s42, s42, 10")
        if enc == -1:
            e("    s_cmp_eq_u32 s3, 0")
            e("    s_cselect_b32 s42, s42, 0")
        if encpar >= 0:
            e("    s_bitcmp1_b32 s2, 0")
            e(f"    s_cselect_b32 s42, s42, 0" if encpar == 1 else "    s_cselect_b32 s42, 0, s42")
        e("L_enc:")
        e("    s_memrealtime s[4:5]")
        e("    s_waitcnt lgkmcnt(0)")
        e(f"    s_sub_u32 s43, s4, s{ST+2*smap[6]}")
        e("    s_cmp_lt_u32 s43, s42")
        e("    s_cbranch_scc1 L_enc")
    if diag:
        e("    s_waitcnt vmcnt(0)")
        stamp(6)
        e("    s_waitcnt lgkmcnt(0)")
        e("    s_mul_i32 s42, s2, 12")
        e("    s_add_u32 s42, s42, s3")
        e("    s_lshl_b32 s42, s42, 7")
        e(f"    s_add_u32 s42, s42, {DIAG}")
        e("    v_mov_b32 v1, s42")
        e("    s_mov_b64 exec, 1")
        inv = {v: k for k, v in smap.items()}
        for k in range(6):
            e(f"    v_mov_b32 v16, s{ST+2*k}")
            e(f"    v_mov_b32 v17, s{ST+2*k+1}")
            e(f"    buffer_store_dwordx2 v[16:17], v1, s[24:27], 0 offen offset:{8*inv[k]}")
            e("    s_nop 2")
        e("    v_mov_b32 v16, 0")
        e("    v_mov_b32 v17, s31")
        e("    buffer_store_dwordx2 v[16:17], v1, s[24:27], 0 offen offset:88")
    e("L_exit:")
    e("    s_endpgm")
    e('.section .rodata,"a"')
    e(".p2align 6")
    e(f".amdhsa_kernel {NAME}")
    e("  .amdhsa_next_free_vgpr 168")
    e("  .amdhsa_next_free_sgpr 102")
    e("  .amdhsa_accum_offset 168")
    e("  .amdhsa_group_segment_fixed_size 0")
    e("  .amdhsa_kernarg_size 48")
    e("  .amdhsa_user_sgpr_count 2")
    e("  .amdhsa_user_sgpr_kernarg_segment_ptr 1")
    e("  .amdhsa_system_sgpr_workgroup_id_x 1")
    e("  .amdhsa_float_denorm_mode_32 3")
    e(".end_amdhsa_kernel")
    sys.stderr.write(f"lorder {lorder} sorder {sorder} A0 {A0} G {G}\n")
    return "\n".join(o) + "\n"


if __name__ == "__main__":
    ap = argparse.ArgumentParser()
    ap.add_argument("-o", default="-")
    ap.add_argument("--ld", default="nt")
    ap.add_argument("--st", default="sc0 sc1")
    ap.add_argument("--diag", action="store_true")
    for name, dv in (("sleep", 0), ("sbar", 2), ("lvm", 3), ("ns", 8), ("pre", 9), ("pairs", 2), ("thr", 14), ("numa", 1), ("dbgout", 0), ("evw", -1), ("enc", 0), ("encpar", -1), ("tlbx", 0), ("tlbo", 0), ("tstep", 8), ("encv", 0), ("ndf", 0), ("dfpos", 0)):
        ap.add_argument("--" + name, type=int, default=dv)
    ap.add_argument("--pubf", default="sc1")
    ap.add_argument("--dff", default="")
    ap.add_argument("--inv", default="")
    ap.add_argument("--pollf", default="sc1")
    a = ap.parse_args()
    kw = vars(a).copy()
    out = kw.pop("o")
    s = gen(**kw)
    if out == "-":
        sys.stdout.write(s)
    else:
        open(out, "w").write(s)
```

```python
import sys, argparse

HEADER = """; Kernarg layout for this problem (48 bytes, ptrs only, base s[0:1]):
"""

NAME = "standalone__channel_attn_se__vision_kernel"
XBYTES = 100663296
MAGIC = 0x5BD1E995
MAGIC2 = 0x2C1B3C6D

L_M = 0
L_HP = 6144
L_P = 6400
L_G = 6656
L_DEC = 7424
L_WU = 8192
LDS = 20480
VOTE = 32768
EPOCH = 65536
DIAG = 1 << 20
WS_BYTES = 2 << 20
SB = 49152
WIN = 128 * SB


def gen(ld="nt", st="sc0 sc1", diag=False, sleep=0, spin=400000, pubf="sc1", pollf="sc1", sbar=2,
        lvm=3, ns=8, pre=9, pairs=2, thr=14, numa=1, dbgout=0, evw=-1, enc=0, encpar=-1, tlbx=0, tlbo=0, tstep=8, encv=0, ndf=0, dff="", dfpos=0, inv="", seq=0, m1=-1, m2=-1):
    o = []
    e = o.append
    ldf = (" " + ld) if ld else ""
    stf = (" " + st) if st else ""
    D0 = 40
    SO = 44
    ST = 90
    na = 16 - ns
    adaptive = []
    for i in range(na):
        adaptive.append((15 - i // 2) if i % 2 == 0 else (9 - i // 2))
    adaptive = adaptive[::-1]
    static = [pp for pp in range(16) if pp not in adaptive]
    lorder = static + adaptive
    sorder = []
    si, ai = 0, 0
    for k in range(16):
        if ai < na and (ai + 1) * 16 <= (k + 1) * na + (16 - na) // 2 * 0 + 0 or si >= len(static):
            sorder.append(adaptive[ai]); ai += 1
        else:
            sorder.append(static[si]); si += 1
    if seq == 1:
        sorder = list(range(16))
    if seq == 2:
        sorder = list(range(15, -1, -1))
    assert sorted(sorder) == list(range(16))
    region = lambda pp: 0 if pp < 10 else 1
    A0 = 2 * ns
    G = A0 - lvm - 1
    e(HEADER.rstrip())
    e(f"; @launch grid=(256,1,1) block=(768,1,1) lds={LDS}")
    e('.amdgcn_target "amdgcn-amd-amdhsa--gfx950"')
    e(".text")
    e(f".globl {NAME}")
    e(".p2align 8")
    e(f".type {NAME},@function")
    e(f"{NAME}:")
    smap = {0: 0, 1: 1, 3: 2, 5: 3, 6: 4, 7: 5}

    def stamp(i):
        if (diag or enc) and i in smap:
            k = smap[i]
            if enc >= 6 and i in (0, 3, 5):
                e(f"    s_memtime s[{ST+2*k}:{ST+1+2*k}]")
            elif enc >= 6 and i in (1, 7):
                pass
            else:
                e(f"    s_memrealtime s[{ST+2*k}:{ST+1+2*k}]")
                if enc >= 6 and i == 6:
                    e(f"    s_memtime s[{ST+2*smap[7]}:{ST+1+2*smap[7]}]")

    def dreg(slot):
        return D0 + 4 * slot

    def load(slot):
        d = dreg(slot)
        fl = ldf
        if dfpos <= slot < dfpos + ndf:
            fl = (" " + dff) if dff else ""
        e(f"    buffer_load_dwordx4 v[{d}:{d+3}], v5, s[16:19], s{SO+slot} offen{fl}")

    def acc(slot):
        for i in range(4):
            d = dreg(slot) + i
            if slot == 0:
                e(f"    v_lshlrev_b32 v{8+2*i}, 16, v{d}")
                e(f"    v_and_b32 v{9+2*i}, s30, v{d}")
            else:
                e(f"    v_lshlrev_b32 v{16+2*i}, 16, v{d}")
                e(f"    v_and_b32 v{17+2*i}, s30, v{d}")
        if slot:
            for i in range(4):
                e(f"    v_pk_add_f32 v[{8+2*i}:{9+2*i}], v[{8+2*i}:{9+2*i}], v[{16+2*i}:{17+2*i}]")

    e("    s_cmp_ge_u32 s2, 256")
    e("    s_cbranch_scc1 L_exit")
    e("    s_load_dwordx4 s[4:7], s[0:1], 0")
    e("    s_load_dwordx4 s[8:11], s[0:1], 16")
    e("    s_load_dwordx4 s[12:15], s[0:1], 32")
    if diag or enc:
        for i in range(6):
            e(f"    s_mov_b64 s[{ST+2*i}:{ST+1+2*i}], 0")
    stamp(0)
    e("    v_lshrrev_b32 v1, 6, v0")
    e("    v_and_b32 v2, 63, v0                 ; lane")
    e("    v_readfirstlane_b32 s3, v1")
    e("    v_lshrrev_b32 v3, 4, v2              ; q (row)")
    e("    v_and_b32 v4, 15, v2                 ; n")
    e("    s_mul_i32 s40, s3, 11")
    e("    s_lshr_b32 s40, s40, 5")
    e("    s_mul_i32 s41, s40, 3")
    e("    s_sub_u32 s41, s3, s41               ; seg = wave%3")
    e("    s_lshl_b32 s43, s41, 8")
    e("    v_mul_u32_u24 v5, 768, v3")
    e("    v_lshl_add_u32 v5, v4, 4, v5")
    e("    v_add_u32 v5, s43, v5                ; v5 = q*768 + seg*256 + n*16")
    e("    s_mov_b32 s18, %d" % XBYTES)
    e("    s_mov_b32 s19, 0x00020000")
    e("    s_mov_b32 s30, 0xffff0000")
    e("    s_lshr_b32 s42, s2, 3")
    e("    s_lshl_b32 s42, s42, 2")
    e("    s_and_b32 s43, s2, 3")
    e("    s_add_u32 s42, s42, s43")
    e(f"    s_mul_i32 s76, s42, {SB}")
    e("    s_lshl_b32 s43, s40, 2")
    e("    s_lshr_b32 s78, 0x5210, s43")
    e("    s_and_b32 s78, s78, 15")
    e("    s_lshr_b32 s79, 0xcb76, s43")
    e("    s_and_b32 s79, s79, 15")
    e("    s_mul_i32 s78, s78, 3072")
    e("    s_mul_i32 s79, s79, 3072")
    e("    s_sub_u32 s80, 46080, s78")
    e("    s_sub_u32 s81, 46080, s79")
    for r in (78, 79, 80, 81):
        e(f"    s_add_u32 s{r}, s{r}, s76")
    e("    s_add_u32 s77, s76, 24576")
    e("    s_lshr_b32 s77, s77, 19")
    e("    s_xor_b32 s77, s77, s2")
    e("    s_lshr_b32 s42, s2, 1")
    e("    s_xor_b32 s42, s42, s77")
    e("    s_bitcmp1_b32 s42, 2")
    e("    s_cselect_b32 s82, s80, s78          ; E0")
    e("    s_cselect_b32 s83, s81, s79          ; E1")
    e("    s_cselect_b32 s84, s78, s80          ; O0")
    e("    s_cselect_b32 s85, s79, s81          ; O1")
    seen = [0, 0]
    for k, pp in enumerate(lorder):
        u = seen[region(pp)] & 1
        seen[region(pp)] += 1
        b = 84 if ((pp ^ u) & 1) else 82
        e(f"    s_add_u32 s{SO+2*k}, s{b}, {pp*WIN}")
        e(f"    s_add_u32 s{SO+2*k+1}, s{b+1}, {pp*WIN}")
    e("    s_and_b32 s86, s2, 1")
    e("    s_add_u32 s86, s86, 1")
    e("    s_cmp_eq_u32 s3, 0")
    e("    s_cselect_b32 s86, s86, 0")
    if inv:
        e("    s_cmp_lg_u32 s3, 11")
        e("    s_cbranch_scc1 L_noinv")
        e(f"    buffer_inv {inv}")
        e("L_noinv:")
    e("    s_waitcnt lgkmcnt(0)")
    e("    s_mov_b32 s16, s4")
    e("    s_mov_b32 s17, s5")
    for s in range(lvm):
        load(s)
    if tlbx or tlbo:
        e("    s_lshl_b32 s42, s3, 23")
        e("    v_lshlrev_b32 v39, %d, v2" % (21 if max(tlbx, tlbo) == 1 else 20))
        e("    v_add_u32 v39, s42, v39")
    if tlbx:
        e("    s_mov_b64 exec, %d" % (15 if tlbx == 1 else 255))
        e("    buffer_load_dword v38, v39, s[16:19], 0 offen")
        e("    s_mov_b64 exec, -1")
    e(f"    s_load_dword s28, s[14:15], {EPOCH}")
    e("    s_mov_b32 s24, s14")
    e("    s_mov_b32 s25, s15")
    e("    s_mov_b32 s26, %d" % WS_BYTES)
    e("    s_mov_b32 s27, 0x00020000")
    if numa:
        e("    s_cmp_lg_u32 s86, 1")
        e("    s_cbranch_scc1 L_noprobe")
        e("    s_bfe_u32 s42, s2, 0x10001           ; r = bit1")
        e("    s_add_u32 s42, s42, 1")
        e(f"    s_mul_i32 s42, s42, {40<<20}")
        e("    s_bfe_u32 s43, s2, 0x30003           ; i & 7")
        e("    s_lshl_b32 s43, s43, 21")
        e("    s_add_u32 s42, s42, s43")
        e("    s_lshr_b32 s43, s2, 6")
        e("    s_lshl_b32 s43, s43, 18")
        e("    s_add_u32 s42, s42, s43")
        e("    s_bfe_u32 s43, s2, 0x10002           ; L")
        e("    s_lshl_b32 s43, s43, 17")
        e("    s_add_u32 s42, s42, s43")
        e("    s_add_u32 s20, s10, s42")
        e("    s_addc_u32 s21, s11, 0")
        e("    s_load_dword s22, s[20:21], 4096")
        for s in range(lvm, pre):
            load(s)
        e("    s_waitcnt lgkmcnt(0)")
        offs = [0, 8192, 24576 + 256, 16384 + 256, 32768 + 512, 40960 + 512][:2 * pairs]
        e("    s_memtime s[32:33]")
        e("    s_waitcnt lgkmcnt(0)")
        for i, of in enumerate(offs):
            a, b = (32, 34) if i % 2 == 0 else (34, 32)
            e(f"    s_load_dword s22, s[20:21], {of}")
            e("    s_waitcnt lgkmcnt(0)")
            e(f"    s_memtime s[{b}:{b+1}]")
            e("    s_waitcnt lgkmcnt(0)")
            e(f"    s_sub_u32 s{36+(i&1)}, s{b}, s{a}")
            if i % 2 == 1:
                if (i // 2) % 2 == 0:
                    e("    s_cmp_gt_u32 s37, s36")
                else:
                    e("    s_cmp_gt_u32 s36, s37")
                if i == 1:
                    e("    s_cselect_b32 s38, 1, -1")
                else:
                    e("    s_cselect_b32 s39, 1, -1")
                    e("    s_add_i32 s38, s38, s39")
        e("    s_lshr_b32 s42, s2, 1")
        e("    s_xor_b32 s42, s42, s2")
        e("    s_sub_i32 s39, 0, s38")
        e("    s_bitcmp1_b32 s42, 2")
        e("    s_cselect_b32 s38, s39, s38")
        e("    s_add_u32 s39, s28, 1")
        e("    s_xor_b32 s39, s39, 0x%08x" % MAGIC2)
        e("    s_xor_b32 s39, s39, s38")
        e("    s_bfe_u32 s42, s2, 0x10001")
        e("    s_lshl_b32 s42, s42, 6")
        e("    s_lshr_b32 s43, s2, 2                ; i*2 + L")
        e("    s_add_u32 s42, s42, s43")
        e("    s_lshl_b32 s42, s42, 3")
        e(f"    s_add_u32 s42, s42, {VOTE}")
        e("    v_mov_b32 v32, s38")
        e("    v_mov_b32 v33, s39")
        e("    v_mov_b32 v34, s42")
        e("    s_mov_b64 exec, 1")
        e("    buffer_store_dwordx2 v[32:33], v34, s[24:27], 0 offen sc1")
        e("    s_mov_b64 exec, -1")
        stamp(1)
        e("L_noprobe:")
    e("    s_mov_b32 s20, s10")
    e("    s_mov_b32 s21, s11")
    e("    s_mov_b32 s22, %d" % XBYTES)
    e("    s_mov_b32 s23, 0x00020000")
    e("    s_mov_b32 s32, s6")
    e("    s_mov_b32 s33, s7")
    e("    s_mov_b32 s34, 4608")
    e("    s_mov_b32 s35, 0x00020000")
    e("    s_mov_b32 s36, s8")
    e("    s_mov_b32 s37, s9")
    e("    s_mov_b32 s38, 4608")
    e("    s_mov_b32 s39, 0x00020000")
    e("    s_mov_b32 s31, %d" % spin)
    e("    s_mul_i32 s42, s41, 1536")
    e("    s_mul_i32 s43, s40, 6")
    e("    s_add_u32 s42, s42, s43")
    e("    v_mul_u32_u24 v1, 24, v2")
    e("    v_add_u32 v1, s42, v1")
    e("    s_lshl_b32 s42, s3, 10")
    e(f"    s_add_u32 s42, s42, {L_WU}")
    e("    s_mov_b32 m0, s42")
    e("    v_lshlrev_b32 v27, 4, v0")
    e("    buffer_load_ushort v24, v1, s[32:35], 0 offen")
    e("    buffer_load_ushort v25, v1, s[32:35], 0 offen offset:2")
    e("    buffer_load_ushort v26, v1, s[32:35], 0 offen offset:4")
    e("    buffer_load_dwordx4 v27, s[36:39], 0 offen lds")
    NW = 4
    e("    s_mul_i32 s42, s40, 1536")
    e("    s_lshl_b32 s43, s41, 9")
    e("    s_add_u32 s42, s42, s43")
    e("    v_lshlrev_b32 v6, 5, v4")
    e("    v_lshl_add_u32 v6, v3, 3, v6")
    e("    v_add_u32 v6, s42, v6")
    e("    s_lshl_b32 s43, s41, 7")
    e("    v_lshlrev_b32 v7, 3, v4")
    e("    v_add_u32 v7, s43, v7")
    e("    v_subrev_u32 v1, 192, v7")
    e("    v_min_u32 v7, v7, v1")
    e("    v_lshlrev_b32 v7, 2, v7")
    e("    v_and_b32 v1, 1, v3")
    e("    v_lshrrev_b32 v31, 1, v3")
    e("    v_lshl_add_u32 v31, v1, 1, v31")
    e("    v_lshlrev_b32 v31, 2, v31            ; i(row)*4")
    e("    s_lshl_b32 s42, s41, 6")
    e("    s_lshl_b32 s43, s40, 4")
    e("    s_add_u32 s42, s42, s43")
    e("    v_add_u32 v4, s42, v31")
    e("    s_lshl_b32 s42, s41, 8")
    e("    v_lshlrev_b32 v3, 2, v2")
    e("    v_add_u32 v3, s42, v3")
    e("    v_lshlrev_b32 v1, 4, v2              ; lane*16")
    e(f"    s_mov_b32 s87, {VOTE}")
    for j in range(32):
        last = min(j + lvm - 1, 31)
        younger = (last - j) + (NW if j < lvm else 0)
        e(f"    s_waitcnt vmcnt({younger})")
        if j == lvm:
            e("    s_waitcnt lgkmcnt(0)")
            e("    s_add_u32 s28, s28, 1                ; epoch + 1")
            e("    s_xor_b32 s29, s28, 0x%08x           ; tag key" % MAGIC)
            e("    s_xor_b32 s88, s28, 0x%08x           ; vote key" % MAGIC2)
        if numa and j == A0 - lvm:
            e("    s_bitcmp1_b32 s2, 0")
            e("    s_cbranch_scc0 L_nodec")
            e("    s_cmp_lg_u32 s86, 2")
            e("    s_cbranch_scc1 L_decbar")
            e("L_vchk:")
            e("    v_bitop3_b32 v36, v32, v33, s88 bitop3:0x96")
            e("    v_bitop3_b32 v37, v34, v35, s88 bitop3:0x96")
            e("    v_or_b32 v36, v36, v37")
            e("    v_cmp_ne_u32 vcc, 0, v36")
            e("    s_cbranch_vccz L_vok")
            e("    s_sub_u32 s31, s31, 1")
            e("    s_cbranch_scc1 L_vok")
            e("    buffer_load_dwordx4 v[32:35], v1, s[24:27], s87 offen sc1")
            e("    s_waitcnt vmcnt(0)")
            e("    s_branch L_vchk")
            e("L_vok:")
            e("    v_add_u32 v36, v32, v34")
            for sh in (1, 2, 4, 8):
                e("    s_nop 1")
                e(f"    v_add_u32_dpp v36, v36, v36 row_shr:{sh} row_mask:0xf bank_mask:0xf bound_ctrl:0")
            e("    s_nop 1")
            e("    v_add_u32_dpp v36, v36, v36 row_bcast:15 row_mask:0xa bank_mask:0xf")
            e("    v_lshrrev_b32 v37, 3, v2")
            e("    v_and_b32 v37, 4, v37                ; (lane>=32)*4")
            e("    s_mov_b32 exec_lo, 0x80000000")
            e("    s_mov_b32 exec_hi, 0x80000000")
            e(f"    ds_write_b32 v37, v36 offset:{L_DEC}")
            e("    s_mov_b64 exec, -1")
            e("    s_waitcnt lgkmcnt(0)")
            stamp(1)
            e("L_decbar:")
            e("    s_barrier")
            e("    v_mov_b32 v36, 0")
            e(f"    ds_read_b64 v[36:37], v36 offset:{L_DEC}")
            e("    s_waitcnt lgkmcnt(0)")
            e("    v_readfirstlane_b32 s4, v36")
            e("    v_readfirstlane_b32 s5, v37")
            for r in range(2):
                wins = [(k, pp) for k, pp in enumerate(lorder) if pp in adaptive and region(pp) == r]
                if not wins:
                    continue
                e(f"    s_abs_i32 s42, s{4+r}")
                e(f"    s_cmp_lt_u32 s42, {thr}")
                e(f"    s_cbranch_scc1 L_keep{r}")
                e(f"    s_lshr_b32 s42, s{4+r}, 29")
                e("    s_xor_b32 s42, s42, s77")
                e("    s_bitcmp1_b32 s42, 2")
                e("    s_cselect_b32 s82, s80, s78")
                e("    s_cselect_b32 s83, s81, s79")
                e("    s_cselect_b32 s84, s78, s80")
                e("    s_cselect_b32 s85, s79, s81")
                for k, pp in wins:
                    b = 84 if (pp & 1) else 82
                    e(f"    s_add_u32 s{SO+2*k}, s{b}, {pp*WIN}")
                    e(f"    s_add_u32 s{SO+2*k+1}, s{b+1}, {pp*WIN}")
                e(f"L_keep{r}:")
            if dbgout:
                e("    s_mov_b32 s76, s4")
                e("    s_mov_b32 s89, s5")
            e("L_nodec:")
        if j + lvm < 32:
            k = j + lvm
            if evw >= 0 and j >= lvm and k >= pre:
                e("    s_bitcmp1_b32 s2, 0")
                e(f"    s_cbranch_scc1 L_ev{k}")
                e(f"    s_waitcnt vmcnt({evw})")
                e(f"L_ev{k}:")
            if numa and k < pre:
                e("    s_cmp_eq_u32 s86, 1")
                e(f"    s_cbranch_scc1 L_sk{k}")
                load(k)
                e(f"L_sk{k}:")
            else:
                load(k)
            if numa and k == G:
                e("    s_cmp_lg_u32 s86, 2")
                e("    s_cbranch_scc1 L_nog")
                e("    buffer_load_dwordx4 v[32:35], v1, s[24:27], s87 offen sc1")
                e("L_nog:")
        if tlbo and j == tstep:
            e("    s_mov_b64 exec, %d" % (15 if tlbo == 1 else 255))
            e("    buffer_load_dword v38, v39, s[20:23], 0 offen")
            e("    s_mov_b64 exec, -1")
        acc(j)
        if j == 20:
            for r in (24, 25, 26):
                e(f"    v_lshlrev_b32 v{r}, 16, v{r}")
    e("    s_nop 1")
    for i in range(4):
        e(f"    v_permlane32_swap_b32 v{8+i}, v{12+i}")
    for i in range(4):
        e(f"    v_add_f32 v{8+i}, v{8+i}, v{12+i}")
    e("    s_nop 0")
    e("    v_permlane16_swap_b32 v8, v10")
    e("    v_permlane16_swap_b32 v9, v11")
    e("    v_add_f32 v8, v8, v10")
    e("    v_add_f32 v9, v9, v11")
    e(f"    ds_write_b64 v6, v[8:9] offset:{L_M}")
    e("    s_waitcnt lgkmcnt(0)")
    e("    s_barrier")
    stamp(3)
    for k in range(4):
        e(f"    ds_read2st64_b32 v[{16+2*k}:{17+2*k}], v3 offset0:{6*k} offset1:{6*k+3}")
    e("    s_waitcnt lgkmcnt(2)" if not (diag or enc) else "    s_waitcnt lgkmcnt(0)")
    e("    v_pk_add_f32 v[16:17], v[16:17], v[18:19]")
    e("    s_waitcnt lgkmcnt(0)")
    e("    v_pk_add_f32 v[20:21], v[20:21], v[22:23]")
    e("    v_pk_add_f32 v[16:17], v[16:17], v[20:21]")
    e("    v_add_f32 v16, v16, v17")
    e("    v_mul_f32 v10, v16, v26")
    e("    v_mul_f32 v11, v16, v26")
    e("    v_mul_f32 v8, v16, v24")
    e("    v_mul_f32 v9, v16, v25")
    e("    v_permlane32_swap_b32 v10, v11")
    e("    s_nop 0")
    e("    v_permlane32_swap_b32 v8, v9")
    e("    v_add_f32 v10, v10, v11              ; [c | c]")
    e("    v_add_f32 v8, v8, v9                 ; [a | b]")
    e("    s_nop 1")
    e("    v_permlane16_swap_b32 v8, v10")
    e("    v_add_f32 v8, v8, v10                ; rows: a, c, b, c")
    e("    s_nop 1")
    e("    v_add_f32_dpp v9, v8, v8 row_shr:1 row_mask:0xf bank_mask:0xf bound_ctrl:0")
    e("    v_add_f32_dpp v9, v8, v9 row_shr:2 row_mask:0xf bank_mask:0xf bound_ctrl:0")
    e("    v_add_f32_dpp v9, v8, v9 row_shr:3 row_mask:0xf bank_mask:0xf bound_ctrl:0")
    e("    s_nop 1")
    e("    v_add_f32_dpp v9, v9, v9 row_shr:4 row_mask:0xf bank_mask:0xf bound_ctrl:0")
    e("    s_nop 1")
    e("    v_add_f32_dpp v9, v9, v9 row_shr:8 row_mask:0xf bank_mask:0xf bound_ctrl:0")
    e("    s_mov_b32 exec_lo, 0x80008000")
    e("    s_mov_b32 exec_hi, 0x00008000")
    e(f"    ds_write_b32 v4, v9 offset:{L_HP}")
    e("    s_mov_b64 exec, -1")
    e("    s_lshl_b32 s42, s2, 6")
    e("    s_cmp_lg_u32 s3, 4")
    e("    s_waitcnt lgkmcnt(0)")
    e("    s_barrier")
    e("    s_cbranch_scc1 L_notpub")
    e("    s_mov_b64 exec, 15")
    e(f"    ds_read_b128 v[8:11], v1 offset:{L_HP}")
    e(f"    ds_read_b128 v[12:15], v1 offset:{L_HP+64}")
    e(f"    ds_read_b128 v[16:19], v1 offset:{L_HP+128}")
    e("    s_waitcnt lgkmcnt(1)")
    e("    v_pk_add_f32 v[8:9], v[8:9], v[12:13]")
    e("    v_add_f32 v10, v10, v14")
    e("    s_waitcnt lgkmcnt(0)")
    e("    v_pk_add_f32 v[8:9], v[8:9], v[16:17]")
    e("    v_add_f32 v10, v10, v18")
    e("    v_bitop3_b32 v11, v8, v9, s29 bitop3:0x96")
    e("    v_xor_b32 v11, v11, v10")
    e(f"    buffer_store_dwordx4 v[8:11], v1, s[24:27], s42 offen {pubf}")
    e("    s_mov_b64 exec, -1")
    stamp(7)
    e("    s_branch L_b3")
    e("L_notpub:")
    e("    s_cmp_lt_u32 s3, 4")
    e("    s_cbranch_scc1 L_poll_start")
    e("    s_cmp_gt_u32 s3, 7")
    e("    s_cbranch_scc1 L_b3")
    e("    v_subrev_u32 v1, 320, v0")
    e("    v_lshlrev_b32 v21, 2, v1")
    e("    v_lshlrev_b32 v1, 1, v1")
    for r in range(12):
        e(f"    ds_read_u16 v{8+r}, v1 offset:{L_WU+384*r}")
    e("    v_and_b32 v20, 15, v2")
    e("    v_lshlrev_b32 v20, 2, v20")
    e(f"    v_add_u32 v20, {L_P}, v20")
    e("    s_waitcnt lgkmcnt(0)")
    for r in range(12):
        e(f"    v_lshlrev_b32 v{8+r}, 16, v{8+r}")
    e("    s_barrier")
    e("    ds_read2_b32 v[22:23], v20 offset0:0 offset1:16")
    e("    ds_read2_b32 v[24:25], v20 offset0:32 offset1:48")
    e("    s_waitcnt lgkmcnt(0)")
    e("    v_pk_add_f32 v[22:23], v[22:23], v[24:25]")
    e("    v_add_f32 v22, v22, v23")
    e("    v_mul_f32 v22, 0x36800000, v22       ; * 2^-18")
    e("    v_cvt_pk_bf16_f32 v22, v22, v22")
    e("    v_lshlrev_b32 v22, 16, v22")
    e("    v_mul_f32 v23, 0xbfb8aa3b, v22       ; -log2e * x")
    e("    v_exp_f32 v23, v23")
    e("    s_nop 0")
    e("    v_add_f32 v23, 1.0, v23")
    e("    v_rcp_f32 v23, v23")
    e("    s_nop 0")
    e("    v_mul_f32 v22, v22, v23")
    e("    v_cvt_pk_bf16_f32 v22, v22, v22")
    e("    v_lshlrev_b32 v22, 16, v22")
    e("    s_nop 1")
    for r in range(12):
        a = 23 + (r % 3)
        op = "v_mul_f32_dpp" if r < 3 else "v_fmac_f32_dpp"
        e(f"    {op} v{a}, v22, v{8+r} row_newbcast:{r} row_mask:0xf bank_mask:0xf")
    e("    v_add_f32 v23, v23, v24")
    e("    v_add_f32 v23, v23, v25")
    e("    v_cvt_pk_bf16_f32 v23, v23, v23")
    e("    v_lshlrev_b32 v23, 16, v23")
    e("    v_mul_f32 v23, 0xbfb8aa3b, v23")
    e("    v_exp_f32 v23, v23")
    e("    s_nop 0")
    e("    v_add_f32 v23, 1.0, v23")
    e("    v_rcp_f32 v23, v23")
    e("    s_nop 0")
    e("    v_cvt_pk_bf16_f32 v23, v23, v23")
    e("    v_lshlrev_b32 v23, 16, v23")
    e(f"    ds_write_b32 v21, v23 offset:{L_G}")
    e("    s_waitcnt lgkmcnt(0)")
    e("    s_branch L_b4")

    e("L_poll_start:")
    e("    s_lshl_b32 s42, s3, 12")
    e("    v_and_b32 v27, 3, v2")
    e("    v_mul_u32_u24 v27, 12, v27")
    e("    s_lshl_b32 s43, s3, 6")
    e("    v_add3_u32 v31, v31, v27, s43")
    regs = (8, 12, 16, 20)
    for k in range(4):
        e(f"    s_mov_b64 s[{4+2*k}:{5+2*k}], -1")
    e("L_poll:")
    for k in range(4):
        e(f"    s_mov_b64 exec, s[{4+2*k}:{5+2*k}]")
        e(f"    s_cbranch_execz L_skip{k}")
        e(f"    buffer_load_dwordx4 v[{regs[k]}:{regs[k]+3}], v1, s[24:27], s42 offen offset:{1024*k} {pollf}")
        e(f"L_skip{k}:")
    e("    s_mov_b64 exec, -1")
    e("    s_waitcnt vmcnt(0)")
    for k in range(4):
        r = regs[k]
        e(f"    v_bitop3_b32 v{27+k}, v{r}, v{r+1}, s29 bitop3:0x96")
    for k in range(4):
        r = regs[k]
        e(f"    v_bitop3_b32 v{27+k}, v{27+k}, v{r+2}, v{r+3} bitop3:0x96")
    for k in range(4):
        e(f"    v_cmp_ne_u32 s[{4+2*k}:{5+2*k}], 0, v{27+k}")
    e("    s_or_b64 s[82:83], s[4:5], s[6:7]")
    e("    s_or_b64 vcc, s[8:9], s[10:11]")
    e("    s_or_b64 s[82:83], s[82:83], vcc")
    e("    s_cbranch_scc0 L_poll_ok")
    e("    s_sub_u32 s31, s31, 1")
    e("    s_cbranch_scc1 L_poll_ok")
    if sleep:
        e(f"    s_sleep {sleep}")
    e("    s_branch L_poll")
    e("L_poll_ok:")
    stamp(7)
    e("    v_add_f32 v10, v10, v14")
    e("    v_add_f32 v18, v18, v22")
    e("    v_pk_add_f32 v[8:9], v[8:9], v[12:13]")
    e("    v_pk_add_f32 v[16:17], v[16:17], v[20:21]")
    e("    v_add_f32 v11, v10, v18")
    e("    v_add_f32 v10, v10, v18")
    e("    v_pk_add_f32 v[8:9], v[8:9], v[16:17]")
    e("    s_nop 0")
    e("    v_permlane32_swap_b32 v10, v11")
    e("    v_permlane32_swap_b32 v8, v9")
    e("    v_add_f32 v10, v10, v11              ; [c | c]")
    e("    v_add_f32 v8, v8, v9                 ; [a | b]")
    e("    s_nop 1")
    e("    v_permlane16_swap_b32 v8, v10")
    e("    v_add_f32 v8, v8, v10                ; rows: a, c, b, c")
    e("    s_nop 1")
    e("    v_add_f32_dpp v8, v8, v8 row_shr:4 row_mask:0xf bank_mask:0xf bound_ctrl:0")
    e("    s_nop 1")
    e("    v_add_f32_dpp v8, v8, v8 row_shr:8 row_mask:0xf bank_mask:0xf bound_ctrl:0")
    e("    s_mov_b32 exec_lo, 0xf000f000")
    e("    s_mov_b32 exec_hi, 0x0000f000")
    e(f"    ds_write_b32 v31, v8 offset:{L_P}")
    e("    s_mov_b64 exec, -1")
    e("    s_waitcnt lgkmcnt(0)")
    e("L_b3:")
    e("    s_barrier")
    e("L_b4:")
    e("    s_barrier")
    e(f"    ds_read_b128 v[8:11], v7 offset:{L_G}")
    e(f"    ds_read_b128 v[12:15], v7 offset:{L_G+16}")

    cnt = [0]

    def scale_store(slot, first=False):
        t = 16 + 8 * (cnt[0] & 1)
        cnt[0] += 1
        for i in range(4):
            d = dreg(slot) + i
            e(f"    v_lshlrev_b32 v{t+2*i}, 16, v{d}")
            e(f"    v_and_b32 v{t+1+2*i}, s30, v{d}")
        if first:
            e("    s_waitcnt lgkmcnt(0)")
            stamp(5)
        for i in range(4):
            e(f"    v_pk_mul_f32 v[{t+2*i}:{t+1+2*i}], v[{t+2*i}:{t+1+2*i}], v[{8+2*i}:{9+2*i}]")
        for i in range(4):
            d = dreg(slot) + i
            e(f"    v_cvt_pk_bf16_f32 v{d}, v{t+2*i}, v{t+1+2*i}")
        d = dreg(slot)
        e(f"    buffer_store_dwordx4 v[{d}:{d+3}], v5, s[20:23], s{SO+slot} offen{stf}")

    sslots = []
    for pp in sorder:
        k = lorder.index(pp)
        sslots += [2 * k, 2 * k + 1]
    for j in range(32):
        if j == m1:
            e(f"    s_memrealtime s[{ST+2*smap[0]}:{ST+1+2*smap[0]}]")
        if j == m2:
            e(f"    s_memrealtime s[{ST+2*smap[3]}:{ST+1+2*smap[3]}]")
        scale_store(sslots[j], first=(j == 0))
        if sbar and (j + 1) % sbar == 0 and j != 31:
            e("    s_barrier")
    e("    s_cmp_lg_u32 s2, 1")
    e("    s_cbranch_scc1 L_noep")
    e("    s_cmp_lg_u32 s3, 11")
    e("    s_cbranch_scc1 L_noep")
    e(f"    v_mov_b32 v1, {EPOCH}")
    e("    v_mov_b32 v3, s28")
    e("    s_mov_b64 exec, 1")
    e("    buffer_store_dword v3, v1, s[24:27], 0 offen sc1")
    if dbgout:
        e("    s_mov_b32 s32, s12")
        e("    s_mov_b32 s33, s13")
        e("    s_mov_b32 s34, 256")
        e("    v_mov_b32 v16, s76")
        e("    v_mov_b32 v17, s89")
        e("    v_mov_b32 v1, 0")
        e("    buffer_store_dwordx2 v[16:17], v1, s[32:35], 0 offen")
    e("    s_mov_b64 exec, -1")
    e("L_noep:")
    if enc:
        e("    s_waitcnt vmcnt(0)")
        stamp(6)
        e("    s_waitcnt lgkmcnt(0)")
        a, b = {1: (0, 0), 2: (0, 3), 3: (0, 5), 4: (5, 6), 5: (0, 6), 6: (5, 7), 7: (0, 5), -1: (0, 1)}[enc]
        e(f"    s_sub_u32 s42, s{ST+2*smap[b]}, s{ST+2*smap[a]}")
        if enc >= 6:
            e("    s_lshr_b32 s42, s42, 4")
        if encv:
            e(f"    s_abs_i32 s42, s{76 if encv == 1 else 89}")
            e("    s_mul_i32 s42, s42, 10")
        if enc == -1:
            e("    s_cmp_eq_u32 s3, 0")
            e("    s_cselect_b32 s42, s42, 0")
        if encpar >= 0:
            e("    s_bitcmp1_b32 s2, 0")
            e(f"    s_cselect_b32 s42, s42, 0" if encpar == 1 else "    s_cselect_b32 s42, 0, s42")
        e("L_enc:")
        e("    s_memrealtime s[4:5]")
        e("    s_waitcnt lgkmcnt(0)")
        e(f"    s_sub_u32 s43, s4, s{ST+2*smap[6]}")
        e("    s_cmp_lt_u32 s43, s42")
        e("    s_cbranch_scc1 L_enc")
    if diag:
        e("    s_waitcnt vmcnt(0)")
        stamp(6)
        e("    s_waitcnt lgkmcnt(0)")
        e("    s_mul_i32 s42, s2, 12")
        e("    s_add_u32 s42, s42, s3")
        e("    s_lshl_b32 s42, s42, 7")
        e(f"    s_add_u32 s42, s42, {DIAG}")
        e("    v_mov_b32 v1, s42")
        e("    s_mov_b64 exec, 1")
        inv = {v: k for k, v in smap.items()}
        for k in range(6):
            e(f"    v_mov_b32 v16, s{ST+2*k}")
            e(f"    v_mov_b32 v17, s{ST+2*k+1}")
            e(f"    buffer_store_dwordx2 v[16:17], v1, s[24:27], 0 offen offset:{8*inv[k]}")
            e("    s_nop 2")
        e("    v_mov_b32 v16, 0")
        e("    v_mov_b32 v17, s31")
        e("    buffer_store_dwordx2 v[16:17], v1, s[24:27], 0 offen offset:88")
    e("L_exit:")
    e("    s_endpgm")
    e('.section .rodata,"a"')
    e(".p2align 6")
    e(f".amdhsa_kernel {NAME}")
    e("  .amdhsa_next_free_vgpr 168")
    e("  .amdhsa_next_free_sgpr 102")
    e("  .amdhsa_accum_offset 168")
    e("  .amdhsa_group_segment_fixed_size 0")
    e("  .amdhsa_kernarg_size 48")
    e("  .amdhsa_user_sgpr_count 2")
    e("  .amdhsa_user_sgpr_kernarg_segment_ptr 1")
    e("  .amdhsa_system_sgpr_workgroup_id_x 1")
    e("  .amdhsa_float_denorm_mode_32 3")
    e(".end_amdhsa_kernel")
    sys.stderr.write(f"lorder {lorder} sorder {sorder} A0 {A0} G {G}\n")
    return "\n".join(o) + "\n"


if __name__ == "__main__":
    ap = argparse.ArgumentParser()
    ap.add_argument("-o", default="-")
    ap.add_argument("--ld", default="nt")
    ap.add_argument("--st", default="sc0 sc1")
    ap.add_argument("--diag", action="store_true")
    for name, dv in (("sleep", 0), ("sbar", 2), ("lvm", 3), ("ns", 8), ("pre", 9), ("pairs", 2), ("thr", 14), ("numa", 1), ("dbgout", 0), ("evw", -1), ("enc", 0), ("encpar", -1), ("tlbx", 0), ("tlbo", 0), ("tstep", 8), ("encv", 0), ("ndf", 0), ("dfpos", 0), ("seq", 0), ("m1", -1), ("m2", -1)):
        ap.add_argument("--" + name, type=int, default=dv)
    ap.add_argument("--pubf", default="sc1")
    ap.add_argument("--dff", default="")
    ap.add_argument("--inv", default="")
    ap.add_argument("--pollf", default="sc1")
    a = ap.parse_args()
    kw = vars(a).copy()
    out = kw.pop("o")
    s = gen(**kw)
    if out == "-":
        sys.stdout.write(s)
    else:
        open(out, "w").write(s)
```

```python
import sys, argparse

HEADER = """; Kernarg layout for this problem (48 bytes, ptrs only, base s[0:1]):
"""

NAME = "standalone__channel_attn_se__vision_kernel"
XBYTES = 100663296
MAGIC = 0x5BD1E995
MAGIC2 = 0x2C1B3C6D

L_M = 0
L_HP = 6144
L_P = 6400
L_G = 6656
L_DEC = 7424
L_WU = 8192
LDS = 20480
VOTE = 32768
EPOCH = 65536
DIAG = 1 << 20
WS_BYTES = 2 << 20
SB = 49152
WIN = 128 * SB


def gen(ld="nt", st="sc0 sc1", diag=False, sleep=0, spin=400000, pubf="sc1", pollf="sc1", sbar=2,
        lvm=3, ns=8, pre=9, pairs=2, thr=14, numa=1, dbgout=0, evw=-1, enc=0, encpar=-1, tlbx=0, tlbo=0, tstep=8, encv=0, ndf=0, dff="", dfpos=0, inv="", seq=0, m1=-1, m2=-1, twice=0):
    o = []
    e = o.append
    ldf = (" " + ld) if ld else ""
    stf = (" " + st) if st else ""
    D0 = 40
    SO = 44
    ST = 90
    na = 16 - ns
    adaptive = []
    for i in range(na):
        adaptive.append((15 - i // 2) if i % 2 == 0 else (9 - i // 2))
    adaptive = adaptive[::-1]
    static = [pp for pp in range(16) if pp not in adaptive]
    lorder = static + adaptive
    sorder = []
    si, ai = 0, 0
    for k in range(16):
        if ai < na and (ai + 1) * 16 <= (k + 1) * na + (16 - na) // 2 * 0 + 0 or si >= len(static):
            sorder.append(adaptive[ai]); ai += 1
        else:
            sorder.append(static[si]); si += 1
    if seq == 1:
        sorder = list(range(16))
    if seq == 2:
        sorder = list(range(15, -1, -1))
    assert sorted(sorder) == list(range(16))
    region = lambda pp: 0 if pp < 10 else 1
    A0 = 2 * ns
    G = A0 - lvm - 1
    e(HEADER.rstrip())
    e(f"; @launch grid=(256,1,1) block=(768,1,1) lds={LDS}")
    e('.amdgcn_target "amdgcn-amd-amdhsa--gfx950"')
    e(".text")
    e(f".globl {NAME}")
    e(".p2align 8")
    e(f".type {NAME},@function")
    e(f"{NAME}:")
    smap = {0: 0, 1: 1, 3: 2, 5: 3, 6: 4, 7: 5}

    def stamp(i):
        if (diag or enc) and i in smap:
            k = smap[i]
            if enc >= 6 and i in (0, 3, 5):
                e(f"    s_memtime s[{ST+2*k}:{ST+1+2*k}]")
            elif enc >= 6 and i in (1, 7):
                pass
            else:
                e(f"    s_memrealtime s[{ST+2*k}:{ST+1+2*k}]")
                if enc >= 6 and i == 6:
                    e(f"    s_memtime s[{ST+2*smap[7]}:{ST+1+2*smap[7]}]")

    def dreg(slot):
        return D0 + 4 * slot

    def load(slot):
        d = dreg(slot)
        fl = ldf
        if dfpos <= slot < dfpos + ndf:
            fl = (" " + dff) if dff else ""
        e(f"    buffer_load_dwordx4 v[{d}:{d+3}], v5, s[16:19], s{SO+slot} offen{fl}")

    def acc(slot):
        for i in range(4):
            d = dreg(slot) + i
            if slot == 0:
                e(f"    v_lshlrev_b32 v{8+2*i}, 16, v{d}")
                e(f"    v_and_b32 v{9+2*i}, s30, v{d}")
            else:
                e(f"    v_lshlrev_b32 v{16+2*i}, 16, v{d}")
                e(f"    v_and_b32 v{17+2*i}, s30, v{d}")
        if slot:
            for i in range(4):
                e(f"    v_pk_add_f32 v[{8+2*i}:{9+2*i}], v[{8+2*i}:{9+2*i}], v[{16+2*i}:{17+2*i}]")

    e("    s_cmp_ge_u32 s2, 256")
    e("    s_cbranch_scc1 L_exit")
    e("    s_load_dwordx4 s[4:7], s[0:1], 0")
    e("    s_load_dwordx4 s[8:11], s[0:1], 16")
    e("    s_load_dwordx4 s[12:15], s[0:1], 32")
    if diag or enc:
        for i in range(6):
            e(f"    s_mov_b64 s[{ST+2*i}:{ST+1+2*i}], 0")
    stamp(0)
    e("    v_lshrrev_b32 v1, 6, v0")
    e("    v_and_b32 v2, 63, v0                 ; lane")
    e("    v_readfirstlane_b32 s3, v1")
    e("    v_lshrrev_b32 v3, 4, v2              ; q (row)")
    e("    v_and_b32 v4, 15, v2                 ; n")
    e("    s_mul_i32 s40, s3, 11")
    e("    s_lshr_b32 s40, s40, 5")
    e("    s_mul_i32 s41, s40, 3")
    e("    s_sub_u32 s41, s3, s41               ; seg = wave%3")
    e("    s_lshl_b32 s43, s41, 8")
    e("    v_mul_u32_u24 v5, 768, v3")
    e("    v_lshl_add_u32 v5, v4, 4, v5")
    e("    v_add_u32 v5, s43, v5                ; v5 = q*768 + seg*256 + n*16")
    e("    s_mov_b32 s18, %d" % XBYTES)
    e("    s_mov_b32 s19, 0x00020000")
    e("    s_mov_b32 s30, 0xffff0000")
    e("    s_lshr_b32 s42, s2, 3")
    e("    s_lshl_b32 s42, s42, 2")
    e("    s_and_b32 s43, s2, 3")
    e("    s_add_u32 s42, s42, s43")
    e(f"    s_mul_i32 s76, s42, {SB}")
    e("    s_lshl_b32 s43, s40, 2")
    e("    s_lshr_b32 s78, 0x5210, s43")
    e("    s_and_b32 s78, s78, 15")
    e("    s_lshr_b32 s79, 0xcb76, s43")
    e("    s_and_b32 s79, s79, 15")
    e("    s_mul_i32 s78, s78, 3072")
    e("    s_mul_i32 s79, s79, 3072")
    e("    s_sub_u32 s80, 46080, s78")
    e("    s_sub_u32 s81, 46080, s79")
    for r in (78, 79, 80, 81):
        e(f"    s_add_u32 s{r}, s{r}, s76")
    e("    s_add_u32 s77, s76, 24576")
    e("    s_lshr_b32 s77, s77, 19")
    e("    s_xor_b32 s77, s77, s2")
    e("    s_lshr_b32 s42, s2, 1")
    e("    s_xor_b32 s42, s42, s77")
    e("    s_bitcmp1_b32 s42, 2")
    e("    s_cselect_b32 s82, s80, s78          ; E0")
    e("    s_cselect_b32 s83, s81, s79          ; E1")
    e("    s_cselect_b32 s84, s78, s80          ; O0")
    e("    s_cselect_b32 s85, s79, s81          ; O1")
    seen = [0, 0]
    for k, pp in enumerate(lorder):
        u = seen[region(pp)] & 1
        seen[region(pp)] += 1
        b = 84 if ((pp ^ u) & 1) else 82
        e(f"    s_add_u32 s{SO+2*k}, s{b}, {pp*WIN}")
        e(f"    s_add_u32 s{SO+2*k+1}, s{b+1}, {pp*WIN}")
    e("    s_and_b32 s86, s2, 1")
    e("    s_add_u32 s86, s86, 1")
    e("    s_cmp_eq_u32 s3, 0")
    e("    s_cselect_b32 s86, s86, 0")
    if inv:
        e("    s_cmp_lg_u32 s3, 11")
        e("    s_cbranch_scc1 L_noinv")
        e(f"    buffer_inv {inv}")
        e("L_noinv:")
    e("    s_waitcnt lgkmcnt(0)")
    e("    s_mov_b32 s16, s4")
    e("    s_mov_b32 s17, s5")
    for s in range(lvm):
        load(s)
    if tlbx or tlbo:
        e("    s_lshl_b32 s42, s3, 23")
        e("    v_lshlrev_b32 v39, %d, v2" % (21 if max(tlbx, tlbo) == 1 else 20))
        e("    v_add_u32 v39, s42, v39")
    if tlbx:
        e("    s_mov_b64 exec, %d" % (15 if tlbx == 1 else 255))
        e("    buffer_load_dword v38, v39, s[16:19], 0 offen")
        e("    s_mov_b64 exec, -1")
    e(f"    s_load_dword s28, s[14:15], {EPOCH}")
    e("    s_mov_b32 s24, s14")
    e("    s_mov_b32 s25, s15")
    e("    s_mov_b32 s26, %d" % WS_BYTES)
    e("    s_mov_b32 s27, 0x00020000")
    if numa:
        e("    s_cmp_lg_u32 s86, 1")
        e("    s_cbranch_scc1 L_noprobe")
        e("    s_bfe_u32 s42, s2, 0x10001           ; r = bit1")
        e("    s_add_u32 s42, s42, 1")
        e(f"    s_mul_i32 s42, s42, {40<<20}")
        e("    s_bfe_u32 s43, s2, 0x30003           ; i & 7")
        e("    s_lshl_b32 s43, s43, 21")
        e("    s_add_u32 s42, s42, s43")
        e("    s_lshr_b32 s43, s2, 6")
        e("    s_lshl_b32 s43, s43, 18")
        e("    s_add_u32 s42, s42, s43")
        e("    s_bfe_u32 s43, s2, 0x10002           ; L")
        e("    s_lshl_b32 s43, s43, 17")
        e("    s_add_u32 s42, s42, s43")
        e("    s_add_u32 s20, s10, s42")
        e("    s_addc_u32 s21, s11, 0")
        e("    s_load_dword s22, s[20:21], 4096")
        for s in range(lvm, pre):
            load(s)
        e("    s_waitcnt lgkmcnt(0)")
        offs = [0, 8192, 24576 + 256, 16384 + 256, 32768 + 512, 40960 + 512][:2 * pairs]
        e("    s_memtime s[32:33]")
        e("    s_waitcnt lgkmcnt(0)")
        for i, of in enumerate(offs):
            a, b = (32, 34) if i % 2 == 0 else (34, 32)
            e(f"    s_load_dword s22, s[20:21], {of}")
            e("    s_waitcnt lgkmcnt(0)")
            e(f"    s_memtime s[{b}:{b+1}]")
            e("    s_waitcnt lgkmcnt(0)")
            e(f"    s_sub_u32 s{36+(i&1)}, s{b}, s{a}")
            if i % 2 == 1:
                if (i // 2) % 2 == 0:
                    e("    s_cmp_gt_u32 s37, s36")
                else:
                    e("    s_cmp_gt_u32 s36, s37")
                if i == 1:
                    e("    s_cselect_b32 s38, 1, -1")
                else:
                    e("    s_cselect_b32 s39, 1, -1")
                    e("    s_add_i32 s38, s38, s39")
        e("    s_lshr_b32 s42, s2, 1")
        e("    s_xor_b32 s42, s42, s2")
        e("    s_sub_i32 s39, 0, s38")
        e("    s_bitcmp1_b32 s42, 2")
        e("    s_cselect_b32 s38, s39, s38")
        e("    s_add_u32 s39, s28, 1")
        e("    s_xor_b32 s39, s39, 0x%08x" % MAGIC2)
        e("    s_xor_b32 s39, s39, s38")
        e("    s_bfe_u32 s42, s2, 0x10001")
        e("    s_lshl_b32 s42, s42, 6")
        e("    s_lshr_b32 s43, s2, 2                ; i*2 + L")
        e("    s_add_u32 s42, s42, s43")
        e("    s_lshl_b32 s42, s42, 3")
        e(f"    s_add_u32 s42, s42, {VOTE}")
        e("    v_mov_b32 v32, s38")
        e("    v_mov_b32 v33, s39")
        e("    v_mov_b32 v34, s42")
        e("    s_mov_b64 exec, 1")
        e("    buffer_store_dwordx2 v[32:33], v34, s[24:27], 0 offen sc1")
        e("    s_mov_b64 exec, -1")
        stamp(1)
        e("L_noprobe:")
    e("    s_mov_b32 s20, s10")
    e("    s_mov_b32 s21, s11")
    e("    s_mov_b32 s22, %d" % XBYTES)
    e("    s_mov_b32 s23, 0x00020000")
    e("    s_mov_b32 s32, s6")
    e("    s_mov_b32 s33, s7")
    e("    s_mov_b32 s34, 4608")
    e("    s_mov_b32 s35, 0x00020000")
    e("    s_mov_b32 s36, s8")
    e("    s_mov_b32 s37, s9")
    e("    s_mov_b32 s38, 4608")
    e("    s_mov_b32 s39, 0x00020000")
    e("    s_mov_b32 s31, %d" % spin)
    e("    s_mul_i32 s42, s41, 1536")
    e("    s_mul_i32 s43, s40, 6")
    e("    s_add_u32 s42, s42, s43")
    e("    v_mul_u32_u24 v1, 24, v2")
    e("    v_add_u32 v1, s42, v1")
    e("    s_lshl_b32 s42, s3, 10")
    e(f"    s_add_u32 s42, s42, {L_WU}")
    e("    s_mov_b32 m0, s42")
    e("    v_lshlrev_b32 v27, 4, v0")
    e("    buffer_load_ushort v24, v1, s[32:35], 0 offen")
    e("    buffer_load_ushort v25, v1, s[32:35], 0 offen offset:2")
    e("    buffer_load_ushort v26, v1, s[32:35], 0 offen offset:4")
    e("    buffer_load_dwordx4 v27, s[36:39], 0 offen lds")
    NW = 4
    e("    s_mul_i32 s42, s40, 1536")
    e("    s_lshl_b32 s43, s41, 9")
    e("    s_add_u32 s42, s42, s43")
    e("    v_lshlrev_b32 v6, 5, v4")
    e("    v_lshl_add_u32 v6, v3, 3, v6")
    e("    v_add_u32 v6, s42, v6")
    e("    s_lshl_b32 s43, s41, 7")
    e("    v_lshlrev_b32 v7, 3, v4")
    e("    v_add_u32 v7, s43, v7")
    e("    v_subrev_u32 v1, 192, v7")
    e("    v_min_u32 v7, v7, v1")
    e("    v_lshlrev_b32 v7, 2, v7")
    e("    v_and_b32 v1, 1, v3")
    e("    v_lshrrev_b32 v31, 1, v3")
    e("    v_lshl_add_u32 v31, v1, 1, v31")
    e("    v_lshlrev_b32 v31, 2, v31            ; i(row)*4")
    e("    s_lshl_b32 s42, s41, 6")
    e("    s_lshl_b32 s43, s40, 4")
    e("    s_add_u32 s42, s42, s43")
    e("    v_add_u32 v4, s42, v31")
    e("    s_lshl_b32 s42, s41, 8")
    e("    v_lshlrev_b32 v3, 2, v2")
    e("    v_add_u32 v3, s42, v3")
    e("    v_lshlrev_b32 v1, 4, v2              ; lane*16")
    e(f"    s_mov_b32 s87, {VOTE}")
    for j in range(32):
        last = min(j + lvm - 1, 31)
        younger = (last - j) + (NW if j < lvm else 0)
        e(f"    s_waitcnt vmcnt({younger})")
        if j == lvm:
            e("    s_waitcnt lgkmcnt(0)")
            e("    s_add_u32 s28, s28, 1                ; epoch + 1")
            e("    s_xor_b32 s29, s28, 0x%08x           ; tag key" % MAGIC)
            e("    s_xor_b32 s88, s28, 0x%08x           ; vote key" % MAGIC2)
        if numa and j == A0 - lvm:
            e("    s_bitcmp1_b32 s2, 0")
            e("    s_cbranch_scc0 L_nodec")
            e("    s_cmp_lg_u32 s86, 2")
            e("    s_cbranch_scc1 L_decbar")
            e("L_vchk:")
            e("    v_bitop3_b32 v36, v32, v33, s88 bitop3:0x96")
            e("    v_bitop3_b32 v37, v34, v35, s88 bitop3:0x96")
            e("    v_or_b32 v36, v36, v37")
            e("    v_cmp_ne_u32 vcc, 0, v36")
            e("    s_cbranch_vccz L_vok")
            e("    s_sub_u32 s31, s31, 1")
            e("    s_cbranch_scc1 L_vok")
            e("    buffer_load_dwordx4 v[32:35], v1, s[24:27], s87 offen sc1")
            e("    s_waitcnt vmcnt(0)")
            e("    s_branch L_vchk")
            e("L_vok:")
            e("    v_add_u32 v36, v32, v34")
            for sh in (1, 2, 4, 8):
                e("    s_nop 1")
                e(f"    v_add_u32_dpp v36, v36, v36 row_shr:{sh} row_mask:0xf bank_mask:0xf bound_ctrl:0")
            e("    s_nop 1")
            e("    v_add_u32_dpp v36, v36, v36 row_bcast:15 row_mask:0xa bank_mask:0xf")
            e("    v_lshrrev_b32 v37, 3, v2")
            e("    v_and_b32 v37, 4, v37                ; (lane>=32)*4")
            e("    s_mov_b32 exec_lo, 0x80000000")
            e("    s_mov_b32 exec_hi, 0x80000000")
            e(f"    ds_write_b32 v37, v36 offset:{L_DEC}")
            e("    s_mov_b64 exec, -1")
            e("    s_waitcnt lgkmcnt(0)")
            stamp(1)
            e("L_decbar:")
            e("    s_barrier")
            e("    v_mov_b32 v36, 0")
            e(f"    ds_read_b64 v[36:37], v36 offset:{L_DEC}")
            e("    s_waitcnt lgkmcnt(0)")
            e("    v_readfirstlane_b32 s4, v36")
            e("    v_readfirstlane_b32 s5, v37")
            for r in range(2):
                wins = [(k, pp) for k, pp in enumerate(lorder) if pp in adaptive and region(pp) == r]
                if not wins:
                    continue
                e(f"    s_abs_i32 s42, s{4+r}")
                e(f"    s_cmp_lt_u32 s42, {thr}")
                e(f"    s_cbranch_scc1 L_keep{r}")
                e(f"    s_lshr_b32 s42, s{4+r}, 29")
                e("    s_xor_b32 s42, s42, s77")
                e("    s_bitcmp1_b32 s42, 2")
                e("    s_cselect_b32 s82, s80, s78")
                e("    s_cselect_b32 s83, s81, s79")
                e("    s_cselect_b32 s84, s78, s80")
                e("    s_cselect_b32 s85, s79, s81")
                for k, pp in wins:
                    b = 84 if (pp & 1) else 82
                    e(f"    s_add_u32 s{SO+2*k}, s{b}, {pp*WIN}")
                    e(f"    s_add_u32 s{SO+2*k+1}, s{b+1}, {pp*WIN}")
                e(f"L_keep{r}:")
            if dbgout:
                e("    s_mov_b32 s76, s4")
                e("    s_mov_b32 s89, s5")
            e("L_nodec:")
        if j + lvm < 32:
            k = j + lvm
            if evw >= 0 and j >= lvm and k >= pre:
                e("    s_bitcmp1_b32 s2, 0")
                e(f"    s_cbranch_scc1 L_ev{k}")
                e(f"    s_waitcnt vmcnt({evw})")
                e(f"L_ev{k}:")
            if numa and k < pre:
                e("    s_cmp_eq_u32 s86, 1")
                e(f"    s_cbranch_scc1 L_sk{k}")
                load(k)
                e(f"L_sk{k}:")
            else:
                load(k)
            if numa and k == G:
                e("    s_cmp_lg_u32 s86, 2")
                e("    s_cbranch_scc1 L_nog")
                e("    buffer_load_dwordx4 v[32:35], v1, s[24:27], s87 offen sc1")
                e("L_nog:")
        if tlbo and j == tstep:
            e("    s_mov_b64 exec, %d" % (15 if tlbo == 1 else 255))
            e("    buffer_load_dword v38, v39, s[20:23], 0 offen")
            e("    s_mov_b64 exec, -1")
        acc(j)
        if j == 20:
            for r in (24, 25, 26):
                e(f"    v_lshlrev_b32 v{r}, 16, v{r}")
    e("    s_nop 1")
    for i in range(4):
        e(f"    v_permlane32_swap_b32 v{8+i}, v{12+i}")
    for i in range(4):
        e(f"    v_add_f32 v{8+i}, v{8+i}, v{12+i}")
    e("    s_nop 0")
    e("    v_permlane16_swap_b32 v8, v10")
    e("    v_permlane16_swap_b32 v9, v11")
    e("    v_add_f32 v8, v8, v10")
    e("    v_add_f32 v9, v9, v11")
    e(f"    ds_write_b64 v6, v[8:9] offset:{L_M}")
    e("    s_waitcnt lgkmcnt(0)")
    e("    s_barrier")
    stamp(3)
    for k in range(4):
        e(f"    ds_read2st64_b32 v[{16+2*k}:{17+2*k}], v3 offset0:{6*k} offset1:{6*k+3}")
    e("    s_waitcnt lgkmcnt(2)" if not (diag or enc) else "    s_waitcnt lgkmcnt(0)")
    e("    v_pk_add_f32 v[16:17], v[16:17], v[18:19]")
    e("    s_waitcnt lgkmcnt(0)")
    e("    v_pk_add_f32 v[20:21], v[20:21], v[22:23]")
    e("    v_pk_add_f32 v[16:17], v[16:17], v[20:21]")
    e("    v_add_f32 v16, v16, v17")
    e("    v_mul_f32 v10, v16, v26")
    e("    v_mul_f32 v11, v16, v26")
    e("    v_mul_f32 v8, v16, v24")
    e("    v_mul_f32 v9, v16, v25")
    e("    v_permlane32_swap_b32 v10, v11")
    e("    s_nop 0")
    e("    v_permlane32_swap_b32 v8, v9")
    e("    v_add_f32 v10, v10, v11              ; [c | c]")
    e("    v_add_f32 v8, v8, v9                 ; [a | b]")
    e("    s_nop 1")
    e("    v_permlane16_swap_b32 v8, v10")
    e("    v_add_f32 v8, v8, v10                ; rows: a, c, b, c")
    e("    s_nop 1")
    e("    v_add_f32_dpp v9, v8, v8 row_shr:1 row_mask:0xf bank_mask:0xf bound_ctrl:0")
    e("    v_add_f32_dpp v9, v8, v9 row_shr:2 row_mask:0xf bank_mask:0xf bound_ctrl:0")
    e("    v_add_f32_dpp v9, v8, v9 row_shr:3 row_mask:0xf bank_mask:0xf bound_ctrl:0")
    e("    s_nop 1")
    e("    v_add_f32_dpp v9, v9, v9 row_shr:4 row_mask:0xf bank_mask:0xf bound_ctrl:0")
    e("    s_nop 1")
    e("    v_add_f32_dpp v9, v9, v9 row_shr:8 row_mask:0xf bank_mask:0xf bound_ctrl:0")
    e("    s_mov_b32 exec_lo, 0x80008000")
    e("    s_mov_b32 exec_hi, 0x00008000")
    e(f"    ds_write_b32 v4, v9 offset:{L_HP}")
    e("    s_mov_b64 exec, -1")
    e("    s_lshl_b32 s42, s2, 6")
    e("    s_cmp_lg_u32 s3, 4")
    e("    s_waitcnt lgkmcnt(0)")
    e("    s_barrier")
    e("    s_cbranch_scc1 L_notpub")
    e("    s_mov_b64 exec, 15")
    e(f"    ds_read_b128 v[8:11], v1 offset:{L_HP}")
    e(f"    ds_read_b128 v[12:15], v1 offset:{L_HP+64}")
    e(f"    ds_read_b128 v[16:19], v1 offset:{L_HP+128}")
    e("    s_waitcnt lgkmcnt(1)")
    e("    v_pk_add_f32 v[8:9], v[8:9], v[12:13]")
    e("    v_add_f32 v10, v10, v14")
    e("    s_waitcnt lgkmcnt(0)")
    e("    v_pk_add_f32 v[8:9], v[8:9], v[16:17]")
    e("    v_add_f32 v10, v10, v18")
    e("    v_bitop3_b32 v11, v8, v9, s29 bitop3:0x96")
    e("    v_xor_b32 v11, v11, v10")
    e(f"    buffer_store_dwordx4 v[8:11], v1, s[24:27], s42 offen {pubf}")
    e("    s_mov_b64 exec, -1")
    stamp(7)
    e("    s_branch L_b3")
    e("L_notpub:")
    e("    s_cmp_lt_u32 s3, 4")
    e("    s_cbranch_scc1 L_poll_start")
    e("    s_cmp_gt_u32 s3, 7")
    e("    s_cbranch_scc1 L_b3")
    e("    v_subrev_u32 v1, 320, v0")
    e("    v_lshlrev_b32 v21, 2, v1")
    e("    v_lshlrev_b32 v1, 1, v1")
    for r in range(12):
        e(f"    ds_read_u16 v{8+r}, v1 offset:{L_WU+384*r}")
    e("    v_and_b32 v20, 15, v2")
    e("    v_lshlrev_b32 v20, 2, v20")
    e(f"    v_add_u32 v20, {L_P}, v20")
    e("    s_waitcnt lgkmcnt(0)")
    for r in range(12):
        e(f"    v_lshlrev_b32 v{8+r}, 16, v{8+r}")
    e("    s_barrier")
    e("    ds_read2_b32 v[22:23], v20 offset0:0 offset1:16")
    e("    ds_read2_b32 v[24:25], v20 offset0:32 offset1:48")
    e("    s_waitcnt lgkmcnt(0)")
    e("    v_pk_add_f32 v[22:23], v[22:23], v[24:25]")
    e("    v_add_f32 v22, v22, v23")
    e("    v_mul_f32 v22, 0x36800000, v22       ; * 2^-18")
    e("    v_cvt_pk_bf16_f32 v22, v22, v22")
    e("    v_lshlrev_b32 v22, 16, v22")
    e("    v_mul_f32 v23, 0xbfb8aa3b, v22       ; -log2e * x")
    e("    v_exp_f32 v23, v23")
    e("    s_nop 0")
    e("    v_add_f32 v23, 1.0, v23")
    e("    v_rcp_f32 v23, v23")
    e("    s_nop 0")
    e("    v_mul_f32 v22, v22, v23")
    e("    v_cvt_pk_bf16_f32 v22, v22, v22")
    e("    v_lshlrev_b32 v22, 16, v22")
    e("    s_nop 1")
    for r in range(12):
        a = 23 + (r % 3)
        op = "v_mul_f32_dpp" if r < 3 else "v_fmac_f32_dpp"
        e(f"    {op} v{a}, v22, v{8+r} row_newbcast:{r} row_mask:0xf bank_mask:0xf")
    e("    v_add_f32 v23, v23, v24")
    e("    v_add_f32 v23, v23, v25")
    e("    v_cvt_pk_bf16_f32 v23, v23, v23")
    e("    v_lshlrev_b32 v23, 16, v23")
    e("    v_mul_f32 v23, 0xbfb8aa3b, v23")
    e("    v_exp_f32 v23, v23")
    e("    s_nop 0")
    e("    v_add_f32 v23, 1.0, v23")
    e("    v_rcp_f32 v23, v23")
    e("    s_nop 0")
    e("    v_cvt_pk_bf16_f32 v23, v23, v23")
    e("    v_lshlrev_b32 v23, 16, v23")
    e(f"    ds_write_b32 v21, v23 offset:{L_G}")
    e("    s_waitcnt lgkmcnt(0)")
    e("    s_branch L_b4")

    e("L_poll_start:")
    e("    s_lshl_b32 s42, s3, 12")
    e("    v_and_b32 v27, 3, v2")
    e("    v_mul_u32_u24 v27, 12, v27")
    e("    s_lshl_b32 s43, s3, 6")
    e("    v_add3_u32 v31, v31, v27, s43")
    regs = (8, 12, 16, 20)
    for k in range(4):
        e(f"    s_mov_b64 s[{4+2*k}:{5+2*k}], -1")
    e("L_poll:")
    for k in range(4):
        e(f"    s_mov_b64 exec, s[{4+2*k}:{5+2*k}]")
        e(f"    s_cbranch_execz L_skip{k}")
        e(f"    buffer_load_dwordx4 v[{regs[k]}:{regs[k]+3}], v1, s[24:27], s42 offen offset:{1024*k} {pollf}")
        e(f"L_skip{k}:")
    e("    s_mov_b64 exec, -1")
    e("    s_waitcnt vmcnt(0)")
    for k in range(4):
        r = regs[k]
        e(f"    v_bitop3_b32 v{27+k}, v{r}, v{r+1}, s29 bitop3:0x96")
    for k in range(4):
        r = regs[k]
        e(f"    v_bitop3_b32 v{27+k}, v{27+k}, v{r+2}, v{r+3} bitop3:0x96")
    for k in range(4):
        e(f"    v_cmp_ne_u32 s[{4+2*k}:{5+2*k}], 0, v{27+k}")
    e("    s_or_b64 s[82:83], s[4:5], s[6:7]")
    e("    s_or_b64 vcc, s[8:9], s[10:11]")
    e("    s_or_b64 s[82:83], s[82:83], vcc")
    e("    s_cbranch_scc0 L_poll_ok")
    e("    s_sub_u32 s31, s31, 1")
    e("    s_cbranch_scc1 L_poll_ok")
    if sleep:
        e(f"    s_sleep {sleep}")
    e("    s_branch L_poll")
    e("L_poll_ok:")
    stamp(7)
    e("    v_add_f32 v10, v10, v14")
    e("    v_add_f32 v18, v18, v22")
    e("    v_pk_add_f32 v[8:9], v[8:9], v[12:13]")
    e("    v_pk_add_f32 v[16:17], v[16:17], v[20:21]")
    e("    v_add_f32 v11, v10, v18")
    e("    v_add_f32 v10, v10, v18")
    e("    v_pk_add_f32 v[8:9], v[8:9], v[16:17]")
    e("    s_nop 0")
    e("    v_permlane32_swap_b32 v10, v11")
    e("    v_permlane32_swap_b32 v8, v9")
    e("    v_add_f32 v10, v10, v11              ; [c | c]")
    e("    v_add_f32 v8, v8, v9                 ; [a | b]")
    e("    s_nop 1")
    e("    v_permlane16_swap_b32 v8, v10")
    e("    v_add_f32 v8, v8, v10                ; rows: a, c, b, c")
    e("    s_nop 1")
    e("    v_add_f32_dpp v8, v8, v8 row_shr:4 row_mask:0xf bank_mask:0xf bound_ctrl:0")
    e("    s_nop 1")
    e("    v_add_f32_dpp v8, v8, v8 row_shr:8 row_mask:0xf bank_mask:0xf bound_ctrl:0")
    e("    s_mov_b32 exec_lo, 0xf000f000")
    e("    s_mov_b32 exec_hi, 0x0000f000")
    e(f"    ds_write_b32 v31, v8 offset:{L_P}")
    e("    s_mov_b64 exec, -1")
    e("    s_waitcnt lgkmcnt(0)")
    e("L_b3:")
    e("    s_barrier")
    e("L_b4:")
    e("    s_barrier")
    e(f"    ds_read_b128 v[8:11], v7 offset:{L_G}")
    e(f"    ds_read_b128 v[12:15], v7 offset:{L_G+16}")

    cnt = [0]

    def scale_store(slot, first=False):
        t = 16 + 8 * (cnt[0] & 1)
        cnt[0] += 1
        for i in range(4):
            d = dreg(slot) + i
            e(f"    v_lshlrev_b32 v{t+2*i}, 16, v{d}")
            e(f"    v_and_b32 v{t+1+2*i}, s30, v{d}")
        if first:
            e("    s_waitcnt lgkmcnt(0)")
            stamp(5)
        for i in range(4):
            e(f"    v_pk_mul_f32 v[{t+2*i}:{t+1+2*i}], v[{t+2*i}:{t+1+2*i}], v[{8+2*i}:{9+2*i}]")
        for i in range(4):
            d = dreg(slot) + i
            e(f"    v_cvt_pk_bf16_f32 v{d}, v{t+2*i}, v{t+1+2*i}")
        d = dreg(slot)
        e(f"    buffer_store_dwordx4 v[{d}:{d+3}], v5, s[20:23], s{SO+slot} offen{stf}")

    sslots = []
    for pp in sorder:
        k = lorder.index(pp)
        sslots += [2 * k, 2 * k + 1]
    for j in range(32):
        if j == m1:
            e(f"    s_memrealtime s[{ST+2*smap[0]}:{ST+1+2*smap[0]}]")
        if j == m2:
            e(f"    s_memrealtime s[{ST+2*smap[3]}:{ST+1+2*smap[3]}]")
        scale_store(sslots[j], first=(j == 0))
        if sbar and (j + 1) % sbar == 0 and j != 31:
            e("    s_barrier")
    if twice:
        e("    s_waitcnt vmcnt(0)")
        e("    s_barrier")
        for rep in range(twice):
            for j in range(32):
                d = dreg(sslots[j])
                e(f"    buffer_store_dwordx4 v[{d}:{d+3}], v5, s[20:23], s{SO+sslots[j]} offen{stf}")
                if sbar and (j + 1) % sbar == 0:
                    e("    s_barrier")
    e("    s_cmp_lg_u32 s2, 1")
    e("    s_cbranch_scc1 L_noep")
    e("    s_cmp_lg_u32 s3, 11")
    e("    s_cbranch_scc1 L_noep")
    e(f"    v_mov_b32 v1, {EPOCH}")
    e("    v_mov_b32 v3, s28")
    e("    s_mov_b64 exec, 1")
    e("    buffer_store_dword v3, v1, s[24:27], 0 offen sc1")
    if dbgout:
        e("    s_mov_b32 s32, s12")
        e("    s_mov_b32 s33, s13")
        e("    s_mov_b32 s34, 256")
        e("    v_mov_b32 v16, s76")
        e("    v_mov_b32 v17, s89")
        e("    v_mov_b32 v1, 0")
        e("    buffer_store_dwordx2 v[16:17], v1, s[32:35], 0 offen")
    e("    s_mov_b64 exec, -1")
    e("L_noep:")
    if enc:
        e("    s_waitcnt vmcnt(0)")
        stamp(6)
        e("    s_waitcnt lgkmcnt(0)")
        a, b = {1: (0, 0), 2: (0, 3), 3: (0, 5), 4: (5, 6), 5: (0, 6), 6: (5, 7), 7: (0, 5), -1: (0, 1)}[enc]
        e(f"    s_sub_u32 s42, s{ST+2*smap[b]}, s{ST+2*smap[a]}")
        if enc >= 6:
            e("    s_lshr_b32 s42, s42, 4")
        if encv:
            e(f"    s_abs_i32 s42, s{76 if encv == 1 else 89}")
            e("    s_mul_i32 s42, s42, 10")
        if enc == -1:
            e("    s_cmp_eq_u32 s3, 0")
            e("    s_cselect_b32 s42, s42, 0")
        if encpar >= 0:
            e("    s_bitcmp1_b32 s2, 0")
            e(f"    s_cselect_b32 s42, s42, 0" if encpar == 1 else "    s_cselect_b32 s42, 0, s42")
        e("L_enc:")
        e("    s_memrealtime s[4:5]")
        e("    s_waitcnt lgkmcnt(0)")
        e(f"    s_sub_u32 s43, s4, s{ST+2*smap[6]}")
        e("    s_cmp_lt_u32 s43, s42")
        e("    s_cbranch_scc1 L_enc")
    if diag:
        e("    s_waitcnt vmcnt(0)")
        stamp(6)
        e("    s_waitcnt lgkmcnt(0)")
        e("    s_mul_i32 s42, s2, 12")
        e("    s_add_u32 s42, s42, s3")
        e("    s_lshl_b32 s42, s42, 7")
        e(f"    s_add_u32 s42, s42, {DIAG}")
        e("    v_mov_b32 v1, s42")
        e("    s_mov_b64 exec, 1")
        inv = {v: k for k, v in smap.items()}
        for k in range(6):
            e(f"    v_mov_b32 v16, s{ST+2*k}")
            e(f"    v_mov_b32 v17, s{ST+2*k+1}")
            e(f"    buffer_store_dwordx2 v[16:17], v1, s[24:27], 0 offen offset:{8*inv[k]}")
            e("    s_nop 2")
        e("    v_mov_b32 v16, 0")
        e("    v_mov_b32 v17, s31")
        e("    buffer_store_dwordx2 v[16:17], v1, s[24:27], 0 offen offset:88")
    e("L_exit:")
    e("    s_endpgm")
    e('.section .rodata,"a"')
    e(".p2align 6")
    e(f".amdhsa_kernel {NAME}")
    e("  .amdhsa_next_free_vgpr 168")
    e("  .amdhsa_next_free_sgpr 102")
    e("  .amdhsa_accum_offset 168")
    e("  .amdhsa_group_segment_fixed_size 0")
    e("  .amdhsa_kernarg_size 48")
    e("  .amdhsa_user_sgpr_count 2")
    e("  .amdhsa_user_sgpr_kernarg_segment_ptr 1")
    e("  .amdhsa_system_sgpr_workgroup_id_x 1")
    e("  .amdhsa_float_denorm_mode_32 3")
    e(".end_amdhsa_kernel")
    sys.stderr.write(f"lorder {lorder} sorder {sorder} A0 {A0} G {G}\n")
    return "\n".join(o) + "\n"


if __name__ == "__main__":
    ap = argparse.ArgumentParser()
    ap.add_argument("-o", default="-")
    ap.add_argument("--ld", default="nt")
    ap.add_argument("--st", default="sc0 sc1")
    ap.add_argument("--diag", action="store_true")
    for name, dv in (("sleep", 0), ("sbar", 2), ("lvm", 3), ("ns", 8), ("pre", 9), ("pairs", 2), ("thr", 14), ("numa", 1), ("dbgout", 0), ("evw", -1), ("enc", 0), ("encpar", -1), ("tlbx", 0), ("tlbo", 0), ("tstep", 8), ("encv", 0), ("ndf", 0), ("dfpos", 0), ("seq", 0), ("m1", -1), ("m2", -1), ("twice", 0)):
        ap.add_argument("--" + name, type=int, default=dv)
    ap.add_argument("--pubf", default="sc1")
    ap.add_argument("--dff", default="")
    ap.add_argument("--inv", default="")
    ap.add_argument("--pollf", default="sc1")
    a = ap.parse_args()
    kw = vars(a).copy()
    out = kw.pop("o")
    s = gen(**kw)
    if out == "-":
        sys.stdout.write(s)
    else:
        open(out, "w").write(s)
```

```python
import sys, argparse

HEADER = """; Kernarg layout for this problem (48 bytes, ptrs only, base s[0:1]):
"""

NAME = "standalone__channel_attn_se__vision_kernel"
XBYTES = 100663296
MAGIC = 0x5BD1E995
MAGIC2 = 0x2C1B3C6D

L_M = 0
L_HP = 6144
L_P = 6400
L_G = 6656
L_DEC = 7424
L_WU = 8192
LDS = 20480
VOTE = 32768
EPOCH = 65536
DIAG = 1 << 20
WS_BYTES = 2 << 20
SB = 49152
WIN = 128 * SB


def gen(ld="nt", st="sc0 sc1", diag=False, sleep=0, spin=400000, pubf="sc1", pollf="sc1", sbar=2,
        lvm=3, ns=8, pre=9, pairs=2, thr=14, numa=1, dbgout=0, evw=-1, enc=0, encpar=-1, tlbx=0, tlbo=0, tstep=8, encv=0, ndf=0, dff="", dfpos=0, inv="", seq=0, m1=-1, m2=-1, twice=0):
    o = []
    e = o.append
    ldf = (" " + ld) if ld else ""
    stf = (" " + st) if st else ""
    D0 = 40
    SO = 44
    ST = 90
    na = 16 - ns
    adaptive = []
    for i in range(na):
        adaptive.append((15 - i // 2) if i % 2 == 0 else (9 - i // 2))
    adaptive = adaptive[::-1]
    static = [pp for pp in range(16) if pp not in adaptive]
    lorder = static + adaptive
    sorder = []
    si, ai = 0, 0
    for k in range(16):
        if ai < na and (ai + 1) * 16 <= (k + 1) * na + (16 - na) // 2 * 0 + 0 or si >= len(static):
            sorder.append(adaptive[ai]); ai += 1
        else:
            sorder.append(static[si]); si += 1
    if seq == 1:
        sorder = list(range(16))
    if seq == 2:
        sorder = list(range(15, -1, -1))
    assert sorted(sorder) == list(range(16))
    region = lambda pp: 0 if pp < 10 else 1
    A0 = 2 * ns
    G = A0 - lvm - 1
    e(HEADER.rstrip())
    e(f"; @launch grid=(256,1,1) block=(768,1,1) lds={LDS}")
    e('.amdgcn_target "amdgcn-amd-amdhsa--gfx950"')
    e(".text")
    e(f".globl {NAME}")
    e(".p2align 8")
    e(f".type {NAME},@function")
    e(f"{NAME}:")
    smap = {0: 0, 1: 1, 3: 2, 5: 3, 6: 4, 7: 5}

    def stamp(i):
        if (diag or enc) and i in smap:
            k = smap[i]
            if enc >= 6 and i in (0, 3, 5):
                e(f"    s_memtime s[{ST+2*k}:{ST+1+2*k}]")
            elif enc >= 6 and i in (1, 7):
                pass
            else:
                e(f"    s_memrealtime s[{ST+2*k}:{ST+1+2*k}]")
                if enc >= 6 and i == 6:
                    e(f"    s_memtime s[{ST+2*smap[7]}:{ST+1+2*smap[7]}]")

    def dreg(slot):
        return D0 + 4 * slot

    def load(slot):
        d = dreg(slot)
        fl = ldf
        if dfpos <= slot < dfpos + ndf:
            fl = (" " + dff) if dff else ""
        e(f"    buffer_load_dwordx4 v[{d}:{d+3}], v5, s[16:19], s{SO+slot} offen{fl}")

    def acc(slot):
        for i in range(4):
            d = dreg(slot) + i
            if slot == 0:
                e(f"    v_lshlrev_b32 v{8+2*i}, 16, v{d}")
                e(f"    v_and_b32 v{9+2*i}, s30, v{d}")
            else:
                e(f"    v_lshlrev_b32 v{16+2*i}, 16, v{d}")
                e(f"    v_and_b32 v{17+2*i}, s30, v{d}")
        if slot:
            for i in range(4):
                e(f"    v_pk_add_f32 v[{8+2*i}:{9+2*i}], v[{8+2*i}:{9+2*i}], v[{16+2*i}:{17+2*i}]")

    e("    s_cmp_ge_u32 s2, 256")
    e("    s_cbranch_scc1 L_exit")
    e("    s_load_dwordx4 s[4:7], s[0:1], 0")
    e("    s_load_dwordx4 s[8:11], s[0:1], 16")
    e("    s_load_dwordx4 s[12:15], s[0:1], 32")
    if diag or enc:
        for i in range(6):
            e(f"    s_mov_b64 s[{ST+2*i}:{ST+1+2*i}], 0")
    stamp(0)
    e("    v_lshrrev_b32 v1, 6, v0")
    e("    v_and_b32 v2, 63, v0                 ; lane")
    e("    v_readfirstlane_b32 s3, v1")
    e("    v_lshrrev_b32 v3, 4, v2              ; q (row)")
    e("    v_and_b32 v4, 15, v2                 ; n")
    e("    s_mul_i32 s40, s3, 11")
    e("    s_lshr_b32 s40, s40, 5")
    e("    s_mul_i32 s41, s40, 3")
    e("    s_sub_u32 s41, s3, s41               ; seg = wave%3")
    e("    s_lshl_b32 s43, s41, 8")
    e("    v_mul_u32_u24 v5, 768, v3")
    e("    v_lshl_add_u32 v5, v4, 4, v5")
    e("    v_add_u32 v5, s43, v5                ; v5 = q*768 + seg*256 + n*16")
    e("    s_mov_b32 s18, %d" % XBYTES)
    e("    s_mov_b32 s19, 0x00020000")
    e("    s_mov_b32 s30, 0xffff0000")
    e("    s_lshr_b32 s42, s2, 3")
    e("    s_lshl_b32 s42, s42, 2")
    e("    s_and_b32 s43, s2, 3")
    e("    s_add_u32 s42, s42, s43")
    e(f"    s_mul_i32 s76, s42, {SB}")
    e("    s_lshl_b32 s43, s40, 2")
    e("    s_lshr_b32 s78, 0x5210, s43")
    e("    s_and_b32 s78, s78, 15")
    e("    s_lshr_b32 s79, 0xcb76, s43")
    e("    s_and_b32 s79, s79, 15")
    e("    s_mul_i32 s78, s78, 3072")
    e("    s_mul_i32 s79, s79, 3072")
    e("    s_sub_u32 s80, 46080, s78")
    e("    s_sub_u32 s81, 46080, s79")
    for r in (78, 79, 80, 81):
        e(f"    s_add_u32 s{r}, s{r}, s76")
    e("    s_add_u32 s77, s76, 24576")
    e("    s_lshr_b32 s77, s77, 19")
    e("    s_xor_b32 s77, s77, s2")
    e("    s_lshr_b32 s42, s2, 1")
    e("    s_xor_b32 s42, s42, s77")
    e("    s_bitcmp1_b32 s42, 2")
    e("    s_cselect_b32 s82, s80, s78          ; E0")
    e("    s_cselect_b32 s83, s81, s79          ; E1")
    e("    s_cselect_b32 s84, s78, s80          ; O0")
    e("    s_cselect_b32 s85, s79, s81          ; O1")
    seen = [0, 0]
    for k, pp in enumerate(lorder):
        u = seen[region(pp)] & 1
        seen[region(pp)] += 1
        b = 84 if ((pp ^ u) & 1) else 82
        e(f"    s_add_u32 s{SO+2*k}, s{b}, {pp*WIN}")
        e(f"    s_add_u32 s{SO+2*k+1}, s{b+1}, {pp*WIN}")
    e("    s_getreg_b32 s89, hwreg(HW_REG_XCC_ID)")
    e("    s_and_b32 s89, s89, 7")
    e("    s_and_b32 s86, s89, 1")
    e("    s_add_u32 s86, s86, 1")
    e("    s_cmp_eq_u32 s3, 0")
    e("    s_cselect_b32 s86, s86, 0")
    if inv:
        e("    s_cmp_lg_u32 s3, 11")
        e("    s_cbranch_scc1 L_noinv")
        e(f"    buffer_inv {inv}")
        e("L_noinv:")
    e("    s_waitcnt lgkmcnt(0)")
    e("    s_mov_b32 s16, s4")
    e("    s_mov_b32 s17, s5")
    for s in range(lvm):
        load(s)
    if tlbx or tlbo:
        e("    s_lshl_b32 s42, s3, 23")
        e("    v_lshlrev_b32 v29, %d, v2" % (21 if max(tlbx, tlbo) == 1 else 20))
        e("    v_add_u32 v29, s42, v29")
    if tlbx:
        e("    s_mov_b64 exec, %d" % (15 if tlbx == 1 else 255))
        e("    buffer_load_dword v28, v29, s[16:19], 0 offen")
        e("    s_mov_b64 exec, -1")
    e(f"    s_load_dword s28, s[14:15], {EPOCH}")
    e("    s_mov_b32 s24, s14")
    e("    s_mov_b32 s25, s15")
    e("    s_mov_b32 s26, %d" % WS_BYTES)
    e("    s_mov_b32 s27, 0x00020000")
    if numa:
        e("    s_cmp_eq_u32 s86, 0")
        e("    s_cbranch_scc1 L_noprobe")
        e("    s_mov_b32 s38, 0")
        e("    s_cmp_eq_u32 s86, 2")
        e("    s_cbranch_scc1 L_pubvote")
        e("    s_bfe_u32 s42, s2, 0x10006           ; r = bit6")
        e("    s_add_u32 s42, s42, 1")
        e(f"    s_mul_i32 s42, s42, {40<<20}")
        e("    s_bfe_u32 s43, s2, 0x30003")
        e("    s_lshl_b32 s43, s43, 21")
        e("    s_add_u32 s42, s42, s43")
        e("    s_lshr_b32 s43, s2, 7")
        e("    s_lshl_b32 s43, s43, 19")
        e("    s_add_u32 s42, s42, s43")
        e("    s_and_b32 s43, s2, 7")
        e("    s_lshl_b32 s43, s43, 16")
        e("    s_add_u32 s42, s42, s43")
        e("    s_add_u32 s20, s10, s42")
        e("    s_addc_u32 s21, s11, 0")
        e("    s_load_dword s22, s[20:21], 4096")
        for sl in range(lvm, pre):
            load(sl)
        e("    s_waitcnt lgkmcnt(0)")
        offs = [0, 8192, 24576 + 256, 16384 + 256, 32768 + 512, 40960 + 512][:2 * pairs]
        e("    s_memtime s[32:33]")
        e("    s_waitcnt lgkmcnt(0)")
        for i, of in enumerate(offs):
            a_, b_ = (32, 34) if i % 2 == 0 else (34, 32)
            e(f"    s_load_dword s22, s[20:21], {of}")
            e("    s_waitcnt lgkmcnt(0)")
            e(f"    s_memtime s[{b_}:{b_+1}]")
            e("    s_waitcnt lgkmcnt(0)")
            e(f"    s_sub_u32 s{36+(i&1)}, s{b_}, s{a_}")
            if i % 2 == 1:
                if (i // 2) % 2 == 0:
                    e("    s_cmp_gt_u32 s37, s36")
                else:
                    e("    s_cmp_gt_u32 s36, s37")
                e("    s_cselect_b32 s39, 16, -16")
                e("    s_add_i32 s38, s38, s39")
        e("    s_lshr_b32 s42, s2, 1")
        e("    s_xor_b32 s42, s42, s89")
        e("    s_sub_i32 s39, 0, s38")
        e("    s_bitcmp1_b32 s42, 2")
        e("    s_cselect_b32 s38, s39, s38")
        e("L_pubvote:")
        e("    s_waitcnt lgkmcnt(0)")
        e("    s_or_b32 s38, s38, s89")
        e("    s_add_u32 s39, s28, 1")
        e("    s_xor_b32 s39, s39, 0x%08x" % MAGIC2)
        e("    s_xor_b32 s39, s39, s38")
        e("    s_lshl_b32 s42, s2, 3")
        e(f"    s_add_u32 s42, s42, {VOTE}")
        e("    v_mov_b32 v32, s38")
        e("    v_mov_b32 v33, s39")
        e("    v_mov_b32 v34, s42")
        e("    s_mov_b64 exec, 1")
        e("    buffer_store_dwordx2 v[32:33], v34, s[24:27], 0 offen sc1")
        e("    s_mov_b64 exec, -1")
        e("L_noprobe:")
    e("    s_mov_b32 s20, s10")
    e("    s_mov_b32 s21, s11")
    e("    s_mov_b32 s22, %d" % XBYTES)
    e("    s_mov_b32 s23, 0x00020000")
    e("    s_mov_b32 s32, s6")
    e("    s_mov_b32 s33, s7")
    e("    s_mov_b32 s34, 4608")
    e("    s_mov_b32 s35, 0x00020000")
    e("    s_mov_b32 s36, s8")
    e("    s_mov_b32 s37, s9")
    e("    s_mov_b32 s38, 4608")
    e("    s_mov_b32 s39, 0x00020000")
    e("    s_mov_b32 s31, %d" % spin)
    e("    s_mul_i32 s42, s41, 1536")
    e("    s_mul_i32 s43, s40, 6")
    e("    s_add_u32 s42, s42, s43")
    e("    v_mul_u32_u24 v1, 24, v2")
    e("    v_add_u32 v1, s42, v1")
    e("    s_lshl_b32 s42, s3, 10")
    e(f"    s_add_u32 s42, s42, {L_WU}")
    e("    s_mov_b32 m0, s42")
    e("    v_lshlrev_b32 v27, 4, v0")
    e("    buffer_load_ushort v24, v1, s[32:35], 0 offen")
    e("    buffer_load_ushort v25, v1, s[32:35], 0 offen offset:2")
    e("    buffer_load_ushort v26, v1, s[32:35], 0 offen offset:4")
    e("    buffer_load_dwordx4 v27, s[36:39], 0 offen lds")
    NW = 4
    e("    s_mul_i32 s42, s40, 1536")
    e("    s_lshl_b32 s43, s41, 9")
    e("    s_add_u32 s42, s42, s43")
    e("    v_lshlrev_b32 v6, 5, v4")
    e("    v_lshl_add_u32 v6, v3, 3, v6")
    e("    v_add_u32 v6, s42, v6")
    e("    s_lshl_b32 s43, s41, 7")
    e("    v_lshlrev_b32 v7, 3, v4")
    e("    v_add_u32 v7, s43, v7")
    e("    v_subrev_u32 v1, 192, v7")
    e("    v_min_u32 v7, v7, v1")
    e("    v_lshlrev_b32 v7, 2, v7")
    e("    v_and_b32 v1, 1, v3")
    e("    v_lshrrev_b32 v31, 1, v3")
    e("    v_lshl_add_u32 v31, v1, 1, v31")
    e("    v_lshlrev_b32 v31, 2, v31            ; i(row)*4")
    e("    s_lshl_b32 s42, s41, 6")
    e("    s_lshl_b32 s43, s40, 4")
    e("    s_add_u32 s42, s42, s43")
    e("    v_add_u32 v4, s42, v31")
    e("    s_lshl_b32 s42, s41, 8")
    e("    v_lshlrev_b32 v3, 2, v2")
    e("    v_add_u32 v3, s42, v3")
    e("    v_lshlrev_b32 v1, 4, v2              ; lane*16")
    e(f"    s_mov_b32 s87, {VOTE}")
    for j in range(32):
        last = min(j + lvm - 1, 31)
        younger = (last - j) + (NW if j < lvm else 0)
        e(f"    s_waitcnt vmcnt({younger})")
        if j == lvm:
            e("    s_waitcnt lgkmcnt(0)")
            e("    s_add_u32 s28, s28, 1                ; epoch + 1")
            e("    s_xor_b32 s29, s28, 0x%08x           ; tag key" % MAGIC)
            e("    s_xor_b32 s88, s28, 0x%08x           ; vote key" % MAGIC2)
        if numa and j == A0 - lvm:
            e("    s_cmp_eq_u32 s86, 0")
            e("    s_cbranch_scc1 L_decbar")
            e("L_vchk:")
            e("    v_bitop3_b32 v28, v32, v33, s88 bitop3:0x96")
            e("    v_bitop3_b32 v29, v34, v35, s88 bitop3:0x96")
            e("    v_bitop3_b32 v30, v36, v37, s88 bitop3:0x96")
            e("    v_bitop3_b32 v27, v38, v39, s88 bitop3:0x96")
            e("    v_or3_b32 v28, v28, v29, v30")
            e("    v_or_b32 v28, v28, v27")
            e("    v_cmp_ne_u32 vcc, 0, v28")
            e("    s_cbranch_vccz L_vok")
            e("    s_sub_u32 s31, s31, 1")
            e("    s_cbranch_scc1 L_vok")
            e("    buffer_load_dwordx4 v[32:35], v1, s[24:27], s87 offen sc1")
            e("    buffer_load_dwordx4 v[36:39], v1, s[24:27], s87 offen offset:1024 sc1")
            e("    s_waitcnt vmcnt(0)")
            e("    s_branch L_vchk")
            e("L_vok:")
            e("    s_and_b32 s42, s2, 0x7b")
            e("    s_lshr_b32 s42, s42, 1")
            e("    v_readlane_b32 s4, v32, s42")
            e("    v_readlane_b32 s5, v34, s42")
            e("    v_readlane_b32 s6, v36, s42")
            e("    v_readlane_b32 s7, v38, s42")
            e("    v_ashrrev_i32 v28, 4, v32")
            e("    v_ashrrev_i32 v29, 4, v34")
            e("    v_ashrrev_i32 v30, 4, v36")
            e("    v_ashrrev_i32 v27, 4, v38")
            e("    v_add3_u32 v28, v28, v29, v30")
            e("    v_add_u32 v28, v28, v27")
            e("    s_bitcmp1_b32 s2, 0")
            e("    s_cselect_b32 s4, s5, s4")
            e("    s_cselect_b32 s6, s7, s6")
            e("    s_bitcmp1_b32 s2, 7")
            e("    s_cselect_b32 s4, s6, s4")
            for sh in (1, 2, 4, 8):
                e("    s_nop 1")
                e(f"    v_add_u32_dpp v28, v28, v28 row_shr:{sh} row_mask:0xf bank_mask:0xf bound_ctrl:0")
            e("    s_nop 1")
            e("    v_add_u32_dpp v28, v28, v28 row_bcast:15 row_mask:0xa bank_mask:0xf")
            e("    v_lshrrev_b32 v30, 3, v2")
            e("    v_and_b32 v30, 4, v30                ; (lane>=32)*4")
            e("    v_mov_b32 v29, s4")
            e("    s_mov_b32 exec_lo, 0x80000000")
            e("    s_mov_b32 exec_hi, 0x80000000")
            e(f"    ds_write2_b32 v30, v28, v29 offset0:{L_DEC//4 if L_DEC//4 < 250 else 0} offset1:2" if False else f"    ds_write_b32 v30, v28 offset:{L_DEC}")
            e(f"    ds_write_b32 v30, v29 offset:{L_DEC+8}")
            e("    s_mov_b64 exec, -1")
            e("    s_waitcnt lgkmcnt(0)")
            stamp(1)
            e("L_decbar:")
            e("    s_barrier")
            e("    v_mov_b32 v28, 0")
            e(f"    ds_read_b96 v[28:30], v28 offset:{L_DEC}")
            e("    s_waitcnt lgkmcnt(0)")
            e("    v_readfirstlane_b32 s4, v28")
            e("    v_readfirstlane_b32 s5, v29")
            e("    v_readfirstlane_b32 s6, v30")
            if dbgout:
                e("    s_mov_b32 s76, s4")
                e("    s_mov_b32 s89, s5")
            e("    s_bitcmp1_b32 s6, 0")
            e("    s_cbranch_scc0 L_nodec")
            e("    s_xor_b32 s77, s77, s6")
            for r in range(2):
                wins = [(k, pp) for k, pp in enumerate(lorder) if pp in adaptive and region(pp) == r]
                if not wins:
                    continue
                e(f"    s_abs_i32 s42, s{4+r}")
                e(f"    s_cmp_lt_u32 s42, {thr}")
                e(f"    s_cbranch_scc1 L_keep{r}")
                e(f"    s_lshr_b32 s42, s{4+r}, 29")
                e("    s_xor_b32 s42, s42, s77")
                e("    s_bitcmp1_b32 s42, 2")
                e("    s_cselect_b32 s82, s80, s78")
                e("    s_cselect_b32 s83, s81, s79")
                e("    s_cselect_b32 s84, s78, s80")
                e("    s_cselect_b32 s85, s79, s81")
                for k, pp in wins:
                    b = 84 if (pp & 1) else 82
                    e(f"    s_add_u32 s{SO+2*k}, s{b}, {pp*WIN}")
                    e(f"    s_add_u32 s{SO+2*k+1}, s{b+1}, {pp*WIN}")
                e(f"L_keep{r}:")
            e("L_nodec:")
        if j + lvm < 32:
            k = j + lvm
            if evw >= 0 and j >= lvm and k >= pre:
                e("    s_bitcmp1_b32 s2, 0")
                e(f"    s_cbranch_scc1 L_ev{k}")
                e(f"    s_waitcnt vmcnt({evw})")
                e(f"L_ev{k}:")
            if numa and k < pre:
                e("    s_cmp_eq_u32 s86, 1")
                e(f"    s_cbranch_scc1 L_sk{k}")
                load(k)
                e(f"L_sk{k}:")
            else:
                load(k)
            if numa and k == G:
                e("    s_cmp_eq_u32 s86, 0")
                e("    s_cbranch_scc1 L_nog")
                e("    buffer_load_dwordx4 v[32:35], v1, s[24:27], s87 offen sc1")
                e("    buffer_load_dwordx4 v[36:39], v1, s[24:27], s87 offen offset:1024 sc1")
                e("L_nog:")
        if tlbo and j == tstep:
            e("    s_mov_b64 exec, %d" % (15 if tlbo == 1 else 255))
            e("    buffer_load_dword v28, v29, s[20:23], 0 offen")
            e("    s_mov_b64 exec, -1")
        acc(j)
        if j == 20:
            for r in (24, 25, 26):
                e(f"    v_lshlrev_b32 v{r}, 16, v{r}")
    e("    s_nop 1")
    for i in range(4):
        e(f"    v_permlane32_swap_b32 v{8+i}, v{12+i}")
    for i in range(4):
        e(f"    v_add_f32 v{8+i}, v{8+i}, v{12+i}")
    e("    s_nop 0")
    e("    v_permlane16_swap_b32 v8, v10")
    e("    v_permlane16_swap_b32 v9, v11")
    e("    v_add_f32 v8, v8, v10")
    e("    v_add_f32 v9, v9, v11")
    e(f"    ds_write_b64 v6, v[8:9] offset:{L_M}")
    e("    s_waitcnt lgkmcnt(0)")
    e("    s_barrier")
    stamp(3)
    for k in range(4):
        e(f"    ds_read2st64_b32 v[{16+2*k}:{17+2*k}], v3 offset0:{6*k} offset1:{6*k+3}")
    e("    s_waitcnt lgkmcnt(2)" if not (diag or enc) else "    s_waitcnt lgkmcnt(0)")
    e("    v_pk_add_f32 v[16:17], v[16:17], v[18:19]")
    e("    s_waitcnt lgkmcnt(0)")
    e("    v_pk_add_f32 v[20:21], v[20:21], v[22:23]")
    e("    v_pk_add_f32 v[16:17], v[16:17], v[20:21]")
    e("    v_add_f32 v16, v16, v17")
    e("    v_mul_f32 v10, v16, v26")
    e("    v_mul_f32 v11, v16, v26")
    e("    v_mul_f32 v8, v16, v24")
    e("    v_mul_f32 v9, v16, v25")
    e("    v_permlane32_swap_b32 v10, v11")
    e("    s_nop 0")
    e("    v_permlane32_swap_b32 v8, v9")
    e("    v_add_f32 v10, v10, v11              ; [c | c]")
    e("    v_add_f32 v8, v8, v9                 ; [a | b]")
    e("    s_nop 1")
    e("    v_permlane16_swap_b32 v8, v10")
    e("    v_add_f32 v8, v8, v10                ; rows: a, c, b, c")
    e("    s_nop 1")
    e("    v_add_f32_dpp v9, v8, v8 row_shr:1 row_mask:0xf bank_mask:0xf bound_ctrl:0")
    e("    v_add_f32_dpp v9, v8, v9 row_shr:2 row_mask:0xf bank_mask:0xf bound_ctrl:0")
    e("    v_add_f32_dpp v9, v8, v9 row_shr:3 row_mask:0xf bank_mask:0xf bound_ctrl:0")
    e("    s_nop 1")
    e("    v_add_f32_dpp v9, v9, v9 row_shr:4 row_mask:0xf bank_mask:0xf bound_ctrl:0")
    e("    s_nop 1")
    e("    v_add_f32_dpp v9, v9, v9 row_shr:8 row_mask:0xf bank_mask:0xf bound_ctrl:0")
    e("    s_mov_b32 exec_lo, 0x80008000")
    e("    s_mov_b32 exec_hi, 0x00008000")
    e(f"    ds_write_b32 v4, v9 offset:{L_HP}")
    e("    s_mov_b64 exec, -1")
    e("    s_lshl_b32 s42, s2, 6")
    e("    s_cmp_lg_u32 s3, 4")
    e("    s_waitcnt lgkmcnt(0)")
    e("    s_barrier")
    e("    s_cbranch_scc1 L_notpub")
    e("    s_mov_b64 exec, 15")
    e(f"    ds_read_b128 v[8:11], v1 offset:{L_HP}")
    e(f"    ds_read_b128 v[12:15], v1 offset:{L_HP+64}")
    e(f"    ds_read_b128 v[16:19], v1 offset:{L_HP+128}")
    e("    s_waitcnt lgkmcnt(1)")
    e("    v_pk_add_f32 v[8:9], v[8:9], v[12:13]")
    e("    v_add_f32 v10, v10, v14")
    e("    s_waitcnt lgkmcnt(0)")
    e("    v_pk_add_f32 v[8:9], v[8:9], v[16:17]")
    e("    v_add_f32 v10, v10, v18")
    e("    v_bitop3_b32 v11, v8, v9, s29 bitop3:0x96")
    e("    v_xor_b32 v11, v11, v10")
    e(f"    buffer_store_dwordx4 v[8:11], v1, s[24:27], s42 offen {pubf}")
    e("    s_mov_b64 exec, -1")
    stamp(7)
    e("    s_branch L_b3")
    e("L_notpub:")
    e("    s_cmp_lt_u32 s3, 4")
    e("    s_cbranch_scc1 L_poll_start")
    e("    s_cmp_gt_u32 s3, 7")
    e("    s_cbranch_scc1 L_b3")
    e("    v_subrev_u32 v1, 320, v0")
    e("    v_lshlrev_b32 v21, 2, v1")
    e("    v_lshlrev_b32 v1, 1, v1")
    for r in range(12):
        e(f"    ds_read_u16 v{8+r}, v1 offset:{L_WU+384*r}")
    e("    v_and_b32 v20, 15, v2")
    e("    v_lshlrev_b32 v20, 2, v20")
    e(f"    v_add_u32 v20, {L_P}, v20")
    e("    s_waitcnt lgkmcnt(0)")
    for r in range(12):
        e(f"    v_lshlrev_b32 v{8+r}, 16, v{8+r}")
    e("    s_barrier")
    e("    ds_read2_b32 v[22:23], v20 offset0:0 offset1:16")
    e("    ds_read2_b32 v[24:25], v20 offset0:32 offset1:48")
    e("    s_waitcnt lgkmcnt(0)")
    e("    v_pk_add_f32 v[22:23], v[22:23], v[24:25]")
    e("    v_add_f32 v22, v22, v23")
    e("    v_mul_f32 v22, 0x36800000, v22       ; * 2^-18")
    e("    v_cvt_pk_bf16_f32 v22, v22, v22")
    e("    v_lshlrev_b32 v22, 16, v22")
    e("    v_mul_f32 v23, 0xbfb8aa3b, v22       ; -log2e * x")
    e("    v_exp_f32 v23, v23")
    e("    s_nop 0")
    e("    v_add_f32 v23, 1.0, v23")
    e("    v_rcp_f32 v23, v23")
    e("    s_nop 0")
    e("    v_mul_f32 v22, v22, v23")
    e("    v_cvt_pk_bf16_f32 v22, v22, v22")
    e("    v_lshlrev_b32 v22, 16, v22")
    e("    s_nop 1")
    for r in range(12):
        a = 23 + (r % 3)
        op = "v_mul_f32_dpp" if r < 3 else "v_fmac_f32_dpp"
        e(f"    {op} v{a}, v22, v{8+r} row_newbcast:{r} row_mask:0xf bank_mask:0xf")
    e("    v_add_f32 v23, v23, v24")
    e("    v_add_f32 v23, v23, v25")
    e("    v_cvt_pk_bf16_f32 v23, v23, v23")
    e("    v_lshlrev_b32 v23, 16, v23")
    e("    v_mul_f32 v23, 0xbfb8aa3b, v23")
    e("    v_exp_f32 v23, v23")
    e("    s_nop 0")
    e("    v_add_f32 v23, 1.0, v23")
    e("    v_rcp_f32 v23, v23")
    e("    s_nop 0")
    e("    v_cvt_pk_bf16_f32 v23, v23, v23")
    e("    v_lshlrev_b32 v23, 16, v23")
    e(f"    ds_write_b32 v21, v23 offset:{L_G}")
    e("    s_waitcnt lgkmcnt(0)")
    e("    s_branch L_b4")

    e("L_poll_start:")
    e("    s_lshl_b32 s42, s3, 12")
    e("    v_and_b32 v27, 3, v2")
    e("    v_mul_u32_u24 v27, 12, v27")
    e("    s_lshl_b32 s43, s3, 6")
    e("    v_add3_u32 v31, v31, v27, s43")
    regs = (8, 12, 16, 20)
    for k in range(4):
        e(f"    s_mov_b64 s[{4+2*k}:{5+2*k}], -1")
    e("L_poll:")
    for k in range(4):
        e(f"    s_mov_b64 exec, s[{4+2*k}:{5+2*k}]")
        e(f"    s_cbranch_execz L_skip{k}")
        e(f"    buffer_load_dwordx4 v[{regs[k]}:{regs[k]+3}], v1, s[24:27], s42 offen offset:{1024*k} {pollf}")
        e(f"L_skip{k}:")
    e("    s_mov_b64 exec, -1")
    e("    s_waitcnt vmcnt(0)")
    for k in range(4):
        r = regs[k]
        e(f"    v_bitop3_b32 v{27+k}, v{r}, v{r+1}, s29 bitop3:0x96")
    for k in range(4):
        r = regs[k]
        e(f"    v_bitop3_b32 v{27+k}, v{27+k}, v{r+2}, v{r+3} bitop3:0x96")
    for k in range(4):
        e(f"    v_cmp_ne_u32 s[{4+2*k}:{5+2*k}], 0, v{27+k}")
    e("    s_or_b64 s[82:83], s[4:5], s[6:7]")
    e("    s_or_b64 vcc, s[8:9], s[10:11]")
    e("    s_or_b64 s[82:83], s[82:83], vcc")
    e("    s_cbranch_scc0 L_poll_ok")
    e("    s_sub_u32 s31, s31, 1")
    e("    s_cbranch_scc1 L_poll_ok")
    if sleep:
        e(f"    s_sleep {sleep}")
    e("    s_branch L_poll")
    e("L_poll_ok:")
    stamp(7)
    e("    v_add_f32 v10, v10, v14")
    e("    v_add_f32 v18, v18, v22")
    e("    v_pk_add_f32 v[8:9], v[8:9], v[12:13]")
    e("    v_pk_add_f32 v[16:17], v[16:17], v[20:21]")
    e("    v_add_f32 v11, v10, v18")
    e("    v_add_f32 v10, v10, v18")
    e("    v_pk_add_f32 v[8:9], v[8:9], v[16:17]")
    e("    s_nop 0")
    e("    v_permlane32_swap_b32 v10, v11")
    e("    v_permlane32_swap_b32 v8, v9")
    e("    v_add_f32 v10, v10, v11              ; [c | c]")
    e("    v_add_f32 v8, v8, v9                 ; [a | b]")
    e("    s_nop 1")
    e("    v_permlane16_swap_b32 v8, v10")
    e("    v_add_f32 v8, v8, v10                ; rows: a, c, b, c")
    e("    s_nop 1")
    e("    v_add_f32_dpp v8, v8, v8 row_shr:4 row_mask:0xf bank_mask:0xf bound_ctrl:0")
    e("    s_nop 1")
    e("    v_add_f32_dpp v8, v8, v8 row_shr:8 row_mask:0xf bank_mask:0xf bound_ctrl:0")
    e("    s_mov_b32 exec_lo, 0xf000f000")
    e("    s_mov_b32 exec_hi, 0x0000f000")
    e(f"    ds_write_b32 v31, v8 offset:{L_P}")
    e("    s_mov_b64 exec, -1")
    e("    s_waitcnt lgkmcnt(0)")
    e("L_b3:")
    e("    s_barrier")
    e("L_b4:")
    e("    s_barrier")
    e(f"    ds_read_b128 v[8:11], v7 offset:{L_G}")
    e(f"    ds_read_b128 v[12:15], v7 offset:{L_G+16}")

    cnt = [0]

    def scale_store(slot, first=False):
        t = 16 + 8 * (cnt[0] & 1)
        cnt[0] += 1
        for i in range(4):
            d = dreg(slot) + i
            e(f"    v_lshlrev_b32 v{t+2*i}, 16, v{d}")
            e(f"    v_and_b32 v{t+1+2*i}, s30, v{d}")
        if first:
            e("    s_waitcnt lgkmcnt(0)")
            stamp(5)
        for i in range(4):
            e(f"    v_pk_mul_f32 v[{t+2*i}:{t+1+2*i}], v[{t+2*i}:{t+1+2*i}], v[{8+2*i}:{9+2*i}]")
        for i in range(4):
            d = dreg(slot) + i
            e(f"    v_cvt_pk_bf16_f32 v{d}, v{t+2*i}, v{t+1+2*i}")
        d = dreg(slot)
        e(f"    buffer_store_dwordx4 v[{d}:{d+3}], v5, s[20:23], s{SO+slot} offen{stf}")

    sslots = []
    for pp in sorder:
        k = lorder.index(pp)
        sslots += [2 * k, 2 * k + 1]
    for j in range(32):
        if j == m1:
            e(f"    s_memrealtime s[{ST+2*smap[0]}:{ST+1+2*smap[0]}]")
        if j == m2:
            e(f"    s_memrealtime s[{ST+2*smap[3]}:{ST+1+2*smap[3]}]")
        scale_store(sslots[j], first=(j == 0))
        if sbar and (j + 1) % sbar == 0 and j != 31:
            e("    s_barrier")
    if twice:
        e("    s_waitcnt vmcnt(0)")
        e("    s_barrier")
        for rep in range(twice):
            for j in range(32):
                d = dreg(sslots[j])
                e(f"    buffer_store_dwordx4 v[{d}:{d+3}], v5, s[20:23], s{SO+sslots[j]} offen{stf}")
                if sbar and (j + 1) % sbar == 0:
                    e("    s_barrier")
    e("    s_cmp_lg_u32 s2, 1")
    e("    s_cbranch_scc1 L_noep")
    e("    s_cmp_lg_u32 s3, 11")
    e("    s_cbranch_scc1 L_noep")
    e(f"    v_mov_b32 v1, {EPOCH}")
    e("    v_mov_b32 v3, s28")
    e("    s_mov_b64 exec, 1")
    e("    buffer_store_dword v3, v1, s[24:27], 0 offen sc1")
    if dbgout:
        e("    s_mov_b32 s32, s12")
        e("    s_mov_b32 s33, s13")
        e("    s_mov_b32 s34, 256")
        e("    v_mov_b32 v16, s76")
        e("    v_mov_b32 v17, s89")
        e("    v_mov_b32 v1, 0")
        e("    buffer_store_dwordx2 v[16:17], v1, s[32:35], 0 offen")
    e("    s_mov_b64 exec, -1")
    e("L_noep:")
    if enc:
        e("    s_waitcnt vmcnt(0)")
        stamp(6)
        e("    s_waitcnt lgkmcnt(0)")
        a, b = {1: (0, 0), 2: (0, 3), 3: (0, 5), 4: (5, 6), 5: (0, 6), 6: (5, 7), 7: (0, 5), -1: (0, 1)}[enc]
        e(f"    s_sub_u32 s42, s{ST+2*smap[b]}, s{ST+2*smap[a]}")
        if enc >= 6:
            e("    s_lshr_b32 s42, s42, 4")
        if encv in (1, 2):
            e(f"    s_abs_i32 s42, s{76 if encv == 1 else 89}")
            e("    s_mul_i32 s42, s42, 10")
        if encv == 3:
            e("    s_getreg_b32 s42, hwreg(HW_REG_XCC_ID)")
            e("    s_and_b32 s42, s42, 7")
            e("    s_add_u32 s42, s42, 2")
            e("    s_mul_i32 s42, s42, 200")
            e("    s_cmp_eq_u32 s2, 0")
            e("    s_cselect_b32 s42, s42, 0")
        if enc == -1:
            e("    s_cmp_eq_u32 s3, 0")
            e("    s_cselect_b32 s42, s42, 0")
        if encpar >= 0:
            e("    s_bitcmp1_b32 s2, 0")
            e(f"    s_cselect_b32 s42, s42, 0" if encpar == 1 else "    s_cselect_b32 s42, 0, s42")
        e("L_enc:")
        e("    s_memrealtime s[4:5]")
        e("    s_waitcnt lgkmcnt(0)")
        e(f"    s_sub_u32 s43, s4, s{ST+2*smap[6]}")
        e("    s_cmp_lt_u32 s43, s42")
        e("    s_cbranch_scc1 L_enc")
    if diag:
        e("    s_waitcnt vmcnt(0)")
        stamp(6)
        e("    s_waitcnt lgkmcnt(0)")
        e("    s_mul_i32 s42, s2, 12")
        e("    s_add_u32 s42, s42, s3")
        e("    s_lshl_b32 s42, s42, 7")
        e(f"    s_add_u32 s42, s42, {DIAG}")
        e("    v_mov_b32 v1, s42")
        e("    s_mov_b64 exec, 1")
        inv = {v: k for k, v in smap.items()}
        for k in range(6):
            e(f"    v_mov_b32 v16, s{ST+2*k}")
            e(f"    v_mov_b32 v17, s{ST+2*k+1}")
            e(f"    buffer_store_dwordx2 v[16:17], v1, s[24:27], 0 offen offset:{8*inv[k]}")
            e("    s_nop 2")
        e("    s_getreg_b32 s42, hwreg(HW_REG_XCC_ID)")
        e("    v_mov_b32 v16, s42")
        e("    v_mov_b32 v17, s31")
        e("    buffer_store_dwordx2 v[16:17], v1, s[24:27], 0 offen offset:88")
    e("L_exit:")
    e("    s_endpgm")
    e('.section .rodata,"a"')
    e(".p2align 6")
    e(f".amdhsa_kernel {NAME}")
    e("  .amdhsa_next_free_vgpr 168")
    e("  .amdhsa_next_free_sgpr 102")
    e("  .amdhsa_accum_offset 168")
    e("  .amdhsa_group_segment_fixed_size 0")
    e("  .amdhsa_kernarg_size 48")
    e("  .amdhsa_user_sgpr_count 2")
    e("  .amdhsa_user_sgpr_kernarg_segment_ptr 1")
    e("  .amdhsa_system_sgpr_workgroup_id_x 1")
    e("  .amdhsa_float_denorm_mode_32 3")
    e(".end_amdhsa_kernel")
    sys.stderr.write(f"lorder {lorder} sorder {sorder} A0 {A0} G {G}\n")
    return "\n".join(o) + "\n"


if __name__ == "__main__":
    ap = argparse.ArgumentParser()
    ap.add_argument("-o", default="-")
    ap.add_argument("--ld", default="nt")
    ap.add_argument("--st", default="sc0 sc1")
    ap.add_argument("--diag", action="store_true")
    for name, dv in (("sleep", 0), ("sbar", 2), ("lvm", 3), ("ns", 8), ("pre", 9), ("pairs", 2), ("thr", 14), ("numa", 1), ("dbgout", 0), ("evw", -1), ("enc", 0), ("encpar", -1), ("tlbx", 0), ("tlbo", 0), ("tstep", 8), ("encv", 0), ("ndf", 0), ("dfpos", 0), ("seq", 0), ("m1", -1), ("m2", -1), ("twice", 0)):
        ap.add_argument("--" + name, type=int, default=dv)
    ap.add_argument("--pubf", default="sc1")
    ap.add_argument("--dff", default="")
    ap.add_argument("--inv", default="")
    ap.add_argument("--pollf", default="sc1")
    a = ap.parse_args()
    kw = vars(a).copy()
    out = kw.pop("o")
    s = gen(**kw)
    if out == "-":
        sys.stdout.write(s)
    else:
        open(out, "w").write(s)
```

```python
import sys, argparse

HEADER = """; Kernarg layout for this problem (48 bytes, ptrs only, base s[0:1]):
"""

NAME = "standalone__channel_attn_se__vision_kernel"
XBYTES = 100663296
MAGIC = 0x5BD1E995
MAGIC2 = 0x2C1B3C6D

L_M = 0
L_HP = 6144
L_P = 6400
L_G = 6656
L_DEC = 7424
L_WU = 8192
LDS = 20480
VOTE = 32768
EPOCH = 65536
DIAG = 1 << 20
WS_BYTES = 2 << 20
SB = 49152
WIN = 128 * SB


def gen(ld="nt", st="sc0 sc1", diag=False, sleep=0, spin=400000, pubf="sc1", pollf="sc1", sbar=2,
        lvm=3, ns=8, pre=9, pairs=2, thr=14, numa=1, dbgout=0, evw=-1, enc=0, encpar=-1, tlbx=0, tlbo=0, tstep=8, encv=0, ndf=0, dff="", dfpos=0, inv="", seq=0, m1=-1, m2=-1, twice=0):
    o = []
    e = o.append
    ldf = (" " + ld) if ld else ""
    stf = (" " + st) if st else ""
    D0 = 40
    SO = 44
    ST = 90
    na = 16 - ns
    adaptive = []
    for i in range(na):
        adaptive.append((15 - i // 2) if i % 2 == 0 else (9 - i // 2))
    adaptive = adaptive[::-1]
    static = [pp for pp in range(16) if pp not in adaptive]
    lorder = static + adaptive
    sorder = []
    si, ai = 0, 0
    for k in range(16):
        if ai < na and (ai + 1) * 16 <= (k + 1) * na + (16 - na) // 2 * 0 + 0 or si >= len(static):
            sorder.append(adaptive[ai]); ai += 1
        else:
            sorder.append(static[si]); si += 1
    if seq == 1:
        sorder = list(range(16))
    if seq == 2:
        sorder = list(range(15, -1, -1))
    assert sorted(sorder) == list(range(16))
    region = lambda pp: 0 if pp < 10 else 1
    A0 = 2 * ns
    G = A0 - lvm - 1
    e(HEADER.rstrip())
    e(f"; @launch grid=(256,1,1) block=(768,1,1) lds={LDS}")
    e('.amdgcn_target "amdgcn-amd-amdhsa--gfx950"')
    e(".text")
    e(f".globl {NAME}")
    e(".p2align 8")
    e(f".type {NAME},@function")
    e(f"{NAME}:")
    smap = {0: 0, 1: 1, 3: 2, 5: 3, 6: 4, 7: 5}

    def stamp(i):
        if (diag or enc) and i in smap:
            k = smap[i]
            if enc >= 6 and i in (0, 3, 5):
                e(f"    s_memtime s[{ST+2*k}:{ST+1+2*k}]")
            elif enc >= 6 and i in (1, 7):
                pass
            else:
                e(f"    s_memrealtime s[{ST+2*k}:{ST+1+2*k}]")
                if enc >= 6 and i == 6:
                    e(f"    s_memtime s[{ST+2*smap[7]}:{ST+1+2*smap[7]}]")

    def dreg(slot):
        return D0 + 4 * slot

    def load(slot):
        d = dreg(slot)
        fl = ldf
        if dfpos <= slot < dfpos + ndf:
            fl = (" " + dff) if dff else ""
        e(f"    buffer_load_dwordx4 v[{d}:{d+3}], v5, s[16:19], s{SO+slot} offen{fl}")

    def acc(slot):
        for i in range(4):
            d = dreg(slot) + i
            if slot == 0:
                e(f"    v_lshlrev_b32 v{8+2*i}, 16, v{d}")
                e(f"    v_and_b32 v{9+2*i}, s30, v{d}")
            else:
                e(f"    v_lshlrev_b32 v{16+2*i}, 16, v{d}")
                e(f"    v_and_b32 v{17+2*i}, s30, v{d}")
        if slot:
            for i in range(4):
                e(f"    v_pk_add_f32 v[{8+2*i}:{9+2*i}], v[{8+2*i}:{9+2*i}], v[{16+2*i}:{17+2*i}]")

    e("    s_cmp_ge_u32 s2, 256")
    e("    s_cbranch_scc1 L_exit")
    e("    s_load_dwordx4 s[4:7], s[0:1], 0")
    e("    s_load_dwordx4 s[8:11], s[0:1], 16")
    e("    s_load_dwordx4 s[12:15], s[0:1], 32")
    if diag or enc:
        for i in range(6):
            e(f"    s_mov_b64 s[{ST+2*i}:{ST+1+2*i}], 0")
    stamp(0)
    e("    v_lshrrev_b32 v1, 6, v0")
    e("    v_and_b32 v2, 63, v0                 ; lane")
    e("    v_readfirstlane_b32 s3, v1")
    e("    v_lshrrev_b32 v3, 4, v2              ; q (row)")
    e("    v_and_b32 v4, 15, v2                 ; n")
    e("    s_mul_i32 s40, s3, 11")
    e("    s_lshr_b32 s40, s40, 5")
    e("    s_mul_i32 s41, s40, 3")
    e("    s_sub_u32 s41, s3, s41               ; seg = wave%3")
    e("    s_lshl_b32 s43, s41, 8")
    e("    v_mul_u32_u24 v5, 768, v3")
    e("    v_lshl_add_u32 v5, v4, 4, v5")
    e("    v_add_u32 v5, s43, v5                ; v5 = q*768 + seg*256 + n*16")
    e("    s_mov_b32 s18, %d" % XBYTES)
    e("    s_mov_b32 s19, 0x00020000")
    e("    s_mov_b32 s30, 0xffff0000")
    e("    s_lshr_b32 s42, s2, 3")
    e("    s_lshl_b32 s42, s42, 2")
    e("    s_and_b32 s43, s2, 3")
    e("    s_add_u32 s42, s42, s43")
    e(f"    s_mul_i32 s76, s42, {SB}")
    e("    s_lshl_b32 s43, s40, 2")
    e("    s_lshr_b32 s78, 0x5210, s43")
    e("    s_and_b32 s78, s78, 15")
    e("    s_lshr_b32 s79, 0xcb76, s43")
    e("    s_and_b32 s79, s79, 15")
    e("    s_mul_i32 s78, s78, 3072")
    e("    s_mul_i32 s79, s79, 3072")
    e("    s_sub_u32 s80, 46080, s78")
    e("    s_sub_u32 s81, 46080, s79")
    for r in (78, 79, 80, 81):
        e(f"    s_add_u32 s{r}, s{r}, s76")
    e("    s_add_u32 s77, s76, 24576")
    e("    s_lshr_b32 s77, s77, 19")
    e("    s_xor_b32 s77, s77, s2")
    e("    s_lshr_b32 s42, s2, 1")
    e("    s_xor_b32 s42, s42, s77")
    e("    s_bitcmp1_b32 s42, 2")
    e("    s_cselect_b32 s82, s80, s78          ; E0")
    e("    s_cselect_b32 s83, s81, s79          ; E1")
    e("    s_cselect_b32 s84, s78, s80          ; O0")
    e("    s_cselect_b32 s85, s79, s81          ; O1")
    seen = [0, 0]
    for k, pp in enumerate(lorder):
        u = seen[region(pp)] & 1
        seen[region(pp)] += 1
        b = 84 if ((pp ^ u) & 1) else 82
        e(f"    s_add_u32 s{SO+2*k}, s{b}, {pp*WIN}")
        e(f"    s_add_u32 s{SO+2*k+1}, s{b+1}, {pp*WIN}")
    e("    s_getreg_b32 s89, hwreg(HW_REG_XCC_ID)")
    e("    s_and_b32 s89, s89, 7")
    e("    s_and_b32 s86, s89, 1")
    e("    s_add_u32 s86, s86, 1")
    e("    s_cmp_eq_u32 s3, 0")
    e("    s_cselect_b32 s86, s86, 0")
    if inv:
        e("    s_cmp_lg_u32 s3, 11")
        e("    s_cbranch_scc1 L_noinv")
        e(f"    buffer_inv {inv}")
        e("L_noinv:")
    e("    s_waitcnt lgkmcnt(0)")
    e("    s_mov_b32 s16, s4")
    e("    s_mov_b32 s17, s5")
    for s in range(lvm):
        load(s)
    if tlbx or tlbo:
        e("    s_lshl_b32 s42, s3, 23")
        e("    v_lshlrev_b32 v29, %d, v2" % (21 if max(tlbx, tlbo) == 1 else 20))
        e("    v_add_u32 v29, s42, v29")
    if tlbx:
        e("    s_mov_b64 exec, %d" % (15 if tlbx == 1 else 255))
        e("    buffer_load_dword v28, v29, s[16:19], 0 offen")
        e("    s_mov_b64 exec, -1")
    e(f"    s_load_dword s28, s[14:15], {EPOCH}")
    e("    s_mov_b32 s24, s14")
    e("    s_mov_b32 s25, s15")
    e("    s_mov_b32 s26, %d" % WS_BYTES)
    e("    s_mov_b32 s27, 0x00020000")
    if numa:
        e("    s_cmp_eq_u32 s86, 0")
        e("    s_cbranch_scc1 L_noprobe")
        e("    s_mov_b32 s38, 0")
        e("    s_cmp_eq_u32 s86, 2")
        e("    s_cbranch_scc1 L_pubvote")
        e("    s_bfe_u32 s42, s2, 0x10006           ; r = bit6")
        e("    s_add_u32 s42, s42, 1")
        e(f"    s_mul_i32 s42, s42, {40<<20}")
        e("    s_bfe_u32 s43, s2, 0x30003")
        e("    s_lshl_b32 s43, s43, 21")
        e("    s_add_u32 s42, s42, s43")
        e("    s_lshr_b32 s43, s2, 7")
        e("    s_lshl_b32 s43, s43, 19")
        e("    s_add_u32 s42, s42, s43")
        e("    s_and_b32 s43, s2, 7")
        e("    s_lshl_b32 s43, s43, 16")
        e("    s_add_u32 s42, s42, s43")
        e("    s_add_u32 s20, s10, s42")
        e("    s_addc_u32 s21, s11, 0")
        e("    s_load_dword s22, s[20:21], 4096")
        for sl in range(lvm, pre):
            load(sl)
        e("    s_waitcnt lgkmcnt(0)")
        offs = [0, 8192, 24576 + 256, 16384 + 256, 32768 + 512, 40960 + 512][:2 * pairs]
        e("    s_memtime s[32:33]")
        e("    s_waitcnt lgkmcnt(0)")
        for i, of in enumerate(offs):
            a_, b_ = (32, 34) if i % 2 == 0 else (34, 32)
            e(f"    s_load_dword s22, s[20:21], {of}")
            e("    s_waitcnt lgkmcnt(0)")
            e(f"    s_memtime s[{b_}:{b_+1}]")
            e("    s_waitcnt lgkmcnt(0)")
            e(f"    s_sub_u32 s{36+(i&1)}, s{b_}, s{a_}")
            if i % 2 == 1:
                if (i // 2) % 2 == 0:
                    e("    s_cmp_gt_u32 s37, s36")
                else:
                    e("    s_cmp_gt_u32 s36, s37")
                e("    s_cselect_b32 s39, 16, -16")
                e("    s_add_i32 s38, s38, s39")
        e("    s_lshr_b32 s42, s2, 1")
        e("    s_xor_b32 s42, s42, s89")
        e("    s_sub_i32 s39, 0, s38")
        e("    s_bitcmp1_b32 s42, 2")
        e("    s_cselect_b32 s38, s39, s38")
        e("L_pubvote:")
        e("    s_waitcnt lgkmcnt(0)")
        e("    s_or_b32 s38, s38, s89")
        e("    s_add_u32 s39, s28, 1")
        e("    s_xor_b32 s39, s39, 0x%08x" % MAGIC2)
        e("    s_xor_b32 s39, s39, s38")
        e("    s_lshl_b32 s42, s2, 3")
        e(f"    s_add_u32 s42, s42, {VOTE}")
        e("    v_mov_b32 v32, s38")
        e("    v_mov_b32 v33, s39")
        e("    v_mov_b32 v34, s42")
        e("    s_mov_b64 exec, 1")
        e("    buffer_store_dwordx2 v[32:33], v34, s[24:27], 0 offen sc1")
        e("    s_mov_b64 exec, -1")
        e("L_noprobe:")
    e("    s_mov_b32 s20, s10")
    e("    s_mov_b32 s21, s11")
    e("    s_mov_b32 s22, %d" % XBYTES)
    e("    s_mov_b32 s23, 0x00020000")
    e("    s_mov_b32 s32, s6")
    e("    s_mov_b32 s33, s7")
    e("    s_mov_b32 s34, 4608")
    e("    s_mov_b32 s35, 0x00020000")
    e("    s_mov_b32 s36, s8")
    e("    s_mov_b32 s37, s9")
    e("    s_mov_b32 s38, 4608")
    e("    s_mov_b32 s39, 0x00020000")
    e("    s_mov_b32 s31, %d" % spin)
    e("    s_mul_i32 s42, s41, 1536")
    e("    s_mul_i32 s43, s40, 6")
    e("    s_add_u32 s42, s42, s43")
    e("    v_mul_u32_u24 v1, 24, v2")
    e("    v_add_u32 v1, s42, v1")
    e("    s_lshl_b32 s42, s3, 10")
    e(f"    s_add_u32 s42, s42, {L_WU}")
    e("    s_mov_b32 m0, s42")
    e("    v_lshlrev_b32 v27, 4, v0")
    e("    buffer_load_ushort v24, v1, s[32:35], 0 offen")
    e("    buffer_load_ushort v25, v1, s[32:35], 0 offen offset:2")
    e("    buffer_load_ushort v26, v1, s[32:35], 0 offen offset:4")
    e("    buffer_load_dwordx4 v27, s[36:39], 0 offen lds")
    NW = 4
    e("    s_mul_i32 s42, s40, 1536")
    e("    s_lshl_b32 s43, s41, 9")
    e("    s_add_u32 s42, s42, s43")
    e("    v_lshlrev_b32 v6, 5, v4")
    e("    v_lshl_add_u32 v6, v3, 3, v6")
    e("    v_add_u32 v6, s42, v6")
    e("    s_lshl_b32 s43, s41, 7")
    e("    v_lshlrev_b32 v7, 3, v4")
    e("    v_add_u32 v7, s43, v7")
    e("    v_subrev_u32 v1, 192, v7")
    e("    v_min_u32 v7, v7, v1")
    e("    v_lshlrev_b32 v7, 2, v7")
    e("    v_and_b32 v1, 1, v3")
    e("    v_lshrrev_b32 v31, 1, v3")
    e("    v_lshl_add_u32 v31, v1, 1, v31")
    e("    v_lshlrev_b32 v31, 2, v31            ; i(row)*4")
    e("    s_lshl_b32 s42, s41, 6")
    e("    s_lshl_b32 s43, s40, 4")
    e("    s_add_u32 s42, s42, s43")
    e("    v_add_u32 v4, s42, v31")
    e("    s_lshl_b32 s42, s41, 8")
    e("    v_lshlrev_b32 v3, 2, v2")
    e("    v_add_u32 v3, s42, v3")
    e("    v_lshlrev_b32 v1, 4, v2              ; lane*16")
    e(f"    s_mov_b32 s87, {VOTE}")
    for j in range(32):
        last = min(j + lvm - 1, 31)
        younger = (last - j) + (NW if j < lvm else 0)
        e(f"    s_waitcnt vmcnt({younger})")
        if j == lvm:
            e("    s_waitcnt lgkmcnt(0)")
            e("    s_add_u32 s28, s28, 1                ; epoch + 1")
            e("    s_xor_b32 s29, s28, 0x%08x           ; tag key" % MAGIC)
            e("    s_xor_b32 s88, s28, 0x%08x           ; vote key" % MAGIC2)
        if numa and j == A0 - lvm:
            e("    s_cmp_eq_u32 s86, 0")
            e("    s_cbranch_scc1 L_decbar")
            e("L_vchk:")
            e("    v_bitop3_b32 v28, v32, v33, s88 bitop3:0x96")
            e("    v_bitop3_b32 v29, v34, v35, s88 bitop3:0x96")
            e("    v_bitop3_b32 v30, v36, v37, s88 bitop3:0x96")
            e("    v_bitop3_b32 v27, v38, v39, s88 bitop3:0x96")
            e("    v_or3_b32 v28, v28, v29, v30")
            e("    v_or_b32 v28, v28, v27")
            e("    v_cmp_ne_u32 vcc, 0, v28")
            e("    s_cbranch_vccz L_vok")
            e("    s_sub_u32 s31, s31, 1")
            e("    s_cbranch_scc1 L_vok")
            e("    buffer_load_dwordx4 v[32:35], v1, s[24:27], s87 offen sc1")
            e("    buffer_load_dwordx4 v[36:39], v1, s[24:27], s87 offen offset:1024 sc1")
            e("    s_waitcnt vmcnt(0)")
            e("    s_branch L_vchk")
            e("L_vok:")
            e("    s_and_b32 s42, s2, 0x7b")
            e("    s_lshr_b32 s42, s42, 1")
            e("    v_readlane_b32 s4, v32, s42")
            e("    v_readlane_b32 s5, v34, s42")
            e("    v_readlane_b32 s6, v36, s42")
            e("    v_readlane_b32 s7, v38, s42")
            e("    v_ashrrev_i32 v28, 4, v32")
            e("    v_ashrrev_i32 v29, 4, v34")
            e("    v_ashrrev_i32 v30, 4, v36")
            e("    v_ashrrev_i32 v27, 4, v38")
            e("    v_add3_u32 v28, v28, v29, v30")
            e("    v_add_u32 v28, v28, v27")
            e("    s_bitcmp1_b32 s2, 0")
            e("    s_cselect_b32 s4, s5, s4")
            e("    s_cselect_b32 s6, s7, s6")
            e("    s_bitcmp1_b32 s2, 7")
            e("    s_cselect_b32 s4, s6, s4")
            for sh in (1, 2, 4, 8):
                e("    s_nop 1")
                e(f"    v_add_u32_dpp v28, v28, v28 row_shr:{sh} row_mask:0xf bank_mask:0xf bound_ctrl:0")
            e("    s_nop 1")
            e("    v_add_u32_dpp v28, v28, v28 row_bcast:15 row_mask:0xa bank_mask:0xf")
            e("    v_lshrrev_b32 v30, 3, v2")
            e("    v_and_b32 v30, 4, v30                ; (lane>=32)*4")
            e("    v_mov_b32 v29, s4")
            e("    s_mov_b32 exec_lo, 0x80000000")
            e("    s_mov_b32 exec_hi, 0x80000000")
            e(f"    ds_write2_b32 v30, v28, v29 offset0:{L_DEC//4 if L_DEC//4 < 250 else 0} offset1:2" if False else f"    ds_write_b32 v30, v28 offset:{L_DEC}")
            e(f"    ds_write_b32 v30, v29 offset:{L_DEC+8}")
            e("    s_mov_b64 exec, -1")
            e("    s_waitcnt lgkmcnt(0)")
            stamp(1)
            e("L_decbar:")
            e("    s_barrier")
            e("    v_mov_b32 v28, 0")
            e(f"    ds_read_b96 v[28:30], v28 offset:{L_DEC}")
            e("    s_waitcnt lgkmcnt(0)")
            e("    v_readfirstlane_b32 s4, v28")
            e("    v_readfirstlane_b32 s5, v29")
            e("    v_readfirstlane_b32 s6, v30")
            if dbgout:
                e("    s_mov_b32 s76, s4")
                e("    s_mov_b32 s89, s5")
            e("    s_bitcmp1_b32 s6, 0")
            e("    s_cbranch_scc0 L_nodec")
            e("    s_xor_b32 s77, s77, s6")
            for r in range(2):
                wins = [(k, pp) for k, pp in enumerate(lorder) if pp in adaptive and region(pp) == r]
                if not wins:
                    continue
                e(f"    s_abs_i32 s42, s{4+r}")
                e(f"    s_cmp_lt_u32 s42, {thr}")
                e(f"    s_cbranch_scc1 L_keep{r}")
                e(f"    s_lshr_b32 s42, s{4+r}, 29")
                e("    s_xor_b32 s42, s42, s77")
                e("    s_bitcmp1_b32 s42, 2")
                e("    s_cselect_b32 s82, s80, s78")
                e("    s_cselect_b32 s83, s81, s79")
                e("    s_cselect_b32 s84, s78, s80")
                e("    s_cselect_b32 s85, s79, s81")
                for k, pp in wins:
                    b = 84 if (pp & 1) else 82
                    e(f"    s_add_u32 s{SO+2*k}, s{b}, {pp*WIN}")
                    e(f"    s_add_u32 s{SO+2*k+1}, s{b+1}, {pp*WIN}")
                e(f"L_keep{r}:")
            e("L_nodec:")
        if j + lvm < 32:
            k = j + lvm
            if evw >= 0 and j >= lvm and k >= pre:
                e("    s_bitcmp1_b32 s2, 0")
                e(f"    s_cbranch_scc1 L_ev{k}")
                e(f"    s_waitcnt vmcnt({evw})")
                e(f"L_ev{k}:")
            if numa and k < pre:
                e("    s_cmp_eq_u32 s86, 1")
                e(f"    s_cbranch_scc1 L_sk{k}")
                load(k)
                e(f"L_sk{k}:")
            else:
                load(k)
            if numa and k == G:
                e("    s_cmp_eq_u32 s86, 0")
                e("    s_cbranch_scc1 L_nog")
                e("    buffer_load_dwordx4 v[32:35], v1, s[24:27], s87 offen sc1")
                e("    buffer_load_dwordx4 v[36:39], v1, s[24:27], s87 offen offset:1024 sc1")
                e("L_nog:")
        if tlbo and j == tstep:
            e("    s_mov_b64 exec, %d" % (15 if tlbo == 1 else 255))
            e("    buffer_load_dword v28, v29, s[20:23], 0 offen")
            e("    s_mov_b64 exec, -1")
        acc(j)
        if j == 20:
            for r in (24, 25, 26):
                e(f"    v_lshlrev_b32 v{r}, 16, v{r}")
    e("    s_nop 1")
    for i in range(4):
        e(f"    v_permlane32_swap_b32 v{8+i}, v{12+i}")
    for i in range(4):
        e(f"    v_add_f32 v{8+i}, v{8+i}, v{12+i}")
    e("    s_nop 0")
    e("    v_permlane16_swap_b32 v8, v10")
    e("    v_permlane16_swap_b32 v9, v11")
    e("    v_add_f32 v8, v8, v10")
    e("    v_add_f32 v9, v9, v11")
    e(f"    ds_write_b64 v6, v[8:9] offset:{L_M}")
    e("    s_waitcnt lgkmcnt(0)")
    e("    s_barrier")
    stamp(3)
    for k in range(4):
        e(f"    ds_read2st64_b32 v[{16+2*k}:{17+2*k}], v3 offset0:{6*k} offset1:{6*k+3}")
    e("    s_waitcnt lgkmcnt(2)" if not (diag or enc) else "    s_waitcnt lgkmcnt(0)")
    e("    v_pk_add_f32 v[16:17], v[16:17], v[18:19]")
    e("    s_waitcnt lgkmcnt(0)")
    e("    v_pk_add_f32 v[20:21], v[20:21], v[22:23]")
    e("    v_pk_add_f32 v[16:17], v[16:17], v[20:21]")
    e("    v_add_f32 v16, v16, v17")
    e("    v_mul_f32 v10, v16, v26")
    e("    v_mul_f32 v11, v16, v26")
    e("    v_mul_f32 v8, v16, v24")
    e("    v_mul_f32 v9, v16, v25")
    e("    v_permlane32_swap_b32 v10, v11")
    e("    s_nop 0")
    e("    v_permlane32_swap_b32 v8, v9")
    e("    v_add_f32 v10, v10, v11              ; [c | c]")
    e("    v_add_f32 v8, v8, v9                 ; [a | b]")
    e("    s_nop 1")
    e("    v_permlane16_swap_b32 v8, v10")
    e("    v_add_f32 v8, v8, v10                ; rows: a, c, b, c")
    e("    s_nop 1")
    e("    v_add_f32_dpp v9, v8, v8 row_shr:1 row_mask:0xf bank_mask:0xf bound_ctrl:0")
    e("    v_add_f32_dpp v9, v8, v9 row_shr:2 row_mask:0xf bank_mask:0xf bound_ctrl:0")
    e("    v_add_f32_dpp v9, v8, v9 row_shr:3 row_mask:0xf bank_mask:0xf bound_ctrl:0")
    e("    s_nop 1")
    e("    v_add_f32_dpp v9, v9, v9 row_shr:4 row_mask:0xf bank_mask:0xf bound_ctrl:0")
    e("    s_nop 1")
    e("    v_add_f32_dpp v9, v9, v9 row_shr:8 row_mask:0xf bank_mask:0xf bound_ctrl:0")
    e("    s_mov_b32 exec_lo, 0x80008000")
    e("    s_mov_b32 exec_hi, 0x00008000")
    e(f"    ds_write_b32 v4, v9 offset:{L_HP}")
    e("    s_mov_b64 exec, -1")
    e("    s_lshl_b32 s42, s2, 6")
    e("    s_cmp_lg_u32 s3, 4")
    e("    s_waitcnt lgkmcnt(0)")
    e("    s_barrier")
    e("    s_cbranch_scc1 L_notpub")
    e("    s_mov_b64 exec, 15")
    e(f"    ds_read_b128 v[8:11], v1 offset:{L_HP}")
    e(f"    ds_read_b128 v[12:15], v1 offset:{L_HP+64}")
    e(f"    ds_read_b128 v[16:19], v1 offset:{L_HP+128}")
    e("    s_waitcnt lgkmcnt(1)")
    e("    v_pk_add_f32 v[8:9], v[8:9], v[12:13]")
    e("    v_add_f32 v10, v10, v14")
    e("    s_waitcnt lgkmcnt(0)")
    e("    v_pk_add_f32 v[8:9], v[8:9], v[16:17]")
    e("    v_add_f32 v10, v10, v18")
    e("    v_bitop3_b32 v11, v8, v9, s29 bitop3:0x96")
    e("    v_xor_b32 v11, v11, v10")
    e(f"    buffer_store_dwordx4 v[8:11], v1, s[24:27], s42 offen {pubf}")
    e("    s_mov_b64 exec, -1")
    stamp(7)
    e("    s_branch L_b3")
    e("L_notpub:")
    e("    s_cmp_lt_u32 s3, 4")
    e("    s_cbranch_scc1 L_poll_start")
    e("    s_cmp_gt_u32 s3, 7")
    e("    s_cbranch_scc1 L_b3")
    e("    v_subrev_u32 v1, 320, v0")
    e("    v_lshlrev_b32 v21, 2, v1")
    e("    v_lshlrev_b32 v1, 1, v1")
    for r in range(12):
        e(f"    ds_read_u16 v{8+r}, v1 offset:{L_WU+384*r}")
    e("    v_and_b32 v20, 15, v2")
    e("    v_lshlrev_b32 v20, 2, v20")
    e(f"    v_add_u32 v20, {L_P}, v20")
    e("    s_waitcnt lgkmcnt(0)")
    for r in range(12):
        e(f"    v_lshlrev_b32 v{8+r}, 16, v{8+r}")
    e("    s_barrier")
    e("    ds_read2_b32 v[22:23], v20 offset0:0 offset1:16")
    e("    ds_read2_b32 v[24:25], v20 offset0:32 offset1:48")
    e("    s_waitcnt lgkmcnt(0)")
    e("    v_pk_add_f32 v[22:23], v[22:23], v[24:25]")
    e("    v_add_f32 v22, v22, v23")
    e("    v_mul_f32 v22, 0x36800000, v22       ; * 2^-18")
    e("    v_cvt_pk_bf16_f32 v22, v22, v22")
    e("    v_lshlrev_b32 v22, 16, v22")
    e("    v_mul_f32 v23, 0xbfb8aa3b, v22       ; -log2e * x")
    e("    v_exp_f32 v23, v23")
    e("    s_nop 0")
    e("    v_add_f32 v23, 1.0, v23")
    e("    v_rcp_f32 v23, v23")
    e("    s_nop 0")
    e("    v_mul_f32 v22, v22, v23")
    e("    v_cvt_pk_bf16_f32 v22, v22, v22")
    e("    v_lshlrev_b32 v22, 16, v22")
    e("    s_nop 1")
    for r in range(12):
        a = 23 + (r % 3)
        op = "v_mul_f32_dpp" if r < 3 else "v_fmac_f32_dpp"
        e(f"    {op} v{a}, v22, v{8+r} row_newbcast:{r} row_mask:0xf bank_mask:0xf")
    e("    v_add_f32 v23, v23, v24")
    e("    v_add_f32 v23, v23, v25")
    e("    v_cvt_pk_bf16_f32 v23, v23, v23")
    e("    v_lshlrev_b32 v23, 16, v23")
    e("    v_mul_f32 v23, 0xbfb8aa3b, v23")
    e("    v_exp_f32 v23, v23")
    e("    s_nop 0")
    e("    v_add_f32 v23, 1.0, v23")
    e("    v_rcp_f32 v23, v23")
    e("    s_nop 0")
    e("    v_cvt_pk_bf16_f32 v23, v23, v23")
    e("    v_lshlrev_b32 v23, 16, v23")
    e(f"    ds_write_b32 v21, v23 offset:{L_G}")
    e("    s_waitcnt lgkmcnt(0)")
    e("    s_branch L_b4")

    e("L_poll_start:")
    e("    s_lshl_b32 s42, s3, 12")
    e("    v_and_b32 v27, 3, v2")
    e("    v_mul_u32_u24 v27, 12, v27")
    e("    s_lshl_b32 s43, s3, 6")
    e("    v_add3_u32 v31, v31, v27, s43")
    regs = (8, 12, 16, 20)
    for k in range(4):
        e(f"    s_mov_b64 s[{4+2*k}:{5+2*k}], -1")
    e("L_poll:")
    for k in range(4):
        e(f"    s_mov_b64 exec, s[{4+2*k}:{5+2*k}]")
        e(f"    s_cbranch_execz L_skip{k}")
        e(f"    buffer_load_dwordx4 v[{regs[k]}:{regs[k]+3}], v1, s[24:27], s42 offen offset:{1024*k} {pollf}")
        e(f"L_skip{k}:")
    e("    s_mov_b64 exec, -1")
    e("    s_waitcnt vmcnt(0)")
    for k in range(4):
        r = regs[k]
        e(f"    v_bitop3_b32 v{27+k}, v{r}, v{r+1}, s29 bitop3:0x96")
    for k in range(4):
        r = regs[k]
        e(f"    v_bitop3_b32 v{27+k}, v{27+k}, v{r+2}, v{r+3} bitop3:0x96")
    for k in range(4):
        e(f"    v_cmp_ne_u32 s[{4+2*k}:{5+2*k}], 0, v{27+k}")
    e("    s_or_b64 s[82:83], s[4:5], s[6:7]")
    e("    s_or_b64 vcc, s[8:9], s[10:11]")
    e("    s_or_b64 s[82:83], s[82:83], vcc")
    e("    s_cbranch_scc0 L_poll_ok")
    e("    s_sub_u32 s31, s31, 1")
    e("    s_cbranch_scc1 L_poll_ok")
    if sleep:
        e(f"    s_sleep {sleep}")
    e("    s_branch L_poll")
    e("L_poll_ok:")
    stamp(7)
    e("    v_add_f32 v10, v10, v14")
    e("    v_add_f32 v18, v18, v22")
    e("    v_pk_add_f32 v[8:9], v[8:9], v[12:13]")
    e("    v_pk_add_f32 v[16:17], v[16:17], v[20:21]")
    e("    v_add_f32 v11, v10, v18")
    e("    v_add_f32 v10, v10, v18")
    e("    v_pk_add_f32 v[8:9], v[8:9], v[16:17]")
    e("    s_nop 0")
    e("    v_permlane32_swap_b32 v10, v11")
    e("    v_permlane32_swap_b32 v8, v9")
    e("    v_add_f32 v10, v10, v11              ; [c | c]")
    e("    v_add_f32 v8, v8, v9                 ; [a | b]")
    e("    s_nop 1")
    e("    v_permlane16_swap_b32 v8, v10")
    e("    v_add_f32 v8, v8, v10                ; rows: a, c, b, c")
    e("    s_nop 1")
    e("    v_add_f32_dpp v8, v8, v8 row_shr:4 row_mask:0xf bank_mask:0xf bound_ctrl:0")
    e("    s_nop 1")
    e("    v_add_f32_dpp v8, v8, v8 row_shr:8 row_mask:0xf bank_mask:0xf bound_ctrl:0")
    e("    s_mov_b32 exec_lo, 0xf000f000")
    e("    s_mov_b32 exec_hi, 0x0000f000")
    e(f"    ds_write_b32 v31, v8 offset:{L_P}")
    e("    s_mov_b64 exec, -1")
    e("    s_waitcnt lgkmcnt(0)")
    e("L_b3:")
    e("    s_barrier")
    e("L_b4:")
    e("    s_barrier")
    e(f"    ds_read_b128 v[8:11], v7 offset:{L_G}")
    e(f"    ds_read_b128 v[12:15], v7 offset:{L_G+16}")

    cnt = [0]

    def scale_store(slot, first=False):
        t = 16 + 8 * (cnt[0] & 1)
        cnt[0] += 1
        for i in range(4):
            d = dreg(slot) + i
            e(f"    v_lshlrev_b32 v{t+2*i}, 16, v{d}")
            e(f"    v_and_b32 v{t+1+2*i}, s30, v{d}")
        if first:
            e("    s_waitcnt lgkmcnt(0)")
            stamp(5)
        for i in range(4):
            e(f"    v_pk_mul_f32 v[{t+2*i}:{t+1+2*i}], v[{t+2*i}:{t+1+2*i}], v[{8+2*i}:{9+2*i}]")
        for i in range(4):
            d = dreg(slot) + i
            e(f"    v_cvt_pk_bf16_f32 v{d}, v{t+2*i}, v{t+1+2*i}")
        d = dreg(slot)
        e(f"    buffer_store_dwordx4 v[{d}:{d+3}], v5, s[20:23], s{SO+slot} offen{stf}")

    sslots = []
    for pp in sorder:
        k = lorder.index(pp)
        sslots += [2 * k, 2 * k + 1]
    for j in range(32):
        if j == m1:
            e(f"    s_memrealtime s[{ST+2*smap[0]}:{ST+1+2*smap[0]}]")
        if j == m2:
            e(f"    s_memrealtime s[{ST+2*smap[3]}:{ST+1+2*smap[3]}]")
        scale_store(sslots[j], first=(j == 0))
        if sbar and (j + 1) % sbar == 0 and j != 31:
            e("    s_barrier")
    if twice:
        e("    s_waitcnt vmcnt(0)")
        e("    s_barrier")
        for rep in range(twice):
            for j in range(32):
                d = dreg(sslots[j])
                e(f"    buffer_store_dwordx4 v[{d}:{d+3}], v5, s[20:23], s{SO+sslots[j]} offen{stf}")
                if sbar and (j + 1) % sbar == 0:
                    e("    s_barrier")
    e("    s_cmp_lg_u32 s2, 1")
    e("    s_cbranch_scc1 L_noep")
    e("    s_cmp_lg_u32 s3, 11")
    e("    s_cbranch_scc1 L_noep")
    e(f"    v_mov_b32 v1, {EPOCH}")
    e("    v_mov_b32 v3, s28")
    e("    s_mov_b64 exec, 1")
    e("    buffer_store_dword v3, v1, s[24:27], 0 offen sc1")
    if dbgout:
        e("    s_mov_b32 s32, s12")
        e("    s_mov_b32 s33, s13")
        e("    s_mov_b32 s34, 256")
        e("    v_mov_b32 v16, s76")
        e("    v_mov_b32 v17, s89")
        e("    v_mov_b32 v1, 0")
        e("    buffer_store_dwordx2 v[16:17], v1, s[32:35], 0 offen")
        e("    v_mov_b32 v18, s16")
        e("    v_mov_b32 v19, s17")
        e("    v_mov_b32 v20, s20")
        e("    v_mov_b32 v21, s21")
        e("    buffer_store_dwordx4 v[18:21], v1, s[32:35], 0 offen offset:16")
        e("    v_mov_b32 v22, s24")
        e("    v_mov_b32 v23, s25")
        e("    buffer_store_dwordx2 v[22:23], v1, s[32:35], 0 offen offset:32")
    e("    s_mov_b64 exec, -1")
    e("L_noep:")
    if enc:
        e("    s_waitcnt vmcnt(0)")
        stamp(6)
        e("    s_waitcnt lgkmcnt(0)")
        a, b = {1: (0, 0), 2: (0, 3), 3: (0, 5), 4: (5, 6), 5: (0, 6), 6: (5, 7), 7: (0, 5), -1: (0, 1)}[enc]
        e(f"    s_sub_u32 s42, s{ST+2*smap[b]}, s{ST+2*smap[a]}")
        if enc >= 6:
            e("    s_lshr_b32 s42, s42, 4")
        if encv in (1, 2):
            e(f"    s_abs_i32 s42, s{76 if encv == 1 else 89}")
            e("    s_mul_i32 s42, s42, 10")
        if encv == 3:
            e("    s_getreg_b32 s42, hwreg(HW_REG_XCC_ID)")
            e("    s_and_b32 s42, s42, 7")
            e("    s_add_u32 s42, s42, 2")
            e("    s_mul_i32 s42, s42, 200")
            e("    s_cmp_eq_u32 s2, 0")
            e("    s_cselect_b32 s42, s42, 0")
        if encv == 4:
            e("    s_bfe_u32 s42, s20, 0x40008")
            e("    s_mul_i32 s42, s42, 100")
        if encv == 5:
            e("    s_bfe_u32 s42, s20, 0x4000c")
            e("    s_mul_i32 s42, s42, 100")
        if encv == 6:
            e("    s_bfe_u32 s42, s20, 0x50010")
            e("    s_mul_i32 s42, s42, 100")
        if encv == 7:
            e("    s_bfe_u32 s42, s20, 0x40004")
            e("    s_mul_i32 s42, s42, 100")
        if enc == -1:
            e("    s_cmp_eq_u32 s3, 0")
            e("    s_cselect_b32 s42, s42, 0")
        if encpar >= 0:
            e("    s_bitcmp1_b32 s2, 0")
            e(f"    s_cselect_b32 s42, s42, 0" if encpar == 1 else "    s_cselect_b32 s42, 0, s42")
        e("L_enc:")
        e("    s_memrealtime s[4:5]")
        e("    s_waitcnt lgkmcnt(0)")
        e(f"    s_sub_u32 s43, s4, s{ST+2*smap[6]}")
        e("    s_cmp_lt_u32 s43, s42")
        e("    s_cbranch_scc1 L_enc")
    if diag:
        e("    s_waitcnt vmcnt(0)")
        stamp(6)
        e("    s_waitcnt lgkmcnt(0)")
        e("    s_mul_i32 s42, s2, 12")
        e("    s_add_u32 s42, s42, s3")
        e("    s_lshl_b32 s42, s42, 7")
        e(f"    s_add_u32 s42, s42, {DIAG}")
        e("    v_mov_b32 v1, s42")
        e("    s_mov_b64 exec, 1")
        inv = {v: k for k, v in smap.items()}
        for k in range(6):
            e(f"    v_mov_b32 v16, s{ST+2*k}")
            e(f"    v_mov_b32 v17, s{ST+2*k+1}")
            e(f"    buffer_store_dwordx2 v[16:17], v1, s[24:27], 0 offen offset:{8*inv[k]}")
            e("    s_nop 2")
        e("    s_getreg_b32 s42, hwreg(HW_REG_XCC_ID)")
        e("    v_mov_b32 v16, s42")
        e("    v_mov_b32 v17, s31")
        e("    buffer_store_dwordx2 v[16:17], v1, s[24:27], 0 offen offset:88")
    e("L_exit:")
    e("    s_endpgm")
    e('.section .rodata,"a"')
    e(".p2align 6")
    e(f".amdhsa_kernel {NAME}")
    e("  .amdhsa_next_free_vgpr 168")
    e("  .amdhsa_next_free_sgpr 102")
    e("  .amdhsa_accum_offset 168")
    e("  .amdhsa_group_segment_fixed_size 0")
    e("  .amdhsa_kernarg_size 48")
    e("  .amdhsa_user_sgpr_count 2")
    e("  .amdhsa_user_sgpr_kernarg_segment_ptr 1")
    e("  .amdhsa_system_sgpr_workgroup_id_x 1")
    e("  .amdhsa_float_denorm_mode_32 3")
    e(".end_amdhsa_kernel")
    sys.stderr.write(f"lorder {lorder} sorder {sorder} A0 {A0} G {G}\n")
    return "\n".join(o) + "\n"


if __name__ == "__main__":
    ap = argparse.ArgumentParser()
    ap.add_argument("-o", default="-")
    ap.add_argument("--ld", default="nt")
    ap.add_argument("--st", default="sc0 sc1")
    ap.add_argument("--diag", action="store_true")
    for name, dv in (("sleep", 0), ("sbar", 2), ("lvm", 3), ("ns", 8), ("pre", 9), ("pairs", 2), ("thr", 14), ("numa", 1), ("dbgout", 0), ("evw", -1), ("enc", 0), ("encpar", -1), ("tlbx", 0), ("tlbo", 0), ("tstep", 8), ("encv", 0), ("ndf", 0), ("dfpos", 0), ("seq", 0), ("m1", -1), ("m2", -1), ("twice", 0)):
        ap.add_argument("--" + name, type=int, default=dv)
    ap.add_argument("--pubf", default="sc1")
    ap.add_argument("--dff", default="")
    ap.add_argument("--inv", default="")
    ap.add_argument("--pollf", default="sc1")
    a = ap.parse_args()
    kw = vars(a).copy()
    out = kw.pop("o")
    s = gen(**kw)
    if out == "-":
        sys.stdout.write(s)
    else:
        open(out, "w").write(s)
```

```python
import sys, argparse

HEADER = """; Kernarg layout for this problem (48 bytes, ptrs only, base s[0:1]):
"""

NAME = "standalone__channel_attn_se__vision_kernel"
XBYTES = 100663296
MAGIC = 0x5BD1E995
MAGIC2 = 0x2C1B3C6D

L_M = 0
L_HP = 6144
L_P = 6400
L_G = 6656
L_DEC = 7424
L_WU = 8192
LDS = 20480
VOTE = 32768
EPOCH = 65536
DIAG = 1 << 20
WS_BYTES = 2 << 20
SB = 49152
WIN = 128 * SB


def gen(ld="nt", st="sc0 sc1", diag=False, sleep=0, spin=400000, pubf="sc1", pollf="sc1", sbar=2,
        lvm=3, ns=8, pre=9, pairs=2, thr=14, numa=1, dbgout=0, evw=-1, enc=0, encpar=-1, tlbx=0, tlbo=0, tstep=8, encv=0, ndf=0, dff="", dfpos=0, inv="", seq=0, m1=-1, m2=-1, twice=0):
    o = []
    e = o.append
    ldf = (" " + ld) if ld else ""
    stf = (" " + st) if st else ""
    D0 = 40
    SO = 44
    ST = 90
    na = 16 - ns
    adaptive = []
    for i in range(na):
        adaptive.append((15 - i // 2) if i % 2 == 0 else (9 - i // 2))
    adaptive = adaptive[::-1]
    static = [pp for pp in range(16) if pp not in adaptive]
    lorder = static + adaptive
    sorder = []
    si, ai = 0, 0
    for k in range(16):
        if ai < na and (ai + 1) * 16 <= (k + 1) * na + (16 - na) // 2 * 0 + 0 or si >= len(static):
            sorder.append(adaptive[ai]); ai += 1
        else:
            sorder.append(static[si]); si += 1
    if seq == 1:
        sorder = list(range(16))
    if seq == 2:
        sorder = list(range(15, -1, -1))
    assert sorted(sorder) == list(range(16))
    region = lambda pp: 0 if pp < 10 else 1
    A0 = 2 * ns
    G = A0 - lvm - 1
    e(HEADER.rstrip())
    e(f"; @launch grid=(256,1,1) block=(768,1,1) lds={LDS}")
    e('.amdgcn_target "amdgcn-amd-amdhsa--gfx950"')
    e(".text")
    e(f".globl {NAME}")
    e(".p2align 8")
    e(f".type {NAME},@function")
    e(f"{NAME}:")
    smap = {0: 0, 1: 1, 3: 2, 5: 3, 6: 4, 7: 5}

    def stamp(i):
        if (diag or enc) and i in smap:
            k = smap[i]
            if enc >= 6 and i in (0, 3, 5):
                e(f"    s_memtime s[{ST+2*k}:{ST+1+2*k}]")
            elif enc >= 6 and i in (1, 7):
                pass
            else:
                e(f"    s_memrealtime s[{ST+2*k}:{ST+1+2*k}]")
                if enc >= 6 and i == 6:
                    e(f"    s_memtime s[{ST+2*smap[7]}:{ST+1+2*smap[7]}]")

    def dreg(slot):
        return D0 + 4 * slot

    def load(slot):
        d = dreg(slot)
        fl = ldf
        if dfpos <= slot < dfpos + ndf:
            fl = (" " + dff) if dff else ""
        e(f"    buffer_load_dwordx4 v[{d}:{d+3}], v5, s[16:19], s{SO+slot} offen{fl}")

    def acc(slot):
        for i in range(4):
            d = dreg(slot) + i
            if slot == 0:
                e(f"    v_lshlrev_b32 v{8+2*i}, 16, v{d}")
                e(f"    v_and_b32 v{9+2*i}, s30, v{d}")
            else:
                e(f"    v_lshlrev_b32 v{16+2*i}, 16, v{d}")
                e(f"    v_and_b32 v{17+2*i}, s30, v{d}")
        if slot:
            for i in range(4):
                e(f"    v_pk_add_f32 v[{8+2*i}:{9+2*i}], v[{8+2*i}:{9+2*i}], v[{16+2*i}:{17+2*i}]")

    e("    s_cmp_ge_u32 s2, 256")
    e("    s_cbranch_scc1 L_exit")
    e("    s_load_dwordx4 s[4:7], s[0:1], 0")
    e("    s_load_dwordx4 s[8:11], s[0:1], 16")
    e("    s_load_dwordx4 s[12:15], s[0:1], 32")
    if diag or enc:
        for i in range(6):
            e(f"    s_mov_b64 s[{ST+2*i}:{ST+1+2*i}], 0")
    stamp(0)
    e("    v_lshrrev_b32 v1, 6, v0")
    e("    v_and_b32 v2, 63, v0                 ; lane")
    e("    v_readfirstlane_b32 s3, v1")
    e("    v_lshrrev_b32 v3, 4, v2              ; q (row)")
    e("    v_and_b32 v4, 15, v2                 ; n")
    e("    s_mul_i32 s40, s3, 11")
    e("    s_lshr_b32 s40, s40, 5")
    e("    s_mul_i32 s41, s40, 3")
    e("    s_sub_u32 s41, s3, s41               ; seg = wave%3")
    e("    s_lshl_b32 s43, s41, 8")
    e("    v_mul_u32_u24 v5, 768, v3")
    e("    v_lshl_add_u32 v5, v4, 4, v5")
    e("    v_add_u32 v5, s43, v5                ; v5 = q*768 + seg*256 + n*16")
    e("    s_mov_b32 s18, %d" % XBYTES)
    e("    s_mov_b32 s19, 0x00020000")
    e("    s_mov_b32 s30, 0xffff0000")
    e("    s_lshr_b32 s42, s2, 3")
    e("    s_lshl_b32 s42, s42, 2")
    e("    s_and_b32 s43, s2, 3")
    e("    s_add_u32 s42, s42, s43")
    e(f"    s_mul_i32 s76, s42, {SB}")
    e("    s_lshl_b32 s43, s40, 2")
    e("    s_lshr_b32 s78, 0x5210, s43")
    e("    s_and_b32 s78, s78, 15")
    e("    s_lshr_b32 s79, 0xcb76, s43")
    e("    s_and_b32 s79, s79, 15")
    e("    s_mul_i32 s78, s78, 3072")
    e("    s_mul_i32 s79, s79, 3072")
    e("    s_sub_u32 s80, 46080, s78")
    e("    s_sub_u32 s81, 46080, s79")
    for r in (78, 79, 80, 81):
        e(f"    s_add_u32 s{r}, s{r}, s76")
    e("    s_add_u32 s77, s76, 24576")
    e("    s_lshr_b32 s77, s77, 19")
    e("    s_xor_b32 s77, s77, s2")
    e("    s_lshr_b32 s42, s2, 1")
    e("    s_xor_b32 s42, s42, s77")
    e("    s_bitcmp1_b32 s42, 2")
    e("    s_cselect_b32 s82, s80, s78          ; E0")
    e("    s_cselect_b32 s83, s81, s79          ; E1")
    e("    s_cselect_b32 s84, s78, s80          ; O0")
    e("    s_cselect_b32 s85, s79, s81          ; O1")
    seen = [0, 0]
    for k, pp in enumerate(lorder):
        u = seen[region(pp)] & 1
        seen[region(pp)] += 1
        b = 84 if ((pp ^ u) & 1) else 82
        e(f"    s_add_u32 s{SO+2*k}, s{b}, {pp*WIN}")
        e(f"    s_add_u32 s{SO+2*k+1}, s{b+1}, {pp*WIN}")
    e("    s_getreg_b32 s89, hwreg(HW_REG_XCC_ID)")
    e("    s_and_b32 s89, s89, 7")
    e("    s_and_b32 s86, s89, 1")
    e("    s_add_u32 s86, s86, 1")
    e("    s_cmp_eq_u32 s3, 0")
    e("    s_cselect_b32 s86, s86, 0")
    if inv:
        e("    s_cmp_lg_u32 s3, 11")
        e("    s_cbranch_scc1 L_noinv")
        e(f"    buffer_inv {inv}")
        e("L_noinv:")
    e("    s_waitcnt lgkmcnt(0)")
    e("    s_mov_b32 s16, s4")
    e("    s_mov_b32 s17, s5")
    for s in range(lvm):
        load(s)
    if tlbx or tlbo:
        e("    s_lshl_b32 s42, s3, 23")
        e("    v_lshlrev_b32 v29, %d, v2" % (21 if max(tlbx, tlbo) == 1 else 20))
        e("    v_add_u32 v29, s42, v29")
    if tlbx:
        e("    s_mov_b64 exec, %d" % (15 if tlbx == 1 else 255))
        e("    buffer_load_dword v28, v29, s[16:19], 0 offen")
        e("    s_mov_b64 exec, -1")
    e(f"    s_load_dword s28, s[14:15], {EPOCH}")
    e("    s_mov_b32 s24, s14")
    e("    s_mov_b32 s25, s15")
    e("    s_mov_b32 s26, %d" % WS_BYTES)
    e("    s_mov_b32 s27, 0x00020000")
    if numa:
        e("    s_cmp_eq_u32 s86, 0")
        e("    s_cbranch_scc1 L_noprobe")
        e("    s_mov_b32 s38, 0")
        e("    s_cmp_eq_u32 s86, 2")
        e("    s_cbranch_scc1 L_pubvote")
        e("    s_bfe_u32 s42, s2, 0x10006           ; r = bit6")
        e("    s_add_u32 s42, s42, 1")
        e(f"    s_mul_i32 s42, s42, {40<<20}")
        e("    s_bfe_u32 s43, s2, 0x30003")
        e("    s_lshl_b32 s43, s43, 21")
        e("    s_add_u32 s42, s42, s43")
        e("    s_lshr_b32 s43, s2, 7")
        e("    s_lshl_b32 s43, s43, 19")
        e("    s_add_u32 s42, s42, s43")
        e("    s_and_b32 s43, s2, 7")
        e("    s_lshl_b32 s43, s43, 16")
        e("    s_add_u32 s42, s42, s43")
        e("    s_and_b32 s43, s10, 0xffe00000")
        e("    s_add_u32 s20, s43, s42")
        e("    s_addc_u32 s21, s11, 0")
        e("    s_load_dword s22, s[20:21], 4096")
        for sl in range(lvm, pre):
            load(sl)
        e("    s_waitcnt lgkmcnt(0)")
        offs = [0, 8192, 24576 + 256, 16384 + 256, 32768 + 512, 40960 + 512][:2 * pairs]
        e("    s_memtime s[32:33]")
        e("    s_waitcnt lgkmcnt(0)")
        for i, of in enumerate(offs):
            a_, b_ = (32, 34) if i % 2 == 0 else (34, 32)
            e(f"    s_load_dword s22, s[20:21], {of}")
            e("    s_waitcnt lgkmcnt(0)")
            e(f"    s_memtime s[{b_}:{b_+1}]")
            e("    s_waitcnt lgkmcnt(0)")
            e(f"    s_sub_u32 s{36+(i&1)}, s{b_}, s{a_}")
            if i % 2 == 1:
                if (i // 2) % 2 == 0:
                    e("    s_cmp_gt_u32 s37, s36")
                else:
                    e("    s_cmp_gt_u32 s36, s37")
                e("    s_cselect_b32 s39, 16, -16")
                e("    s_add_i32 s38, s38, s39")
        e("    s_lshr_b32 s42, s2, 1")
        e("    s_xor_b32 s42, s42, s89")
        e("    s_sub_i32 s39, 0, s38")
        e("    s_bitcmp1_b32 s42, 2")
        e("    s_cselect_b32 s38, s39, s38")
        e("L_pubvote:")
        e("    s_waitcnt lgkmcnt(0)")
        e("    s_or_b32 s38, s38, s89")
        e("    s_add_u32 s39, s28, 1")
        e("    s_xor_b32 s39, s39, 0x%08x" % MAGIC2)
        e("    s_xor_b32 s39, s39, s38")
        e("    s_lshl_b32 s42, s2, 3")
        e(f"    s_add_u32 s42, s42, {VOTE}")
        e("    v_mov_b32 v32, s38")
        e("    v_mov_b32 v33, s39")
        e("    v_mov_b32 v34, s42")
        e("    s_mov_b64 exec, 1")
        e("    buffer_store_dwordx2 v[32:33], v34, s[24:27], 0 offen sc1")
        e("    s_mov_b64 exec, -1")
        e("L_noprobe:")
    e("    s_mov_b32 s20, s10")
    e("    s_mov_b32 s21, s11")
    e("    s_mov_b32 s22, %d" % XBYTES)
    e("    s_mov_b32 s23, 0x00020000")
    e("    s_mov_b32 s32, s6")
    e("    s_mov_b32 s33, s7")
    e("    s_mov_b32 s34, 4608")
    e("    s_mov_b32 s35, 0x00020000")
    e("    s_mov_b32 s36, s8")
    e("    s_mov_b32 s37, s9")
    e("    s_mov_b32 s38, 4608")
    e("    s_mov_b32 s39, 0x00020000")
    e("    s_mov_b32 s31, %d" % spin)
    e("    s_mul_i32 s42, s41, 1536")
    e("    s_mul_i32 s43, s40, 6")
    e("    s_add_u32 s42, s42, s43")
    e("    v_mul_u32_u24 v1, 24, v2")
    e("    v_add_u32 v1, s42, v1")
    e("    s_lshl_b32 s42, s3, 10")
    e(f"    s_add_u32 s42, s42, {L_WU}")
    e("    s_mov_b32 m0, s42")
    e("    v_lshlrev_b32 v27, 4, v0")
    e("    buffer_load_ushort v24, v1, s[32:35], 0 offen")
    e("    buffer_load_ushort v25, v1, s[32:35], 0 offen offset:2")
    e("    buffer_load_ushort v26, v1, s[32:35], 0 offen offset:4")
    e("    buffer_load_dwordx4 v27, s[36:39], 0 offen lds")
    NW = 4
    e("    s_mul_i32 s42, s40, 1536")
    e("    s_lshl_b32 s43, s41, 9")
    e("    s_add_u32 s42, s42, s43")
    e("    v_lshlrev_b32 v6, 5, v4")
    e("    v_lshl_add_u32 v6, v3, 3, v6")
    e("    v_add_u32 v6, s42, v6")
    e("    s_lshl_b32 s43, s41, 7")
    e("    v_lshlrev_b32 v7, 3, v4")
    e("    v_add_u32 v7, s43, v7")
    e("    v_subrev_u32 v1, 192, v7")
    e("    v_min_u32 v7, v7, v1")
    e("    v_lshlrev_b32 v7, 2, v7")
    e("    v_and_b32 v1, 1, v3")
    e("    v_lshrrev_b32 v31, 1, v3")
    e("    v_lshl_add_u32 v31, v1, 1, v31")
    e("    v_lshlrev_b32 v31, 2, v31            ; i(row)*4")
    e("    s_lshl_b32 s42, s41, 6")
    e("    s_lshl_b32 s43, s40, 4")
    e("    s_add_u32 s42, s42, s43")
    e("    v_add_u32 v4, s42, v31")
    e("    s_lshl_b32 s42, s41, 8")
    e("    v_lshlrev_b32 v3, 2, v2")
    e("    v_add_u32 v3, s42, v3")
    e("    v_lshlrev_b32 v1, 4, v2              ; lane*16")
    e(f"    s_mov_b32 s87, {VOTE}")
    for j in range(32):
        last = min(j + lvm - 1, 31)
        younger = (last - j) + (NW if j < lvm else 0)
        e(f"    s_waitcnt vmcnt({younger})")
        if j == lvm:
            e("    s_waitcnt lgkmcnt(0)")
            e("    s_add_u32 s28, s28, 1                ; epoch + 1")
            e("    s_xor_b32 s29, s28, 0x%08x           ; tag key" % MAGIC)
            e("    s_xor_b32 s88, s28, 0x%08x           ; vote key" % MAGIC2)
        if numa and j == A0 - lvm:
            e("    s_cmp_eq_u32 s86, 0")
            e("    s_cbranch_scc1 L_decbar")
            e("L_vchk:")
            e("    v_bitop3_b32 v28, v32, v33, s88 bitop3:0x96")
            e("    v_bitop3_b32 v29, v34, v35, s88 bitop3:0x96")
            e("    v_bitop3_b32 v30, v36, v37, s88 bitop3:0x96")
            e("    v_bitop3_b32 v27, v38, v39, s88 bitop3:0x96")
            e("    v_or3_b32 v28, v28, v29, v30")
            e("    v_or_b32 v28, v28, v27")
            e("    v_cmp_ne_u32 vcc, 0, v28")
            e("    s_cbranch_vccz L_vok")
            e("    s_sub_u32 s31, s31, 1")
            e("    s_cbranch_scc1 L_vok")
            e("    buffer_load_dwordx4 v[32:35], v1, s[24:27], s87 offen sc1")
            e("    buffer_load_dwordx4 v[36:39], v1, s[24:27], s87 offen offset:1024 sc1")
            e("    s_waitcnt vmcnt(0)")
            e("    s_branch L_vchk")
            e("L_vok:")
            e("    s_and_b32 s42, s2, 0x7b")
            e("    s_lshr_b32 s42, s42, 1")
            e("    v_readlane_b32 s4, v32, s42")
            e("    v_readlane_b32 s5, v34, s42")
            e("    v_readlane_b32 s6, v36, s42")
            e("    v_readlane_b32 s7, v38, s42")
            e("    v_ashrrev_i32 v28, 4, v32")
            e("    v_ashrrev_i32 v29, 4, v34")
            e("    v_ashrrev_i32 v30, 4, v36")
            e("    v_ashrrev_i32 v27, 4, v38")
            e("    v_add3_u32 v28, v28, v29, v30")
            e("    v_add_u32 v28, v28, v27")
            e("    s_bitcmp1_b32 s2, 0")
            e("    s_cselect_b32 s4, s5, s4")
            e("    s_cselect_b32 s6, s7, s6")
            e("    s_bitcmp1_b32 s2, 7")
            e("    s_cselect_b32 s4, s6, s4")
            for sh in (1, 2, 4, 8):
                e("    s_nop 1")
                e(f"    v_add_u32_dpp v28, v28, v28 row_shr:{sh} row_mask:0xf bank_mask:0xf bound_ctrl:0")
            e("    s_nop 1")
            e("    v_add_u32_dpp v28, v28, v28 row_bcast:15 row_mask:0xa bank_mask:0xf")
            e("    v_lshrrev_b32 v30, 3, v2")
            e("    v_and_b32 v30, 4, v30                ; (lane>=32)*4")
            e("    v_mov_b32 v29, s4")
            e("    s_mov_b32 exec_lo, 0x80000000")
            e("    s_mov_b32 exec_hi, 0x80000000")
            e(f"    ds_write2_b32 v30, v28, v29 offset0:{L_DEC//4 if L_DEC//4 < 250 else 0} offset1:2" if False else f"    ds_write_b32 v30, v28 offset:{L_DEC}")
            e(f"    ds_write_b32 v30, v29 offset:{L_DEC+8}")
            e("    s_mov_b64 exec, -1")
            e("    s_waitcnt lgkmcnt(0)")
            stamp(1)
            e("L_decbar:")
            e("    s_barrier")
            e("    v_mov_b32 v28, 0")
            e(f"    ds_read_b96 v[28:30], v28 offset:{L_DEC}")
            e("    s_waitcnt lgkmcnt(0)")
            e("    v_readfirstlane_b32 s4, v28")
            e("    v_readfirstlane_b32 s5, v29")
            e("    v_readfirstlane_b32 s6, v30")
            e("    s_mov_b32 s7, s76")
            if dbgout:
                e("    s_mov_b32 s76, s4")
                e("    s_mov_b32 s89, s5")
            e("    s_bitcmp1_b32 s6, 0")
            e("    s_cbranch_scc0 L_nodec")
            e("    s_and_b32 s42, s20, 0x1fffff")
            e("    s_add_u32 s43, s42, 1536")
            e("    s_lshr_b32 s43, s43, 10              ; c")
            e("    s_lshl_b32 s78, s40, 1")
            e("    s_sub_u32 s78, s78, s43              ; u - c (u = 2*grp)")
            e("    s_mul_i32 s78, s78, 11")
            e("    s_add_u32 s79, s78, 11")
            e("    s_and_b32 s78, s78, 15")
            e("    s_and_b32 s79, s79, 15")
            e("    s_xor_b32 s80, s78, 8")
            e("    s_xor_b32 s81, s79, 8")
            for r in (78, 79, 80, 81):
                e(f"    s_mul_i32 s{r}, s{r}, 3072")
                e(f"    s_add_u32 s{r}, s{r}, s7")
            e("    s_add_u32 s77, s7, 24576")
            e("    s_add_u32 s77, s77, s42")
            e("    s_lshr_b32 s77, s77, 19")
            e("    s_xor_b32 s77, s77, s2")
            e("    s_xor_b32 s77, s77, s6")
            for r in range(2):
                wins = [(k, pp) for k, pp in enumerate(lorder) if pp in adaptive and region(pp) == r]
                if not wins:
                    continue
                e(f"    s_abs_i32 s42, s{4+r}")
                e(f"    s_cmp_lt_u32 s42, {thr}")
                e(f"    s_cbranch_scc1 L_keep{r}")
                e(f"    s_lshr_b32 s42, s{4+r}, 29")
                e("    s_xor_b32 s42, s42, s77")
                e("    s_bitcmp1_b32 s42, 2")
                e("    s_cselect_b32 s82, s80, s78")
                e("    s_cselect_b32 s83, s81, s79")
                e("    s_cselect_b32 s84, s78, s80")
                e("    s_cselect_b32 s85, s79, s81")
                for k, pp in wins:
                    b = 84 if (pp & 1) else 82
                    e(f"    s_add_u32 s{SO+2*k}, s{b}, {pp*WIN}")
                    e(f"    s_add_u32 s{SO+2*k+1}, s{b+1}, {pp*WIN}")
                e(f"L_keep{r}:")
            e("L_nodec:")
        if j + lvm < 32:
            k = j + lvm
            if evw >= 0 and j >= lvm and k >= pre:
                e("    s_bitcmp1_b32 s2, 0")
                e(f"    s_cbranch_scc1 L_ev{k}")
                e(f"    s_waitcnt vmcnt({evw})")
                e(f"L_ev{k}:")
            if numa and k < pre:
                e("    s_cmp_eq_u32 s86, 1")
                e(f"    s_cbranch_scc1 L_sk{k}")
                load(k)
                e(f"L_sk{k}:")
            else:
                load(k)
            if numa and k == G:
                e("    s_cmp_eq_u32 s86, 0")
                e("    s_cbranch_scc1 L_nog")
                e("    buffer_load_dwordx4 v[32:35], v1, s[24:27], s87 offen sc1")
                e("    buffer_load_dwordx4 v[36:39], v1, s[24:27], s87 offen offset:1024 sc1")
                e("L_nog:")
        if tlbo and j == tstep:
            e("    s_mov_b64 exec, %d" % (15 if tlbo == 1 else 255))
            e("    buffer_load_dword v28, v29, s[20:23], 0 offen")
            e("    s_mov_b64 exec, -1")
        acc(j)
        if j == 20:
            for r in (24, 25, 26):
                e(f"    v_lshlrev_b32 v{r}, 16, v{r}")
    e("    s_nop 1")
    for i in range(4):
        e(f"    v_permlane32_swap_b32 v{8+i}, v{12+i}")
    for i in range(4):
        e(f"    v_add_f32 v{8+i}, v{8+i}, v{12+i}")
    e("    s_nop 0")
    e("    v_permlane16_swap_b32 v8, v10")
    e("    v_permlane16_swap_b32 v9, v11")
    e("    v_add_f32 v8, v8, v10")
    e("    v_add_f32 v9, v9, v11")
    e(f"    ds_write_b64 v6, v[8:9] offset:{L_M}")
    e("    s_waitcnt lgkmcnt(0)")
    e("    s_barrier")
    stamp(3)
    for k in range(4):
        e(f"    ds_read2st64_b32 v[{16+2*k}:{17+2*k}], v3 offset0:{6*k} offset1:{6*k+3}")
    e("    s_waitcnt lgkmcnt(2)" if not (diag or enc) else "    s_waitcnt lgkmcnt(0)")
    e("    v_pk_add_f32 v[16:17], v[16:17], v[18:19]")
    e("    s_waitcnt lgkmcnt(0)")
    e("    v_pk_add_f32 v[20:21], v[20:21], v[22:23]")
    e("    v_pk_add_f32 v[16:17], v[16:17], v[20:21]")
    e("    v_add_f32 v16, v16, v17")
    e("    v_mul_f32 v10, v16, v26")
    e("    v_mul_f32 v11, v16, v26")
    e("    v_mul_f32 v8, v16, v24")
    e("    v_mul_f32 v9, v16, v25")
    e("    v_permlane32_swap_b32 v10, v11")
    e("    s_nop 0")
    e("    v_permlane32_swap_b32 v8, v9")
    e("    v_add_f32 v10, v10, v11              ; [c | c]")
    e("    v_add_f32 v8, v8, v9                 ; [a | b]")
    e("    s_nop 1")
    e("    v_permlane16_swap_b32 v8, v10")
    e("    v_add_f32 v8, v8, v10                ; rows: a, c, b, c")
    e("    s_nop 1")
    e("    v_add_f32_dpp v9, v8, v8 row_shr:1 row_mask:0xf bank_mask:0xf bound_ctrl:0")
    e("    v_add_f32_dpp v9, v8, v9 row_shr:2 row_mask:0xf bank_mask:0xf bound_ctrl:0")
    e("    v_add_f32_dpp v9, v8, v9 row_shr:3 row_mask:0xf bank_mask:0xf bound_ctrl:0")
    e("    s_nop 1")
    e("    v_add_f32_dpp v9, v9, v9 row_shr:4 row_mask:0xf bank_mask:0xf bound_ctrl:0")
    e("    s_nop 1")
    e("    v_add_f32_dpp v9, v9, v9 row_shr:8 row_mask:0xf bank_mask:0xf bound_ctrl:0")
    e("    s_mov_b32 exec_lo, 0x80008000")
    e("    s_mov_b32 exec_hi, 0x00008000")
    e(f"    ds_write_b32 v4, v9 offset:{L_HP}")
    e("    s_mov_b64 exec, -1")
    e("    s_lshl_b32 s42, s2, 6")
    e("    s_cmp_lg_u32 s3, 4")
    e("    s_waitcnt lgkmcnt(0)")
    e("    s_barrier")
    e("    s_cbranch_scc1 L_notpub")
    e("    s_mov_b64 exec, 15")
    e(f"    ds_read_b128 v[8:11], v1 offset:{L_HP}")
    e(f"    ds_read_b128 v[12:15], v1 offset:{L_HP+64}")
    e(f"    ds_read_b128 v[16:19], v1 offset:{L_HP+128}")
    e("    s_waitcnt lgkmcnt(1)")
    e("    v_pk_add_f32 v[8:9], v[8:9], v[12:13]")
    e("    v_add_f32 v10, v10, v14")
    e("    s_waitcnt lgkmcnt(0)")
    e("    v_pk_add_f32 v[8:9], v[8:9], v[16:17]")
    e("    v_add_f32 v10, v10, v18")
    e("    v_bitop3_b32 v11, v8, v9, s29 bitop3:0x96")
    e("    v_xor_b32 v11, v11, v10")
    e(f"    buffer_store_dwordx4 v[8:11], v1, s[24:27], s42 offen {pubf}")
    e("    s_mov_b64 exec, -1")
    stamp(7)
    e("    s_branch L_b3")
    e("L_notpub:")
    e("    s_cmp_lt_u32 s3, 4")
    e("    s_cbranch_scc1 L_poll_start")
    e("    s_cmp_gt_u32 s3, 7")
    e("    s_cbranch_scc1 L_b3")
    e("    v_subrev_u32 v1, 320, v0")
    e("    v_lshlrev_b32 v21, 2, v1")
    e("    v_lshlrev_b32 v1, 1, v1")
    for r in range(12):
        e(f"    ds_read_u16 v{8+r}, v1 offset:{L_WU+384*r}")
    e("    v_and_b32 v20, 15, v2")
    e("    v_lshlrev_b32 v20, 2, v20")
    e(f"    v_add_u32 v20, {L_P}, v20")
    e("    s_waitcnt lgkmcnt(0)")
    for r in range(12):
        e(f"    v_lshlrev_b32 v{8+r}, 16, v{8+r}")
    e("    s_barrier")
    e("    ds_read2_b32 v[22:23], v20 offset0:0 offset1:16")
    e("    ds_read2_b32 v[24:25], v20 offset0:32 offset1:48")
    e("    s_waitcnt lgkmcnt(0)")
    e("    v_pk_add_f32 v[22:23], v[22:23], v[24:25]")
    e("    v_add_f32 v22, v22, v23")
    e("    v_mul_f32 v22, 0x36800000, v22       ; * 2^-18")
    e("    v_cvt_pk_bf16_f32 v22, v22, v22")
    e("    v_lshlrev_b32 v22, 16, v22")
    e("    v_mul_f32 v23, 0xbfb8aa3b, v22       ; -log2e * x")
    e("    v_exp_f32 v23, v23")
    e("    s_nop 0")
    e("    v_add_f32 v23, 1.0, v23")
    e("    v_rcp_f32 v23, v23")
    e("    s_nop 0")
    e("    v_mul_f32 v22, v22, v23")
    e("    v_cvt_pk_bf16_f32 v22, v22, v22")
    e("    v_lshlrev_b32 v22, 16, v22")
    e("    s_nop 1")
    for r in range(12):
        a = 23 + (r % 3)
        op = "v_mul_f32_dpp" if r < 3 else "v_fmac_f32_dpp"
        e(f"    {op} v{a}, v22, v{8+r} row_newbcast:{r} row_mask:0xf bank_mask:0xf")
    e("    v_add_f32 v23, v23, v24")
    e("    v_add_f32 v23, v23, v25")
    e("    v_cvt_pk_bf16_f32 v23, v23, v23")
    e("    v_lshlrev_b32 v23, 16, v23")
    e("    v_mul_f32 v23, 0xbfb8aa3b, v23")
    e("    v_exp_f32 v23, v23")
    e("    s_nop 0")
    e("    v_add_f32 v23, 1.0, v23")
    e("    v_rcp_f32 v23, v23")
    e("    s_nop 0")
    e("    v_cvt_pk_bf16_f32 v23, v23, v23")
    e("    v_lshlrev_b32 v23, 16, v23")
    e(f"    ds_write_b32 v21, v23 offset:{L_G}")
    e("    s_waitcnt lgkmcnt(0)")
    e("    s_branch L_b4")

    e("L_poll_start:")
    e("    s_lshl_b32 s42, s3, 12")
    e("    v_and_b32 v27, 3, v2")
    e("    v_mul_u32_u24 v27, 12, v27")
    e("    s_lshl_b32 s43, s3, 6")
    e("    v_add3_u32 v31, v31, v27, s43")
    regs = (8, 12, 16, 20)
    for k in range(4):
        e(f"    s_mov_b64 s[{4+2*k}:{5+2*k}], -1")
    e("L_poll:")
    for k in range(4):
        e(f"    s_mov_b64 exec, s[{4+2*k}:{5+2*k}]")
        e(f"    s_cbranch_execz L_skip{k}")
        e(f"    buffer_load_dwordx4 v[{regs[k]}:{regs[k]+3}], v1, s[24:27], s42 offen offset:{1024*k} {pollf}")
        e(f"L_skip{k}:")
    e("    s_mov_b64 exec, -1")
    e("    s_waitcnt vmcnt(0)")
    for k in range(4):
        r = regs[k]
        e(f"    v_bitop3_b32 v{27+k}, v{r}, v{r+1}, s29 bitop3:0x96")
    for k in range(4):
        r = regs[k]
        e(f"    v_bitop3_b32 v{27+k}, v{27+k}, v{r+2}, v{r+3} bitop3:0x96")
    for k in range(4):
        e(f"    v_cmp_ne_u32 s[{4+2*k}:{5+2*k}], 0, v{27+k}")
    e("    s_or_b64 s[82:83], s[4:5], s[6:7]")
    e("    s_or_b64 vcc, s[8:9], s[10:11]")
    e("    s_or_b64 s[82:83], s[82:83], vcc")
    e("    s_cbranch_scc0 L_poll_ok")
    e("    s_sub_u32 s31, s31, 1")
    e("    s_cbranch_scc1 L_poll_ok")
    if sleep:
        e(f"    s_sleep {sleep}")
    e("    s_branch L_poll")
    e("L_poll_ok:")
    stamp(7)
    e("    v_add_f32 v10, v10, v14")
    e("    v_add_f32 v18, v18, v22")
    e("    v_pk_add_f32 v[8:9], v[8:9], v[12:13]")
    e("    v_pk_add_f32 v[16:17], v[16:17], v[20:21]")
    e("    v_add_f32 v11, v10, v18")
    e("    v_add_f32 v10, v10, v18")
    e("    v_pk_add_f32 v[8:9], v[8:9], v[16:17]")
    e("    s_nop 0")
    e("    v_permlane32_swap_b32 v10, v11")
    e("    v_permlane32_swap_b32 v8, v9")
    e("    v_add_f32 v10, v10, v11              ; [c | c]")
    e("    v_add_f32 v8, v8, v9                 ; [a | b]")
    e("    s_nop 1")
    e("    v_permlane16_swap_b32 v8, v10")
    e("    v_add_f32 v8, v8, v10                ; rows: a, c, b, c")
    e("    s_nop 1")
    e("    v_add_f32_dpp v8, v8, v8 row_shr:4 row_mask:0xf bank_mask:0xf bound_ctrl:0")
    e("    s_nop 1")
    e("    v_add_f32_dpp v8, v8, v8 row_shr:8 row_mask:0xf bank_mask:0xf bound_ctrl:0")
    e("    s_mov_b32 exec_lo, 0xf000f000")
    e("    s_mov_b32 exec_hi, 0x0000f000")
    e(f"    ds_write_b32 v31, v8 offset:{L_P}")
    e("    s_mov_b64 exec, -1")
    e("    s_waitcnt lgkmcnt(0)")
    e("L_b3:")
    e("    s_barrier")
    e("L_b4:")
    e("    s_barrier")
    e(f"    ds_read_b128 v[8:11], v7 offset:{L_G}")
    e(f"    ds_read_b128 v[12:15], v7 offset:{L_G+16}")

    cnt = [0]

    def scale_store(slot, first=False):
        t = 16 + 8 * (cnt[0] & 1)
        cnt[0] += 1
        for i in range(4):
            d = dreg(slot) + i
            e(f"    v_lshlrev_b32 v{t+2*i}, 16, v{d}")
            e(f"    v_and_b32 v{t+1+2*i}, s30, v{d}")
        if first:
            e("    s_waitcnt lgkmcnt(0)")
            stamp(5)
        for i in range(4):
            e(f"    v_pk_mul_f32 v[{t+2*i}:{t+1+2*i}], v[{t+2*i}:{t+1+2*i}], v[{8+2*i}:{9+2*i}]")
        for i in range(4):
            d = dreg(slot) + i
            e(f"    v_cvt_pk_bf16_f32 v{d}, v{t+2*i}, v{t+1+2*i}")
        d = dreg(slot)
        e(f"    buffer_store_dwordx4 v[{d}:{d+3}], v5, s[20:23], s{SO+slot} offen{stf}")

    sslots = []
    for pp in sorder:
        k = lorder.index(pp)
        sslots += [2 * k, 2 * k + 1]
    for j in range(32):
        if j == m1:
            e(f"    s_memrealtime s[{ST+2*smap[0]}:{ST+1+2*smap[0]}]")
        if j == m2:
            e(f"    s_memrealtime s[{ST+2*smap[3]}:{ST+1+2*smap[3]}]")
        scale_store(sslots[j], first=(j == 0))
        if sbar and (j + 1) % sbar == 0 and j != 31:
            e("    s_barrier")
    if twice:
        e("    s_waitcnt vmcnt(0)")
        e("    s_barrier")
        for rep in range(twice):
            for j in range(32):
                d = dreg(sslots[j])
                e(f"    buffer_store_dwordx4 v[{d}:{d+3}], v5, s[20:23], s{SO+sslots[j]} offen{stf}")
                if sbar and (j + 1) % sbar == 0:
                    e("    s_barrier")
    e("    s_cmp_lg_u32 s2, 1")
    e("    s_cbranch_scc1 L_noep")
    e("    s_cmp_lg_u32 s3, 11")
    e("    s_cbranch_scc1 L_noep")
    e(f"    v_mov_b32 v1, {EPOCH}")
    e("    v_mov_b32 v3, s28")
    e("    s_mov_b64 exec, 1")
    e("    buffer_store_dword v3, v1, s[24:27], 0 offen sc1")
    if dbgout:
        e("    s_mov_b32 s32, s12")
        e("    s_mov_b32 s33, s13")
        e("    s_mov_b32 s34, 256")
        e("    v_mov_b32 v16, s76")
        e("    v_mov_b32 v17, s89")
        e("    v_mov_b32 v1, 0")
        e("    buffer_store_dwordx2 v[16:17], v1, s[32:35], 0 offen")
        e("    v_mov_b32 v18, s16")
        e("    v_mov_b32 v19, s17")
        e("    v_mov_b32 v20, s20")
        e("    v_mov_b32 v21, s21")
        e("    buffer_store_dwordx4 v[18:21], v1, s[32:35], 0 offen offset:16")
        e("    v_mov_b32 v22, s24")
        e("    v_mov_b32 v23, s25")
        e("    buffer_store_dwordx2 v[22:23], v1, s[32:35], 0 offen offset:32")
    e("    s_mov_b64 exec, -1")
    e("L_noep:")
    if enc:
        e("    s_waitcnt vmcnt(0)")
        stamp(6)
        e("    s_waitcnt lgkmcnt(0)")
        a, b = {1: (0, 0), 2: (0, 3), 3: (0, 5), 4: (5, 6), 5: (0, 6), 6: (5, 7), 7: (0, 5), -1: (0, 1)}[enc]
        e(f"    s_sub_u32 s42, s{ST+2*smap[b]}, s{ST+2*smap[a]}")
        if enc >= 6:
            e("    s_lshr_b32 s42, s42, 4")
        if encv in (1, 2):
            e(f"    s_abs_i32 s42, s{76 if encv == 1 else 89}")
            e("    s_mul_i32 s42, s42, 10")
        if encv == 3:
            e("    s_getreg_b32 s42, hwreg(HW_REG_XCC_ID)")
            e("    s_and_b32 s42, s42, 7")
            e("    s_add_u32 s42, s42, 2")
            e("    s_mul_i32 s42, s42, 200")
            e("    s_cmp_eq_u32 s2, 0")
            e("    s_cselect_b32 s42, s42, 0")
        if encv == 4:
            e("    s_bfe_u32 s42, s20, 0x40008")
            e("    s_mul_i32 s42, s42, 100")
        if encv == 5:
            e("    s_bfe_u32 s42, s20, 0x4000c")
            e("    s_mul_i32 s42, s42, 100")
        if encv == 6:
            e("    s_bfe_u32 s42, s20, 0x50010")
            e("    s_mul_i32 s42, s42, 100")
        if encv == 7:
            e("    s_bfe_u32 s42, s20, 0x40004")
            e("    s_mul_i32 s42, s42, 100")
        if enc == -1:
            e("    s_cmp_eq_u32 s3, 0")
            e("    s_cselect_b32 s42, s42, 0")
        if encpar >= 0:
            e("    s_bitcmp1_b32 s2, 0")
            e(f"    s_cselect_b32 s42, s42, 0" if encpar == 1 else "    s_cselect_b32 s42, 0, s42")
        e("L_enc:")
        e("    s_memrealtime s[4:5]")
        e("    s_waitcnt lgkmcnt(0)")
        e(f"    s_sub_u32 s43, s4, s{ST+2*smap[6]}")
        e("    s_cmp_lt_u32 s43, s42")
        e("    s_cbranch_scc1 L_enc")
    if diag:
        e("    s_waitcnt vmcnt(0)")
        stamp(6)
        e("    s_waitcnt lgkmcnt(0)")
        e("    s_mul_i32 s42, s2, 12")
        e("    s_add_u32 s42, s42, s3")
        e("    s_lshl_b32 s42, s42, 7")
        e(f"    s_add_u32 s42, s42, {DIAG}")
        e("    v_mov_b32 v1, s42")
        e("    s_mov_b64 exec, 1")
        inv = {v: k for k, v in smap.items()}
        for k in range(6):
            e(f"    v_mov_b32 v16, s{ST+2*k}")
            e(f"    v_mov_b32 v17, s{ST+2*k+1}")
            e(f"    buffer_store_dwordx2 v[16:17], v1, s[24:27], 0 offen offset:{8*inv[k]}")
            e("    s_nop 2")
        e("    s_getreg_b32 s42, hwreg(HW_REG_XCC_ID)")
        e("    v_mov_b32 v16, s42")
        e("    v_mov_b32 v17, s31")
        e("    buffer_store_dwordx2 v[16:17], v1, s[24:27], 0 offen offset:88")
    e("L_exit:")
    e("    s_endpgm")
    e('.section .rodata,"a"')
    e(".p2align 6")
    e(f".amdhsa_kernel {NAME}")
    e("  .amdhsa_next_free_vgpr 168")
    e("  .amdhsa_next_free_sgpr 102")
    e("  .amdhsa_accum_offset 168")
    e("  .amdhsa_group_segment_fixed_size 0")
    e("  .amdhsa_kernarg_size 48")
    e("  .amdhsa_user_sgpr_count 2")
    e("  .amdhsa_user_sgpr_kernarg_segment_ptr 1")
    e("  .amdhsa_system_sgpr_workgroup_id_x 1")
    e("  .amdhsa_float_denorm_mode_32 3")
    e(".end_amdhsa_kernel")
    sys.stderr.write(f"lorder {lorder} sorder {sorder} A0 {A0} G {G}\n")
    return "\n".join(o) + "\n"


if __name__ == "__main__":
    ap = argparse.ArgumentParser()
    ap.add_argument("-o", default="-")
    ap.add_argument("--ld", default="nt")
    ap.add_argument("--st", default="sc0 sc1")
    ap.add_argument("--diag", action="store_true")
    for name, dv in (("sleep", 0), ("sbar", 2), ("lvm", 3), ("ns", 8), ("pre", 9), ("pairs", 2), ("thr", 14), ("numa", 1), ("dbgout", 0), ("evw", -1), ("enc", 0), ("encpar", -1), ("tlbx", 0), ("tlbo", 0), ("tstep", 8), ("encv", 0), ("ndf", 0), ("dfpos", 0), ("seq", 0), ("m1", -1), ("m2", -1), ("twice", 0)):
        ap.add_argument("--" + name, type=int, default=dv)
    ap.add_argument("--pubf", default="sc1")
    ap.add_argument("--dff", default="")
    ap.add_argument("--inv", default="")
    ap.add_argument("--pollf", default="sc1")
    a = ap.parse_args()
    kw = vars(a).copy()
    out = kw.pop("o")
    s = gen(**kw)
    if out == "-":
        sys.stdout.write(s)
    else:
        open(out, "w").write(s)
```

```python
import sys, argparse

HEADER = """; Kernarg layout for this problem (48 bytes, ptrs only, base s[0:1]):
"""

NAME = "standalone__channel_attn_se__vision_kernel"
XBYTES = 100663296
MAGIC = 0x5BD1E995
MAGIC2 = 0x2C1B3C6D

L_M = 0
L_HP = 6144
L_P = 6400
L_G = 6656
L_DEC = 7424
L_W = 8192
LDS = 20480
VOTE = 32768
EPOCH = 65536
DIAG = 1 << 20
WS_BYTES = 2 << 20
SB = 49152
WIN = 128 * SB


def gen(ld="nt", st="sc0 sc1", diag=False, sleep=0, spin=400000, pubf="sc1", pollf="sc1", sbar=1,
        lvm=3, ns=8, pre=9, pairs=2, thr=14, dbgout=0, enc=0, sdiag=0, tx=0, to=1, tstep=7, wstep=4, allpar=0,
        mfma=0, prio=0, gw=0, gd=0):
    o = []
    e = o.append
    ldf = (" " + ld) if ld else ""
    stf = (" " + st) if st else ""
    D0 = 40
    SO = 44
    ST = 90
    na = 16 - ns
    adaptive = [(15 - i // 2) if i % 2 == 0 else (9 - i // 2) for i in range(na)][::-1]
    static = [pp for pp in range(16) if pp not in adaptive]
    lorder = static + adaptive
    sorder = []
    si, ai = 0, 0
    for k in range(16):
        if (ai < na and (ai + 1) * 16 <= (k + 1) * na) or si >= len(static):
            sorder.append(adaptive[ai]); ai += 1
        else:
            sorder.append(static[si]); si += 1
    assert sorted(sorder) == list(range(16))
    region = lambda pp: 0 if pp < 10 else 1
    A0 = 2 * ns
    G = A0 - lvm - 1 + gd
    e(HEADER.rstrip())
    e(f"; @launch grid=(256,1,1) block=(768,1,1) lds={LDS}")
    e('.amdgcn_target "amdgcn-amd-amdhsa--gfx950"')
    e(".text")
    e(f".globl {NAME}")
    e(".p2align 8")
    e(f".type {NAME},@function")
    e(f"{NAME}:")
    smap = {0: 0, 1: 1, 3: 2, 5: 3, 6: 4, 7: 5}

    def stamp(i, sd=False):
        if sdiag and i in (1, 7) and not sd:
            return
        if sd and not sdiag:
            return
        if (diag or enc) and i in smap:
            k = smap[i]
            e(f"    s_memrealtime s[{ST+2*k}:{ST+1+2*k}]")

    def dreg(slot):
        return D0 + 4 * slot

    q = []

    def load(slot, track=True):
        d = dreg(slot)
        e(f"    buffer_load_dwordx4 v[{d}:{d+3}], v5, s[16:19], s{SO+slot} offen{ldf}")
        if track:
            q.append(slot)

    def soff(k, pp, u):
        b = 84 if ((pp ^ u) & 1) else 82
        e(f"    s_add_u32 s{SO+2*k}, s{b}, {pp*WIN}")
        e(f"    s_add_u32 s{SO+2*k+1}, s{b+1}, {pp*WIN}")

    us = []
    seen = [0, 0]
    for pp in lorder:
        us.append(seen[region(pp)] & 1)
        seen[region(pp)] += 1

    e("    s_cmp_ge_u32 s2, 256")
    e("    s_cbranch_scc1 L_exit")
    e("    s_load_dwordx2 s[16:17], s[0:1], 0       ; x")
    e("    s_load_dwordx2 s[20:21], s[0:1], 24      ; out")
    e("    s_load_dwordx2 s[24:25], s[0:1], 40      ; ws")
    e("    s_load_dwordx4 s[12:15], s[0:1], 8")
    if diag or enc:
        for i in range(6):
            e(f"    s_mov_b64 s[{ST+2*i}:{ST+1+2*i}], 0")
    stamp(0)
    e("    v_lshrrev_b32 v1, 6, v0")
    e("    v_and_b32 v2, 63, v0                 ; lane")
    e("    v_readfirstlane_b32 s3, v1")
    e("    v_lshrrev_b32 v3, 4, v2              ; q (row)")
    e("    v_and_b32 v4, 15, v2                 ; n")
    e("    v_mul_u32_u24 v5, 768, v3")
    e("    s_mul_i32 s40, s3, 11")
    e("    s_lshr_b32 s40, s40, 5")
    e("    s_mul_i32 s41, s40, 3")
    e("    s_sub_u32 s41, s3, s41               ; seg = wave%3")
    e("    s_lshl_b32 s43, s41, 8")
    e("    v_lshl_add_u32 v5, v4, 4, v5")
    e("    v_add_u32 v5, s43, v5                ; v5 = q*768 + seg*256 + n*16")
    e("    s_mov_b32 s18, %d" % XBYTES)
    e("    s_mov_b32 s19, 0x00020000")
    e("    s_lshr_b32 s42, s2, 3")
    e("    s_and_b32 s43, s2, 3")
    e("    s_lshl2_add_u32 s42, s42, s43")
    e(f"    s_mul_i32 s76, s42, {SB}")
    e("    s_mul_i32 s78, s40, 6144")
    e("    s_add_u32 s78, s78, s76              ; half 0, t0")
    e("    s_add_u32 s80, s78, 24576            ; half 1, t0")
    e("    s_bitcmp1_b32 s2, 2")
    e("    s_cselect_b32 s82, s80, s78")
    e("    s_add_u32 s83, s82, 3072")
    for k in range(2):
        e(f"    s_add_u32 s{SO+2*k}, s82, {lorder[k]*WIN}")
        e(f"    s_add_u32 s{SO+2*k+1}, s83, {lorder[k]*WIN}")
    assert lvm <= 4
    e("    s_waitcnt lgkmcnt(0)")
    for s in range(lvm):
        load(s)
    stamp(1, True)
    for k in range(2, 16):
        e(f"    s_add_u32 s{SO+2*k}, s82, {lorder[k]*WIN}")
        e(f"    s_add_u32 s{SO+2*k+1}, s83, {lorder[k]*WIN}")
    e("    s_mov_b32 s22, %d" % XBYTES)
    e("    s_mov_b32 s23, 0x00020000")
    e("    s_mov_b32 s26, %d" % WS_BYTES)
    e("    s_mov_b32 s27, 0x00020000")
    e("    s_mov_b32 s30, 0xffff0000")
    e("    s_mov_b32 s31, %d" % spin)
    e(f"    s_mov_b32 s87, {VOTE}")
    e("    s_mov_b32 s86, 0")
    e("    s_cmp_gt_u32 s3, 3")
    e("    s_cbranch_scc1 L_norole")
    e("    s_cmp_eq_u32 s3, 0")
    e("    s_cbranch_scc1 L_wave0")
    e("    s_cmp_eq_u32 s3, 3")
    e("    s_cbranch_scc1 L_wave3")
    if tx:
        e("    s_lshr_b32 s42, s2, 3")
        e("    s_and_b32 s43, s42, 15")
        e("    s_add_u32 s43, s43, 32")
        e("    s_cmp_eq_u32 s3, 1")
        e("    s_cselect_b32 s42, s42, s43")
        e("    s_lshl_b32 s42, s42, 21")
        e("    s_load_dword s4, s[16:17], s42")
    e("    s_branch L_norole")
    e("L_wave3:")
    e("    s_load_dword s4, s[12:13], 0")
    e("    s_load_dword s5, s[14:15], 0")
    e("    s_branch L_norole")
    e("L_wave0:")
    e(f"    s_load_dword s28, s[24:25], {EPOCH}")
    e("    s_getreg_b32 s89, hwreg(HW_REG_XCC_ID)")
    e("    s_and_b32 s89, s89, 7")
    e("    s_mov_b32 s38, 0")
    e("    s_mov_b32 s86, 2")
    e("    s_bitcmp1_b32 s89, 0")
    e("    s_cbranch_scc1 L_pubvote")
    e("    s_mov_b32 s86, 1")
    e("    s_bfe_u32 s42, s2, 0x10006")
    e("    s_add_u32 s42, s42, 1")
    e(f"    s_mul_i32 s42, s42, {40<<20}")
    e("    s_bfe_u32 s43, s2, 0x30003")
    e("    s_lshl_b32 s43, s43, 21")
    e("    s_add_u32 s42, s42, s43")
    e("    s_lshr_b32 s43, s2, 7")
    e("    s_lshl_b32 s43, s43, 19")
    e("    s_add_u32 s42, s42, s43")
    e("    s_and_b32 s43, s2, 7")
    e("    s_lshl_b32 s43, s43, 16")
    e("    s_add_u32 s42, s42, s43")
    e("    s_and_b32 s43, s20, 0xffe00000")
    e("    s_add_u32 s6, s43, s42")
    e("    s_addc_u32 s7, s21, 0")
    e("    s_load_dword s4, s[6:7], 4096")
    for sl in range(lvm, pre):
        load(sl, track=False)
    e("    s_waitcnt lgkmcnt(0)")
    offs = [0, 8192, 24576 + 256, 16384 + 256, 32768 + 512, 40960 + 512][:2 * pairs]
    e("    s_memtime s[32:33]")
    e("    s_waitcnt lgkmcnt(0)")
    for i, of in enumerate(offs):
        a_, b_ = (32, 34) if i % 2 == 0 else (34, 32)
        e(f"    s_load_dword s4, s[6:7], {of}")
        e("    s_waitcnt lgkmcnt(0)")
        e(f"    s_memtime s[{b_}:{b_+1}]")
        e("    s_waitcnt lgkmcnt(0)")
        e(f"    s_sub_u32 s{8+(i&1)}, s{b_}, s{a_}")
        if i % 2 == 1:
            e("    s_cmp_gt_u32 s9, s8" if (i // 2) % 2 == 0 else "    s_cmp_gt_u32 s8, s9")
            e("    s_cselect_b32 s39, 16, -16")
            e("    s_add_i32 s38, s38, s39")
    e("    s_lshr_b32 s42, s2, 1")
    e("    s_xor_b32 s42, s42, s89")
    e("    s_sub_i32 s39, 0, s38")
    e("    s_bitcmp1_b32 s42, 2")
    e("    s_cselect_b32 s38, s39, s38")
    e("L_pubvote:")
    e("    s_waitcnt lgkmcnt(0)")
    e("    s_or_b32 s38, s38, s89")
    e("    s_add_u32 s39, s28, 1")
    e("    s_xor_b32 s39, s39, 0x%08x" % MAGIC2)
    e("    s_xor_b32 s39, s39, s38")
    e("    s_lshl_b32 s42, s2, 3")
    e("    v_mov_b32 v32, s38")
    e("    v_mov_b32 v33, s39")
    e("    v_mov_b32 v34, s42")
    e("    s_mov_b64 exec, 1")
    e("    buffer_store_dwordx2 v[32:33], v34, s[24:27], s87 offen sc1")
    e("    s_mov_b64 exec, -1")
    e("L_norole:")
    if mfma:
        e("    v_and_b32 v16, 1, v4")
        e("    v_lshlrev_b32 v16, 4, v16")
        e("    v_mov_b32 v17, 0x3f80")
        e("    v_lshlrev_b32 v16, v16, v17          ; 0x3f80 << 16*(n&1)")
        e("    v_lshrrev_b32 v17, 1, v4             ; n>>1")
        for d in range(4):
            e(f"    v_cmp_eq_u32 vcc, {d}, v17")
            e(f"    v_mov_b32 v{8+d}, 0")
            e("    s_nop 0")
            e(f"    v_cndmask_b32 v{12+d}, 0, v16, vcc")
    e("    v_lshlrev_b32 v1, 4, v2              ; lane*16")

    def acc(slot):
        d = dreg(slot)
        if mfma:
            e(f"    v_mfma_f32_16x16x32_bf16 v[8:11], v[12:15], v[{d}:{d+3}], v[8:11]")
            return
        for i in range(4):
            if slot == 0:
                e(f"    v_lshlrev_b32 v{8+2*i}, 16, v{d+i}")
                e(f"    v_and_b32 v{9+2*i}, s30, v{d+i}")
            else:
                e(f"    v_lshlrev_b32 v{16+2*i}, 16, v{d+i}")
                e(f"    v_and_b32 v{17+2*i}, s30, v{d+i}")
        if slot:
            for i in range(4):
                e(f"    v_pk_add_f32 v[{8+2*i}:{9+2*i}], v[{8+2*i}:{9+2*i}], v[{16+2*i}:{17+2*i}]")

    for j in range(32):
        younger = len(q) - 1 - q.index(j)
        e(f"    s_waitcnt vmcnt({younger})")
        if j == sdiag - 1:
            stamp(7, True)
        if j == A0 - lvm:
            e("    s_waitcnt lgkmcnt(0)")
            e("    s_add_u32 s28, s28, 1                ; epoch + 1")
            e("    s_xor_b32 s29, s28, 0x%08x           ; tag key" % MAGIC)
            e(f"    s_cmp_lg_u32 s3, {gw}")
            e("    s_cbranch_scc1 L_decbar")
            e("    s_xor_b32 s88, s28, 0x%08x           ; vote key" % MAGIC2)
            if gd:
                e(f"    s_waitcnt vmcnt({max(0, lvm - gd)})")
            e("L_vchk:")
            e("    v_bitop3_b32 v28, v32, v33, s88 bitop3:0x96")
            e("    v_bitop3_b32 v29, v34, v35, s88 bitop3:0x96")
            e("    v_bitop3_b32 v30, v36, v37, s88 bitop3:0x96")
            e("    v_bitop3_b32 v27, v38, v39, s88 bitop3:0x96")
            e("    v_or3_b32 v28, v28, v29, v30")
            e("    v_or_b32 v28, v28, v27")
            e("    v_cmp_ne_u32 vcc, 0, v28")
            e("    s_cbranch_vccz L_vok")
            e("    s_sub_u32 s31, s31, 1")
            e("    s_cbranch_scc1 L_vok")
            e("    buffer_load_dwordx4 v[32:35], v1, s[24:27], s87 offen sc1")
            e("    buffer_load_dwordx4 v[36:39], v1, s[24:27], s87 offen offset:1024 sc1")
            e("    s_waitcnt vmcnt(0)")
            e("    s_branch L_vchk")
            e("L_vok:")
            e("    s_and_b32 s42, s2, 0x7b")
            e("    s_lshr_b32 s42, s42, 1")
            e("    v_readlane_b32 s4, v32, s42")
            e("    v_readlane_b32 s5, v34, s42")
            e("    v_readlane_b32 s6, v36, s42")
            e("    v_readlane_b32 s7, v38, s42")
            e("    v_ashrrev_i32 v28, 4, v32")
            e("    v_ashrrev_i32 v29, 4, v34")
            e("    v_ashrrev_i32 v30, 4, v36")
            e("    v_ashrrev_i32 v27, 4, v38")
            e("    v_add3_u32 v28, v28, v29, v30")
            e("    v_add_u32 v28, v28, v27")
            e("    s_bitcmp1_b32 s2, 0")
            e("    s_cselect_b32 s4, s5, s4")
            e("    s_cselect_b32 s6, s7, s6")
            e("    s_bitcmp1_b32 s2, 7")
            e("    s_cselect_b32 s4, s6, s4")
            for sh in (1, 2, 4, 8):
                e("    s_nop 1")
                e(f"    v_add_u32_dpp v28, v28, v28 row_shr:{sh} row_mask:0xf bank_mask:0xf bound_ctrl:0")
            e("    s_nop 1")
            e("    v_add_u32_dpp v28, v28, v28 row_bcast:15 row_mask:0xa bank_mask:0xf")
            e("    v_lshrrev_b32 v30, 3, v2")
            e("    v_and_b32 v30, 4, v30                ; (lane>=32)*4")
            e("    v_mov_b32 v29, s4")
            e("    s_mov_b32 exec_lo, 0x80000000")
            e("    s_mov_b32 exec_hi, 0x80000000")
            e(f"    ds_write_b32 v30, v28 offset:{L_DEC}")
            e(f"    ds_write_b32 v30, v29 offset:{L_DEC+8}")
            e("    s_mov_b64 exec, -1")
            e("    s_waitcnt lgkmcnt(0)")
            stamp(1)
            e("L_decbar:")
            e("    s_barrier")
            e("    v_mov_b32 v28, 0")
            e(f"    ds_read_b96 v[28:30], v28 offset:{L_DEC}")
            e("    s_and_b32 s42, s20, 0x1fffff")
            e("    s_add_u32 s43, s42, 1536")
            e("    s_lshr_b32 s43, s43, 10              ; c")
            e("    s_lshl_b32 s78, s40, 1")
            e("    s_sub_u32 s78, s78, s43              ; u - c (u = 2*grp)")
            e("    s_mul_i32 s78, s78, 11")
            e("    s_add_u32 s79, s78, 11")
            e("    s_and_b32 s78, s78, 15")
            e("    s_and_b32 s79, s79, 15")
            e("    s_xor_b32 s80, s78, 8")
            e("    s_xor_b32 s81, s79, 8")
            for r in (78, 79, 80, 81):
                e(f"    s_mul_i32 s{r}, s{r}, 3072")
                e(f"    s_add_u32 s{r}, s{r}, s76")
            e("    s_add_u32 s77, s76, 24576")
            e("    s_add_u32 s77, s77, s42")
            e("    s_lshr_b32 s77, s77, 19")
            e("    s_xor_b32 s77, s77, s2")
            e("    s_waitcnt lgkmcnt(0)")
            e("    v_readfirstlane_b32 s4, v28")
            e("    v_readfirstlane_b32 s5, v29")
            e("    v_readfirstlane_b32 s6, v30")
            if dbgout:
                e("    s_mov_b32 s76, s4")
                e("    s_mov_b32 s89, s5")
            if allpar:
                e("    s_xor_b32 s42, s16, s20")
                e("    s_lshr_b32 s42, s42, 12")
                e("    s_or_b32 s42, s42, s6")
                e("    s_bitcmp1_b32 s42, 0")
            else:
                e("    s_bitcmp1_b32 s6, 0")
            e("    s_cbranch_scc0 L_nodec")
            e("    s_xor_b32 s77, s77, s6")
            for r in range(2):
                wins = [(k, pp) for k, pp in enumerate(lorder) if pp in adaptive and region(pp) == r]
                if not wins:
                    continue
                e(f"    s_abs_i32 s42, s{4+r}")
                e(f"    s_cmp_lt_u32 s42, {thr}")
                e(f"    s_cbranch_scc1 L_keep{r}")
                e(f"    s_lshr_b32 s42, s{4+r}, 29")
                e("    s_xor_b32 s42, s42, s77")
                e("    s_bitcmp1_b32 s42, 2")
                e("    s_cselect_b32 s82, s80, s78")
                e("    s_cselect_b32 s83, s81, s79")
                e("    s_cselect_b32 s84, s78, s80")
                e("    s_cselect_b32 s85, s79, s81")
                for k, pp in wins:
                    soff(k, pp, 0)
                e(f"L_keep{r}:")
            e("L_nodec:")
        if j + lvm < 32:
            k = j + lvm
            if k < pre:
                e("    s_cmp_eq_u32 s86, 1")
                e(f"    s_cbranch_scc1 L_sk{k}")
                load(k)
                e(f"L_sk{k}:")
            else:
                load(k)
            if k == G:
                e(f"    s_cmp_lg_u32 s3, {gw}")
                e("    s_cbranch_scc1 L_nog")
                e("    buffer_load_dwordx4 v[32:35], v1, s[24:27], s87 offen sc1")
                e("    buffer_load_dwordx4 v[36:39], v1, s[24:27], s87 offen offset:1024 sc1")
                e("L_nog:")
        acc(j)
        if j == wstep:
            e("    s_cmp_lt_u32 s3, 5")
            e("    s_cselect_b32 s36, s14, s12")
            e("    s_cselect_b32 s37, s15, s13")
            e("    s_cselect_b32 s42, 0, 5120")
            e("    s_mov_b32 s38, 4608")
            e("    s_mov_b32 s39, 0x00020000")
            e("    s_lshl_b32 s43, s3, 10")
            e(f"    s_add_u32 m0, s43, {L_W}")
            e("    s_sub_u32 s43, s43, s42")
            e("    buffer_load_dwordx4 v1, s[36:39], s43 offen lds")
            q.append("w")
        if j == tstep:
            e(f"    s_load_dword s28, s[24:25], {EPOCH}")
            if to:
                e("    s_cmp_gt_u32 s3, 2")
                e("    s_cbranch_scc1 L_noto")
                e("    s_lshr_b32 s42, s2, 3")
                e("    s_and_b32 s43, s42, 15")
                e("    s_add_u32 s43, s43, 32")
                e("    s_cmp_eq_u32 s3, 1")
                e("    s_cselect_b32 s42, s42, s43")
                e("    s_lshl_b32 s42, s42, 21")
                e("    s_load_dword s10, s[20:21], s42")
                e("L_noto:")
        if j == 18:
            e("    s_mul_i32 s42, s41, 1536")
            e("    s_mul_i32 s43, s40, 6")
            e("    s_add_u32 s42, s42, s43")
            e("    v_mul_u32_u24 v27, 24, v2")
            e("    v_add_u32 v27, s42, v27")
            for i in range(3):
                e(f"    ds_read_u16 v{24+i}, v27 offset:{L_W+5120+2*i}")
            e("    s_mul_i32 s42, s40, 1536")
            e("    s_lshl_b32 s43, s41, 9")
            e("    s_add_u32 s42, s42, s43")
            e("    v_lshlrev_b32 v6, 5, v4")
            e(f"    v_lshl_add_u32 v6, v3, {4 if mfma else 3}, v6")
            e("    v_add_u32 v6, s42, v6")
            e("    s_lshl_b32 s43, s41, 7")
            e("    v_lshlrev_b32 v7, 3, v4")
            e("    v_add_u32 v7, s43, v7")
            e("    v_subrev_u32 v27, 192, v7")
            e("    v_min_u32 v7, v7, v27")
            e("    v_lshlrev_b32 v7, 2, v7")
            e("    v_and_b32 v27, 1, v3")
            e("    v_lshrrev_b32 v31, 1, v3")
            e("    v_lshl_add_u32 v31, v27, 1, v31")
            e("    v_lshlrev_b32 v31, 2, v31            ; i(row)*4")
            e("    s_lshl_b32 s42, s41, 6")
            e("    s_lshl_b32 s43, s40, 4")
            e("    s_add_u32 s42, s42, s43")
            e("    v_add_u32 v4, s42, v31")
            e("    s_lshl_b32 s42, s41, 8")
            e("    v_lshlrev_b32 v3, 2, v2")
            e("    v_add_u32 v3, s42, v3")
            e("    s_waitcnt lgkmcnt(0)")
            for r in (24, 25, 26):
                e(f"    v_lshlrev_b32 v{r}, 16, v{r}")
    if mfma:
        e("    s_mov_b32 exec_hi, 0")
        e("    s_nop 7")
        e(f"    ds_write_b128 v6, v[8:11] offset:{L_M}")
        e("    s_mov_b32 exec_hi, -1")
    else:
        e("    s_nop 1")
        for i in range(4):
            e(f"    v_permlane32_swap_b32 v{8+i}, v{12+i}")
        for i in range(4):
            e(f"    v_add_f32 v{8+i}, v{8+i}, v{12+i}")
        e("    s_nop 0")
        e("    v_permlane16_swap_b32 v8, v10")
        e("    v_permlane16_swap_b32 v9, v11")
        e("    v_add_f32 v8, v8, v10")
        e("    v_add_f32 v9, v9, v11")
        e(f"    ds_write_b64 v6, v[8:9] offset:{L_M}")
    e("    s_waitcnt lgkmcnt(0)")
    e("    s_barrier")
    stamp(3)
    for k in range(4):
        e(f"    ds_read2st64_b32 v[{16+2*k}:{17+2*k}], v3 offset0:{6*k} offset1:{6*k+3}")
    e("    s_waitcnt lgkmcnt(2)" if not (diag or enc) else "    s_waitcnt lgkmcnt(0)")
    e("    v_pk_add_f32 v[16:17], v[16:17], v[18:19]")
    e("    s_waitcnt lgkmcnt(0)")
    e("    v_pk_add_f32 v[20:21], v[20:21], v[22:23]")
    e("    v_pk_add_f32 v[16:17], v[16:17], v[20:21]")
    e("    v_add_f32 v16, v16, v17")
    e("    v_mul_f32 v10, v16, v26")
    e("    v_mul_f32 v11, v16, v26")
    e("    v_mul_f32 v8, v16, v24")
    e("    v_mul_f32 v9, v16, v25")
    e("    v_permlane32_swap_b32 v10, v11")
    e("    s_nop 0")
    e("    v_permlane32_swap_b32 v8, v9")
    e("    v_add_f32 v10, v10, v11              ; [c | c]")
    e("    v_add_f32 v8, v8, v9                 ; [a | b]")
    e("    s_nop 1")
    e("    v_permlane16_swap_b32 v8, v10")
    e("    v_add_f32 v8, v8, v10                ; rows: a, c, b, c")
    e("    s_nop 1")
    e("    v_add_f32_dpp v9, v8, v8 row_shr:1 row_mask:0xf bank_mask:0xf bound_ctrl:0")
    e("    v_add_f32_dpp v9, v8, v9 row_shr:2 row_mask:0xf bank_mask:0xf bound_ctrl:0")
    e("    v_add_f32_dpp v9, v8, v9 row_shr:3 row_mask:0xf bank_mask:0xf bound_ctrl:0")
    e("    s_nop 1")
    e("    v_add_f32_dpp v9, v9, v9 row_shr:4 row_mask:0xf bank_mask:0xf bound_ctrl:0")
    e("    s_nop 1")
    e("    v_add_f32_dpp v9, v9, v9 row_shr:8 row_mask:0xf bank_mask:0xf bound_ctrl:0")
    e("    s_mov_b32 exec_lo, 0x80008000")
    e("    s_mov_b32 exec_hi, 0x00008000")
    e(f"    ds_write_b32 v4, v9 offset:{L_HP}")
    e("    s_mov_b64 exec, -1")
    e("    s_lshl_b32 s42, s2, 6")
    e("    s_cmp_lg_u32 s3, 4")
    e("    s_waitcnt lgkmcnt(0)")
    e("    s_barrier")
    e("    s_cbranch_scc1 L_notpub")
    e("    s_mov_b64 exec, 15")
    e(f"    ds_read_b128 v[8:11], v1 offset:{L_HP}")
    e(f"    ds_read_b128 v[12:15], v1 offset:{L_HP+64}")
    e(f"    ds_read_b128 v[16:19], v1 offset:{L_HP+128}")
    e("    s_waitcnt lgkmcnt(1)")
    e("    v_pk_add_f32 v[8:9], v[8:9], v[12:13]")
    e("    v_add_f32 v10, v10, v14")
    e("    s_waitcnt lgkmcnt(0)")
    e("    v_pk_add_f32 v[8:9], v[8:9], v[16:17]")
    e("    v_add_f32 v10, v10, v18")
    e("    v_bitop3_b32 v11, v8, v9, s29 bitop3:0x96")
    e("    v_xor_b32 v11, v11, v10")
    e(f"    buffer_store_dwordx4 v[8:11], v1, s[24:27], s42 offen {pubf}")
    e("    s_mov_b64 exec, -1")
    stamp(7)
    e("    s_branch L_b3")
    e("L_notpub:")
    e("    s_cmp_lt_u32 s3, 4")
    e("    s_cbranch_scc1 L_poll_start")
    e("    s_cmp_gt_u32 s3, 7")
    e("    s_cbranch_scc1 L_b3")
    e("    v_subrev_u32 v1, 320, v0")
    e("    v_lshlrev_b32 v21, 2, v1")
    e("    v_lshlrev_b32 v1, 1, v1")
    for r in range(12):
        e(f"    ds_read_u16 v{8+r}, v1 offset:{L_W+384*r}")
    e("    v_and_b32 v20, 15, v2")
    e("    v_lshlrev_b32 v20, 2, v20")
    e(f"    v_add_u32 v20, {L_P}, v20")
    e("    s_waitcnt lgkmcnt(0)")
    for r in range(12):
        e(f"    v_lshlrev_b32 v{8+r}, 16, v{8+r}")
    e("    s_barrier")
    e("    ds_read2_b32 v[22:23], v20 offset0:0 offset1:16")
    e("    ds_read2_b32 v[24:25], v20 offset0:32 offset1:48")
    e("    s_waitcnt lgkmcnt(0)")
    e("    v_pk_add_f32 v[22:23], v[22:23], v[24:25]")
    e("    v_add_f32 v22, v22, v23")
    e("    v_mul_f32 v22, 0x36800000, v22       ; * 2^-18")
    e("    v_cvt_pk_bf16_f32 v22, v22, v22")
    e("    v_lshlrev_b32 v22, 16, v22")
    e("    v_mul_f32 v23, 0xbfb8aa3b, v22       ; -log2e * x")
    e("    v_exp_f32 v23, v23")
    e("    s_nop 0")
    e("    v_add_f32 v23, 1.0, v23")
    e("    v_rcp_f32 v23, v23")
    e("    s_nop 0")
    e("    v_mul_f32 v22, v22, v23")
    e("    v_cvt_pk_bf16_f32 v22, v22, v22")
    e("    v_lshlrev_b32 v22, 16, v22")
    e("    s_nop 1")
    for r in range(12):
        a = 23 + (r % 3)
        op = "v_mul_f32_dpp" if r < 3 else "v_fmac_f32_dpp"
        e(f"    {op} v{a}, v22, v{8+r} row_newbcast:{r} row_mask:0xf bank_mask:0xf")
    e("    v_add_f32 v23, v23, v24")
    e("    v_add_f32 v23, v23, v25")
    e("    v_cvt_pk_bf16_f32 v23, v23, v23")
    e("    v_lshlrev_b32 v23, 16, v23")
    e("    v_mul_f32 v23, 0xbfb8aa3b, v23")
    e("    v_exp_f32 v23, v23")
    e("    s_nop 0")
    e("    v_add_f32 v23, 1.0, v23")
    e("    v_rcp_f32 v23, v23")
    e("    s_nop 0")
    e("    v_cvt_pk_bf16_f32 v23, v23, v23")
    e("    v_lshlrev_b32 v23, 16, v23")
    e(f"    ds_write_b32 v21, v23 offset:{L_G}")
    e("    s_waitcnt lgkmcnt(0)")
    e("    s_branch L_b4")

    e("L_poll_start:")
    e("    s_lshl_b32 s42, s3, 12")
    e("    v_and_b32 v27, 3, v2")
    e("    v_mul_u32_u24 v27, 12, v27")
    e("    s_lshl_b32 s43, s3, 6")
    e("    v_add3_u32 v31, v31, v27, s43")
    regs = (8, 12, 16, 20)
    for k in range(4):
        e(f"    s_mov_b64 s[{4+2*k}:{5+2*k}], -1")
    e("L_poll:")
    for k in range(4):
        e(f"    s_mov_b64 exec, s[{4+2*k}:{5+2*k}]")
        e(f"    s_cbranch_execz L_skip{k}")
        e(f"    buffer_load_dwordx4 v[{regs[k]}:{regs[k]+3}], v1, s[24:27], s42 offen offset:{1024*k} {pollf}")
        e(f"L_skip{k}:")
    e("    s_mov_b64 exec, -1")
    e("    s_waitcnt vmcnt(0)")
    for k in range(4):
        r = regs[k]
        e(f"    v_bitop3_b32 v{27+k}, v{r}, v{r+1}, s29 bitop3:0x96")
    for k in range(4):
        r = regs[k]
        e(f"    v_bitop3_b32 v{27+k}, v{27+k}, v{r+2}, v{r+3} bitop3:0x96")
    for k in range(4):
        e(f"    v_cmp_ne_u32 s[{4+2*k}:{5+2*k}], 0, v{27+k}")
    e("    s_or_b64 s[82:83], s[4:5], s[6:7]")
    e("    s_or_b64 vcc, s[8:9], s[10:11]")
    e("    s_or_b64 s[82:83], s[82:83], vcc")
    e("    s_cbranch_scc0 L_poll_ok")
    e("    s_sub_u32 s31, s31, 1")
    e("    s_cbranch_scc1 L_poll_ok")
    if sleep:
        e(f"    s_sleep {sleep}")
    e("    s_branch L_poll")
    e("L_poll_ok:")
    stamp(7)
    e("    v_add_f32 v10, v10, v14")
    e("    v_add_f32 v18, v18, v22")
    e("    v_pk_add_f32 v[8:9], v[8:9], v[12:13]")
    e("    v_pk_add_f32 v[16:17], v[16:17], v[20:21]")
    e("    v_add_f32 v11, v10, v18")
    e("    v_add_f32 v10, v10, v18")
    e("    v_pk_add_f32 v[8:9], v[8:9], v[16:17]")
    e("    s_nop 0")
    e("    v_permlane32_swap_b32 v10, v11")
    e("    v_permlane32_swap_b32 v8, v9")
    e("    v_add_f32 v10, v10, v11              ; [c | c]")
    e("    v_add_f32 v8, v8, v9                 ; [a | b]")
    e("    s_nop 1")
    e("    v_permlane16_swap_b32 v8, v10")
    e("    v_add_f32 v8, v8, v10                ; rows: a, c, b, c")
    e("    s_nop 1")
    e("    v_add_f32_dpp v8, v8, v8 row_shr:4 row_mask:0xf bank_mask:0xf bound_ctrl:0")
    e("    s_nop 1")
    e("    v_add_f32_dpp v8, v8, v8 row_shr:8 row_mask:0xf bank_mask:0xf bound_ctrl:0")
    e("    s_mov_b32 exec_lo, 0xf000f000")
    e("    s_mov_b32 exec_hi, 0x0000f000")
    e(f"    ds_write_b32 v31, v8 offset:{L_P}")
    e("    s_mov_b64 exec, -1")
    e("    s_waitcnt lgkmcnt(0)")
    e("L_b3:")
    e("    s_barrier")
    e("L_b4:")
    e("    s_barrier")
    e(f"    ds_read_b128 v[8:11], v7 offset:{L_G}")
    e(f"    ds_read_b128 v[12:15], v7 offset:{L_G+16}")

    cnt = [0]

    def scale_store(slot, first=False):
        t = 16 + 8 * (cnt[0] & 1)
        cnt[0] += 1
        for i in range(4):
            d = dreg(slot) + i
            e(f"    v_lshlrev_b32 v{t+2*i}, 16, v{d}")
            e(f"    v_and_b32 v{t+1+2*i}, s30, v{d}")
        if first:
            e("    s_waitcnt lgkmcnt(0)")
            stamp(5)
        for i in range(4):
            e(f"    v_pk_mul_f32 v[{t+2*i}:{t+1+2*i}], v[{t+2*i}:{t+1+2*i}], v[{8+2*i}:{9+2*i}]")
        for i in range(4):
            d = dreg(slot) + i
            e(f"    v_cvt_pk_bf16_f32 v{d}, v{t+2*i}, v{t+1+2*i}")
        d = dreg(slot)
        e(f"    buffer_store_dwordx4 v[{d}:{d+3}], v5, s[20:23], s{SO+slot} offen{stf}")

    sslots = []
    for pp in sorder:
        k = lorder.index(pp)
        sslots += [2 * k, 2 * k + 1]
    for j in range(32):
        scale_store(sslots[j], first=(j == 0))
        if j == 1:
            e("    s_cmp_lg_u32 s2, 0")
            e("    s_cbranch_scc1 L_noep")
            e("    s_cmp_lg_u32 s3, 11")
            e("    s_cbranch_scc1 L_noep")
            e(f"    v_mov_b32 v1, {EPOCH}")
            e("    v_mov_b32 v3, s28")
            e("    s_mov_b64 exec, 1")
            e("    buffer_store_dword v3, v1, s[24:27], 0 offen sc1")
            if dbgout:
                e("    s_load_dwordx2 s[32:33], s[0:1], 32")
                e("    s_mov_b32 s34, 256")
                e("    s_mov_b32 s35, 0x00020000")
                e("    v_mov_b32 v2, s76")
                e("    v_mov_b32 v3, s89")
                e("    v_mov_b32 v1, 0")
                e("    s_waitcnt lgkmcnt(0)")
                e("    buffer_store_dwordx2 v[2:3], v1, s[32:35], 0 offen")
            e("    s_mov_b64 exec, -1")
            e("L_noep:")
        if sbar and (j + 1) % sbar == 0 and j != 31:
            e("    s_barrier")
    if enc:
        e("    s_waitcnt vmcnt(0)")
        stamp(6)
        e("    s_waitcnt lgkmcnt(0)")
        a, b = {1: (0, 0), 2: (0, 3), 3: (0, 5), 4: (5, 6), 5: (0, 6)}[enc]
        e(f"    s_sub_u32 s42, s{ST+2*smap[b]}, s{ST+2*smap[a]}")
        e("L_enc:")
        e("    s_memrealtime s[4:5]")
        e("    s_waitcnt lgkmcnt(0)")
        e(f"    s_sub_u32 s43, s4, s{ST+2*smap[6]}")
        e("    s_cmp_lt_u32 s43, s42")
        e("    s_cbranch_scc1 L_enc")
    if diag:
        e("    s_waitcnt vmcnt(0)")
        stamp(6)
        e("    s_waitcnt lgkmcnt(0)")
        e("    s_mul_i32 s42, s2, 12")
        e("    s_add_u32 s42, s42, s3")
        e("    s_lshl_b32 s42, s42, 7")
        e(f"    s_add_u32 s42, s42, {DIAG}")
        e("    v_mov_b32 v1, s42")
        e("    s_mov_b64 exec, 1")
        inv = {v: k for k, v in smap.items()}
        for k in range(6):
            e(f"    v_mov_b32 v16, s{ST+2*k}")
            e(f"    v_mov_b32 v17, s{ST+2*k+1}")
            e(f"    buffer_store_dwordx2 v[16:17], v1, s[24:27], 0 offen offset:{8*inv[k]}")
            e("    s_nop 2")
        e("    s_getreg_b32 s42, hwreg(HW_REG_XCC_ID)")
        e("    v_mov_b32 v16, s42")
        e("    v_mov_b32 v17, s31")
        e("    buffer_store_dwordx2 v[16:17], v1, s[24:27], 0 offen offset:88")
    e("L_exit:")
    e("    s_endpgm")
    e('.section .rodata,"a"')
    e(".p2align 6")
    e(f".amdhsa_kernel {NAME}")
    e("  .amdhsa_next_free_vgpr 168")
    e("  .amdhsa_next_free_sgpr 102")
    e("  .amdhsa_accum_offset 168")
    e("  .amdhsa_group_segment_fixed_size 0")
    e("  .amdhsa_kernarg_size 48")
    e("  .amdhsa_user_sgpr_count 2")
    e("  .amdhsa_user_sgpr_kernarg_segment_ptr 1")
    e("  .amdhsa_system_sgpr_workgroup_id_x 1")
    e("  .amdhsa_float_denorm_mode_32 3")
    e(".end_amdhsa_kernel")
    return "\n".join(o) + "\n"


if __name__ == "__main__":
    ap = argparse.ArgumentParser()
    ap.add_argument("-o", default="-")
    ap.add_argument("--ld", default="nt")
    ap.add_argument("--st", default="sc0 sc1")
    ap.add_argument("--diag", action="store_true")
    for name, dv in (("sleep", 0), ("sbar", 1), ("lvm", 3), ("ns", 8), ("pre", 9), ("pairs", 2), ("thr", 14), ("dbgout", 0),
                     ("enc", 0), ("sdiag", 0), ("tx", 0), ("to", 1), ("tstep", 7), ("wstep", 4), ("allpar", 0), ("mfma", 0), ("prio", 0), ("gw", 0), ("gd", 0)):
        ap.add_argument("--" + name, type=int, default=dv)
    ap.add_argument("--pubf", default="sc1")
    ap.add_argument("--pollf", default="sc1")
    a = ap.parse_args()
    kw = vars(a).copy()
    out = kw.pop("o")
    s = gen(**kw)
    if out == "-":
        sys.stdout.write(s)
    else:
        open(out, "w").write(s)
```

```python
import sys, argparse

HEADER = """; Kernarg layout for this problem (48 bytes, ptrs only, base s[0:1]):
"""

NAME = "standalone__channel_attn_se__vision_kernel"
XBYTES = 100663296
MAGIC = 0x5BD1E995
MAGIC2 = 0x2C1B3C6D

L_M = 0
L_HP = 6144
L_P = 6400
L_G = 6656
L_DEC = 7424
L_W = 8192
LDS = 20480
VOTE = 32768
EPOCH = 65536
DIAG = 1 << 20
WS_BYTES = 2 << 20
SB = 49152
WIN = 128 * SB


def gen(ld="nt", st="sc0 sc1", diag=False, sleep=0, spin=400000, pubf="sc1", pollf="sc1", sbar=1,
        lvm=3, ns=8, pre=9, pairs=2, thr=14, dbgout=0, enc=0, sdiag=0, tx=0, to=1, tstep=7, wstep=4, allpar=0,
        mfma=0, prio=0, gw=0, gd=0, clk=0, dot=0, pg=0, stub=0):
    o = []
    e = o.append
    ldf = (" " + ld) if ld else ""
    stf = (" " + st) if st else ""
    D0 = 40
    SO = 44
    ST = 90
    na = 16 - ns
    adaptive = [(15 - i // 2) if i % 2 == 0 else (9 - i // 2) for i in range(na)][::-1]
    static = [pp for pp in range(16) if pp not in adaptive]
    lorder = static + adaptive
    sorder = []
    si, ai = 0, 0
    for k in range(16):
        if (ai < na and (ai + 1) * 16 <= (k + 1) * na) or si >= len(static):
            sorder.append(adaptive[ai]); ai += 1
        else:
            sorder.append(static[si]); si += 1
    assert sorted(sorder) == list(range(16))
    region = lambda pp: 0 if pp < 10 else 1
    A0 = 2 * ns
    G = A0 - lvm - 1 + gd
    e(HEADER.rstrip())
    e(f"; @launch grid=(256,1,1) block=(768,1,1) lds={LDS}")
    e('.amdgcn_target "amdgcn-amd-amdhsa--gfx950"')
    e(".text")
    e(f".globl {NAME}")
    e(".p2align 8")
    e(f".type {NAME},@function")
    e(f"{NAME}:")
    smap = {0: 0, 1: 1, 3: 2, 5: 3, 6: 4, 7: 5}

    def stamp(i, sd=False):
        if clk and i in (1, 7):
            return
        if clk and diag and i == (5 if clk == 1 else 0):
            e(f"    s_memtime s[{ST+2*smap[1]}:{ST+1+2*smap[1]}]")
        if clk and diag and i == (6 if clk == 1 else 3):
            e(f"    s_memtime s[{ST+2*smap[7]}:{ST+1+2*smap[7]}]")
        if sdiag and i in (1, 7) and not sd:
            return
        if sd and not sdiag:
            return
        if (diag or enc) and i in smap:
            k = smap[i]
            e(f"    s_memrealtime s[{ST+2*k}:{ST+1+2*k}]")

    def dreg(slot):
        return D0 + 4 * slot

    q = []

    def load(slot, track=True):
        d = dreg(slot)
        e(f"    buffer_load_dwordx4 v[{d}:{d+3}], v5, s[16:19], s{SO+slot} offen{ldf}")
        if track:
            q.append(slot)

    def soff(k, pp, u):
        b = 84 if ((pp ^ u) & 1) else 82
        e(f"    s_add_u32 s{SO+2*k}, s{b}, {pp*WIN}")
        e(f"    s_add_u32 s{SO+2*k+1}, s{b+1}, {pp*WIN}")

    us = []
    seen = [0, 0]
    for pp in lorder:
        us.append(seen[region(pp)] & 1)
        seen[region(pp)] += 1

    e("    s_cmp_ge_u32 s2, 256")
    e("    s_cbranch_scc1 L_exit")
    e("    s_load_dwordx2 s[16:17], s[0:1], 0       ; x")
    e("    s_load_dwordx2 s[20:21], s[0:1], 24      ; out")
    e("    s_load_dwordx2 s[24:25], s[0:1], 40      ; ws")
    e("    s_load_dwordx4 s[12:15], s[0:1], 8")
    if diag or enc:
        for i in range(6):
            e(f"    s_mov_b64 s[{ST+2*i}:{ST+1+2*i}], 0")
    stamp(0)
    e("    v_lshrrev_b32 v1, 6, v0")
    e("    v_and_b32 v2, 63, v0                 ; lane")
    e("    v_readfirstlane_b32 s3, v1")
    e("    v_lshrrev_b32 v3, 4, v2              ; q (row)")
    e("    v_and_b32 v4, 15, v2                 ; n")
    e("    v_mul_u32_u24 v5, 768, v3")
    e("    s_mul_i32 s40, s3, 11")
    e("    s_lshr_b32 s40, s40, 5")
    e("    s_mul_i32 s41, s40, 3")
    e("    s_sub_u32 s41, s3, s41               ; seg = wave%3")
    e("    s_lshl_b32 s43, s41, 8")
    e("    v_lshl_add_u32 v5, v4, 4, v5")
    e("    v_add_u32 v5, s43, v5                ; v5 = q*768 + seg*256 + n*16")
    e("    s_mov_b32 s18, %d" % XBYTES)
    e("    s_mov_b32 s19, 0x00020000")
    e("    s_lshr_b32 s42, s2, 3")
    e("    s_and_b32 s43, s2, 3")
    e("    s_lshl2_add_u32 s42, s42, s43")
    e(f"    s_mul_i32 s76, s42, {SB}")
    e("    s_mul_i32 s78, s40, 6144")
    e("    s_add_u32 s78, s78, s76              ; half 0, t0")
    e("    s_add_u32 s80, s78, 24576            ; half 1, t0")
    e("    s_bitcmp1_b32 s2, 2")
    e("    s_cselect_b32 s82, s80, s78")
    e("    s_add_u32 s83, s82, 3072")
    for k in range(2):
        e(f"    s_add_u32 s{SO+2*k}, s82, {lorder[k]*WIN}")
        e(f"    s_add_u32 s{SO+2*k+1}, s83, {lorder[k]*WIN}")
    assert lvm <= 4
    e("    s_waitcnt lgkmcnt(0)")
    for s in range(lvm):
        load(s)
    stamp(1, True)
    for k in range(2, 16):
        e(f"    s_add_u32 s{SO+2*k}, s82, {lorder[k]*WIN}")
        e(f"    s_add_u32 s{SO+2*k+1}, s83, {lorder[k]*WIN}")
    e("    s_mov_b32 s22, %d" % XBYTES)
    e("    s_mov_b32 s23, 0x00020000")
    e("    s_mov_b32 s26, %d" % WS_BYTES)
    e("    s_mov_b32 s27, 0x00020000")
    e("    s_mov_b32 s30, 0xffff0000")
    e("    s_mov_b32 s31, %d" % spin)
    e(f"    s_mov_b32 s87, {VOTE}")
    e("    s_mov_b32 s86, 0")
    e("    s_cmp_gt_u32 s3, 3")
    e("    s_cbranch_scc1 L_norole")
    e("    s_cmp_eq_u32 s3, 0")
    e("    s_cbranch_scc1 L_wave0")
    e("    s_cmp_eq_u32 s3, 3")
    e("    s_cbranch_scc1 L_wave3")
    if tx:
        e("    s_lshr_b32 s42, s2, 3")
        e("    s_and_b32 s43, s42, 15")
        e("    s_add_u32 s43, s43, 32")
        e("    s_cmp_eq_u32 s3, 1")
        e("    s_cselect_b32 s42, s42, s43")
        e("    s_lshl_b32 s42, s42, 21")
        e("    s_load_dword s4, s[16:17], s42")
    e("    s_branch L_norole")
    e("L_wave3:")
    e("    s_load_dword s4, s[12:13], 0")
    e("    s_load_dword s5, s[14:15], 0")
    e("    s_branch L_norole")
    e("L_wave0:")
    e(f"    s_load_dword s28, s[24:25], {EPOCH}")
    e("    s_getreg_b32 s89, hwreg(HW_REG_XCC_ID)")
    e("    s_and_b32 s89, s89, 7")
    e("    s_mov_b32 s38, 0")
    e("    s_mov_b32 s86, 2")
    e("    s_bitcmp1_b32 s89, 0")
    e("    s_cbranch_scc1 L_pubvote")
    e("    s_mov_b32 s86, 1")
    e("    s_bfe_u32 s42, s2, 0x10006")
    e("    s_add_u32 s42, s42, 1")
    e(f"    s_mul_i32 s42, s42, {40<<20}")
    e("    s_bfe_u32 s43, s2, 0x30003")
    e("    s_lshl_b32 s43, s43, 21")
    e("    s_add_u32 s42, s42, s43")
    e("    s_lshr_b32 s43, s2, 7")
    e("    s_lshl_b32 s43, s43, 19")
    e("    s_add_u32 s42, s42, s43")
    e("    s_and_b32 s43, s2, 7")
    e("    s_lshl_b32 s43, s43, 16")
    e("    s_add_u32 s42, s42, s43")
    e("    s_and_b32 s43, s20, 0xffe00000")
    e("    s_add_u32 s6, s43, s42")
    e("    s_addc_u32 s7, s21, 0")
    e("    s_load_dword s4, s[6:7], 4096")
    for sl in range(lvm, pre):
        load(sl, track=False)
    e("    s_waitcnt lgkmcnt(0)")
    offs = [0, 8192, 24576 + 256, 16384 + 256, 32768 + 512, 40960 + 512][:2 * pairs]
    e("    s_memtime s[32:33]")
    e("    s_waitcnt lgkmcnt(0)")
    for i, of in enumerate(offs):
        a_, b_ = (32, 34) if i % 2 == 0 else (34, 32)
        e(f"    s_load_dword s4, s[6:7], {of}")
        e("    s_waitcnt lgkmcnt(0)")
        e(f"    s_memtime s[{b_}:{b_+1}]")
        e("    s_waitcnt lgkmcnt(0)")
        e(f"    s_sub_u32 s{8+(i&1)}, s{b_}, s{a_}")
        if i % 2 == 1:
            e("    s_cmp_gt_u32 s9, s8" if (i // 2) % 2 == 0 else "    s_cmp_gt_u32 s8, s9")
            e("    s_cselect_b32 s39, 16, -16")
            e("    s_add_i32 s38, s38, s39")
    e("    s_lshr_b32 s42, s2, 1")
    e("    s_xor_b32 s42, s42, s89")
    e("    s_sub_i32 s39, 0, s38")
    e("    s_bitcmp1_b32 s42, 2")
    e("    s_cselect_b32 s38, s39, s38")
    e("L_pubvote:")
    e("    s_waitcnt lgkmcnt(0)")
    e("    s_or_b32 s38, s38, s89")
    e("    s_add_u32 s39, s28, 1")
    e("    s_xor_b32 s39, s39, 0x%08x" % MAGIC2)
    e("    s_xor_b32 s39, s39, s38")
    e("    s_lshl_b32 s42, s2, 3")
    e("    v_mov_b32 v32, s38")
    e("    v_mov_b32 v33, s39")
    e("    v_mov_b32 v34, s42")
    e("    s_mov_b64 exec, 1")
    e("    buffer_store_dwordx2 v[32:33], v34, s[24:27], s87 offen sc1")
    e("    s_mov_b64 exec, -1")
    e("L_norole:")
    if mfma:
        e("    v_and_b32 v16, 1, v4")
        e("    v_lshlrev_b32 v16, 4, v16")
        e("    v_mov_b32 v17, 0x3f80")
        e("    v_lshlrev_b32 v16, v16, v17          ; 0x3f80 << 16*(n&1)")
        e("    v_lshrrev_b32 v17, 1, v4             ; n>>1")
        for d in range(4):
            e(f"    v_cmp_eq_u32 vcc, {d}, v17")
            e(f"    v_mov_b32 v{8+d}, 0")
            e("    s_nop 0")
            e(f"    v_cndmask_b32 v{12+d}, 0, v16, vcc")
    e("    v_lshlrev_b32 v1, 4, v2              ; lane*16")

    def acc(slot):
        d = dreg(slot)
        if mfma:
            e(f"    v_mfma_f32_16x16x32_bf16 v[8:11], v[12:15], v[{d}:{d+3}], v[8:11]")
            return
        for i in range(4):
            if slot == 0:
                e(f"    v_lshlrev_b32 v{8+2*i}, 16, v{d+i}")
                e(f"    v_and_b32 v{9+2*i}, s30, v{d+i}")
            else:
                e(f"    v_lshlrev_b32 v{16+2*i}, 16, v{d+i}")
                e(f"    v_and_b32 v{17+2*i}, s30, v{d+i}")
        if slot:
            for i in range(4):
                e(f"    v_pk_add_f32 v[{8+2*i}:{9+2*i}], v[{8+2*i}:{9+2*i}], v[{16+2*i}:{17+2*i}]")

    for j in range(32):
        younger = len(q) - 1 - q.index(j)
        e(f"    s_waitcnt vmcnt({younger})")
        if j == sdiag - 1:
            stamp(7, True)
        if j == A0 - lvm:
            e("    s_waitcnt lgkmcnt(0)")
            e("    s_add_u32 s28, s28, 1                ; epoch + 1")
            e("    s_xor_b32 s29, s28, 0x%08x           ; tag key" % MAGIC)
            e(f"    s_cmp_lg_u32 s3, {gw}")
            e("    s_cbranch_scc1 L_decbar")
            e("    s_xor_b32 s88, s28, 0x%08x           ; vote key" % MAGIC2)
            if gd:
                e(f"    s_waitcnt vmcnt({max(0, lvm - gd)})")
            e("L_vchk:")
            e("    v_bitop3_b32 v28, v32, v33, s88 bitop3:0x96")
            e("    v_bitop3_b32 v29, v34, v35, s88 bitop3:0x96")
            e("    v_bitop3_b32 v30, v36, v37, s88 bitop3:0x96")
            e("    v_bitop3_b32 v27, v38, v39, s88 bitop3:0x96")
            e("    v_or3_b32 v28, v28, v29, v30")
            e("    v_or_b32 v28, v28, v27")
            e("    v_cmp_ne_u32 vcc, 0, v28")
            e("    s_cbranch_vccz L_vok")
            e("    s_sub_u32 s31, s31, 1")
            e("    s_cbranch_scc1 L_vok")
            e("    buffer_load_dwordx4 v[32:35], v1, s[24:27], s87 offen sc1")
            e("    buffer_load_dwordx4 v[36:39], v1, s[24:27], s87 offen offset:1024 sc1")
            e("    s_waitcnt vmcnt(0)")
            e("    s_branch L_vchk")
            e("L_vok:")
            e("    s_and_b32 s42, s2, 0x7b")
            e("    s_lshr_b32 s42, s42, 1")
            e("    v_readlane_b32 s4, v32, s42")
            e("    v_readlane_b32 s5, v34, s42")
            e("    v_readlane_b32 s6, v36, s42")
            e("    v_readlane_b32 s7, v38, s42")
            e("    v_ashrrev_i32 v28, 4, v32")
            e("    v_ashrrev_i32 v29, 4, v34")
            e("    v_ashrrev_i32 v30, 4, v36")
            e("    v_ashrrev_i32 v27, 4, v38")
            e("    v_add3_u32 v28, v28, v29, v30")
            e("    v_add_u32 v28, v28, v27")
            e("    s_bitcmp1_b32 s2, 0")
            e("    s_cselect_b32 s4, s5, s4")
            e("    s_cselect_b32 s6, s7, s6")
            e("    s_bitcmp1_b32 s2, 7")
            e("    s_cselect_b32 s4, s6, s4")
            for sh in (1, 2, 4, 8):
                e("    s_nop 1")
                e(f"    v_add_u32_dpp v28, v28, v28 row_shr:{sh} row_mask:0xf bank_mask:0xf bound_ctrl:0")
            e("    s_nop 1")
            e("    v_add_u32_dpp v28, v28, v28 row_bcast:15 row_mask:0xa bank_mask:0xf")
            e("    v_lshrrev_b32 v30, 3, v2")
            e("    v_and_b32 v30, 4, v30                ; (lane>=32)*4")
            e("    v_mov_b32 v29, s4")
            e("    s_mov_b32 exec_lo, 0x80000000")
            e("    s_mov_b32 exec_hi, 0x80000000")
            e(f"    ds_write_b32 v30, v28 offset:{L_DEC}")
            e(f"    ds_write_b32 v30, v29 offset:{L_DEC+8}")
            e("    s_mov_b64 exec, -1")
            e("    s_waitcnt lgkmcnt(0)")
            stamp(1)
            e("L_decbar:")
            e("    s_barrier")
            e("    v_mov_b32 v28, 0")
            e(f"    ds_read_b96 v[28:30], v28 offset:{L_DEC}")
            e("    s_and_b32 s42, s20, 0x1fffff")
            e("    s_add_u32 s43, s42, 1536")
            e("    s_lshr_b32 s43, s43, 10              ; c")
            e("    s_lshl_b32 s78, s40, 1")
            e("    s_sub_u32 s78, s78, s43              ; u - c (u = 2*grp)")
            e("    s_mul_i32 s78, s78, 11")
            e("    s_add_u32 s79, s78, 11")
            e("    s_and_b32 s78, s78, 15")
            e("    s_and_b32 s79, s79, 15")
            e("    s_xor_b32 s80, s78, 8")
            e("    s_xor_b32 s81, s79, 8")
            for r in (78, 79, 80, 81):
                e(f"    s_mul_i32 s{r}, s{r}, 3072")
                e(f"    s_add_u32 s{r}, s{r}, s76")
            e("    s_add_u32 s77, s76, 24576")
            e("    s_add_u32 s77, s77, s42")
            e("    s_lshr_b32 s77, s77, 19")
            e("    s_xor_b32 s77, s77, s2")
            e("    s_waitcnt lgkmcnt(0)")
            e("    v_readfirstlane_b32 s4, v28")
            e("    v_readfirstlane_b32 s5, v29")
            e("    v_readfirstlane_b32 s6, v30")
            if dbgout:
                e("    s_mov_b32 s76, s4")
                e("    s_mov_b32 s89, s5")
            if allpar:
                e("    s_xor_b32 s42, s16, s20")
                e("    s_lshr_b32 s42, s42, 12")
                e("    s_or_b32 s42, s42, s6")
                e("    s_bitcmp1_b32 s42, 0")
            else:
                e("    s_bitcmp1_b32 s6, 0")
            e("    s_cbranch_scc0 L_nodec")
            e("    s_xor_b32 s77, s77, s6")
            for r in range(2):
                wins = [(k, pp) for k, pp in enumerate(lorder) if pp in adaptive and region(pp) == r]
                if not wins:
                    continue
                e(f"    s_abs_i32 s42, s{4+r}")
                e(f"    s_cmp_lt_u32 s42, {thr}")
                e(f"    s_cbranch_scc1 L_keep{r}")
                e(f"    s_lshr_b32 s42, s{4+r}, 29")
                e("    s_xor_b32 s42, s42, s77")
                e("    s_bitcmp1_b32 s42, 2")
                e("    s_cselect_b32 s82, s80, s78")
                e("    s_cselect_b32 s83, s81, s79")
                e("    s_cselect_b32 s84, s78, s80")
                e("    s_cselect_b32 s85, s79, s81")
                for k, pp in wins:
                    soff(k, pp, 0)
                e(f"L_keep{r}:")
            e("L_nodec:")
        if j + lvm < 32:
            k = j + lvm
            if k < pre:
                e("    s_cmp_eq_u32 s86, 1")
                e(f"    s_cbranch_scc1 L_sk{k}")
                load(k)
                e(f"L_sk{k}:")
            else:
                load(k)
            if k == G:
                e(f"    s_cmp_lg_u32 s3, {gw}")
                e("    s_cbranch_scc1 L_nog")
                e("    buffer_load_dwordx4 v[32:35], v1, s[24:27], s87 offen sc1")
                e("    buffer_load_dwordx4 v[36:39], v1, s[24:27], s87 offen offset:1024 sc1")
                e("L_nog:")
        acc(j)
        if j == wstep:
            e("    s_cmp_lt_u32 s3, 5")
            e("    s_cselect_b32 s36, s14, s12")
            e("    s_cselect_b32 s37, s15, s13")
            e("    s_cselect_b32 s42, 0, 5120")
            e("    s_mov_b32 s38, 4608")
            e("    s_mov_b32 s39, 0x00020000")
            e("    s_lshl_b32 s43, s3, 10")
            e(f"    s_add_u32 m0, s43, {L_W}")
            e("    s_sub_u32 s43, s43, s42")
            e("    buffer_load_dwordx4 v1, s[36:39], s43 offen lds")
            q.append("w")
        if j == tstep:
            e(f"    s_load_dword s28, s[24:25], {EPOCH}")
            if to:
                e("    s_cmp_gt_u32 s3, 2")
                e("    s_cbranch_scc1 L_noto")
                e("    s_lshr_b32 s42, s2, 3")
                e("    s_and_b32 s43, s42, 15")
                e("    s_add_u32 s43, s43, 32")
                e("    s_cmp_eq_u32 s3, 1")
                e("    s_cselect_b32 s42, s42, s43")
                e("    s_lshl_b32 s42, s42, 21")
                e("    s_load_dword s10, s[20:21], s42")
                e("L_noto:")
        if stub and j == stub:
            e("    s_cmp_eq_u32 s3, 5")
            e("    s_cbranch_scc1 L_stub")
            e("L_stubret:")
        if j == 18:
            e("    s_mul_i32 s42, s41, 1536")
            e("    s_mul_i32 s43, s40, 6")
            e("    s_add_u32 s42, s42, s43")
            e("    v_mul_u32_u24 v27, 24, v2")
            e("    v_add_u32 v27, s42, v27")
            for i in range(3):
                e(f"    ds_read_u16 v{24+i}, v27 offset:{L_W+5120+2*i}")
            e("    s_mul_i32 s42, s40, 1536")
            e("    s_lshl_b32 s43, s41, 9")
            e("    s_add_u32 s42, s42, s43")
            e("    v_lshlrev_b32 v6, 5, v4")
            e(f"    v_lshl_add_u32 v6, v3, {4 if mfma else 3}, v6")
            e("    v_add_u32 v6, s42, v6")
            e("    s_lshl_b32 s43, s41, 7")
            e("    v_lshlrev_b32 v7, 3, v4")
            e("    v_add_u32 v7, s43, v7")
            e("    v_subrev_u32 v27, 192, v7")
            e("    v_min_u32 v7, v7, v27")
            e("    v_lshlrev_b32 v7, 2, v7")
            e("    v_and_b32 v27, 1, v3")
            e("    v_lshrrev_b32 v31, 1, v3")
            e("    v_lshl_add_u32 v31, v27, 1, v31")
            e("    v_lshlrev_b32 v31, 2, v31            ; i(row)*4")
            e("    s_lshl_b32 s42, s41, 6")
            e("    s_lshl_b32 s43, s40, 4")
            e("    s_add_u32 s42, s42, s43")
            e("    v_add_u32 v4, s42, v31")
            e("    s_lshl_b32 s42, s41, 8")
            e("    v_lshlrev_b32 v3, 2, v2")
            e("    v_add_u32 v3, s42, v3")
            e("    s_waitcnt lgkmcnt(0)")
            for r in (24, 25, 26):
                e(f"    v_lshlrev_b32 v{r}, 16, v{r}")
    if mfma:
        e("    s_mov_b32 exec_hi, 0")
        e("    s_nop 7")
        e(f"    ds_write_b128 v6, v[8:11] offset:{L_M}")
        e("    s_mov_b32 exec_hi, -1")
    else:
        e("    s_nop 1")
        for i in range(4):
            e(f"    v_permlane32_swap_b32 v{8+i}, v{12+i}")
        for i in range(4):
            e(f"    v_add_f32 v{8+i}, v{8+i}, v{12+i}")
        e("    s_nop 0")
        e("    v_permlane16_swap_b32 v8, v10")
        e("    v_permlane16_swap_b32 v9, v11")
        e("    v_add_f32 v8, v8, v10")
        e("    v_add_f32 v9, v9, v11")
        e(f"    ds_write_b64 v6, v[8:9] offset:{L_M}")
    e("    s_waitcnt lgkmcnt(0)")
    e("    s_barrier")
    stamp(3)
    for k in range(4):
        e(f"    ds_read2st64_b32 v[{16+2*k}:{17+2*k}], v3 offset0:{6*k} offset1:{6*k+3}")
    e("    s_waitcnt lgkmcnt(2)" if not (diag or enc) else "    s_waitcnt lgkmcnt(0)")
    e("    v_pk_add_f32 v[16:17], v[16:17], v[18:19]")
    e("    s_waitcnt lgkmcnt(0)")
    e("    v_pk_add_f32 v[20:21], v[20:21], v[22:23]")
    e("    v_pk_add_f32 v[16:17], v[16:17], v[20:21]")
    e("    v_add_f32 v16, v16, v17")
    e("    v_mul_f32 v10, v16, v26")
    e("    v_mul_f32 v11, v16, v26")
    e("    v_mul_f32 v8, v16, v24")
    e("    v_mul_f32 v9, v16, v25")
    e("    v_permlane32_swap_b32 v10, v11")
    e("    s_nop 0")
    e("    v_permlane32_swap_b32 v8, v9")
    e("    v_add_f32 v10, v10, v11              ; [c | c]")
    e("    v_add_f32 v8, v8, v9                 ; [a | b]")
    e("    s_nop 1")
    e("    v_permlane16_swap_b32 v8, v10")
    e("    v_add_f32 v8, v8, v10                ; rows: a, c, b, c")
    e("    s_nop 1")
    e("    v_add_f32_dpp v9, v8, v8 row_shr:1 row_mask:0xf bank_mask:0xf bound_ctrl:0")
    e("    v_add_f32_dpp v9, v8, v9 row_shr:2 row_mask:0xf bank_mask:0xf bound_ctrl:0")
    e("    v_add_f32_dpp v9, v8, v9 row_shr:3 row_mask:0xf bank_mask:0xf bound_ctrl:0")
    e("    s_nop 1")
    e("    v_add_f32_dpp v9, v9, v9 row_shr:4 row_mask:0xf bank_mask:0xf bound_ctrl:0")
    e("    s_nop 1")
    e("    v_add_f32_dpp v9, v9, v9 row_shr:8 row_mask:0xf bank_mask:0xf bound_ctrl:0")
    e("    s_mov_b32 exec_lo, 0x80008000")
    e("    s_mov_b32 exec_hi, 0x00008000")
    e(f"    ds_write_b32 v4, v9 offset:{L_HP}")
    e("    s_mov_b64 exec, -1")
    e("    s_lshl_b32 s42, s2, 6")
    e("    s_cmp_lg_u32 s3, 4")
    e("    s_waitcnt lgkmcnt(0)")
    e("    s_barrier")
    e("    s_cbranch_scc1 L_notpub")
    e("    s_mov_b64 exec, 15")
    e(f"    ds_read_b128 v[8:11], v1 offset:{L_HP}")
    e(f"    ds_read_b128 v[12:15], v1 offset:{L_HP+64}")
    e(f"    ds_read_b128 v[16:19], v1 offset:{L_HP+128}")
    e("    s_waitcnt lgkmcnt(1)")
    e("    v_pk_add_f32 v[8:9], v[8:9], v[12:13]")
    e("    v_add_f32 v10, v10, v14")
    e("    s_waitcnt lgkmcnt(0)")
    e("    v_pk_add_f32 v[8:9], v[8:9], v[16:17]")
    e("    v_add_f32 v10, v10, v18")
    e("    v_bitop3_b32 v11, v8, v9, s29 bitop3:0x96")
    e("    v_xor_b32 v11, v11, v10")
    e(f"    buffer_store_dwordx4 v[8:11], v1, s[24:27], s42 offen {pubf}")
    e("    s_mov_b64 exec, -1")
    stamp(7)
    e("    s_branch L_b3")
    e("L_notpub:")
    e("    s_cmp_lt_u32 s3, 4")
    e("    s_cbranch_scc1 L_poll_start")
    e("    s_cmp_gt_u32 s3, 7")
    e("    s_cbranch_scc1 L_b3")
    e("    v_subrev_u32 v1, 320, v0")
    e("    v_lshlrev_b32 v21, 2, v1")
    e("    v_lshlrev_b32 v1, 1, v1")
    for r in range(12):
        e(f"    ds_read_u16 v{8+r}, v1 offset:{L_W+384*r}")
    e("    v_and_b32 v20, 15, v2")
    e("    v_lshlrev_b32 v20, 2, v20")
    e(f"    v_add_u32 v20, {L_P}, v20")
    e("    s_waitcnt lgkmcnt(0)")
    for r in range(12):
        e(f"    v_lshlrev_b32 v{8+r}, 16, v{8+r}")
    e("    s_barrier")
    e("    ds_read2_b32 v[22:23], v20 offset0:0 offset1:16")
    e("    ds_read2_b32 v[24:25], v20 offset0:32 offset1:48")
    e("    s_waitcnt lgkmcnt(0)")
    e("    v_pk_add_f32 v[22:23], v[22:23], v[24:25]")
    e("    v_add_f32 v22, v22, v23")
    e("    v_mul_f32 v22, 0x36800000, v22       ; * 2^-18")
    e("    v_cvt_pk_bf16_f32 v22, v22, v22")
    e("    v_lshlrev_b32 v22, 16, v22")
    e("    v_mul_f32 v23, 0xbfb8aa3b, v22       ; -log2e * x")
    e("    v_exp_f32 v23, v23")
    e("    s_nop 0")
    e("    v_add_f32 v23, 1.0, v23")
    e("    v_rcp_f32 v23, v23")
    e("    s_nop 0")
    e("    v_mul_f32 v22, v22, v23")
    e("    v_cvt_pk_bf16_f32 v22, v22, v22")
    e("    v_lshlrev_b32 v22, 16, v22")
    e("    s_nop 1")
    for r in range(12):
        a = 23 + (r % 3)
        op = "v_mul_f32_dpp" if r < 3 else "v_fmac_f32_dpp"
        e(f"    {op} v{a}, v22, v{8+r} row_newbcast:{r} row_mask:0xf bank_mask:0xf")
    e("    v_add_f32 v23, v23, v24")
    e("    v_add_f32 v23, v23, v25")
    e("    v_cvt_pk_bf16_f32 v23, v23, v23")
    e("    v_lshlrev_b32 v23, 16, v23")
    e("    v_mul_f32 v23, 0xbfb8aa3b, v23")
    e("    v_exp_f32 v23, v23")
    e("    s_nop 0")
    e("    v_add_f32 v23, 1.0, v23")
    e("    v_rcp_f32 v23, v23")
    e("    s_nop 0")
    e("    v_cvt_pk_bf16_f32 v23, v23, v23")
    e("    v_lshlrev_b32 v23, 16, v23")
    e(f"    ds_write_b32 v21, v23 offset:{L_G}")
    e("    s_waitcnt lgkmcnt(0)")
    e("    s_branch L_b4")

    e("L_poll_start:")
    e("    s_lshl_b32 s42, s3, 12")
    e("    v_and_b32 v27, 3, v2")
    e("    v_mul_u32_u24 v27, 12, v27")
    e("    s_lshl_b32 s43, s3, 6")
    e("    v_add3_u32 v31, v31, v27, s43")
    regs = (8, 12, 16, 20)
    for k in range(4):
        e(f"    s_mov_b64 s[{4+2*k}:{5+2*k}], -1")
    e("L_poll:")
    for k in range(4):
        e(f"    s_mov_b64 exec, s[{4+2*k}:{5+2*k}]")
        e(f"    s_cbranch_execz L_skip{k}")
        e(f"    buffer_load_dwordx4 v[{regs[k]}:{regs[k]+3}], v1, s[24:27], s42 offen offset:{1024*k} {pollf}")
        e(f"L_skip{k}:")
    e("    s_mov_b64 exec, -1")
    e("    s_waitcnt vmcnt(0)")
    for k in range(4):
        r = regs[k]
        e(f"    v_bitop3_b32 v{27+k}, v{r}, v{r+1}, s29 bitop3:0x96")
    for k in range(4):
        r = regs[k]
        e(f"    v_bitop3_b32 v{27+k}, v{27+k}, v{r+2}, v{r+3} bitop3:0x96")
    for k in range(4):
        e(f"    v_cmp_ne_u32 s[{4+2*k}:{5+2*k}], 0, v{27+k}")
    e("    s_or_b64 s[82:83], s[4:5], s[6:7]")
    e("    s_or_b64 vcc, s[8:9], s[10:11]")
    e("    s_or_b64 s[82:83], s[82:83], vcc")
    e("    s_cbranch_scc0 L_poll_ok")
    e("    s_sub_u32 s31, s31, 1")
    e("    s_cbranch_scc1 L_poll_ok")
    if sleep:
        e(f"    s_sleep {sleep}")
    e("    s_branch L_poll")
    e("L_poll_ok:")
    stamp(7)
    e("    v_add_f32 v10, v10, v14")
    e("    v_add_f32 v18, v18, v22")
    e("    v_pk_add_f32 v[8:9], v[8:9], v[12:13]")
    e("    v_pk_add_f32 v[16:17], v[16:17], v[20:21]")
    e("    v_add_f32 v11, v10, v18")
    e("    v_add_f32 v10, v10, v18")
    e("    v_pk_add_f32 v[8:9], v[8:9], v[16:17]")
    e("    s_nop 0")
    e("    v_permlane32_swap_b32 v10, v11")
    e("    v_permlane32_swap_b32 v8, v9")
    e("    v_add_f32 v10, v10, v11              ; [c | c]")
    e("    v_add_f32 v8, v8, v9                 ; [a | b]")
    e("    s_nop 1")
    e("    v_permlane16_swap_b32 v8, v10")
    e("    v_add_f32 v8, v8, v10                ; rows: a, c, b, c")
    e("    s_nop 1")
    e("    v_add_f32_dpp v8, v8, v8 row_shr:4 row_mask:0xf bank_mask:0xf bound_ctrl:0")
    e("    s_nop 1")
    e("    v_add_f32_dpp v8, v8, v8 row_shr:8 row_mask:0xf bank_mask:0xf bound_ctrl:0")
    e("    s_mov_b32 exec_lo, 0xf000f000")
    e("    s_mov_b32 exec_hi, 0x0000f000")
    e(f"    ds_write_b32 v31, v8 offset:{L_P}")
    e("    s_mov_b64 exec, -1")
    e("    s_waitcnt lgkmcnt(0)")
    if pg:
        e("    s_branch L_b3")
        e(".p2align 12")
        if stub:
            e("L_stub:")
            e("    s_branch L_stubret")
    e("L_b3:")
    e("    s_barrier")
    e("L_b4:")
    e("    s_barrier")
    e(f"    ds_read_b128 v[8:11], v7 offset:{L_G}")
    e(f"    ds_read_b128 v[12:15], v7 offset:{L_G+16}")

    cnt = [0]

    def scale_store(slot, first=False):
        t = 16 + 8 * (cnt[0] & 1)
        cnt[0] += 1
        if dot:
            if first:
                e("    s_waitcnt lgkmcnt(0)")
                stamp(5)
                for i in range(4):
                    e(f"    v_lshrrev_b32 v{8+2*i}, 16, v{8+2*i}     ; (g_lo, 0)")
            for i in range(4):
                d = dreg(slot) + i
                e(f"    v_dot2_f32_bf16 v{t+2*i}, v{d}, v{8+2*i}, 0")
                e(f"    v_dot2_f32_bf16 v{t+1+2*i}, v{d}, v{9+2*i}, 0")
            e("    s_nop 0")
            for i in range(4):
                d = dreg(slot) + i
                e(f"    v_cvt_pk_bf16_f32 v{d}, v{t+2*i}, v{t+1+2*i}")
            d = dreg(slot)
            e(f"    buffer_store_dwordx4 v[{d}:{d+3}], v5, s[20:23], s{SO+slot} offen{stf}")
            return
        for i in range(4):
            d = dreg(slot) + i
            e(f"    v_lshlrev_b32 v{t+2*i}, 16, v{d}")
            e(f"    v_and_b32 v{t+1+2*i}, s30, v{d}")
        if first:
            e("    s_waitcnt lgkmcnt(0)")
            stamp(5)
        for i in range(4):
            e(f"    v_pk_mul_f32 v[{t+2*i}:{t+1+2*i}], v[{t+2*i}:{t+1+2*i}], v[{8+2*i}:{9+2*i}]")
        for i in range(4):
            d = dreg(slot) + i
            e(f"    v_cvt_pk_bf16_f32 v{d}, v{t+2*i}, v{t+1+2*i}")
        d = dreg(slot)
        e(f"    buffer_store_dwordx4 v[{d}:{d+3}], v5, s[20:23], s{SO+slot} offen{stf}")

    sslots = []
    for pp in sorder:
        k = lorder.index(pp)
        sslots += [2 * k, 2 * k + 1]
    for j in range(32):
        scale_store(sslots[j], first=(j == 0))
        if j == 1:
            e("    s_cmp_lg_u32 s2, 0")
            e("    s_cbranch_scc1 L_noep")
            e("    s_cmp_lg_u32 s3, 11")
            e("    s_cbranch_scc1 L_noep")
            e(f"    v_mov_b32 v1, {EPOCH}")
            e("    v_mov_b32 v3, s28")
            e("    s_mov_b64 exec, 1")
            e("    buffer_store_dword v3, v1, s[24:27], 0 offen sc1")
            if dbgout:
                e("    s_load_dwordx2 s[32:33], s[0:1], 32")
                e("    s_mov_b32 s34, 256")
                e("    s_mov_b32 s35, 0x00020000")
                e("    v_mov_b32 v2, s76")
                e("    v_mov_b32 v3, s89")
                e("    v_mov_b32 v1, 0")
                e("    s_waitcnt lgkmcnt(0)")
                e("    buffer_store_dwordx2 v[2:3], v1, s[32:35], 0 offen")
            e("    s_mov_b64 exec, -1")
            e("L_noep:")
        if sbar and (j + 1) % sbar == 0 and j != 31:
            e("    s_barrier")
    if enc:
        e("    s_waitcnt vmcnt(0)")
        stamp(6)
        e("    s_waitcnt lgkmcnt(0)")
        a, b = {1: (0, 0), 2: (0, 3), 3: (0, 5), 4: (5, 6), 5: (0, 6)}[enc]
        e(f"    s_sub_u32 s42, s{ST+2*smap[b]}, s{ST+2*smap[a]}")
        e("L_enc:")
        e("    s_memrealtime s[4:5]")
        e("    s_waitcnt lgkmcnt(0)")
        e(f"    s_sub_u32 s43, s4, s{ST+2*smap[6]}")
        e("    s_cmp_lt_u32 s43, s42")
        e("    s_cbranch_scc1 L_enc")
    if diag:
        e("    s_waitcnt vmcnt(0)")
        stamp(6)
        e("    s_waitcnt lgkmcnt(0)")
        e("    s_mul_i32 s42, s2, 12")
        e("    s_add_u32 s42, s42, s3")
        e("    s_lshl_b32 s42, s42, 7")
        e(f"    s_add_u32 s42, s42, {DIAG}")
        e("    v_mov_b32 v1, s42")
        e("    s_mov_b64 exec, 1")
        inv = {v: k for k, v in smap.items()}
        for k in range(6):
            e(f"    v_mov_b32 v16, s{ST+2*k}")
            e(f"    v_mov_b32 v17, s{ST+2*k+1}")
            e(f"    buffer_store_dwordx2 v[16:17], v1, s[24:27], 0 offen offset:{8*inv[k]}")
            e("    s_nop 2")
        e("    s_getreg_b32 s42, hwreg(HW_REG_XCC_ID)")
        e("    v_mov_b32 v16, s42")
        e("    v_mov_b32 v17, s31")
        e("    buffer_store_dwordx2 v[16:17], v1, s[24:27], 0 offen offset:88")
    e("L_exit:")
    e("    s_endpgm")
    e('.section .rodata,"a"')
    e(".p2align 6")
    e(f".amdhsa_kernel {NAME}")
    e("  .amdhsa_next_free_vgpr 168")
    e("  .amdhsa_next_free_sgpr 102")
    e("  .amdhsa_accum_offset 168")
    e("  .amdhsa_group_segment_fixed_size 0")
    e("  .amdhsa_kernarg_size 48")
    e("  .amdhsa_user_sgpr_count 2")
    e("  .amdhsa_user_sgpr_kernarg_segment_ptr 1")
    e("  .amdhsa_system_sgpr_workgroup_id_x 1")
    e("  .amdhsa_float_denorm_mode_32 3")
    e(".end_amdhsa_kernel")
    return "\n".join(o) + "\n"


if __name__ == "__main__":
    ap = argparse.ArgumentParser()
    ap.add_argument("-o", default="-")
    ap.add_argument("--ld", default="nt")
    ap.add_argument("--st", default="sc0 sc1")
    ap.add_argument("--diag", action="store_true")
    for name, dv in (("sleep", 0), ("sbar", 1), ("lvm", 3), ("ns", 8), ("pre", 9), ("pairs", 2), ("thr", 14), ("dbgout", 0),
                     ("enc", 0), ("sdiag", 0), ("tx", 0), ("to", 1), ("tstep", 7), ("wstep", 4), ("allpar", 0), ("mfma", 0), ("prio", 0), ("gw", 0), ("gd", 0), ("clk", 0), ("dot", 0), ("pg", 0), ("stub", 0)):
        ap.add_argument("--" + name, type=int, default=dv)
    ap.add_argument("--pubf", default="sc1")
    ap.add_argument("--pollf", default="sc1")
    a = ap.parse_args()
    kw = vars(a).copy()
    out = kw.pop("o")
    s = gen(**kw)
    if out == "-":
        sys.stdout.write(s)
    else:
        open(out, "w").write(s)
```

```python
import sys, argparse

HEADER = """; Kernarg layout for this problem (48 bytes, ptrs only, base s[0:1]):
"""

NAME = "standalone__channel_attn_se__vision_kernel"
XBYTES = 100663296
MAGIC = 0x5BD1E995
MAGIC2 = 0x2C1B3C6D

L_M = 0
L_HP = 6144
L_P = 7488
L_G = 6656
L_DEC = 7424
L_W = 8192
LDS = 20480
VOTE = 262144
EPOCH = 270336
DIAG = 1 << 20
WS_BYTES = 2 << 20
SB = 49152
WIN = 128 * SB


def gen(ld="nt", st="sc0 sc1", diag=False, sleep=0, spin=400000, pubf="sc1", pollf="sc1", sbar=1,
        lvm=3, ns=8, pre=9, pairs=2, thr=14, dbgout=0, enc=0, sdiag=0, tx=0, to=1, tstep=7, wstep=4, allpar=0,
        mfma=0, prio=0, gw=0, gd=0, clk=0, dot=0, pg=0, stub=0, evw=-1, evs=1, rep=0, np8=0):
    o = []
    e = o.append
    ldf = (" " + ld) if ld else ""
    stf = (" " + st) if st else ""
    D0 = 40
    SO = 44
    ST = 90
    na = 16 - ns
    adaptive = [(15 - i // 2) if i % 2 == 0 else (9 - i // 2) for i in range(na)][::-1]
    static = [pp for pp in range(16) if pp not in adaptive]
    lorder = static + adaptive
    sorder = []
    si, ai = 0, 0
    for k in range(16):
        if (ai < na and (ai + 1) * 16 <= (k + 1) * na) or si >= len(static):
            sorder.append(adaptive[ai]); ai += 1
        else:
            sorder.append(static[si]); si += 1
    assert sorted(sorder) == list(range(16))
    region = lambda pp: 0 if pp < 10 else 1
    A0 = 2 * ns
    G = A0 - lvm - 1 + gd
    e(HEADER.rstrip())
    e(f"; @launch grid=(256,1,1) block=(768,1,1) lds={LDS}")
    e('.amdgcn_target "amdgcn-amd-amdhsa--gfx950"')
    e(".text")
    e(f".globl {NAME}")
    e(".p2align 8")
    e(f".type {NAME},@function")
    e(f"{NAME}:")
    smap = {0: 0, 1: 1, 3: 2, 5: 3, 6: 4, 7: 5}

    def stamp(i, sd=False):
        if clk and i in (1, 7):
            return
        if clk and diag and i == (5 if clk == 1 else 0):
            e(f"    s_memtime s[{ST+2*smap[1]}:{ST+1+2*smap[1]}]")
        if clk and diag and i == (6 if clk == 1 else 3):
            e(f"    s_memtime s[{ST+2*smap[7]}:{ST+1+2*smap[7]}]")
        if sdiag and i in (1, 7) and not sd:
            return
        if sd and not sdiag:
            return
        if (diag or enc) and i in smap:
            k = smap[i]
            e(f"    s_memrealtime s[{ST+2*k}:{ST+1+2*k}]")

    def dreg(slot):
        return D0 + 4 * slot

    q = []

    def load(slot, track=True):
        d = dreg(slot)
        e(f"    buffer_load_dwordx4 v[{d}:{d+3}], v5, s[16:19], s{SO+slot} offen{ldf}")
        if track:
            q.append(slot)

    def soff(k, pp, u):
        b = 84 if ((pp ^ u) & 1) else 82
        e(f"    s_add_u32 s{SO+2*k}, s{b}, {pp*WIN}")
        e(f"    s_add_u32 s{SO+2*k+1}, s{b+1}, {pp*WIN}")

    us = []
    seen = [0, 0]
    for pp in lorder:
        us.append(seen[region(pp)] & 1)
        seen[region(pp)] += 1

    e("    s_cmp_ge_u32 s2, 256")
    e("    s_cbranch_scc1 L_exit")
    e("    s_load_dwordx2 s[16:17], s[0:1], 0       ; x")
    e("    s_load_dwordx2 s[20:21], s[0:1], 24      ; out")
    e("    s_load_dwordx2 s[24:25], s[0:1], 40      ; ws")
    e("    s_load_dwordx4 s[12:15], s[0:1], 8")
    if diag or enc:
        for i in range(6):
            e(f"    s_mov_b64 s[{ST+2*i}:{ST+1+2*i}], 0")
    stamp(0)
    e("    v_lshrrev_b32 v1, 6, v0")
    e("    v_and_b32 v2, 63, v0                 ; lane")
    e("    v_readfirstlane_b32 s3, v1")
    e("    v_lshrrev_b32 v3, 4, v2              ; q (row)")
    e("    v_and_b32 v4, 15, v2                 ; n")
    e("    v_mul_u32_u24 v5, 768, v3")
    e("    s_mul_i32 s40, s3, 11")
    e("    s_lshr_b32 s40, s40, 5")
    e("    s_mul_i32 s41, s40, 3")
    e("    s_sub_u32 s41, s3, s41               ; seg = wave%3")
    e("    s_lshl_b32 s43, s41, 8")
    e("    v_lshl_add_u32 v5, v4, 4, v5")
    e("    v_add_u32 v5, s43, v5                ; v5 = q*768 + seg*256 + n*16")
    e("    s_mov_b32 s18, %d" % XBYTES)
    e("    s_mov_b32 s19, 0x00020000")
    e("    s_lshr_b32 s42, s2, 3")
    e("    s_and_b32 s43, s2, 3")
    e("    s_lshl2_add_u32 s42, s42, s43")
    e(f"    s_mul_i32 s76, s42, {SB}")
    e("    s_mul_i32 s78, s40, 6144")
    e("    s_add_u32 s78, s78, s76              ; half 0, t0")
    e("    s_add_u32 s80, s78, 24576            ; half 1, t0")
    e("    s_bitcmp1_b32 s2, 2")
    e("    s_cselect_b32 s82, s80, s78")
    e("    s_add_u32 s83, s82, 3072")
    for k in range(2):
        e(f"    s_add_u32 s{SO+2*k}, s82, {lorder[k]*WIN}")
        e(f"    s_add_u32 s{SO+2*k+1}, s83, {lorder[k]*WIN}")
    assert lvm <= 4
    e("    s_waitcnt lgkmcnt(0)")
    for s in range(lvm):
        load(s)
    stamp(1, True)
    for k in range(2, 16):
        e(f"    s_add_u32 s{SO+2*k}, s82, {lorder[k]*WIN}")
        e(f"    s_add_u32 s{SO+2*k+1}, s83, {lorder[k]*WIN}")
    e("    s_mov_b32 s22, %d" % XBYTES)
    e("    s_mov_b32 s23, 0x00020000")
    e("    s_mov_b32 s26, %d" % WS_BYTES)
    e("    s_mov_b32 s27, 0x00020000")
    e("    s_mov_b32 s30, 0xffff0000")
    e("    s_mov_b32 s31, %d" % spin)
    e(f"    s_mov_b32 s87, {VOTE}")
    e("    s_mov_b32 s86, 0")
    if evw >= 0:
        e("    s_getreg_b32 s11, hwreg(HW_REG_XCC_ID)")
    e("    s_cmp_gt_u32 s3, 3")
    e("    s_cbranch_scc1 L_norole")
    e("    s_cmp_eq_u32 s3, 0")
    e("    s_cbranch_scc1 L_wave0")
    e("    s_cmp_eq_u32 s3, 3")
    e("    s_cbranch_scc1 L_wave3")
    if tx:
        e("    s_lshr_b32 s42, s2, 3")
        e("    s_and_b32 s43, s42, 15")
        e("    s_add_u32 s43, s43, 32")
        e("    s_cmp_eq_u32 s3, 1")
        e("    s_cselect_b32 s42, s42, s43")
        e("    s_lshl_b32 s42, s42, 21")
        e("    s_load_dword s4, s[16:17], s42")
    e("    s_branch L_norole")
    e("L_wave3:")
    e("    s_load_dword s4, s[12:13], 0")
    e("    s_load_dword s5, s[14:15], 0")
    e("    s_branch L_norole")
    e("L_wave0:")
    e(f"    s_load_dword s28, s[24:25], {EPOCH}")
    e("    s_getreg_b32 s89, hwreg(HW_REG_XCC_ID)")
    e("    s_and_b32 s89, s89, 7")
    e("    s_mov_b32 s38, 0")
    e("    s_mov_b32 s86, 2")
    e("    s_bitcmp1_b32 s89, 0")
    e("    s_cbranch_scc1 L_pubvote")
    e("    s_mov_b32 s86, 1")
    e("    s_bfe_u32 s42, s2, 0x10006")
    e("    s_add_u32 s42, s42, 1")
    e(f"    s_mul_i32 s42, s42, {40<<20}")
    e("    s_bfe_u32 s43, s2, 0x30003")
    e("    s_lshl_b32 s43, s43, 21")
    e("    s_add_u32 s42, s42, s43")
    e("    s_lshr_b32 s43, s2, 7")
    e("    s_lshl_b32 s43, s43, 19")
    e("    s_add_u32 s42, s42, s43")
    e("    s_and_b32 s43, s2, 7")
    e("    s_lshl_b32 s43, s43, 16")
    e("    s_add_u32 s42, s42, s43")
    e("    s_and_b32 s43, s20, 0xffe00000")
    e("    s_add_u32 s6, s43, s42")
    e("    s_addc_u32 s7, s21, 0")
    e("    s_load_dword s4, s[6:7], 4096")
    for sl in range(lvm, pre):
        load(sl, track=False)
    e("    s_waitcnt lgkmcnt(0)")
    offs = [0, 8192, 24576 + 256, 16384 + 256, 32768 + 512, 40960 + 512][:2 * pairs]
    e("    s_memtime s[32:33]")
    e("    s_waitcnt lgkmcnt(0)")
    for i, of in enumerate(offs):
        a_, b_ = (32, 34) if i % 2 == 0 else (34, 32)
        e(f"    s_load_dword s4, s[6:7], {of}")
        e("    s_waitcnt lgkmcnt(0)")
        e(f"    s_memtime s[{b_}:{b_+1}]")
        e("    s_waitcnt lgkmcnt(0)")
        e(f"    s_sub_u32 s{8+(i&1)}, s{b_}, s{a_}")
        if i % 2 == 1:
            e("    s_cmp_gt_u32 s9, s8" if (i // 2) % 2 == 0 else "    s_cmp_gt_u32 s8, s9")
            e("    s_cselect_b32 s39, 16, -16")
            e("    s_add_i32 s38, s38, s39")
    e("    s_lshr_b32 s42, s2, 1")
    e("    s_xor_b32 s42, s42, s89")
    e("    s_sub_i32 s39, 0, s38")
    e("    s_bitcmp1_b32 s42, 2")
    e("    s_cselect_b32 s38, s39, s38")
    e("L_pubvote:")
    e("    s_waitcnt lgkmcnt(0)")
    e("    s_or_b32 s38, s38, s89")
    e("    s_add_u32 s39, s28, 1")
    e("    s_xor_b32 s39, s39, 0x%08x" % MAGIC2)
    e("    s_xor_b32 s39, s39, s38")
    e("    s_lshl_b32 s42, s2, 3")
    e("    v_mov_b32 v32, s38")
    e("    v_mov_b32 v33, s39")
    e("    v_mov_b32 v34, s42")
    e("    s_mov_b64 exec, 1")
    e("    buffer_store_dwordx2 v[32:33], v34, s[24:27], s87 offen sc1")
    e("    s_mov_b64 exec, -1")
    e("L_norole:")
    if mfma:
        e("    v_and_b32 v16, 1, v4")
        e("    v_lshlrev_b32 v16, 4, v16")
        e("    v_mov_b32 v17, 0x3f80")
        e("    v_lshlrev_b32 v16, v16, v17          ; 0x3f80 << 16*(n&1)")
        e("    v_lshrrev_b32 v17, 1, v4             ; n>>1")
        for d in range(4):
            e(f"    v_cmp_eq_u32 vcc, {d}, v17")
            e(f"    v_mov_b32 v{8+d}, 0")
            e("    s_nop 0")
            e(f"    v_cndmask_b32 v{12+d}, 0, v16, vcc")
    e("    v_lshlrev_b32 v1, 4, v2              ; lane*16")

    def acc(slot):
        d = dreg(slot)
        if mfma:
            e(f"    v_mfma_f32_16x16x32_bf16 v[8:11], v[12:15], v[{d}:{d+3}], v[8:11]")
            return
        for i in range(4):
            if slot == 0:
                e(f"    v_lshlrev_b32 v{8+2*i}, 16, v{d+i}")
                e(f"    v_and_b32 v{9+2*i}, s30, v{d+i}")
            else:
                e(f"    v_lshlrev_b32 v{16+2*i}, 16, v{d+i}")
                e(f"    v_and_b32 v{17+2*i}, s30, v{d+i}")
        if slot:
            for i in range(4):
                e(f"    v_pk_add_f32 v[{8+2*i}:{9+2*i}], v[{8+2*i}:{9+2*i}], v[{16+2*i}:{17+2*i}]")

    for j in range(32):
        younger = len(q) - 1 - q.index(j)
        e(f"    s_waitcnt vmcnt({younger})")
        if j == sdiag - 1:
            stamp(7, True)
        if j == A0 - lvm:
            e("    s_waitcnt lgkmcnt(0)")
            e("    s_add_u32 s28, s28, 1                ; epoch + 1")
            e("    s_xor_b32 s29, s28, 0x%08x           ; tag key" % MAGIC)
            e(f"    s_cmp_lg_u32 s3, {gw}")
            e("    s_cbranch_scc1 L_decbar")
            e("    s_xor_b32 s88, s28, 0x%08x           ; vote key" % MAGIC2)
            if gd:
                e(f"    s_waitcnt vmcnt({max(0, lvm - gd)})")
            e("L_vchk:")
            e("    v_bitop3_b32 v28, v32, v33, s88 bitop3:0x96")
            e("    v_bitop3_b32 v29, v34, v35, s88 bitop3:0x96")
            e("    v_bitop3_b32 v30, v36, v37, s88 bitop3:0x96")
            e("    v_bitop3_b32 v27, v38, v39, s88 bitop3:0x96")
            e("    v_or3_b32 v28, v28, v29, v30")
            e("    v_or_b32 v28, v28, v27")
            e("    v_cmp_ne_u32 vcc, 0, v28")
            e("    s_cbranch_vccz L_vok")
            e("    s_sub_u32 s31, s31, 1")
            e("    s_cbranch_scc1 L_vok")
            e("    buffer_load_dwordx4 v[32:35], v1, s[24:27], s87 offen sc1")
            e("    buffer_load_dwordx4 v[36:39], v1, s[24:27], s87 offen offset:1024 sc1")
            e("    s_waitcnt vmcnt(0)")
            e("    s_branch L_vchk")
            e("L_vok:")
            e("    s_and_b32 s42, s2, 0x7b")
            e("    s_lshr_b32 s42, s42, 1")
            e("    v_readlane_b32 s4, v32, s42")
            e("    v_readlane_b32 s5, v34, s42")
            e("    v_readlane_b32 s6, v36, s42")
            e("    v_readlane_b32 s7, v38, s42")
            e("    v_ashrrev_i32 v28, 4, v32")
            e("    v_ashrrev_i32 v29, 4, v34")
            e("    v_ashrrev_i32 v30, 4, v36")
            e("    v_ashrrev_i32 v27, 4, v38")
            e("    v_add3_u32 v28, v28, v29, v30")
            e("    v_add_u32 v28, v28, v27")
            e("    s_bitcmp1_b32 s2, 0")
            e("    s_cselect_b32 s4, s5, s4")
            e("    s_cselect_b32 s6, s7, s6")
            e("    s_bitcmp1_b32 s2, 7")
            e("    s_cselect_b32 s4, s6, s4")
            for sh in (1, 2, 4, 8):
                e("    s_nop 1")
                e(f"    v_add_u32_dpp v28, v28, v28 row_shr:{sh} row_mask:0xf bank_mask:0xf bound_ctrl:0")
            e("    s_nop 1")
            e("    v_add_u32_dpp v28, v28, v28 row_bcast:15 row_mask:0xa bank_mask:0xf")
            e("    v_lshrrev_b32 v30, 3, v2")
            e("    v_and_b32 v30, 4, v30                ; (lane>=32)*4")
            e("    v_mov_b32 v29, s4")
            e("    s_mov_b32 exec_lo, 0x80000000")
            e("    s_mov_b32 exec_hi, 0x80000000")
            e(f"    ds_write_b32 v30, v28 offset:{L_DEC}")
            e(f"    ds_write_b32 v30, v29 offset:{L_DEC+8}")
            e("    s_mov_b64 exec, -1")
            e("    s_waitcnt lgkmcnt(0)")
            stamp(1)
            e("L_decbar:")
            e("    s_barrier")
            e("    v_mov_b32 v28, 0")
            e(f"    ds_read_b96 v[28:30], v28 offset:{L_DEC}")
            e("    s_and_b32 s42, s20, 0x1fffff")
            e("    s_add_u32 s43, s42, 1536")
            e("    s_lshr_b32 s43, s43, 10              ; c")
            e("    s_lshl_b32 s78, s40, 1")
            e("    s_sub_u32 s78, s78, s43              ; u - c (u = 2*grp)")
            e("    s_mul_i32 s78, s78, 11")
            e("    s_add_u32 s79, s78, 11")
            e("    s_and_b32 s78, s78, 15")
            e("    s_and_b32 s79, s79, 15")
            e("    s_xor_b32 s80, s78, 8")
            e("    s_xor_b32 s81, s79, 8")
            for r in (78, 79, 80, 81):
                e(f"    s_mul_i32 s{r}, s{r}, 3072")
                e(f"    s_add_u32 s{r}, s{r}, s76")
            e("    s_add_u32 s77, s76, 24576")
            e("    s_add_u32 s77, s77, s42")
            e("    s_lshr_b32 s77, s77, 19")
            e("    s_xor_b32 s77, s77, s2")
            e("    s_waitcnt lgkmcnt(0)")
            e("    v_readfirstlane_b32 s4, v28")
            e("    v_readfirstlane_b32 s5, v29")
            e("    v_readfirstlane_b32 s6, v30")
            if dbgout:
                e("    s_mov_b32 s76, s4")
                e("    s_mov_b32 s89, s5")
            if allpar:
                e("    s_xor_b32 s42, s16, s20")
                e("    s_lshr_b32 s42, s42, 12")
                e("    s_or_b32 s42, s42, s6")
                e("    s_bitcmp1_b32 s42, 0")
            else:
                e("    s_bitcmp1_b32 s6, 0")
            e("    s_cbranch_scc0 L_nodec")
            e("    s_xor_b32 s77, s77, s6")
            for r in range(2):
                wins = [(k, pp) for k, pp in enumerate(lorder) if pp in adaptive and region(pp) == r]
                if not wins:
                    continue
                e(f"    s_abs_i32 s42, s{4+r}")
                e(f"    s_cmp_lt_u32 s42, {thr}")
                e(f"    s_cbranch_scc1 L_keep{r}")
                e(f"    s_lshr_b32 s42, s{4+r}, 29")
                e("    s_xor_b32 s42, s42, s77")
                e("    s_bitcmp1_b32 s42, 2")
                e("    s_cselect_b32 s82, s80, s78")
                e("    s_cselect_b32 s83, s81, s79")
                e("    s_cselect_b32 s84, s78, s80")
                e("    s_cselect_b32 s85, s79, s81")
                for k, pp in wins:
                    soff(k, pp, 0)
                e(f"L_keep{r}:")
            e("L_nodec:")
        if j + lvm < 32:
            k = j + lvm
            if evw >= 0 and k >= pre and (k % evs == 0):
                e("    s_bitcmp1_b32 s11, 0")
                e(f"    s_cbranch_scc1 L_ev{k}")
                e(f"    s_waitcnt vmcnt({evw})")
                e(f"L_ev{k}:")
            if k < pre:
                e("    s_cmp_eq_u32 s86, 1")
                e(f"    s_cbranch_scc1 L_sk{k}")
                load(k)
                e(f"L_sk{k}:")
            else:
                load(k)
            if k == G:
                e(f"    s_cmp_lg_u32 s3, {gw}")
                e("    s_cbranch_scc1 L_nog")
                e("    buffer_load_dwordx4 v[32:35], v1, s[24:27], s87 offen sc1")
                e("    buffer_load_dwordx4 v[36:39], v1, s[24:27], s87 offen offset:1024 sc1")
                e("L_nog:")
        acc(j)
        if j == wstep:
            e("    s_cmp_lt_u32 s3, 5")
            e("    s_cselect_b32 s36, s14, s12")
            e("    s_cselect_b32 s37, s15, s13")
            e("    s_cselect_b32 s42, 0, 5120")
            e("    s_mov_b32 s38, 4608")
            e("    s_mov_b32 s39, 0x00020000")
            e("    s_lshl_b32 s43, s3, 10")
            e(f"    s_add_u32 m0, s43, {L_W}")
            e("    s_sub_u32 s43, s43, s42")
            e("    buffer_load_dwordx4 v1, s[36:39], s43 offen lds")
            q.append("w")
        if j == tstep:
            e(f"    s_load_dword s28, s[24:25], {EPOCH}")
            if to:
                e("    s_cmp_gt_u32 s3, 2")
                e("    s_cbranch_scc1 L_noto")
                e("    s_lshr_b32 s42, s2, 3")
                e("    s_and_b32 s43, s42, 15")
                e("    s_add_u32 s43, s43, 32")
                e("    s_cmp_eq_u32 s3, 1")
                e("    s_cselect_b32 s42, s42, s43")
                e("    s_lshl_b32 s42, s42, 21")
                e("    s_load_dword s10, s[20:21], s42")
                e("L_noto:")
        if stub and j == stub:
            e("    s_cmp_eq_u32 s3, 5")
            e("    s_cbranch_scc1 L_stub")
            e("L_stubret:")
        if j == 18:
            e("    s_mul_i32 s42, s41, 1536")
            e("    s_mul_i32 s43, s40, 6")
            e("    s_add_u32 s42, s42, s43")
            e("    v_mul_u32_u24 v27, 24, v2")
            e("    v_add_u32 v27, s42, v27")
            for i in range(3):
                e(f"    ds_read_u16 v{24+i}, v27 offset:{L_W+5120+2*i}")
            e("    s_mul_i32 s42, s40, 1536")
            e("    s_lshl_b32 s43, s41, 9")
            e("    s_add_u32 s42, s42, s43")
            e("    v_lshlrev_b32 v6, 5, v4")
            e(f"    v_lshl_add_u32 v6, v3, {4 if mfma else 3}, v6")
            e("    v_add_u32 v6, s42, v6")
            e("    s_lshl_b32 s43, s41, 7")
            e("    v_lshlrev_b32 v7, 3, v4")
            e("    v_add_u32 v7, s43, v7")
            e("    v_subrev_u32 v27, 192, v7")
            e("    v_min_u32 v7, v7, v27")
            e("    v_lshlrev_b32 v7, 2, v7")
            e("    v_and_b32 v27, 1, v3")
            e("    v_lshrrev_b32 v31, 1, v3")
            e("    v_lshl_add_u32 v31, v27, 1, v31")
            e("    v_lshlrev_b32 v31, 2, v31            ; i(row)*4")
            e("    s_lshl_b32 s42, s41, 6")
            e("    s_lshl_b32 s43, s40, 4")
            e("    s_add_u32 s42, s42, s43")
            e("    v_add_u32 v4, s42, v31")
            e("    s_lshl_b32 s42, s41, 8")
            e("    v_lshlrev_b32 v3, 2, v2")
            e("    v_add_u32 v3, s42, v3")
            if rep:
                e("    v_and_b32 v32, 48, v1                ; (lane&3)*16")
                e("    v_lshrrev_b32 v33, 2, v2")
                e(f"    v_mul_u32_u24 v33, {rep}, v33")
                e("    v_add_u32 v33, v33, v32")
            e("    s_waitcnt lgkmcnt(0)")
            for r in (24, 25, 26):
                e(f"    v_lshlrev_b32 v{r}, 16, v{r}")
    if mfma:
        e("    s_mov_b32 exec_hi, 0")
        e("    s_nop 7")
        e(f"    ds_write_b128 v6, v[8:11] offset:{L_M}")
        e("    s_mov_b32 exec_hi, -1")
    else:
        e("    s_nop 1")
        for i in range(4):
            e(f"    v_permlane32_swap_b32 v{8+i}, v{12+i}")
        for i in range(4):
            e(f"    v_add_f32 v{8+i}, v{8+i}, v{12+i}")
        e("    s_nop 0")
        e("    v_permlane16_swap_b32 v8, v10")
        e("    v_permlane16_swap_b32 v9, v11")
        e("    v_add_f32 v8, v8, v10")
        e("    v_add_f32 v9, v9, v11")
        e(f"    ds_write_b64 v6, v[8:9] offset:{L_M}")
    e("    s_waitcnt lgkmcnt(0)")
    e("    s_barrier")
    stamp(3)
    for k in range(4):
        e(f"    ds_read2st64_b32 v[{16+2*k}:{17+2*k}], v3 offset0:{6*k} offset1:{6*k+3}")
    e("    s_waitcnt lgkmcnt(2)" if not (diag or enc) else "    s_waitcnt lgkmcnt(0)")
    e("    v_pk_add_f32 v[16:17], v[16:17], v[18:19]")
    e("    s_waitcnt lgkmcnt(0)")
    e("    v_pk_add_f32 v[20:21], v[20:21], v[22:23]")
    e("    v_pk_add_f32 v[16:17], v[16:17], v[20:21]")
    e("    v_add_f32 v16, v16, v17")
    e("    v_mul_f32 v10, v16, v26")
    e("    v_mul_f32 v11, v16, v26")
    e("    v_mul_f32 v8, v16, v24")
    e("    v_mul_f32 v9, v16, v25")
    e("    v_permlane32_swap_b32 v10, v11")
    e("    s_nop 0")
    e("    v_permlane32_swap_b32 v8, v9")
    e("    v_add_f32 v10, v10, v11              ; [c | c]")
    e("    v_add_f32 v8, v8, v9                 ; [a | b]")
    e("    s_nop 1")
    e("    v_permlane16_swap_b32 v8, v10")
    e("    v_add_f32 v8, v8, v10                ; rows: a, c, b, c")
    e("    s_nop 1")
    e("    v_add_f32_dpp v9, v8, v8 row_shr:1 row_mask:0xf bank_mask:0xf bound_ctrl:0")
    e("    v_add_f32_dpp v9, v8, v9 row_shr:2 row_mask:0xf bank_mask:0xf bound_ctrl:0")
    e("    v_add_f32_dpp v9, v8, v9 row_shr:3 row_mask:0xf bank_mask:0xf bound_ctrl:0")
    e("    s_nop 1")
    e("    v_add_f32_dpp v9, v9, v9 row_shr:4 row_mask:0xf bank_mask:0xf bound_ctrl:0")
    e("    s_nop 1")
    e("    v_add_f32_dpp v9, v9, v9 row_shr:8 row_mask:0xf bank_mask:0xf bound_ctrl:0")
    e("    s_mov_b32 exec_lo, 0x80008000")
    e("    s_mov_b32 exec_hi, 0x00008000")
    e(f"    ds_write_b32 v4, v9 offset:{L_HP}")
    e("    s_mov_b64 exec, -1")
    e("    s_lshl_b32 s42, s2, 6")
    e("    s_cmp_lg_u32 s3, 4")
    e("    s_waitcnt lgkmcnt(0)")
    e("    s_barrier")
    e("    s_cbranch_scc1 L_notpub")
    if rep:
        e("    s_mov_b32 exec_hi, 0")
        e(f"    ds_read_b128 v[8:11], v32 offset:{L_HP}")
        e(f"    ds_read_b128 v[12:15], v32 offset:{L_HP+64}")
        e(f"    ds_read_b128 v[16:19], v32 offset:{L_HP+128}")
    else:
        e("    s_mov_b64 exec, 15")
        e(f"    ds_read_b128 v[8:11], v1 offset:{L_HP}")
        e(f"    ds_read_b128 v[12:15], v1 offset:{L_HP+64}")
        e(f"    ds_read_b128 v[16:19], v1 offset:{L_HP+128}")
    e("    s_waitcnt lgkmcnt(1)")
    e("    v_pk_add_f32 v[8:9], v[8:9], v[12:13]")
    e("    v_add_f32 v10, v10, v14")
    e("    s_waitcnt lgkmcnt(0)")
    e("    v_pk_add_f32 v[8:9], v[8:9], v[16:17]")
    e("    v_add_f32 v10, v10, v18")
    e("    v_bitop3_b32 v11, v8, v9, s29 bitop3:0x96")
    e("    v_xor_b32 v11, v11, v10")
    e(f"    buffer_store_dwordx4 v[8:11], v{33 if rep else 1}, s[24:27], s42 offen {pubf}")
    e("    s_mov_b64 exec, -1")
    stamp(7)
    e("    s_branch L_b3")
    e("L_notpub:")
    e("    s_cmp_lt_u32 s3, 4")
    e("    s_cbranch_scc1 L_poll_start")
    e("    s_cmp_gt_u32 s3, 7")
    e("    s_cbranch_scc1 L_poll_start" if np8 else "    s_cbranch_scc1 L_b3")
    e("    v_subrev_u32 v1, 320, v0")
    e("    v_lshlrev_b32 v21, 2, v1")
    e("    v_lshlrev_b32 v1, 1, v1")
    for r in range(12):
        e(f"    ds_read_u16 v{8+r}, v1 offset:{L_W+384*r}")
    e("    v_and_b32 v20, 15, v2")
    e("    v_lshlrev_b32 v20, 2, v20")
    e(f"    v_add_u32 v20, {L_P}, v20")
    e("    s_waitcnt lgkmcnt(0)")
    for r in range(12):
        e(f"    v_lshlrev_b32 v{8+r}, 16, v{8+r}")
    e("    s_barrier")
    e("    ds_read2_b32 v[22:23], v20 offset0:0 offset1:16")
    e("    ds_read2_b32 v[24:25], v20 offset0:32 offset1:48")
    if np8:
        e("    ds_read2_b32 v[26:27], v20 offset0:64 offset1:80")
        e("    ds_read2_b32 v[28:29], v20 offset0:96 offset1:112")
        e("    s_waitcnt lgkmcnt(2)")
        e("    v_pk_add_f32 v[22:23], v[22:23], v[24:25]")
        e("    s_waitcnt lgkmcnt(0)")
        e("    v_pk_add_f32 v[24:25], v[26:27], v[28:29]")
    else:
        e("    s_waitcnt lgkmcnt(0)")
    e("    v_pk_add_f32 v[22:23], v[22:23], v[24:25]")
    e("    v_add_f32 v22, v22, v23")
    e("    v_mul_f32 v22, 0x36800000, v22       ; * 2^-18")
    e("    v_cvt_pk_bf16_f32 v22, v22, v22")
    e("    v_lshlrev_b32 v22, 16, v22")
    e("    v_mul_f32 v23, 0xbfb8aa3b, v22       ; -log2e * x")
    e("    v_exp_f32 v23, v23")
    e("    s_nop 0")
    e("    v_add_f32 v23, 1.0, v23")
    e("    v_rcp_f32 v23, v23")
    e("    s_nop 0")
    e("    v_mul_f32 v22, v22, v23")
    e("    v_cvt_pk_bf16_f32 v22, v22, v22")
    e("    v_lshlrev_b32 v22, 16, v22")
    e("    s_nop 1")
    for r in range(12):
        a = 23 + (r % 3)
        op = "v_mul_f32_dpp" if r < 3 else "v_fmac_f32_dpp"
        e(f"    {op} v{a}, v22, v{8+r} row_newbcast:{r} row_mask:0xf bank_mask:0xf")
    e("    v_add_f32 v23, v23, v24")
    e("    v_add_f32 v23, v23, v25")
    e("    v_cvt_pk_bf16_f32 v23, v23, v23")
    e("    v_lshlrev_b32 v23, 16, v23")
    e("    v_mul_f32 v23, 0xbfb8aa3b, v23")
    e("    v_exp_f32 v23, v23")
    e("    s_nop 0")
    e("    v_add_f32 v23, 1.0, v23")
    e("    v_rcp_f32 v23, v23")
    e("    s_nop 0")
    e("    v_cvt_pk_bf16_f32 v23, v23, v23")
    e("    v_lshlrev_b32 v23, 16, v23")
    e(f"    ds_write_b32 v21, v23 offset:{L_G}")
    e("    s_waitcnt lgkmcnt(0)")
    e("    s_branch L_b4")

    e("L_poll_start:")
    NL = 2 if np8 else 4
    if np8:
        e("    s_sub_u32 s10, s3, 4")
        e("    s_cmp_lt_u32 s3, 4")
        e("    s_cselect_b32 s10, s3, s10")
        e("    s_lshl_b32 s42, s10, 11")
    else:
        e("    s_mov_b32 s10, s3")
        e("    s_lshl_b32 s42, s3, 12")
    if rep:
        e("    s_getreg_b32 s43, hwreg(HW_REG_XCC_ID)")
        e("    s_and_b32 s43, s43, 7")
        e(f"    s_mul_i32 s43, s43, {rep}")
        e("    s_add_u32 s42, s42, s43")
    e("    v_and_b32 v27, 3, v2")
    e("    v_mul_u32_u24 v27, 12, v27")
    e("    s_lshl_b32 s43, s10, 6")
    e("    v_add3_u32 v31, v31, v27, s43")
    regs = (8, 12, 16, 20)
    for k in range(NL):
        e(f"    s_mov_b64 s[{4+2*k}:{5+2*k}], -1")
    e("L_poll:")
    for k in range(NL):
        e(f"    s_mov_b64 exec, s[{4+2*k}:{5+2*k}]")
        e(f"    s_cbranch_execz L_skip{k}")
        e(f"    buffer_load_dwordx4 v[{regs[k]}:{regs[k]+3}], v1, s[24:27], s42 offen offset:{1024*k} {pollf}")
        e(f"L_skip{k}:")
    e("    s_mov_b64 exec, -1")
    e("    s_waitcnt vmcnt(0)")
    for k in range(NL):
        r = regs[k]
        e(f"    v_bitop3_b32 v{27+k}, v{r}, v{r+1}, s29 bitop3:0x96")
    for k in range(NL):
        r = regs[k]
        e(f"    v_bitop3_b32 v{27+k}, v{27+k}, v{r+2}, v{r+3} bitop3:0x96")
    for k in range(NL):
        e(f"    v_cmp_ne_u32 s[{4+2*k}:{5+2*k}], 0, v{27+k}")
    e("    s_or_b64 s[82:83], s[4:5], s[6:7]")
    if NL == 4:
        e("    s_or_b64 vcc, s[8:9], s[10:11]")
        e("    s_or_b64 s[82:83], s[82:83], vcc")
    e("    s_cbranch_scc0 L_poll_ok")
    e("    s_sub_u32 s31, s31, 1")
    e("    s_cbranch_scc1 L_poll_ok")
    if sleep:
        e(f"    s_sleep {sleep}")
    e("    s_branch L_poll")
    e("L_poll_ok:")
    stamp(7)
    if NL == 4:
        e("    v_add_f32 v10, v10, v14")
        e("    v_add_f32 v18, v18, v22")
        e("    v_pk_add_f32 v[8:9], v[8:9], v[12:13]")
        e("    v_pk_add_f32 v[16:17], v[16:17], v[20:21]")
        e("    v_add_f32 v11, v10, v18")
        e("    v_add_f32 v10, v10, v18")
        e("    v_pk_add_f32 v[8:9], v[8:9], v[16:17]")
    else:
        e("    v_add_f32 v11, v10, v14")
        e("    v_add_f32 v10, v10, v14")
        e("    v_pk_add_f32 v[8:9], v[8:9], v[12:13]")
    e("    s_nop 0")
    e("    v_permlane32_swap_b32 v10, v11")
    e("    v_permlane32_swap_b32 v8, v9")
    e("    v_add_f32 v10, v10, v11              ; [c | c]")
    e("    v_add_f32 v8, v8, v9                 ; [a | b]")
    e("    s_nop 1")
    e("    v_permlane16_swap_b32 v8, v10")
    e("    v_add_f32 v8, v8, v10                ; rows: a, c, b, c")
    e("    s_nop 1")
    e("    v_add_f32_dpp v8, v8, v8 row_shr:4 row_mask:0xf bank_mask:0xf bound_ctrl:0")
    e("    s_nop 1")
    e("    v_add_f32_dpp v8, v8, v8 row_shr:8 row_mask:0xf bank_mask:0xf bound_ctrl:0")
    e("    s_mov_b32 exec_lo, 0xf000f000")
    e("    s_mov_b32 exec_hi, 0x0000f000")
    e(f"    ds_write_b32 v31, v8 offset:{L_P}")
    e("    s_mov_b64 exec, -1")
    e("    s_waitcnt lgkmcnt(0)")
    if pg:
        e("    s_branch L_b3")
        e(".p2align 12")
        if stub:
            e("L_stub:")
            e("    s_branch L_stubret")
    e("L_b3:")
    e("    s_barrier")
    e("L_b4:")
    e("    s_barrier")
    e(f"    ds_read_b128 v[8:11], v7 offset:{L_G}")
    e(f"    ds_read_b128 v[12:15], v7 offset:{L_G+16}")

    cnt = [0]

    def scale_store(slot, first=False):
        t = 16 + 8 * (cnt[0] & 1)
        cnt[0] += 1
        if dot:
            if first:
                e("    s_waitcnt lgkmcnt(0)")
                stamp(5)
                for i in range(4):
                    e(f"    v_lshrrev_b32 v{8+2*i}, 16, v{8+2*i}     ; (g_lo, 0)")
            for i in range(4):
                d = dreg(slot) + i
                e(f"    v_dot2_f32_bf16 v{t+2*i}, v{d}, v{8+2*i}, 0")
                e(f"    v_dot2_f32_bf16 v{t+1+2*i}, v{d}, v{9+2*i}, 0")
            e("    s_nop 0")
            for i in range(4):
                d = dreg(slot) + i
                e(f"    v_cvt_pk_bf16_f32 v{d}, v{t+2*i}, v{t+1+2*i}")
            d = dreg(slot)
            e(f"    buffer_store_dwordx4 v[{d}:{d+3}], v5, s[20:23], s{SO+slot} offen{stf}")
            return
        for i in range(4):
            d = dreg(slot) + i
            e(f"    v_lshlrev_b32 v{t+2*i}, 16, v{d}")
            e(f"    v_and_b32 v{t+1+2*i}, s30, v{d}")
        if first:
            e("    s_waitcnt lgkmcnt(0)")
            stamp(5)
        for i in range(4):
            e(f"    v_pk_mul_f32 v[{t+2*i}:{t+1+2*i}], v[{t+2*i}:{t+1+2*i}], v[{8+2*i}:{9+2*i}]")
        for i in range(4):
            d = dreg(slot) + i
            e(f"    v_cvt_pk_bf16_f32 v{d}, v{t+2*i}, v{t+1+2*i}")
        d = dreg(slot)
        e(f"    buffer_store_dwordx4 v[{d}:{d+3}], v5, s[20:23], s{SO+slot} offen{stf}")

    sslots = []
    for pp in sorder:
        k = lorder.index(pp)
        sslots += [2 * k, 2 * k + 1]
    for j in range(32):
        scale_store(sslots[j], first=(j == 0))
        if j == 1:
            e("    s_cmp_lg_u32 s2, 0")
            e("    s_cbranch_scc1 L_noep")
            e("    s_cmp_lg_u32 s3, 11")
            e("    s_cbranch_scc1 L_noep")
            e(f"    v_mov_b32 v1, {EPOCH}")
            e("    v_mov_b32 v3, s28")
            e("    s_mov_b64 exec, 1")
            e("    buffer_store_dword v3, v1, s[24:27], 0 offen sc1")
            if dbgout:
                e("    s_load_dwordx2 s[32:33], s[0:1], 32")
                e("    s_mov_b32 s34, 256")
                e("    s_mov_b32 s35, 0x00020000")
                e("    v_mov_b32 v2, s76")
                e("    v_mov_b32 v3, s89")
                e("    v_mov_b32 v1, 0")
                e("    s_waitcnt lgkmcnt(0)")
                e("    buffer_store_dwordx2 v[2:3], v1, s[32:35], 0 offen")
            e("    s_mov_b64 exec, -1")
            e("L_noep:")
        if sbar and (j + 1) % sbar == 0 and j != 31:
            e("    s_barrier")
    if enc:
        e("    s_waitcnt vmcnt(0)")
        stamp(6)
        e("    s_waitcnt lgkmcnt(0)")
        a, b = {1: (0, 0), 2: (0, 3), 3: (0, 5), 4: (5, 6), 5: (0, 6)}[enc]
        e(f"    s_sub_u32 s42, s{ST+2*smap[b]}, s{ST+2*smap[a]}")
        e("L_enc:")
        e("    s_memrealtime s[4:5]")
        e("    s_waitcnt lgkmcnt(0)")
        e(f"    s_sub_u32 s43, s4, s{ST+2*smap[6]}")
        e("    s_cmp_lt_u32 s43, s42")
        e("    s_cbranch_scc1 L_enc")
    if diag:
        e("    s_waitcnt vmcnt(0)")
        stamp(6)
        e("    s_waitcnt lgkmcnt(0)")
        e("    s_mul_i32 s42, s2, 12")
        e("    s_add_u32 s42, s42, s3")
        e("    s_lshl_b32 s42, s42, 7")
        e(f"    s_add_u32 s42, s42, {DIAG}")
        e("    v_mov_b32 v1, s42")
        e("    s_mov_b64 exec, 1")
        inv = {v: k for k, v in smap.items()}
        for k in range(6):
            e(f"    v_mov_b32 v16, s{ST+2*k}")
            e(f"    v_mov_b32 v17, s{ST+2*k+1}")
            e(f"    buffer_store_dwordx2 v[16:17], v1, s[24:27], 0 offen offset:{8*inv[k]}")
            e("    s_nop 2")
        e("    s_getreg_b32 s42, hwreg(HW_REG_XCC_ID)")
        e("    v_mov_b32 v16, s42")
        e("    v_mov_b32 v17, s31")
        e("    buffer_store_dwordx2 v[16:17], v1, s[24:27], 0 offen offset:88")
    e("L_exit:")
    e("    s_endpgm")
    e('.section .rodata,"a"')
    e(".p2align 6")
    e(f".amdhsa_kernel {NAME}")
    e("  .amdhsa_next_free_vgpr 168")
    e("  .amdhsa_next_free_sgpr 102")
    e("  .amdhsa_accum_offset 168")
    e("  .amdhsa_group_segment_fixed_size 0")
    e("  .amdhsa_kernarg_size 48")
    e("  .amdhsa_user_sgpr_count 2")
    e("  .amdhsa_user_sgpr_kernarg_segment_ptr 1")
    e("  .amdhsa_system_sgpr_workgroup_id_x 1")
    e("  .amdhsa_float_denorm_mode_32 3")
    e(".end_amdhsa_kernel")
    return "\n".join(o) + "\n"


if __name__ == "__main__":
    ap = argparse.ArgumentParser()
    ap.add_argument("-o", default="-")
    ap.add_argument("--ld", default="nt")
    ap.add_argument("--st", default="sc0 sc1")
    ap.add_argument("--diag", action="store_true")
    for name, dv in (("sleep", 0), ("sbar", 1), ("lvm", 3), ("ns", 8), ("pre", 9), ("pairs", 2), ("thr", 14), ("dbgout", 0),
                     ("enc", 0), ("sdiag", 0), ("tx", 0), ("to", 1), ("tstep", 7), ("wstep", 4), ("allpar", 0), ("mfma", 0), ("prio", 0), ("gw", 0), ("gd", 0), ("clk", 0), ("dot", 0), ("pg", 0), ("stub", 0), ("evw", -1), ("evs", 1), ("rep", 0), ("np8", 0)):
        ap.add_argument("--" + name, type=int, default=dv)
    ap.add_argument("--pubf", default="sc1")
    ap.add_argument("--pollf", default="sc1")
    a = ap.parse_args()
    kw = vars(a).copy()
    out = kw.pop("o")
    s = gen(**kw)
    if out == "-":
        sys.stdout.write(s)
    else:
        open(out, "w").write(s)
```

```python
import sys, argparse

HEADER = """; Kernarg layout for this problem (48 bytes, ptrs only, base s[0:1]):
"""

NAME = "standalone__channel_attn_se__vision_kernel"
XBYTES = 100663296
MAGIC = 0x5BD1E995
MAGIC2 = 0x2C1B3C6D

L_M = 0
L_HP = 6144
L_P = 7488
L_G = 6656
L_DEC = 7424
L_W = 8192
LDS = 20480
VOTE = 262144
EPOCH = 270336
DIAG = 1 << 20
WS_BYTES = 2 << 20
SB = 49152
WIN = 128 * SB


def gen(ld="nt", st="sc0 sc1", diag=False, sleep=0, spin=400000, pubf="sc1", pollf="sc1", sbar=1,
        lvm=3, ns=8, pre=9, pairs=2, thr=14, dbgout=0, enc=0, sdiag=0, tx=0, to=1, tstep=7, wstep=4, allpar=0,
        mfma=0, prio=0, gw=0, gd=0, clk=0, dot=0, pg=0, stub=0, evw=-1, evs=1, rep=0, np8=0, zr=0, fine=0, ow=0, eve=32, txs=-1):
    o = []
    e = o.append
    ldf = (" " + ld) if ld else ""
    stf = (" " + st) if st else ""
    D0 = 40
    SO = 44
    ST = 90
    na = 16 - ns
    adaptive = [(15 - i // 2) if i % 2 == 0 else (9 - i // 2) for i in range(na)][::-1]
    static = [pp for pp in range(16) if pp not in adaptive]
    lorder = static + adaptive
    sorder = []
    si, ai = 0, 0
    for k in range(16):
        if (ai < na and (ai + 1) * 16 <= (k + 1) * na) or si >= len(static):
            sorder.append(adaptive[ai]); ai += 1
        else:
            sorder.append(static[si]); si += 1
    assert sorted(sorder) == list(range(16))
    region = lambda pp: 0 if pp < 10 else 1
    A0 = 2 * ns
    G = A0 - lvm - 1 + gd
    e(HEADER.rstrip())
    e(f"; @launch grid=(256,1,1) block=(768,1,1) lds={LDS}")
    e('.amdgcn_target "amdgcn-amd-amdhsa--gfx950"')
    e(".text")
    e(f".globl {NAME}")
    e(".p2align 8")
    e(f".type {NAME},@function")
    e(f"{NAME}:")
    smap = {0: 0, 1: 1, 3: 2, 5: 3, 6: 4, 7: 5}

    def stamp(i, sd=False):
        if clk and i in (1, 7):
            return
        if clk and diag and i == (5 if clk == 1 else 0):
            e(f"    s_memtime s[{ST+2*smap[1]}:{ST+1+2*smap[1]}]")
        if clk and diag and i == (6 if clk == 1 else 3):
            e(f"    s_memtime s[{ST+2*smap[7]}:{ST+1+2*smap[7]}]")
        if sdiag and i in (1, 7) and not sd:
            return
        if sd and not sdiag:
            return
        if (diag or enc) and i in smap:
            k = smap[i]
            e(f"    s_memrealtime s[{ST+2*k}:{ST+1+2*k}]")

    def dreg(slot):
        return D0 + 4 * slot

    q = []

    def load(slot, track=True):
        d = dreg(slot)
        e(f"    buffer_load_dwordx4 v[{d}:{d+3}], v5, s[16:19], s{SO+slot} offen{ldf}")
        if track:
            q.append(slot)

    def soff(k, pp, u):
        b = 84 if ((pp ^ u) & 1) else 82
        e(f"    s_add_u32 s{SO+2*k}, s{b}, {pp*WIN}")
        e(f"    s_add_u32 s{SO+2*k+1}, s{b+1}, {pp*WIN}")

    us = []
    seen = [0, 0]
    for pp in lorder:
        us.append(seen[region(pp)] & 1)
        seen[region(pp)] += 1

    e("    s_cmp_ge_u32 s2, 256")
    e("    s_cbranch_scc1 L_exit")
    e("    s_load_dwordx2 s[16:17], s[0:1], 0       ; x")
    e("    s_load_dwordx2 s[20:21], s[0:1], 24      ; out")
    e("    s_load_dwordx2 s[24:25], s[0:1], 40      ; ws")
    e("    s_load_dwordx4 s[12:15], s[0:1], 8")
    if diag or enc:
        for i in range(6):
            e(f"    s_mov_b64 s[{ST+2*i}:{ST+1+2*i}], 0")
    stamp(0)
    e("    v_lshrrev_b32 v1, 6, v0")
    e("    v_and_b32 v2, 63, v0                 ; lane")
    e("    v_readfirstlane_b32 s3, v1")
    e("    v_lshrrev_b32 v3, 4, v2              ; q (row)")
    e("    v_and_b32 v4, 15, v2                 ; n")
    e("    v_mul_u32_u24 v5, 768, v3")
    e("    s_mul_i32 s40, s3, 11")
    e("    s_lshr_b32 s40, s40, 5")
    e("    s_mul_i32 s41, s40, 3")
    e("    s_sub_u32 s41, s3, s41               ; seg = wave%3")
    e("    s_lshl_b32 s43, s41, 8")
    e("    v_lshl_add_u32 v5, v4, 4, v5")
    e("    v_add_u32 v5, s43, v5                ; v5 = q*768 + seg*256 + n*16")
    e("    s_mov_b32 s18, %d" % XBYTES)
    e("    s_mov_b32 s19, 0x00020000")
    e("    s_lshr_b32 s42, s2, 3")
    e("    s_and_b32 s43, s2, 3")
    e("    s_lshl2_add_u32 s42, s42, s43")
    e(f"    s_mul_i32 s76, s42, {SB}")
    e("    s_mul_i32 s78, s40, 6144")
    e("    s_add_u32 s78, s78, s76              ; half 0, t0")
    e("    s_add_u32 s80, s78, 24576            ; half 1, t0")
    e("    s_bitcmp1_b32 s2, 2")
    e("    s_cselect_b32 s82, s80, s78")
    e("    s_add_u32 s83, s82, 3072")
    for k in range(2):
        e(f"    s_add_u32 s{SO+2*k}, s82, {lorder[k]*WIN}")
        e(f"    s_add_u32 s{SO+2*k+1}, s83, {lorder[k]*WIN}")
    assert lvm <= 4
    e("    s_waitcnt lgkmcnt(0)")
    for s in range(lvm):
        load(s)
    stamp(1, True)
    for k in range(2, 16):
        e(f"    s_add_u32 s{SO+2*k}, s82, {lorder[k]*WIN}")
        e(f"    s_add_u32 s{SO+2*k+1}, s83, {lorder[k]*WIN}")
    e("    s_mov_b32 s22, %d" % XBYTES)
    e("    s_mov_b32 s23, 0x00020000")
    e("    s_mov_b32 s26, %d" % WS_BYTES)
    e("    s_mov_b32 s27, 0x00020000")
    e("    s_mov_b32 s30, 0xffff0000")
    e("    s_mov_b32 s31, %d" % spin)
    e(f"    s_mov_b32 s87, {VOTE}")
    e("    s_mov_b32 s86, 0")
    if evw >= 0:
        e("    s_getreg_b32 s11, hwreg(HW_REG_XCC_ID)")
    e("    s_cmp_gt_u32 s3, 3")
    e("    s_cbranch_scc1 L_norole")
    e("    s_cmp_eq_u32 s3, 0")
    e("    s_cbranch_scc1 L_wave0")
    e("    s_cmp_eq_u32 s3, 3")
    e("    s_cbranch_scc1 L_wave3")
    if tx:
        e("    s_lshr_b32 s42, s2, 3")
        e("    s_and_b32 s43, s42, 15")
        e("    s_add_u32 s43, s43, 32")
        e("    s_cmp_eq_u32 s3, 1")
        e("    s_cselect_b32 s42, s42, s43")
        e("    s_lshl_b32 s42, s42, 21")
        e("    s_load_dword s4, s[16:17], s42")
    e("    s_branch L_norole")
    e("L_wave3:")
    e("    s_load_dword s4, s[12:13], 0")
    e("    s_load_dword s5, s[14:15], 0")
    e("    s_branch L_norole")
    e("L_wave0:")
    e(f"    s_load_dword s28, s[24:25], {EPOCH}")
    if zr:
        e("    v_and_b32 v36, 3, v2")
        e("    v_lshlrev_b32 v36, 4, v36")
        e("    v_lshrrev_b32 v37, 2, v2")
        e(f"    v_mul_u32_u24 v37, {rep}, v37")
        e("    v_add_u32 v36, v36, v37")
        for i in range(4):
            e(f"    v_mov_b32 v{32+i}, 0")
        e("    s_lshl_b32 s42, s2, 6")
        e("    s_mov_b32 exec_hi, 0")
        e("    buffer_store_dwordx4 v[32:35], v36, s[24:27], s42 offen sc1")
        e("    s_mov_b32 exec_hi, -1")
    e("    s_getreg_b32 s89, hwreg(HW_REG_XCC_ID)")
    e("    s_and_b32 s89, s89, 7")
    e("    s_mov_b32 s38, 0")
    e("    s_mov_b32 s86, 2")
    e("    s_bitcmp1_b32 s89, 0")
    e("    s_cbranch_scc1 L_pubvote0" if zr else "    s_cbranch_scc1 L_pubvote")
    e("    s_mov_b32 s86, 1")
    e("    s_bfe_u32 s42, s2, 0x10006")
    e("    s_add_u32 s42, s42, 1")
    e(f"    s_mul_i32 s42, s42, {40<<20}")
    e("    s_bfe_u32 s43, s2, 0x30003")
    e("    s_lshl_b32 s43, s43, 21")
    e("    s_add_u32 s42, s42, s43")
    e("    s_lshr_b32 s43, s2, 7")
    e("    s_lshl_b32 s43, s43, 19")
    e("    s_add_u32 s42, s42, s43")
    e("    s_and_b32 s43, s2, 7")
    e("    s_lshl_b32 s43, s43, 16")
    e("    s_add_u32 s42, s42, s43")
    e("    s_and_b32 s43, s20, 0xffe00000")
    e("    s_add_u32 s6, s43, s42")
    e("    s_addc_u32 s7, s21, 0")
    e("    s_load_dword s4, s[6:7], 4096")
    for sl in range(lvm, pre):
        load(sl, track=False)
    e("    s_waitcnt lgkmcnt(0)")
    offs = [0, 8192, 24576 + 256, 16384 + 256, 32768 + 512, 40960 + 512][:2 * pairs]
    e("    s_memtime s[32:33]")
    e("    s_waitcnt lgkmcnt(0)")
    for i, of in enumerate(offs):
        a_, b_ = (32, 34) if i % 2 == 0 else (34, 32)
        e(f"    s_load_dword s4, s[6:7], {of}")
        e("    s_waitcnt lgkmcnt(0)")
        e(f"    s_memtime s[{b_}:{b_+1}]")
        e("    s_waitcnt lgkmcnt(0)")
        e(f"    s_sub_u32 s{8+(i&1)}, s{b_}, s{a_}")
        if i % 2 == 1:
            e("    s_cmp_gt_u32 s9, s8" if (i // 2) % 2 == 0 else "    s_cmp_gt_u32 s8, s9")
            e("    s_cselect_b32 s39, 16, -16")
            e("    s_add_i32 s38, s38, s39")
    e("    s_lshr_b32 s42, s2, 1")
    e("    s_xor_b32 s42, s42, s89")
    e("    s_sub_i32 s39, 0, s38")
    e("    s_bitcmp1_b32 s42, 2")
    e("    s_cselect_b32 s38, s39, s38")
    if zr:
        e(f"    s_waitcnt vmcnt({pre-lvm})")
        e("    s_branch L_pubvote")
        e("L_pubvote0:")
        e("    s_waitcnt vmcnt(0)")
    e("L_pubvote:")
    e("    s_waitcnt lgkmcnt(0)")
    e("    s_or_b32 s38, s38, s89")
    e("    s_add_u32 s39, s28, 1")
    e("    s_xor_b32 s39, s39, 0x%08x" % MAGIC2)
    e("    s_xor_b32 s39, s39, s38")
    e("    s_lshl_b32 s42, s2, 3")
    e("    v_mov_b32 v32, s38")
    e("    v_mov_b32 v33, s39")
    e("    v_mov_b32 v34, s42")
    e("    s_mov_b64 exec, 1")
    e("    buffer_store_dwordx2 v[32:33], v34, s[24:27], s87 offen sc1")
    e("    s_mov_b64 exec, -1")
    e("L_norole:")
    if mfma:
        e("    v_and_b32 v16, 1, v4")
        e("    v_lshlrev_b32 v16, 4, v16")
        e("    v_mov_b32 v17, 0x3f80")
        e("    v_lshlrev_b32 v16, v16, v17          ; 0x3f80 << 16*(n&1)")
        e("    v_lshrrev_b32 v17, 1, v4             ; n>>1")
        for d in range(4):
            e(f"    v_cmp_eq_u32 vcc, {d}, v17")
            e(f"    v_mov_b32 v{8+d}, 0")
            e("    s_nop 0")
            e(f"    v_cndmask_b32 v{12+d}, 0, v16, vcc")
    e("    v_lshlrev_b32 v1, 4, v2              ; lane*16")

    def acc(slot):
        d = dreg(slot)
        if mfma:
            e(f"    v_mfma_f32_16x16x32_bf16 v[8:11], v[12:15], v[{d}:{d+3}], v[8:11]")
            return
        for i in range(4):
            if slot == 0:
                e(f"    v_lshlrev_b32 v{8+2*i}, 16, v{d+i}")
                e(f"    v_and_b32 v{9+2*i}, s30, v{d+i}")
            else:
                e(f"    v_lshlrev_b32 v{16+2*i}, 16, v{d+i}")
                e(f"    v_and_b32 v{17+2*i}, s30, v{d+i}")
        if slot:
            for i in range(4):
                e(f"    v_pk_add_f32 v[{8+2*i}:{9+2*i}], v[{8+2*i}:{9+2*i}], v[{16+2*i}:{17+2*i}]")

    for j in range(32):
        younger = len(q) - 1 - q.index(j)
        e(f"    s_waitcnt vmcnt({younger})")
        if j == sdiag - 1:
            stamp(7, True)
        if j == A0 - lvm:
            e("    s_waitcnt lgkmcnt(0)")
            e("    s_add_u32 s28, s28, 1                ; epoch + 1")
            e("    s_xor_b32 s29, s28, 0x%08x           ; tag key" % MAGIC)
            e(f"    s_cmp_lg_u32 s3, {gw}")
            e("    s_cbranch_scc1 L_decbar")
            e("    s_xor_b32 s88, s28, 0x%08x           ; vote key" % MAGIC2)
            if gd:
                e(f"    s_waitcnt vmcnt({max(0, lvm - gd)})")
            e("L_vchk:")
            e("    v_bitop3_b32 v28, v32, v33, s88 bitop3:0x96")
            e("    v_bitop3_b32 v29, v34, v35, s88 bitop3:0x96")
            e("    v_bitop3_b32 v30, v36, v37, s88 bitop3:0x96")
            e("    v_bitop3_b32 v27, v38, v39, s88 bitop3:0x96")
            e("    v_or3_b32 v28, v28, v29, v30")
            e("    v_or_b32 v28, v28, v27")
            e("    v_cmp_ne_u32 vcc, 0, v28")
            e("    s_cbranch_vccz L_vok")
            e("    s_sub_u32 s31, s31, 1")
            e("    s_cbranch_scc1 L_vok")
            e("    buffer_load_dwordx4 v[32:35], v1, s[24:27], s87 offen sc1")
            e("    buffer_load_dwordx4 v[36:39], v1, s[24:27], s87 offen offset:1024 sc1")
            e("    s_waitcnt vmcnt(0)")
            e("    s_branch L_vchk")
            e("L_vok:")
            e("    s_and_b32 s42, s2, 0x7b")
            e("    s_lshr_b32 s42, s42, 1")
            e("    v_readlane_b32 s4, v32, s42")
            e("    v_readlane_b32 s5, v34, s42")
            e("    v_readlane_b32 s6, v36, s42")
            e("    v_readlane_b32 s7, v38, s42")
            e("    v_ashrrev_i32 v28, 4, v32")
            e("    v_ashrrev_i32 v29, 4, v34")
            e("    v_ashrrev_i32 v30, 4, v36")
            e("    v_ashrrev_i32 v27, 4, v38")
            e("    v_add3_u32 v28, v28, v29, v30")
            e("    v_add_u32 v28, v28, v27")
            e("    s_bitcmp1_b32 s2, 0")
            e("    s_cselect_b32 s4, s5, s4")
            e("    s_cselect_b32 s6, s7, s6")
            e("    s_bitcmp1_b32 s2, 7")
            e("    s_cselect_b32 s4, s6, s4")
            for sh in (1, 2, 4, 8):
                e("    s_nop 1")
                e(f"    v_add_u32_dpp v28, v28, v28 row_shr:{sh} row_mask:0xf bank_mask:0xf bound_ctrl:0")
            e("    s_nop 1")
            e("    v_add_u32_dpp v28, v28, v28 row_bcast:15 row_mask:0xa bank_mask:0xf")
            e("    v_lshrrev_b32 v30, 3, v2")
            e("    v_and_b32 v30, 4, v30                ; (lane>=32)*4")
            e("    v_mov_b32 v29, s4")
            e("    s_mov_b32 exec_lo, 0x80000000")
            e("    s_mov_b32 exec_hi, 0x80000000")
            e(f"    ds_write_b32 v30, v28 offset:{L_DEC}")
            e(f"    ds_write_b32 v30, v29 offset:{L_DEC+8}")
            e("    s_mov_b64 exec, -1")
            e("    s_waitcnt lgkmcnt(0)")
            stamp(1)
            e("L_decbar:")
            e("    s_barrier")
            e("    v_mov_b32 v28, 0")
            e(f"    ds_read_b96 v[28:30], v28 offset:{L_DEC}")
            e("    s_and_b32 s42, s20, 0x1fffff")
            e("    s_add_u32 s43, s42, 1536")
            e("    s_lshr_b32 s43, s43, 10              ; c")
            e("    s_lshl_b32 s78, s40, 1")
            e("    s_sub_u32 s78, s78, s43              ; u - c (u = 2*grp)")
            e("    s_mul_i32 s78, s78, 11")
            e("    s_add_u32 s79, s78, 11")
            e("    s_and_b32 s78, s78, 15")
            e("    s_and_b32 s79, s79, 15")
            e("    s_xor_b32 s80, s78, 8")
            e("    s_xor_b32 s81, s79, 8")
            for r in (78, 79, 80, 81):
                e(f"    s_mul_i32 s{r}, s{r}, 3072")
                e(f"    s_add_u32 s{r}, s{r}, s76")
            e("    s_add_u32 s77, s76, 24576")
            e("    s_add_u32 s77, s77, s42")
            e("    s_lshr_b32 s77, s77, 19")
            e("    s_xor_b32 s77, s77, s2")
            e("    s_waitcnt lgkmcnt(0)")
            e("    v_readfirstlane_b32 s4, v28")
            e("    v_readfirstlane_b32 s5, v29")
            e("    v_readfirstlane_b32 s6, v30")
            if dbgout:
                e("    s_mov_b32 s76, s4")
                e("    s_mov_b32 s89, s5")
            if allpar:
                e("    s_xor_b32 s42, s16, s20")
                e("    s_lshr_b32 s42, s42, 12")
                e("    s_or_b32 s42, s42, s6")
                e("    s_bitcmp1_b32 s42, 0")
            else:
                e("    s_bitcmp1_b32 s6, 0")
            e("    s_cbranch_scc0 L_nodec")
            e("    s_xor_b32 s77, s77, s6")
            for r in range(2):
                wins = [(k, pp) for k, pp in enumerate(lorder) if pp in adaptive and region(pp) == r]
                if not wins:
                    continue
                e(f"    s_abs_i32 s42, s{4+r}")
                e(f"    s_cmp_lt_u32 s42, {thr}")
                e(f"    s_cbranch_scc1 L_keep{r}")
                e(f"    s_lshr_b32 s42, s{4+r}, 29")
                e("    s_xor_b32 s42, s42, s77")
                e("    s_bitcmp1_b32 s42, 2")
                e("    s_cselect_b32 s82, s80, s78")
                e("    s_cselect_b32 s83, s81, s79")
                e("    s_cselect_b32 s84, s78, s80")
                e("    s_cselect_b32 s85, s79, s81")
                for k, pp in wins:
                    soff(k, pp, 0)
                e(f"L_keep{r}:")
            e("L_nodec:")
        if ow and j + lvm == 32 - ow:
            for k in range(32 - ow, 32):
                load(k)
        if j + lvm < 32 - ow:
            k = j + lvm
            if evw >= 0 and k >= pre and (k % evs == 0) and k < eve:
                e("    s_bitcmp1_b32 s11, 0")
                e(f"    s_cbranch_scc1 L_ev{k}")
                e(f"    s_waitcnt vmcnt({evw})")
                e(f"L_ev{k}:")
            if k < pre:
                e("    s_cmp_eq_u32 s86, 1")
                e(f"    s_cbranch_scc1 L_sk{k}")
                load(k)
                e(f"L_sk{k}:")
            else:
                load(k)
            if k == G:
                e(f"    s_cmp_lg_u32 s3, {gw}")
                e("    s_cbranch_scc1 L_nog")
                e("    buffer_load_dwordx4 v[32:35], v1, s[24:27], s87 offen sc1")
                e("    buffer_load_dwordx4 v[36:39], v1, s[24:27], s87 offen offset:1024 sc1")
                e("L_nog:")
        acc(j)
        if j == wstep:
            e("    s_cmp_lt_u32 s3, 5")
            e("    s_cselect_b32 s36, s14, s12")
            e("    s_cselect_b32 s37, s15, s13")
            e("    s_cselect_b32 s42, 0, 5120")
            e("    s_mov_b32 s38, 4608")
            e("    s_mov_b32 s39, 0x00020000")
            e("    s_lshl_b32 s43, s3, 10")
            e(f"    s_add_u32 m0, s43, {L_W}")
            e("    s_sub_u32 s43, s43, s42")
            e("    buffer_load_dwordx4 v1, s[36:39], s43 offen lds")
            q.append("w")
        if j == txs:
            e("    s_sub_u32 s42, s3, 1")
            e("    s_cmp_gt_u32 s42, 1")
            e("    s_cbranch_scc1 L_notx")
            e("    s_lshr_b32 s42, s2, 3")
            e("    s_and_b32 s43, s42, 15")
            e("    s_add_u32 s43, s43, 32")
            e("    s_cmp_eq_u32 s3, 1")
            e("    s_cselect_b32 s42, s42, s43")
            e("    s_lshl_b32 s42, s42, 21")
            e("    s_load_dword s10, s[16:17], s42")
            e("L_notx:")
        if j == tstep:
            e(f"    s_load_dword s28, s[24:25], {EPOCH}")
            if to:
                e("    s_cmp_gt_u32 s3, 2")
                e("    s_cbranch_scc1 L_noto")
                e("    s_lshr_b32 s42, s2, 3")
                e("    s_and_b32 s43, s42, 15")
                e("    s_add_u32 s43, s43, 32")
                e("    s_cmp_eq_u32 s3, 1")
                e("    s_cselect_b32 s42, s42, s43")
                e("    s_lshl_b32 s42, s42, 21")
                e("    s_load_dword s10, s[20:21], s42")
                e("L_noto:")
        if stub and j == stub:
            e("    s_cmp_eq_u32 s3, 5")
            e("    s_cbranch_scc1 L_stub")
            e("L_stubret:")
        if j == 18:
            e("    s_mul_i32 s42, s41, 1536")
            e("    s_mul_i32 s43, s40, 6")
            e("    s_add_u32 s42, s42, s43")
            e("    v_mul_u32_u24 v27, 24, v2")
            e("    v_add_u32 v27, s42, v27")
            for i in range(3):
                e(f"    ds_read_u16 v{24+i}, v27 offset:{L_W+5120+2*i}")
            e("    s_mul_i32 s42, s40, 1536")
            e("    s_lshl_b32 s43, s41, 9")
            e("    s_add_u32 s42, s42, s43")
            e("    v_lshlrev_b32 v6, 5, v4")
            e(f"    v_lshl_add_u32 v6, v3, {4 if mfma else 3}, v6")
            e("    v_add_u32 v6, s42, v6")
            e("    s_lshl_b32 s43, s41, 7")
            e("    v_lshlrev_b32 v7, 3, v4")
            e("    v_add_u32 v7, s43, v7")
            e("    v_subrev_u32 v27, 192, v7")
            e("    v_min_u32 v7, v7, v27")
            e("    v_lshlrev_b32 v7, 2, v7")
            e("    v_and_b32 v27, 1, v3")
            e("    v_lshrrev_b32 v31, 1, v3")
            e("    v_lshl_add_u32 v31, v27, 1, v31")
            e("    v_lshlrev_b32 v31, 2, v31            ; i(row)*4")
            e("    s_lshl_b32 s42, s41, 6")
            e("    s_lshl_b32 s43, s40, 4")
            e("    s_add_u32 s42, s42, s43")
            e("    v_add_u32 v4, s42, v31")
            e("    s_lshl_b32 s42, s41, 8")
            e("    v_lshlrev_b32 v3, 2, v2")
            e("    v_add_u32 v3, s42, v3")
            if rep:
                e("    v_and_b32 v32, 48, v1                ; (lane&3)*16")
                e("    v_lshrrev_b32 v33, 2, v2")
                e(f"    v_mul_u32_u24 v33, {rep}, v33")
                e("    v_add_u32 v33, v33, v32")
            e("    s_waitcnt lgkmcnt(0)")
            for r in (24, 25, 26):
                e(f"    v_lshlrev_b32 v{r}, 16, v{r}")
    if mfma:
        e("    s_mov_b32 exec_hi, 0")
        e("    s_nop 7")
        e(f"    ds_write_b128 v6, v[8:11] offset:{L_M}")
        e("    s_mov_b32 exec_hi, -1")
    else:
        e("    s_nop 1")
        for i in range(4):
            e(f"    v_permlane32_swap_b32 v{8+i}, v{12+i}")
        for i in range(4):
            e(f"    v_add_f32 v{8+i}, v{8+i}, v{12+i}")
        e("    s_nop 0")
        e("    v_permlane16_swap_b32 v8, v10")
        e("    v_permlane16_swap_b32 v9, v11")
        e("    v_add_f32 v8, v8, v10")
        e("    v_add_f32 v9, v9, v11")
        e(f"    ds_write_b64 v6, v[8:9] offset:{L_M}")
    e("    s_waitcnt lgkmcnt(0)")
    e("    s_barrier")
    stamp(3)
    for k in range(4):
        e(f"    ds_read2st64_b32 v[{16+2*k}:{17+2*k}], v3 offset0:{6*k} offset1:{6*k+3}")
    e("    s_waitcnt lgkmcnt(2)" if not (diag or enc) else "    s_waitcnt lgkmcnt(0)")
    e("    v_pk_add_f32 v[16:17], v[16:17], v[18:19]")
    e("    s_waitcnt lgkmcnt(0)")
    e("    v_pk_add_f32 v[20:21], v[20:21], v[22:23]")
    e("    v_pk_add_f32 v[16:17], v[16:17], v[20:21]")
    e("    v_add_f32 v16, v16, v17")
    e("    v_mul_f32 v10, v16, v26")
    e("    v_mul_f32 v11, v16, v26")
    e("    v_mul_f32 v8, v16, v24")
    e("    v_mul_f32 v9, v16, v25")
    e("    v_permlane32_swap_b32 v10, v11")
    e("    s_nop 0")
    e("    v_permlane32_swap_b32 v8, v9")
    e("    v_add_f32 v10, v10, v11              ; [c | c]")
    e("    v_add_f32 v8, v8, v9                 ; [a | b]")
    e("    s_nop 1")
    e("    v_permlane16_swap_b32 v8, v10")
    e("    v_add_f32 v8, v8, v10                ; rows: a, c, b, c")
    e("    s_nop 1")
    e("    v_add_f32_dpp v9, v8, v8 row_shr:1 row_mask:0xf bank_mask:0xf bound_ctrl:0")
    e("    v_add_f32_dpp v9, v8, v9 row_shr:2 row_mask:0xf bank_mask:0xf bound_ctrl:0")
    e("    v_add_f32_dpp v9, v8, v9 row_shr:3 row_mask:0xf bank_mask:0xf bound_ctrl:0")
    e("    s_nop 1")
    e("    v_add_f32_dpp v9, v9, v9 row_shr:4 row_mask:0xf bank_mask:0xf bound_ctrl:0")
    e("    s_nop 1")
    e("    v_add_f32_dpp v9, v9, v9 row_shr:8 row_mask:0xf bank_mask:0xf bound_ctrl:0")
    e("    s_mov_b32 exec_lo, 0x80008000")
    e("    s_mov_b32 exec_hi, 0x00008000")
    e(f"    ds_write_b32 v4, v9 offset:{L_HP}")
    e("    s_mov_b64 exec, -1")
    e("    s_lshl_b32 s42, s2, 6")
    e("    s_cmp_lg_u32 s3, 4")
    e("    s_waitcnt lgkmcnt(0)")
    e("    s_barrier")
    e("    s_cbranch_scc1 L_notpub")
    if rep:
        e("    s_mov_b32 exec_hi, 0")
        e(f"    ds_read_b128 v[8:11], v32 offset:{L_HP}")
        e(f"    ds_read_b128 v[12:15], v32 offset:{L_HP+64}")
        e(f"    ds_read_b128 v[16:19], v32 offset:{L_HP+128}")
    else:
        e("    s_mov_b64 exec, 15")
        e(f"    ds_read_b128 v[8:11], v1 offset:{L_HP}")
        e(f"    ds_read_b128 v[12:15], v1 offset:{L_HP+64}")
        e(f"    ds_read_b128 v[16:19], v1 offset:{L_HP+128}")
    e("    s_waitcnt lgkmcnt(1)")
    e("    v_pk_add_f32 v[8:9], v[8:9], v[12:13]")
    e("    v_add_f32 v10, v10, v14")
    e("    s_waitcnt lgkmcnt(0)")
    e("    v_pk_add_f32 v[8:9], v[8:9], v[16:17]")
    e("    v_add_f32 v10, v10, v18")
    e("    v_bitop3_b32 v11, v8, v9, s29 bitop3:0x96")
    e("    v_xor_b32 v11, v11, v10")
    e(f"    buffer_store_dwordx4 v[8:11], v{33 if rep else 1}, s[24:27], s42 offen {pubf}")
    e("    s_mov_b64 exec, -1")
    stamp(7)
    e("    s_branch L_b3")
    e("L_notpub:")
    e("    s_cmp_lt_u32 s3, 4")
    e("    s_cbranch_scc1 L_poll_start")
    e("    s_cmp_gt_u32 s3, 7")
    e("    s_cbranch_scc1 L_poll_start" if np8 else "    s_cbranch_scc1 L_b3")
    e("    v_subrev_u32 v1, 320, v0")
    e("    v_lshlrev_b32 v21, 2, v1")
    e("    v_lshlrev_b32 v1, 1, v1")
    for r in range(12):
        e(f"    ds_read_u16 v{8+r}, v1 offset:{L_W+384*r}")
    e("    v_and_b32 v20, 15, v2")
    e("    v_lshlrev_b32 v20, 2, v20")
    e(f"    v_add_u32 v20, {L_P}, v20")
    e("    s_waitcnt lgkmcnt(0)")
    for r in range(12):
        e(f"    v_lshlrev_b32 v{8+r}, 16, v{8+r}")
    e("    s_barrier")
    e("    ds_read2_b32 v[22:23], v20 offset0:0 offset1:16")
    e("    ds_read2_b32 v[24:25], v20 offset0:32 offset1:48")
    if np8:
        e("    ds_read2_b32 v[26:27], v20 offset0:64 offset1:80")
        e("    ds_read2_b32 v[28:29], v20 offset0:96 offset1:112")
        e("    s_waitcnt lgkmcnt(2)")
        e("    v_pk_add_f32 v[22:23], v[22:23], v[24:25]")
        e("    s_waitcnt lgkmcnt(0)")
        e("    v_pk_add_f32 v[24:25], v[26:27], v[28:29]")
    else:
        e("    s_waitcnt lgkmcnt(0)")
    e("    v_pk_add_f32 v[22:23], v[22:23], v[24:25]")
    e("    v_add_f32 v22, v22, v23")
    e("    v_mul_f32 v22, 0x36800000, v22       ; * 2^-18")
    e("    v_cvt_pk_bf16_f32 v22, v22, v22")
    e("    v_lshlrev_b32 v22, 16, v22")
    e("    v_mul_f32 v23, 0xbfb8aa3b, v22       ; -log2e * x")
    e("    v_exp_f32 v23, v23")
    e("    s_nop 0")
    e("    v_add_f32 v23, 1.0, v23")
    e("    v_rcp_f32 v23, v23")
    e("    s_nop 0")
    e("    v_mul_f32 v22, v22, v23")
    e("    v_cvt_pk_bf16_f32 v22, v22, v22")
    e("    v_lshlrev_b32 v22, 16, v22")
    e("    s_nop 1")
    for r in range(12):
        a = 23 + (r % 3)
        op = "v_mul_f32_dpp" if r < 3 else "v_fmac_f32_dpp"
        e(f"    {op} v{a}, v22, v{8+r} row_newbcast:{r} row_mask:0xf bank_mask:0xf")
    e("    v_add_f32 v23, v23, v24")
    e("    v_add_f32 v23, v23, v25")
    e("    v_cvt_pk_bf16_f32 v23, v23, v23")
    e("    v_lshlrev_b32 v23, 16, v23")
    e("    v_mul_f32 v23, 0xbfb8aa3b, v23")
    e("    v_exp_f32 v23, v23")
    e("    s_nop 0")
    e("    v_add_f32 v23, 1.0, v23")
    e("    v_rcp_f32 v23, v23")
    e("    s_nop 0")
    e("    v_cvt_pk_bf16_f32 v23, v23, v23")
    e("    v_lshlrev_b32 v23, 16, v23")
    e(f"    ds_write_b32 v21, v23 offset:{L_G}")
    e("    s_waitcnt lgkmcnt(0)")
    e("    s_branch L_b4")

    e("L_poll_start:")
    NL = 2 if np8 else 4
    if np8:
        e("    s_sub_u32 s10, s3, 4")
        e("    s_cmp_lt_u32 s3, 4")
        e("    s_cselect_b32 s10, s3, s10")
        e("    s_lshl_b32 s42, s10, 11")
    else:
        e("    s_mov_b32 s10, s3")
        e("    s_lshl_b32 s42, s3, 12")
    if rep:
        e("    s_getreg_b32 s43, hwreg(HW_REG_XCC_ID)")
        e("    s_and_b32 s43, s43, 7")
        e(f"    s_mul_i32 s43, s43, {rep}")
        e("    s_add_u32 s42, s42, s43")
    e("    v_and_b32 v27, 3, v2")
    e("    v_mul_u32_u24 v27, 12, v27")
    e("    s_lshl_b32 s43, s10, 6")
    e("    v_add3_u32 v31, v31, v27, s43")
    regs = (8, 12, 16, 20)
    for k in range(NL):
        e(f"    s_mov_b64 s[{4+2*k}:{5+2*k}], -1")
    e("L_poll:")
    for k in range(NL):
        e(f"    s_mov_b64 exec, s[{4+2*k}:{5+2*k}]")
        e(f"    s_cbranch_execz L_skip{k}")
        e(f"    buffer_load_dwordx4 v[{regs[k]}:{regs[k]+3}], v1, s[24:27], s42 offen offset:{1024*k} {pollf}")
        e(f"L_skip{k}:")
    e("    s_mov_b64 exec, -1")
    e("    s_waitcnt vmcnt(0)")
    for k in range(NL):
        r = regs[k]
        e(f"    v_bitop3_b32 v{27+k}, v{r}, v{r+1}, s29 bitop3:0x96")
    for k in range(NL):
        r = regs[k]
        e(f"    v_bitop3_b32 v{27+k}, v{27+k}, v{r+2}, v{r+3} bitop3:0x96")
    for k in range(NL):
        e(f"    v_cmp_ne_u32 s[{4+2*k}:{5+2*k}], 0, v{27+k}")
    e("    s_or_b64 s[82:83], s[4:5], s[6:7]")
    if NL == 4:
        e("    s_or_b64 vcc, s[8:9], s[10:11]")
        e("    s_or_b64 s[82:83], s[82:83], vcc")
    e("    s_cbranch_scc0 L_poll_ok")
    e("    s_sub_u32 s31, s31, 1")
    e("    s_cbranch_scc1 L_poll_ok")
    if sleep:
        e(f"    s_sleep {sleep}")
    e("    s_branch L_poll")
    e("L_poll_ok:")
    stamp(7)
    if NL == 4:
        e("    v_add_f32 v10, v10, v14")
        e("    v_add_f32 v18, v18, v22")
        e("    v_pk_add_f32 v[8:9], v[8:9], v[12:13]")
        e("    v_pk_add_f32 v[16:17], v[16:17], v[20:21]")
        e("    v_add_f32 v11, v10, v18")
        e("    v_add_f32 v10, v10, v18")
        e("    v_pk_add_f32 v[8:9], v[8:9], v[16:17]")
    else:
        e("    v_add_f32 v11, v10, v14")
        e("    v_add_f32 v10, v10, v14")
        e("    v_pk_add_f32 v[8:9], v[8:9], v[12:13]")
    e("    s_nop 0")
    e("    v_permlane32_swap_b32 v10, v11")
    e("    v_permlane32_swap_b32 v8, v9")
    e("    v_add_f32 v10, v10, v11              ; [c | c]")
    e("    v_add_f32 v8, v8, v9                 ; [a | b]")
    e("    s_nop 1")
    e("    v_permlane16_swap_b32 v8, v10")
    e("    v_add_f32 v8, v8, v10                ; rows: a, c, b, c")
    e("    s_nop 1")
    e("    v_add_f32_dpp v8, v8, v8 row_shr:4 row_mask:0xf bank_mask:0xf bound_ctrl:0")
    e("    s_nop 1")
    e("    v_add_f32_dpp v8, v8, v8 row_shr:8 row_mask:0xf bank_mask:0xf bound_ctrl:0")
    e("    s_mov_b32 exec_lo, 0xf000f000")
    e("    s_mov_b32 exec_hi, 0x0000f000")
    e(f"    ds_write_b32 v31, v8 offset:{L_P}")
    e("    s_mov_b64 exec, -1")
    e("    s_waitcnt lgkmcnt(0)")
    if pg:
        e("    s_branch L_b3")
        e(".p2align 12")
        if stub:
            e("L_stub:")
            e("    s_branch L_stubret")
    e("L_b3:")
    e("    s_barrier")
    e("L_b4:")
    e("    s_barrier")
    e(f"    ds_read_b128 v[8:11], v7 offset:{L_G}")
    e(f"    ds_read_b128 v[12:15], v7 offset:{L_G+16}")

    cnt = [0]

    def scale_store(slot, first=False):
        t = 16 + 8 * (cnt[0] & 1)
        cnt[0] += 1
        if dot:
            if first:
                e("    s_waitcnt lgkmcnt(0)")
                stamp(5)
                for i in range(4):
                    e(f"    v_lshrrev_b32 v{8+2*i}, 16, v{8+2*i}     ; (g_lo, 0)")
            for i in range(4):
                d = dreg(slot) + i
                e(f"    v_dot2_f32_bf16 v{t+2*i}, v{d}, v{8+2*i}, 0")
                e(f"    v_dot2_f32_bf16 v{t+1+2*i}, v{d}, v{9+2*i}, 0")
            e("    s_nop 0")
            for i in range(4):
                d = dreg(slot) + i
                e(f"    v_cvt_pk_bf16_f32 v{d}, v{t+2*i}, v{t+1+2*i}")
            d = dreg(slot)
            e(f"    buffer_store_dwordx4 v[{d}:{d+3}], v5, s[20:23], s{SO+slot} offen{stf}")
            return
        for i in range(4):
            d = dreg(slot) + i
            e(f"    v_lshlrev_b32 v{t+2*i}, 16, v{d}")
            e(f"    v_and_b32 v{t+1+2*i}, s30, v{d}")
        if first:
            e("    s_waitcnt lgkmcnt(0)")
            stamp(5)
        for i in range(4):
            e(f"    v_pk_mul_f32 v[{t+2*i}:{t+1+2*i}], v[{t+2*i}:{t+1+2*i}], v[{8+2*i}:{9+2*i}]")
        for i in range(4):
            d = dreg(slot) + i
            e(f"    v_cvt_pk_bf16_f32 v{d}, v{t+2*i}, v{t+1+2*i}")
        d = dreg(slot)
        e(f"    buffer_store_dwordx4 v[{d}:{d+3}], v5, s[20:23], s{SO+slot} offen{stf}")

    sslots = []
    for pp in sorder:
        k = lorder.index(pp)
        sslots += [2 * k, 2 * k + 1]
    if fine:
        S_ = list(range(A0)); A_ = list(range(A0, 32))
        sslots = []
        si, ai = 0, 0
        for k in range(32):
            if (si < len(S_) and (si + 0.5) * len(A_) <= (ai + 0.5) * len(S_)) or ai >= len(A_):
                sslots.append(S_[si]); si += 1
            else:
                sslots.append(A_[ai]); ai += 1
        assert sorted(sslots) == list(range(32))
    for j in range(32):
        scale_store(sslots[j], first=(j == 0))
        if j == 1:
            e("    s_cmp_lg_u32 s2, 0")
            e("    s_cbranch_scc1 L_noep")
            e("    s_cmp_lg_u32 s3, 11")
            e("    s_cbranch_scc1 L_noep")
            e(f"    v_mov_b32 v1, {EPOCH}")
            e("    v_mov_b32 v3, s28")
            e("    s_mov_b64 exec, 1")
            e("    buffer_store_dword v3, v1, s[24:27], 0 offen sc1")
            if dbgout:
                e("    s_load_dwordx2 s[32:33], s[0:1], 32")
                e("    s_mov_b32 s34, 256")
                e("    s_mov_b32 s35, 0x00020000")
                e("    v_mov_b32 v2, s76")
                e("    v_mov_b32 v3, s89")
                e("    v_mov_b32 v1, 0")
                e("    s_waitcnt lgkmcnt(0)")
                e("    buffer_store_dwordx2 v[2:3], v1, s[32:35], 0 offen")
            e("    s_mov_b64 exec, -1")
            e("L_noep:")
        if sbar and (j + 1) % sbar == 0 and j != 31:
            e("    s_barrier")
    if enc:
        e("    s_waitcnt vmcnt(0)")
        stamp(6)
        e("    s_waitcnt lgkmcnt(0)")
        a, b = {1: (0, 0), 2: (0, 3), 3: (0, 5), 4: (5, 6), 5: (0, 6)}[enc]
        e(f"    s_sub_u32 s42, s{ST+2*smap[b]}, s{ST+2*smap[a]}")
        e("L_enc:")
        e("    s_memrealtime s[4:5]")
        e("    s_waitcnt lgkmcnt(0)")
        e(f"    s_sub_u32 s43, s4, s{ST+2*smap[6]}")
        e("    s_cmp_lt_u32 s43, s42")
        e("    s_cbranch_scc1 L_enc")
    if diag:
        e("    s_waitcnt vmcnt(0)")
        stamp(6)
        e("    s_waitcnt lgkmcnt(0)")
        e("    s_mul_i32 s42, s2, 12")
        e("    s_add_u32 s42, s42, s3")
        e("    s_lshl_b32 s42, s42, 7")
        e(f"    s_add_u32 s42, s42, {DIAG}")
        e("    v_mov_b32 v1, s42")
        e("    s_mov_b64 exec, 1")
        inv = {v: k for k, v in smap.items()}
        for k in range(6):
            e(f"    v_mov_b32 v16, s{ST+2*k}")
            e(f"    v_mov_b32 v17, s{ST+2*k+1}")
            e(f"    buffer_store_dwordx2 v[16:17], v1, s[24:27], 0 offen offset:{8*inv[k]}")
            e("    s_nop 2")
        e("    s_getreg_b32 s42, hwreg(HW_REG_XCC_ID)")
        e("    v_mov_b32 v16, s42")
        e("    v_mov_b32 v17, s31")
        e("    buffer_store_dwordx2 v[16:17], v1, s[24:27], 0 offen offset:88")
    e("L_exit:")
    e("    s_endpgm")
    e('.section .rodata,"a"')
    e(".p2align 6")
    e(f".amdhsa_kernel {NAME}")
    e("  .amdhsa_next_free_vgpr 168")
    e("  .amdhsa_next_free_sgpr 102")
    e("  .amdhsa_accum_offset 168")
    e("  .amdhsa_group_segment_fixed_size 0")
    e("  .amdhsa_kernarg_size 48")
    e("  .amdhsa_user_sgpr_count 2")
    e("  .amdhsa_user_sgpr_kernarg_segment_ptr 1")
    e("  .amdhsa_system_sgpr_workgroup_id_x 1")
    e("  .amdhsa_float_denorm_mode_32 3")
    e(".end_amdhsa_kernel")
    return "\n".join(o) + "\n"


if __name__ == "__main__":
    ap = argparse.ArgumentParser()
    ap.add_argument("-o", default="-")
    ap.add_argument("--ld", default="nt")
    ap.add_argument("--st", default="sc0 sc1")
    ap.add_argument("--diag", action="store_true")
    for name, dv in (("sleep", 0), ("sbar", 1), ("lvm", 3), ("ns", 8), ("pre", 9), ("pairs", 2), ("thr", 14), ("dbgout", 0),
                     ("enc", 0), ("sdiag", 0), ("tx", 0), ("to", 1), ("tstep", 7), ("wstep", 4), ("allpar", 0), ("mfma", 0), ("prio", 0), ("gw", 0), ("gd", 0), ("clk", 0), ("dot", 0), ("pg", 0), ("stub", 0), ("evw", -1), ("evs", 1), ("rep", 0), ("np8", 0), ("zr", 0), ("fine", 0), ("ow", 0), ("eve", 32), ("txs", -1)):
        ap.add_argument("--" + name, type=int, default=dv)
    ap.add_argument("--pubf", default="sc1")
    ap.add_argument("--pollf", default="sc1")
    a = ap.parse_args()
    kw = vars(a).copy()
    out = kw.pop("o")
    s = gen(**kw)
    if out == "-":
        sys.stdout.write(s)
    else:
        open(out, "w").write(s)
```

```python
import sys, argparse

HEADER = """; Kernarg layout for this problem (48 bytes, ptrs only, base s[0:1]):
"""

NAME = "standalone__channel_attn_se__vision_kernel"
XBYTES = 100663296
MAGIC = 0x5BD1E995
MAGIC2 = 0x2C1B3C6D

L_M = 0
L_HP = 6144
L_P = 7488
L_G = 6656
L_DEC = 7424
L_W = 8192
LDS = 20480
VOTE = 262144
EPOCH = 270336
DIAG = 1 << 20
WS_BYTES = 2 << 20
SB = 49152
WIN = 128 * SB


def gen(ld="nt", st="sc0 sc1", diag=False, sleep=0, spin=400000, pubf="sc1", pollf="sc1", sbar=1,
        lvm=3, ns=8, pre=9, pairs=2, thr=14, dbgout=0, enc=0, sdiag=0, tx=0, to=1, tstep=7, wstep=4, allpar=0,
        mfma=0, prio=0, gw=0, gd=0, clk=0, dot=0, pg=0, stub=0, evw=-1, evs=1, rep=0, np8=0, zr=0, fine=0, ow=0, eve=32, txs=-1):
    o = []
    e = o.append
    ldf = (" " + ld) if ld else ""
    stf = (" " + st) if st else ""
    D0 = 40
    SO = 44
    ST = 90
    na = 16 - ns
    adaptive = [(15 - i // 2) if i % 2 == 0 else (9 - i // 2) for i in range(na)][::-1]
    static = [pp for pp in range(16) if pp not in adaptive]
    lorder = static + adaptive
    sorder = []
    si, ai = 0, 0
    for k in range(16):
        if (ai < na and (ai + 1) * 16 <= (k + 1) * na) or si >= len(static):
            sorder.append(adaptive[ai]); ai += 1
        else:
            sorder.append(static[si]); si += 1
    assert sorted(sorder) == list(range(16))
    region = lambda pp: 0 if pp < 10 else 1
    A0 = 2 * ns
    G = A0 - lvm - 1 + gd
    e(HEADER.rstrip())
    e(f"; @launch grid=(256,1,1) block=(768,1,1) lds={LDS}")
    e('.amdgcn_target "amdgcn-amd-amdhsa--gfx950"')
    e(".text")
    e(f".globl {NAME}")
    e(".p2align 8")
    e(f".type {NAME},@function")
    e(f"{NAME}:")
    smap = {0: 0, 1: 1, 3: 2, 5: 3, 6: 4, 7: 5}

    def stamp(i, sd=False):
        if clk and i in (1, 7):
            return
        if clk and diag and i == (5 if clk == 1 else 0):
            e(f"    s_memtime s[{ST+2*smap[1]}:{ST+1+2*smap[1]}]")
        if clk and diag and i == (6 if clk == 1 else 3):
            e(f"    s_memtime s[{ST+2*smap[7]}:{ST+1+2*smap[7]}]")
        if sdiag and i in (1, 7) and not sd:
            return
        if sd and not sdiag:
            return
        if (diag or enc) and i in smap:
            k = smap[i]
            e(f"    s_memrealtime s[{ST+2*k}:{ST+1+2*k}]")

    def dreg(slot):
        return D0 + 4 * slot

    q = []

    def load(slot, track=True):
        d = dreg(slot)
        e(f"    buffer_load_dwordx4 v[{d}:{d+3}], v5, s[16:19], s{SO+slot} offen{ldf}")
        if track:
            q.append(slot)

    def soff(k, pp, u):
        b = 84 if ((pp ^ u) & 1) else 82
        e(f"    s_add_u32 s{SO+2*k}, s{b}, {pp*WIN}")
        e(f"    s_add_u32 s{SO+2*k+1}, s{b+1}, {pp*WIN}")

    us = []
    seen = [0, 0]
    for pp in lorder:
        us.append(seen[region(pp)] & 1)
        seen[region(pp)] += 1

    e("    s_cmp_ge_u32 s2, 256")
    e("    s_cbranch_scc1 L_exit")
    e("    s_load_dwordx2 s[16:17], s[0:1], 0       ; x")
    e("    s_load_dwordx2 s[20:21], s[0:1], 24      ; out")
    e("    s_load_dwordx2 s[24:25], s[0:1], 40      ; ws")
    e("    s_load_dwordx4 s[12:15], s[0:1], 8")
    if diag or enc:
        for i in range(6):
            e(f"    s_mov_b64 s[{ST+2*i}:{ST+1+2*i}], 0")
    stamp(0)
    e("    v_lshrrev_b32 v1, 6, v0")
    e("    v_and_b32 v2, 63, v0                 ; lane")
    e("    v_readfirstlane_b32 s3, v1")
    e("    v_lshrrev_b32 v3, 4, v2              ; q (row)")
    e("    v_and_b32 v4, 15, v2                 ; n")
    e("    v_mul_u32_u24 v5, 768, v3")
    e("    s_mul_i32 s40, s3, 11")
    e("    s_lshr_b32 s40, s40, 5")
    e("    s_mul_i32 s41, s40, 3")
    e("    s_sub_u32 s41, s3, s41               ; seg = wave%3")
    e("    s_lshl_b32 s43, s41, 8")
    e("    v_lshl_add_u32 v5, v4, 4, v5")
    e("    v_add_u32 v5, s43, v5                ; v5 = q*768 + seg*256 + n*16")
    e("    s_mov_b32 s18, %d" % XBYTES)
    e("    s_mov_b32 s19, 0x00020000")
    e("    s_lshr_b32 s42, s2, 3")
    e("    s_and_b32 s43, s2, 3")
    e("    s_lshl2_add_u32 s42, s42, s43")
    e(f"    s_mul_i32 s76, s42, {SB}")
    e("    s_mul_i32 s78, s40, 6144")
    e("    s_add_u32 s78, s78, s76              ; half 0, t0")
    e("    s_add_u32 s80, s78, 24576            ; half 1, t0")
    e("    s_bitcmp1_b32 s2, 2")
    e("    s_cselect_b32 s82, s80, s78")
    e("    s_add_u32 s83, s82, 3072")
    for k in range(2):
        e(f"    s_add_u32 s{SO+2*k}, s82, {lorder[k]*WIN}")
        e(f"    s_add_u32 s{SO+2*k+1}, s83, {lorder[k]*WIN}")
    assert lvm <= 4
    e("    s_waitcnt lgkmcnt(0)")
    for s in range(lvm):
        load(s)
    stamp(1, True)
    for k in range(2, 16):
        e(f"    s_add_u32 s{SO+2*k}, s82, {lorder[k]*WIN}")
        e(f"    s_add_u32 s{SO+2*k+1}, s83, {lorder[k]*WIN}")
    e("    s_mov_b32 s22, %d" % XBYTES)
    e("    s_mov_b32 s23, 0x00020000")
    e("    s_mov_b32 s26, %d" % WS_BYTES)
    e("    s_mov_b32 s27, 0x00020000")
    e("    s_mov_b32 s30, 0xffff0000")
    e("    s_mov_b32 s31, %d" % spin)
    e(f"    s_mov_b32 s87, {VOTE}")
    e("    s_mov_b32 s86, 0")
    if evw >= 0:
        e("    s_getreg_b32 s11, hwreg(HW_REG_XCC_ID)")
    e("    s_cmp_gt_u32 s3, 3")
    e("    s_cbranch_scc1 L_norole")
    e("    s_cmp_eq_u32 s3, 0")
    e("    s_cbranch_scc1 L_wave0")
    e("    s_cmp_eq_u32 s3, 3")
    e("    s_cbranch_scc1 L_wave3")
    if tx:
        e("    s_lshr_b32 s42, s2, 3")
        e("    s_and_b32 s43, s42, 15")
        e("    s_add_u32 s43, s43, 32")
        e("    s_cmp_eq_u32 s3, 1")
        e("    s_cselect_b32 s42, s42, s43")
        e("    s_lshl_b32 s42, s42, 21")
        e("    s_load_dword s4, s[16:17], s42")
    e("    s_branch L_norole")
    e("L_wave3:")
    e("    s_load_dword s4, s[12:13], 0")
    e("    s_load_dword s5, s[14:15], 0")
    e("    s_branch L_norole")
    e("L_wave0:")
    e(f"    s_load_dword s28, s[24:25], {EPOCH}")
    if zr == 1:
        e("    v_and_b32 v36, 3, v2")
        e("    v_lshlrev_b32 v36, 4, v36")
        e("    v_lshrrev_b32 v37, 2, v2")
        e(f"    v_mul_u32_u24 v37, {rep}, v37")
        e("    v_add_u32 v36, v36, v37")
        for i in range(4):
            e(f"    v_mov_b32 v{32+i}, 0")
        e("    s_lshl_b32 s42, s2, 6")
        e("    s_mov_b32 exec_hi, 0")
        e("    buffer_store_dwordx4 v[32:35], v36, s[24:27], s42 offen sc1")
        e("    s_mov_b32 exec_hi, -1")
    e("    s_getreg_b32 s89, hwreg(HW_REG_XCC_ID)")
    e("    s_and_b32 s89, s89, 7")
    e("    s_mov_b32 s38, 0")
    e("    s_mov_b32 s86, 2")
    e("    s_bitcmp1_b32 s89, 0")
    e("    s_cbranch_scc1 L_pubvote0" if zr == 1 else "    s_cbranch_scc1 L_pubvote")
    e("    s_mov_b32 s86, 1")
    e("    s_bfe_u32 s42, s2, 0x10006")
    e("    s_add_u32 s42, s42, 1")
    e(f"    s_mul_i32 s42, s42, {40<<20}")
    e("    s_bfe_u32 s43, s2, 0x30003")
    e("    s_lshl_b32 s43, s43, 21")
    e("    s_add_u32 s42, s42, s43")
    e("    s_lshr_b32 s43, s2, 7")
    e("    s_lshl_b32 s43, s43, 19")
    e("    s_add_u32 s42, s42, s43")
    e("    s_and_b32 s43, s2, 7")
    e("    s_lshl_b32 s43, s43, 16")
    e("    s_add_u32 s42, s42, s43")
    e("    s_and_b32 s43, s20, 0xffe00000")
    e("    s_add_u32 s6, s43, s42")
    e("    s_addc_u32 s7, s21, 0")
    e("    s_load_dword s4, s[6:7], 4096")
    for sl in range(lvm, pre):
        load(sl, track=False)
    e("    s_waitcnt lgkmcnt(0)")
    offs = [0, 8192, 24576 + 256, 16384 + 256, 32768 + 512, 40960 + 512][:2 * pairs]
    e("    s_memtime s[32:33]")
    e("    s_waitcnt lgkmcnt(0)")
    for i, of in enumerate(offs):
        a_, b_ = (32, 34) if i % 2 == 0 else (34, 32)
        e(f"    s_load_dword s4, s[6:7], {of}")
        e("    s_waitcnt lgkmcnt(0)")
        e(f"    s_memtime s[{b_}:{b_+1}]")
        e("    s_waitcnt lgkmcnt(0)")
        e(f"    s_sub_u32 s{8+(i&1)}, s{b_}, s{a_}")
        if i % 2 == 1:
            e("    s_cmp_gt_u32 s9, s8" if (i // 2) % 2 == 0 else "    s_cmp_gt_u32 s8, s9")
            e("    s_cselect_b32 s39, 16, -16")
            e("    s_add_i32 s38, s38, s39")
    e("    s_lshr_b32 s42, s2, 1")
    e("    s_xor_b32 s42, s42, s89")
    e("    s_sub_i32 s39, 0, s38")
    e("    s_bitcmp1_b32 s42, 2")
    e("    s_cselect_b32 s38, s39, s38")
    if zr == 1:
        e(f"    s_waitcnt vmcnt({pre-lvm})")
        e("    s_branch L_pubvote")
        e("L_pubvote0:")
        e("    s_waitcnt vmcnt(0)")
    e("L_pubvote:")
    e("    s_waitcnt lgkmcnt(0)")
    e("    s_or_b32 s38, s38, s89")
    e("    s_add_u32 s39, s28, 1")
    e("    s_xor_b32 s39, s39, 0x%08x" % MAGIC2)
    e("    s_xor_b32 s39, s39, s38")
    e("    s_lshl_b32 s42, s2, 3")
    e("    v_mov_b32 v32, s38")
    e("    v_mov_b32 v33, s39")
    e("    v_mov_b32 v34, s42")
    e("    s_mov_b64 exec, 1")
    e("    buffer_store_dwordx2 v[32:33], v34, s[24:27], s87 offen sc1")
    e("    s_mov_b64 exec, -1")
    e("L_norole:")
    if mfma:
        e("    v_and_b32 v16, 1, v4")
        e("    v_lshlrev_b32 v16, 4, v16")
        e("    v_mov_b32 v17, 0x3f80")
        e("    v_lshlrev_b32 v16, v16, v17          ; 0x3f80 << 16*(n&1)")
        e("    v_lshrrev_b32 v17, 1, v4             ; n>>1")
        for d in range(4):
            e(f"    v_cmp_eq_u32 vcc, {d}, v17")
            e(f"    v_mov_b32 v{8+d}, 0")
            e("    s_nop 0")
            e(f"    v_cndmask_b32 v{12+d}, 0, v16, vcc")
    e("    v_lshlrev_b32 v1, 4, v2              ; lane*16")

    def acc(slot):
        d = dreg(slot)
        if mfma:
            e(f"    v_mfma_f32_16x16x32_bf16 v[8:11], v[12:15], v[{d}:{d+3}], v[8:11]")
            return
        for i in range(4):
            if slot == 0:
                e(f"    v_lshlrev_b32 v{8+2*i}, 16, v{d+i}")
                e(f"    v_and_b32 v{9+2*i}, s30, v{d+i}")
            else:
                e(f"    v_lshlrev_b32 v{16+2*i}, 16, v{d+i}")
                e(f"    v_and_b32 v{17+2*i}, s30, v{d+i}")
        if slot:
            for i in range(4):
                e(f"    v_pk_add_f32 v[{8+2*i}:{9+2*i}], v[{8+2*i}:{9+2*i}], v[{16+2*i}:{17+2*i}]")

    for j in range(32):
        younger = len(q) - 1 - q.index(j)
        e(f"    s_waitcnt vmcnt({younger})")
        if j == sdiag - 1:
            stamp(7, True)
        if j == A0 - lvm:
            e("    s_waitcnt lgkmcnt(0)")
            e("    s_add_u32 s28, s28, 1                ; epoch + 1")
            e("    s_xor_b32 s29, s28, 0x%08x           ; tag key" % MAGIC)
            e(f"    s_cmp_lg_u32 s3, {gw}")
            e("    s_cbranch_scc1 L_decbar")
            e("    s_xor_b32 s88, s28, 0x%08x           ; vote key" % MAGIC2)
            if gd:
                e(f"    s_waitcnt vmcnt({max(0, lvm - gd)})")
            e("L_vchk:")
            e("    v_bitop3_b32 v28, v32, v33, s88 bitop3:0x96")
            e("    v_bitop3_b32 v29, v34, v35, s88 bitop3:0x96")
            e("    v_bitop3_b32 v30, v36, v37, s88 bitop3:0x96")
            e("    v_bitop3_b32 v27, v38, v39, s88 bitop3:0x96")
            e("    v_or3_b32 v28, v28, v29, v30")
            e("    v_or_b32 v28, v28, v27")
            e("    v_cmp_ne_u32 vcc, 0, v28")
            e("    s_cbranch_vccz L_vok")
            e("    s_sub_u32 s31, s31, 1")
            e("    s_cbranch_scc1 L_vok")
            e("    buffer_load_dwordx4 v[32:35], v1, s[24:27], s87 offen sc1")
            e("    buffer_load_dwordx4 v[36:39], v1, s[24:27], s87 offen offset:1024 sc1")
            e("    s_waitcnt vmcnt(0)")
            e("    s_branch L_vchk")
            e("L_vok:")
            e("    s_and_b32 s42, s2, 0x7b")
            e("    s_lshr_b32 s42, s42, 1")
            e("    v_readlane_b32 s4, v32, s42")
            e("    v_readlane_b32 s5, v34, s42")
            e("    v_readlane_b32 s6, v36, s42")
            e("    v_readlane_b32 s7, v38, s42")
            e("    v_ashrrev_i32 v28, 4, v32")
            e("    v_ashrrev_i32 v29, 4, v34")
            e("    v_ashrrev_i32 v30, 4, v36")
            e("    v_ashrrev_i32 v27, 4, v38")
            e("    v_add3_u32 v28, v28, v29, v30")
            e("    v_add_u32 v28, v28, v27")
            e("    s_bitcmp1_b32 s2, 0")
            e("    s_cselect_b32 s4, s5, s4")
            e("    s_cselect_b32 s6, s7, s6")
            e("    s_bitcmp1_b32 s2, 7")
            e("    s_cselect_b32 s4, s6, s4")
            for sh in (1, 2, 4, 8):
                e("    s_nop 1")
                e(f"    v_add_u32_dpp v28, v28, v28 row_shr:{sh} row_mask:0xf bank_mask:0xf bound_ctrl:0")
            e("    s_nop 1")
            e("    v_add_u32_dpp v28, v28, v28 row_bcast:15 row_mask:0xa bank_mask:0xf")
            e("    v_lshrrev_b32 v30, 3, v2")
            e("    v_and_b32 v30, 4, v30                ; (lane>=32)*4")
            e("    v_mov_b32 v29, s4")
            e("    s_mov_b32 exec_lo, 0x80000000")
            e("    s_mov_b32 exec_hi, 0x80000000")
            e(f"    ds_write_b32 v30, v28 offset:{L_DEC}")
            e(f"    ds_write_b32 v30, v29 offset:{L_DEC+8}")
            e("    s_mov_b64 exec, -1")
            e("    s_waitcnt lgkmcnt(0)")
            stamp(1)
            e("L_decbar:")
            e("    s_barrier")
            e("    v_mov_b32 v28, 0")
            e(f"    ds_read_b96 v[28:30], v28 offset:{L_DEC}")
            e("    s_and_b32 s42, s20, 0x1fffff")
            e("    s_add_u32 s43, s42, 1536")
            e("    s_lshr_b32 s43, s43, 10              ; c")
            e("    s_lshl_b32 s78, s40, 1")
            e("    s_sub_u32 s78, s78, s43              ; u - c (u = 2*grp)")
            e("    s_mul_i32 s78, s78, 11")
            e("    s_add_u32 s79, s78, 11")
            e("    s_and_b32 s78, s78, 15")
            e("    s_and_b32 s79, s79, 15")
            e("    s_xor_b32 s80, s78, 8")
            e("    s_xor_b32 s81, s79, 8")
            for r in (78, 79, 80, 81):
                e(f"    s_mul_i32 s{r}, s{r}, 3072")
                e(f"    s_add_u32 s{r}, s{r}, s76")
            e("    s_add_u32 s77, s76, 24576")
            e("    s_add_u32 s77, s77, s42")
            e("    s_lshr_b32 s77, s77, 19")
            e("    s_xor_b32 s77, s77, s2")
            e("    s_waitcnt lgkmcnt(0)")
            e("    v_readfirstlane_b32 s4, v28")
            e("    v_readfirstlane_b32 s5, v29")
            e("    v_readfirstlane_b32 s6, v30")
            if dbgout:
                e("    s_mov_b32 s76, s4")
                e("    s_mov_b32 s89, s5")
            if allpar:
                e("    s_xor_b32 s42, s16, s20")
                e("    s_lshr_b32 s42, s42, 12")
                e("    s_or_b32 s42, s42, s6")
                e("    s_bitcmp1_b32 s42, 0")
            else:
                e("    s_bitcmp1_b32 s6, 0")
            e("    s_cbranch_scc0 L_nodec")
            e("    s_xor_b32 s77, s77, s6")
            for r in range(2):
                wins = [(k, pp) for k, pp in enumerate(lorder) if pp in adaptive and region(pp) == r]
                if not wins:
                    continue
                e(f"    s_abs_i32 s42, s{4+r}")
                e(f"    s_cmp_lt_u32 s42, {thr}")
                e(f"    s_cbranch_scc1 L_keep{r}")
                e(f"    s_lshr_b32 s42, s{4+r}, 29")
                e("    s_xor_b32 s42, s42, s77")
                e("    s_bitcmp1_b32 s42, 2")
                e("    s_cselect_b32 s82, s80, s78")
                e("    s_cselect_b32 s83, s81, s79")
                e("    s_cselect_b32 s84, s78, s80")
                e("    s_cselect_b32 s85, s79, s81")
                for k, pp in wins:
                    soff(k, pp, 0)
                e(f"L_keep{r}:")
            e("L_nodec:")
        if ow and j + lvm == 32 - ow:
            for k in range(32 - ow, 32):
                load(k)
        if j + lvm < 32 - ow:
            k = j + lvm
            if evw >= 0 and k >= pre and (k % evs == 0) and k < eve:
                e("    s_bitcmp1_b32 s11, 0")
                e(f"    s_cbranch_scc1 L_ev{k}")
                e(f"    s_waitcnt vmcnt({evw})")
                e(f"L_ev{k}:")
            if k < pre:
                e("    s_cmp_eq_u32 s86, 1")
                e(f"    s_cbranch_scc1 L_sk{k}")
                load(k)
                e(f"L_sk{k}:")
            else:
                load(k)
            if k == G:
                e(f"    s_cmp_lg_u32 s3, {gw}")
                e("    s_cbranch_scc1 L_nog")
                e("    buffer_load_dwordx4 v[32:35], v1, s[24:27], s87 offen sc1")
                e("    buffer_load_dwordx4 v[36:39], v1, s[24:27], s87 offen offset:1024 sc1")
                e("L_nog:")
        acc(j)
        if j == wstep:
            e("    s_cmp_lt_u32 s3, 5")
            e("    s_cselect_b32 s36, s14, s12")
            e("    s_cselect_b32 s37, s15, s13")
            e("    s_cselect_b32 s42, 0, 5120")
            e("    s_mov_b32 s38, 4608")
            e("    s_mov_b32 s39, 0x00020000")
            e("    s_lshl_b32 s43, s3, 10")
            e(f"    s_add_u32 m0, s43, {L_W}")
            e("    s_sub_u32 s43, s43, s42")
            e("    buffer_load_dwordx4 v1, s[36:39], s43 offen lds")
            q.append("w")
        if zr >= 2 and j == zr:
            e("    s_cmp_lg_u32 s3, 4")
            e("    s_cbranch_scc1 L_nozr")
            e("    v_and_b32 v36, 48, v1")
            e("    v_lshrrev_b32 v37, 2, v2")
            e(f"    v_mul_u32_u24 v37, {rep}, v37")
            e("    v_add_u32 v36, v36, v37")
            for i in range(4):
                e(f"    v_mov_b32 v{32+i}, 0")
            e("    s_lshl_b32 s42, s2, 6")
            e("    s_mov_b32 exec_hi, 0")
            e("    buffer_store_dwordx4 v[32:35], v36, s[24:27], s42 offen sc1")
            e("    s_mov_b32 exec_hi, -1")
            e("L_nozr:")
        if j == txs:
            e("    s_sub_u32 s42, s3, 1")
            e("    s_cmp_gt_u32 s42, 1")
            e("    s_cbranch_scc1 L_notx")
            e("    s_lshr_b32 s42, s2, 3")
            e("    s_and_b32 s43, s42, 15")
            e("    s_add_u32 s43, s43, 32")
            e("    s_cmp_eq_u32 s3, 1")
            e("    s_cselect_b32 s42, s42, s43")
            e("    s_lshl_b32 s42, s42, 21")
            e("    s_load_dword s10, s[16:17], s42")
            e("L_notx:")
        if j == tstep:
            e(f"    s_load_dword s28, s[24:25], {EPOCH}")
            if to:
                e("    s_cmp_gt_u32 s3, 2")
                e("    s_cbranch_scc1 L_noto")
                e("    s_lshr_b32 s42, s2, 3")
                e("    s_and_b32 s43, s42, 15")
                e("    s_add_u32 s43, s43, 32")
                e("    s_cmp_eq_u32 s3, 1")
                e("    s_cselect_b32 s42, s42, s43")
                e("    s_lshl_b32 s42, s42, 21")
                e("    s_load_dword s10, s[20:21], s42")
                e("L_noto:")
        if stub and j == stub:
            e("    s_cmp_eq_u32 s3, 5")
            e("    s_cbranch_scc1 L_stub")
            e("L_stubret:")
        if j == 18:
            e("    s_mul_i32 s42, s41, 1536")
            e("    s_mul_i32 s43, s40, 6")
            e("    s_add_u32 s42, s42, s43")
            e("    v_mul_u32_u24 v27, 24, v2")
            e("    v_add_u32 v27, s42, v27")
            for i in range(3):
                e(f"    ds_read_u16 v{24+i}, v27 offset:{L_W+5120+2*i}")
            e("    s_mul_i32 s42, s40, 1536")
            e("    s_lshl_b32 s43, s41, 9")
            e("    s_add_u32 s42, s42, s43")
            e("    v_lshlrev_b32 v6, 5, v4")
            e(f"    v_lshl_add_u32 v6, v3, {4 if mfma else 3}, v6")
            e("    v_add_u32 v6, s42, v6")
            e("    s_lshl_b32 s43, s41, 7")
            e("    v_lshlrev_b32 v7, 3, v4")
            e("    v_add_u32 v7, s43, v7")
            e("    v_subrev_u32 v27, 192, v7")
            e("    v_min_u32 v7, v7, v27")
            e("    v_lshlrev_b32 v7, 2, v7")
            e("    v_and_b32 v27, 1, v3")
            e("    v_lshrrev_b32 v31, 1, v3")
            e("    v_lshl_add_u32 v31, v27, 1, v31")
            e("    v_lshlrev_b32 v31, 2, v31            ; i(row)*4")
            e("    s_lshl_b32 s42, s41, 6")
            e("    s_lshl_b32 s43, s40, 4")
            e("    s_add_u32 s42, s42, s43")
            e("    v_add_u32 v4, s42, v31")
            e("    s_lshl_b32 s42, s41, 8")
            e("    v_lshlrev_b32 v3, 2, v2")
            e("    v_add_u32 v3, s42, v3")
            if rep:
                e("    v_and_b32 v32, 48, v1                ; (lane&3)*16")
                e("    v_lshrrev_b32 v33, 2, v2")
                e(f"    v_mul_u32_u24 v33, {rep}, v33")
                e("    v_add_u32 v33, v33, v32")
            e("    s_waitcnt lgkmcnt(0)")
            for r in (24, 25, 26):
                e(f"    v_lshlrev_b32 v{r}, 16, v{r}")
    if mfma:
        e("    s_mov_b32 exec_hi, 0")
        e("    s_nop 7")
        e(f"    ds_write_b128 v6, v[8:11] offset:{L_M}")
        e("    s_mov_b32 exec_hi, -1")
    else:
        e("    s_nop 1")
        for i in range(4):
            e(f"    v_permlane32_swap_b32 v{8+i}, v{12+i}")
        for i in range(4):
            e(f"    v_add_f32 v{8+i}, v{8+i}, v{12+i}")
        e("    s_nop 0")
        e("    v_permlane16_swap_b32 v8, v10")
        e("    v_permlane16_swap_b32 v9, v11")
        e("    v_add_f32 v8, v8, v10")
        e("    v_add_f32 v9, v9, v11")
        e(f"    ds_write_b64 v6, v[8:9] offset:{L_M}")
    e("    s_waitcnt lgkmcnt(0)")
    e("    s_barrier")
    stamp(3)
    for k in range(4):
        e(f"    ds_read2st64_b32 v[{16+2*k}:{17+2*k}], v3 offset0:{6*k} offset1:{6*k+3}")
    e("    s_waitcnt lgkmcnt(2)" if not (diag or enc) else "    s_waitcnt lgkmcnt(0)")
    e("    v_pk_add_f32 v[16:17], v[16:17], v[18:19]")
    e("    s_waitcnt lgkmcnt(0)")
    e("    v_pk_add_f32 v[20:21], v[20:21], v[22:23]")
    e("    v_pk_add_f32 v[16:17], v[16:17], v[20:21]")
    e("    v_add_f32 v16, v16, v17")
    e("    v_mul_f32 v10, v16, v26")
    e("    v_mul_f32 v11, v16, v26")
    e("    v_mul_f32 v8, v16, v24")
    e("    v_mul_f32 v9, v16, v25")
    e("    v_permlane32_swap_b32 v10, v11")
    e("    s_nop 0")
    e("    v_permlane32_swap_b32 v8, v9")
    e("    v_add_f32 v10, v10, v11              ; [c | c]")
    e("    v_add_f32 v8, v8, v9                 ; [a | b]")
    e("    s_nop 1")
    e("    v_permlane16_swap_b32 v8, v10")
    e("    v_add_f32 v8, v8, v10                ; rows: a, c, b, c")
    e("    s_nop 1")
    e("    v_add_f32_dpp v9, v8, v8 row_shr:1 row_mask:0xf bank_mask:0xf bound_ctrl:0")
    e("    v_add_f32_dpp v9, v8, v9 row_shr:2 row_mask:0xf bank_mask:0xf bound_ctrl:0")
    e("    v_add_f32_dpp v9, v8, v9 row_shr:3 row_mask:0xf bank_mask:0xf bound_ctrl:0")
    e("    s_nop 1")
    e("    v_add_f32_dpp v9, v9, v9 row_shr:4 row_mask:0xf bank_mask:0xf bound_ctrl:0")
    e("    s_nop 1")
    e("    v_add_f32_dpp v9, v9, v9 row_shr:8 row_mask:0xf bank_mask:0xf bound_ctrl:0")
    e("    s_mov_b32 exec_lo, 0x80008000")
    e("    s_mov_b32 exec_hi, 0x00008000")
    e(f"    ds_write_b32 v4, v9 offset:{L_HP}")
    e("    s_mov_b64 exec, -1")
    e("    s_lshl_b32 s42, s2, 6")
    e("    s_cmp_lg_u32 s3, 4")
    e("    s_waitcnt lgkmcnt(0)")
    e("    s_barrier")
    e("    s_cbranch_scc1 L_notpub")
    if rep:
        e("    s_mov_b32 exec_hi, 0")
        e(f"    ds_read_b128 v[8:11], v32 offset:{L_HP}")
        e(f"    ds_read_b128 v[12:15], v32 offset:{L_HP+64}")
        e(f"    ds_read_b128 v[16:19], v32 offset:{L_HP+128}")
    else:
        e("    s_mov_b64 exec, 15")
        e(f"    ds_read_b128 v[8:11], v1 offset:{L_HP}")
        e(f"    ds_read_b128 v[12:15], v1 offset:{L_HP+64}")
        e(f"    ds_read_b128 v[16:19], v1 offset:{L_HP+128}")
    e("    s_waitcnt lgkmcnt(1)")
    e("    v_pk_add_f32 v[8:9], v[8:9], v[12:13]")
    e("    v_add_f32 v10, v10, v14")
    e("    s_waitcnt lgkmcnt(0)")
    e("    v_pk_add_f32 v[8:9], v[8:9], v[16:17]")
    e("    v_add_f32 v10, v10, v18")
    e("    v_bitop3_b32 v11, v8, v9, s29 bitop3:0x96")
    e("    v_xor_b32 v11, v11, v10")
    e(f"    buffer_store_dwordx4 v[8:11], v{33 if rep else 1}, s[24:27], s42 offen {pubf}")
    e("    s_mov_b64 exec, -1")
    stamp(7)
    e("    s_branch L_b3")
    e("L_notpub:")
    e("    s_cmp_lt_u32 s3, 4")
    e("    s_cbranch_scc1 L_poll_start")
    e("    s_cmp_gt_u32 s3, 7")
    e("    s_cbranch_scc1 L_poll_start" if np8 else "    s_cbranch_scc1 L_b3")
    e("    v_subrev_u32 v1, 320, v0")
    e("    v_lshlrev_b32 v21, 2, v1")
    e("    v_lshlrev_b32 v1, 1, v1")
    for r in range(12):
        e(f"    ds_read_u16 v{8+r}, v1 offset:{L_W+384*r}")
    e("    v_and_b32 v20, 15, v2")
    e("    v_lshlrev_b32 v20, 2, v20")
    e(f"    v_add_u32 v20, {L_P}, v20")
    e("    s_waitcnt lgkmcnt(0)")
    for r in range(12):
        e(f"    v_lshlrev_b32 v{8+r}, 16, v{8+r}")
    e("    s_barrier")
    e("    ds_read2_b32 v[22:23], v20 offset0:0 offset1:16")
    e("    ds_read2_b32 v[24:25], v20 offset0:32 offset1:48")
    if np8:
        e("    ds_read2_b32 v[26:27], v20 offset0:64 offset1:80")
        e("    ds_read2_b32 v[28:29], v20 offset0:96 offset1:112")
        e("    s_waitcnt lgkmcnt(2)")
        e("    v_pk_add_f32 v[22:23], v[22:23], v[24:25]")
        e("    s_waitcnt lgkmcnt(0)")
        e("    v_pk_add_f32 v[24:25], v[26:27], v[28:29]")
    else:
        e("    s_waitcnt lgkmcnt(0)")
    e("    v_pk_add_f32 v[22:23], v[22:23], v[24:25]")
    e("    v_add_f32 v22, v22, v23")
    e("    v_mul_f32 v22, 0x36800000, v22       ; * 2^-18")
    e("    v_cvt_pk_bf16_f32 v22, v22, v22")
    e("    v_lshlrev_b32 v22, 16, v22")
    e("    v_mul_f32 v23, 0xbfb8aa3b, v22       ; -log2e * x")
    e("    v_exp_f32 v23, v23")
    e("    s_nop 0")
    e("    v_add_f32 v23, 1.0, v23")
    e("    v_rcp_f32 v23, v23")
    e("    s_nop 0")
    e("    v_mul_f32 v22, v22, v23")
    e("    v_cvt_pk_bf16_f32 v22, v22, v22")
    e("    v_lshlrev_b32 v22, 16, v22")
    e("    s_nop 1")
    for r in range(12):
        a = 23 + (r % 3)
        op = "v_mul_f32_dpp" if r < 3 else "v_fmac_f32_dpp"
        e(f"    {op} v{a}, v22, v{8+r} row_newbcast:{r} row_mask:0xf bank_mask:0xf")
    e("    v_add_f32 v23, v23, v24")
    e("    v_add_f32 v23, v23, v25")
    e("    v_cvt_pk_bf16_f32 v23, v23, v23")
    e("    v_lshlrev_b32 v23, 16, v23")
    e("    v_mul_f32 v23, 0xbfb8aa3b, v23")
    e("    v_exp_f32 v23, v23")
    e("    s_nop 0")
    e("    v_add_f32 v23, 1.0, v23")
    e("    v_rcp_f32 v23, v23")
    e("    s_nop 0")
    e("    v_cvt_pk_bf16_f32 v23, v23, v23")
    e("    v_lshlrev_b32 v23, 16, v23")
    e(f"    ds_write_b32 v21, v23 offset:{L_G}")
    e("    s_waitcnt lgkmcnt(0)")
    e("    s_branch L_b4")

    e("L_poll_start:")
    NL = 2 if np8 else 4
    if np8:
        e("    s_sub_u32 s10, s3, 4")
        e("    s_cmp_lt_u32 s3, 4")
        e("    s_cselect_b32 s10, s3, s10")
        e("    s_lshl_b32 s42, s10, 11")
    else:
        e("    s_mov_b32 s10, s3")
        e("    s_lshl_b32 s42, s3, 12")
    if rep:
        e("    s_getreg_b32 s43, hwreg(HW_REG_XCC_ID)")
        e("    s_and_b32 s43, s43, 7")
        e(f"    s_mul_i32 s43, s43, {rep}")
        e("    s_add_u32 s42, s42, s43")
    e("    v_and_b32 v27, 3, v2")
    e("    v_mul_u32_u24 v27, 12, v27")
    e("    s_lshl_b32 s43, s10, 6")
    e("    v_add3_u32 v31, v31, v27, s43")
    regs = (8, 12, 16, 20)
    for k in range(NL):
        e(f"    s_mov_b64 s[{4+2*k}:{5+2*k}], -1")
    e("L_poll:")
    for k in range(NL):
        e(f"    s_mov_b64 exec, s[{4+2*k}:{5+2*k}]")
        e(f"    s_cbranch_execz L_skip{k}")
        e(f"    buffer_load_dwordx4 v[{regs[k]}:{regs[k]+3}], v1, s[24:27], s42 offen offset:{1024*k} {pollf}")
        e(f"L_skip{k}:")
    e("    s_mov_b64 exec, -1")
    e("    s_waitcnt vmcnt(0)")
    for k in range(NL):
        r = regs[k]
        e(f"    v_bitop3_b32 v{27+k}, v{r}, v{r+1}, s29 bitop3:0x96")
    for k in range(NL):
        r = regs[k]
        e(f"    v_bitop3_b32 v{27+k}, v{27+k}, v{r+2}, v{r+3} bitop3:0x96")
    for k in range(NL):
        e(f"    v_cmp_ne_u32 s[{4+2*k}:{5+2*k}], 0, v{27+k}")
    e("    s_or_b64 s[82:83], s[4:5], s[6:7]")
    if NL == 4:
        e("    s_or_b64 vcc, s[8:9], s[10:11]")
        e("    s_or_b64 s[82:83], s[82:83], vcc")
    e("    s_cbranch_scc0 L_poll_ok")
    e("    s_sub_u32 s31, s31, 1")
    e("    s_cbranch_scc1 L_poll_ok")
    if sleep:
        e(f"    s_sleep {sleep}")
    e("    s_branch L_poll")
    e("L_poll_ok:")
    stamp(7)
    if NL == 4:
        e("    v_add_f32 v10, v10, v14")
        e("    v_add_f32 v18, v18, v22")
        e("    v_pk_add_f32 v[8:9], v[8:9], v[12:13]")
        e("    v_pk_add_f32 v[16:17], v[16:17], v[20:21]")
        e("    v_add_f32 v11, v10, v18")
        e("    v_add_f32 v10, v10, v18")
        e("    v_pk_add_f32 v[8:9], v[8:9], v[16:17]")
    else:
        e("    v_add_f32 v11, v10, v14")
        e("    v_add_f32 v10, v10, v14")
        e("    v_pk_add_f32 v[8:9], v[8:9], v[12:13]")
    e("    s_nop 0")
    e("    v_permlane32_swap_b32 v10, v11")
    e("    v_permlane32_swap_b32 v8, v9")
    e("    v_add_f32 v10, v10, v11              ; [c | c]")
    e("    v_add_f32 v8, v8, v9                 ; [a | b]")
    e("    s_nop 1")
    e("    v_permlane16_swap_b32 v8, v10")
    e("    v_add_f32 v8, v8, v10                ; rows: a, c, b, c")
    e("    s_nop 1")
    e("    v_add_f32_dpp v8, v8, v8 row_shr:4 row_mask:0xf bank_mask:0xf bound_ctrl:0")
    e("    s_nop 1")
    e("    v_add_f32_dpp v8, v8, v8 row_shr:8 row_mask:0xf bank_mask:0xf bound_ctrl:0")
    e("    s_mov_b32 exec_lo, 0xf000f000")
    e("    s_mov_b32 exec_hi, 0x0000f000")
    e(f"    ds_write_b32 v31, v8 offset:{L_P}")
    e("    s_mov_b64 exec, -1")
    e("    s_waitcnt lgkmcnt(0)")
    if pg:
        e("    s_branch L_b3")
        e(".p2align 12")
        if stub:
            e("L_stub:")
            e("    s_branch L_stubret")
    e("L_b3:")
    e("    s_barrier")
    e("L_b4:")
    e("    s_barrier")
    e(f"    ds_read_b128 v[8:11], v7 offset:{L_G}")
    e(f"    ds_read_b128 v[12:15], v7 offset:{L_G+16}")

    cnt = [0]

    def scale_store(slot, first=False):
        t = 16 + 8 * (cnt[0] & 1)
        cnt[0] += 1
        if dot:
            if first:
                e("    s_waitcnt lgkmcnt(0)")
                stamp(5)
                for i in range(4):
                    e(f"    v_lshrrev_b32 v{8+2*i}, 16, v{8+2*i}     ; (g_lo, 0)")
            for i in range(4):
                d = dreg(slot) + i
                e(f"    v_dot2_f32_bf16 v{t+2*i}, v{d}, v{8+2*i}, 0")
                e(f"    v_dot2_f32_bf16 v{t+1+2*i}, v{d}, v{9+2*i}, 0")
            e("    s_nop 0")
            for i in range(4):
                d = dreg(slot) + i
                e(f"    v_cvt_pk_bf16_f32 v{d}, v{t+2*i}, v{t+1+2*i}")
            d = dreg(slot)
            e(f"    buffer_store_dwordx4 v[{d}:{d+3}], v5, s[20:23], s{SO+slot} offen{stf}")
            return
        for i in range(4):
            d = dreg(slot) + i
            e(f"    v_lshlrev_b32 v{t+2*i}, 16, v{d}")
            e(f"    v_and_b32 v{t+1+2*i}, s30, v{d}")
        if first:
            e("    s_waitcnt lgkmcnt(0)")
            stamp(5)
        for i in range(4):
            e(f"    v_pk_mul_f32 v[{t+2*i}:{t+1+2*i}], v[{t+2*i}:{t+1+2*i}], v[{8+2*i}:{9+2*i}]")
        for i in range(4):
            d = dreg(slot) + i
            e(f"    v_cvt_pk_bf16_f32 v{d}, v{t+2*i}, v{t+1+2*i}")
        d = dreg(slot)
        e(f"    buffer_store_dwordx4 v[{d}:{d+3}], v5, s[20:23], s{SO+slot} offen{stf}")

    sslots = []
    for pp in sorder:
        k = lorder.index(pp)
        sslots += [2 * k, 2 * k + 1]
    if fine:
        S_ = list(range(A0)); A_ = list(range(A0, 32))
        sslots = []
        si, ai = 0, 0
        for k in range(32):
            if (si < len(S_) and (si + 0.5) * len(A_) <= (ai + 0.5) * len(S_)) or ai >= len(A_):
                sslots.append(S_[si]); si += 1
            else:
                sslots.append(A_[ai]); ai += 1
        assert sorted(sslots) == list(range(32))
    for j in range(32):
        scale_store(sslots[j], first=(j == 0))
        if j == 1:
            e("    s_cmp_lg_u32 s2, 0")
            e("    s_cbranch_scc1 L_noep")
            e("    s_cmp_lg_u32 s3, 11")
            e("    s_cbranch_scc1 L_noep")
            e(f"    v_mov_b32 v1, {EPOCH}")
            e("    v_mov_b32 v3, s28")
            e("    s_mov_b64 exec, 1")
            e("    buffer_store_dword v3, v1, s[24:27], 0 offen sc1")
            if dbgout:
                e("    s_load_dwordx2 s[32:33], s[0:1], 32")
                e("    s_mov_b32 s34, 256")
                e("    s_mov_b32 s35, 0x00020000")
                e("    v_mov_b32 v2, s76")
                e("    v_mov_b32 v3, s89")
                e("    v_mov_b32 v1, 0")
                e("    s_waitcnt lgkmcnt(0)")
                e("    buffer_store_dwordx2 v[2:3], v1, s[32:35], 0 offen")
            e("    s_mov_b64 exec, -1")
            e("L_noep:")
        if sbar and (j + 1) % sbar == 0 and j != 31:
            e("    s_barrier")
    if enc:
        e("    s_waitcnt vmcnt(0)")
        stamp(6)
        e("    s_waitcnt lgkmcnt(0)")
        a, b = {1: (0, 0), 2: (0, 3), 3: (0, 5), 4: (5, 6), 5: (0, 6)}[enc]
        e(f"    s_sub_u32 s42, s{ST+2*smap[b]}, s{ST+2*smap[a]}")
        e("L_enc:")
        e("    s_memrealtime s[4:5]")
        e("    s_waitcnt lgkmcnt(0)")
        e(f"    s_sub_u32 s43, s4, s{ST+2*smap[6]}")
        e("    s_cmp_lt_u32 s43, s42")
        e("    s_cbranch_scc1 L_enc")
    if diag:
        e("    s_waitcnt vmcnt(0)")
        stamp(6)
        e("    s_waitcnt lgkmcnt(0)")
        e("    s_mul_i32 s42, s2, 12")
        e("    s_add_u32 s42, s42, s3")
        e("    s_lshl_b32 s42, s42, 7")
        e(f"    s_add_u32 s42, s42, {DIAG}")
        e("    v_mov_b32 v1, s42")
        e("    s_mov_b64 exec, 1")
        inv = {v: k for k, v in smap.items()}
        for k in range(6):
            e(f"    v_mov_b32 v16, s{ST+2*k}")
            e(f"    v_mov_b32 v17, s{ST+2*k+1}")
            e(f"    buffer_store_dwordx2 v[16:17], v1, s[24:27], 0 offen offset:{8*inv[k]}")
            e("    s_nop 2")
        e("    s_getreg_b32 s42, hwreg(HW_REG_XCC_ID)")
        e("    v_mov_b32 v16, s42")
        e("    v_mov_b32 v17, s31")
        e("    buffer_store_dwordx2 v[16:17], v1, s[24:27], 0 offen offset:88")
    e("L_exit:")
    e("    s_endpgm")
    e('.section .rodata,"a"')
    e(".p2align 6")
    e(f".amdhsa_kernel {NAME}")
    e("  .amdhsa_next_free_vgpr 168")
    e("  .amdhsa_next_free_sgpr 102")
    e("  .amdhsa_accum_offset 168")
    e("  .amdhsa_group_segment_fixed_size 0")
    e("  .amdhsa_kernarg_size 48")
    e("  .amdhsa_user_sgpr_count 2")
    e("  .amdhsa_user_sgpr_kernarg_segment_ptr 1")
    e("  .amdhsa_system_sgpr_workgroup_id_x 1")
    e("  .amdhsa_float_denorm_mode_32 3")
    e(".end_amdhsa_kernel")
    return "\n".join(o) + "\n"


if __name__ == "__main__":
    ap = argparse.ArgumentParser()
    ap.add_argument("-o", default="-")
    ap.add_argument("--ld", default="nt")
    ap.add_argument("--st", default="sc0 sc1")
    ap.add_argument("--diag", action="store_true")
    for name, dv in (("sleep", 0), ("sbar", 1), ("lvm", 3), ("ns", 8), ("pre", 9), ("pairs", 2), ("thr", 14), ("dbgout", 0),
                     ("enc", 0), ("sdiag", 0), ("tx", 0), ("to", 1), ("tstep", 7), ("wstep", 4), ("allpar", 0), ("mfma", 0), ("prio", 0), ("gw", 0), ("gd", 0), ("clk", 0), ("dot", 0), ("pg", 0), ("stub", 0), ("evw", -1), ("evs", 1), ("rep", 0), ("np8", 0), ("zr", 0), ("fine", 0), ("ow", 0), ("eve", 32), ("txs", -1)):
        ap.add_argument("--" + name, type=int, default=dv)
    ap.add_argument("--pubf", default="sc1")
    ap.add_argument("--pollf", default="sc1")
    a = ap.parse_args()
    kw = vars(a).copy()
    out = kw.pop("o")
    s = gen(**kw)
    if out == "-":
        sys.stdout.write(s)
    else:
        open(out, "w").write(s)
```

```python
import sys, argparse

HEADER = """; Kernarg layout for this problem (48 bytes, ptrs only, base s[0:1]):
"""

NAME = "standalone__channel_attn_se__vision_kernel"
XBYTES = 100663296
MAGIC = 0x5BD1E995
MAGIC2 = 0x2C1B3C6D

L_M = 0
L_HP = 6144
L_P = 7488
L_G = 6656
L_DEC = 7424
L_W = 8192
LDS = 20480
VOTE = 262144
EPOCH = 270336
DIAG = 1 << 20
WS_BYTES = 2 << 20
SB = 49152
WIN = 128 * SB


def gen(ld="nt", st="sc0 sc1", diag=False, sleep=0, spin=400000, pubf="sc1", pollf="sc1", sbar=1,
        lvm=3, ns=8, pre=9, pairs=2, thr=14, dbgout=0, enc=0, sdiag=0, tx=0, to=1, tstep=7, wstep=4, allpar=0,
        mfma=0, prio=0, gw=0, gd=0, clk=0, dot=0, pg=0, stub=0, evw=-1, evs=1, rep=0, np8=0, zr=0, fine=0, ow=0, eve=32, txs=-1):
    o = []
    e = o.append
    ldf = (" " + ld) if ld else ""
    stf = (" " + st) if st else ""
    D0 = 40
    SO = 44
    ST = 90
    na = 16 - ns
    adaptive = [(15 - i // 2) if i % 2 == 0 else (9 - i // 2) for i in range(na)][::-1]
    static = [pp for pp in range(16) if pp not in adaptive]
    lorder = static + adaptive
    sorder = []
    si, ai = 0, 0
    for k in range(16):
        if (ai < na and (ai + 1) * 16 <= (k + 1) * na) or si >= len(static):
            sorder.append(adaptive[ai]); ai += 1
        else:
            sorder.append(static[si]); si += 1
    assert sorted(sorder) == list(range(16))
    region = lambda pp: 0 if pp < 10 else 1
    A0 = 2 * ns
    G = A0 - lvm - 1 + gd
    e(HEADER.rstrip())
    e(f"; @launch grid=(256,1,1) block=(768,1,1) lds={LDS}")
    e('.amdgcn_target "amdgcn-amd-amdhsa--gfx950"')
    e(".text")
    e(f".globl {NAME}")
    e(".p2align 8")
    e(f".type {NAME},@function")
    e(f"{NAME}:")
    smap = {0: 0, 1: 1, 3: 2, 5: 3, 6: 4, 7: 5}

    def stamp(i, sd=False):
        if clk and i in (1, 7):
            return
        if clk and diag and i == (5 if clk == 1 else 0):
            e(f"    s_memtime s[{ST+2*smap[1]}:{ST+1+2*smap[1]}]")
        if clk and diag and i == (6 if clk == 1 else 3):
            e(f"    s_memtime s[{ST+2*smap[7]}:{ST+1+2*smap[7]}]")
        if sdiag and i in (1, 7) and not sd:
            return
        if sd and not sdiag:
            return
        if (diag or enc) and i in smap:
            k = smap[i]
            e(f"    s_memrealtime s[{ST+2*k}:{ST+1+2*k}]")

    def dreg(slot):
        return D0 + 4 * slot

    q = []

    def load(slot, track=True):
        d = dreg(slot)
        e(f"    buffer_load_dwordx4 v[{d}:{d+3}], v5, s[16:19], s{SO+slot} offen{ldf}")
        if track:
            q.append(slot)

    def soff(k, pp, u):
        b = 84 if ((pp ^ u) & 1) else 82
        e(f"    s_add_u32 s{SO+2*k}, s{b}, {pp*WIN}")
        e(f"    s_add_u32 s{SO+2*k+1}, s{b+1}, {pp*WIN}")

    us = []
    seen = [0, 0]
    for pp in lorder:
        us.append(seen[region(pp)] & 1)
        seen[region(pp)] += 1

    e("    s_cmp_ge_u32 s2, 256")
    e("    s_cbranch_scc1 L_exit")
    e("    s_load_dwordx2 s[16:17], s[0:1], 0       ; x")
    e("    s_load_dwordx2 s[20:21], s[0:1], 24      ; out")
    e("    s_load_dwordx2 s[24:25], s[0:1], 40      ; ws")
    e("    s_load_dwordx4 s[12:15], s[0:1], 8")
    if diag or enc:
        for i in range(6):
            e(f"    s_mov_b64 s[{ST+2*i}:{ST+1+2*i}], 0")
    stamp(0)
    e("    v_lshrrev_b32 v1, 6, v0")
    e("    v_and_b32 v2, 63, v0                 ; lane")
    e("    v_readfirstlane_b32 s3, v1")
    e("    v_lshrrev_b32 v3, 4, v2              ; q (row)")
    e("    v_and_b32 v4, 15, v2                 ; n")
    e("    v_mul_u32_u24 v5, 768, v3")
    e("    s_mul_i32 s40, s3, 11")
    e("    s_lshr_b32 s40, s40, 5")
    e("    s_mul_i32 s41, s40, 3")
    e("    s_sub_u32 s41, s3, s41               ; seg = wave%3")
    e("    s_lshl_b32 s43, s41, 8")
    e("    v_lshl_add_u32 v5, v4, 4, v5")
    e("    v_add_u32 v5, s43, v5                ; v5 = q*768 + seg*256 + n*16")
    e("    s_mov_b32 s18, %d" % XBYTES)
    e("    s_mov_b32 s19, 0x00020000")
    e("    s_lshr_b32 s42, s2, 3")
    e("    s_and_b32 s43, s2, 3")
    e("    s_lshl2_add_u32 s42, s42, s43")
    e(f"    s_mul_i32 s76, s42, {SB}")
    e("    s_mul_i32 s78, s40, 6144")
    e("    s_add_u32 s78, s78, s76              ; half 0, t0")
    e("    s_add_u32 s80, s78, 24576            ; half 1, t0")
    e("    s_bitcmp1_b32 s2, 2")
    e("    s_cselect_b32 s82, s80, s78")
    e("    s_add_u32 s83, s82, 3072")
    for k in range(2):
        e(f"    s_add_u32 s{SO+2*k}, s82, {lorder[k]*WIN}")
        e(f"    s_add_u32 s{SO+2*k+1}, s83, {lorder[k]*WIN}")
    assert lvm <= 4
    e("    s_waitcnt lgkmcnt(0)")
    for s in range(lvm):
        load(s)
    stamp(1, True)
    for k in range(2, 16):
        e(f"    s_add_u32 s{SO+2*k}, s82, {lorder[k]*WIN}")
        e(f"    s_add_u32 s{SO+2*k+1}, s83, {lorder[k]*WIN}")
    e("    s_mov_b32 s22, %d" % XBYTES)
    e("    s_mov_b32 s23, 0x00020000")
    e("    s_mov_b32 s26, %d" % WS_BYTES)
    e("    s_mov_b32 s27, 0x00020000")
    e("    s_mov_b32 s30, 0xffff0000")
    e("    s_mov_b32 s31, %d" % spin)
    e(f"    s_mov_b32 s87, {VOTE}")
    e("    s_mov_b32 s86, 0")
    if evw >= 0:
        e("    s_getreg_b32 s11, hwreg(HW_REG_XCC_ID)")
    e("    s_cmp_gt_u32 s3, 3")
    e("    s_cbranch_scc1 L_norole")
    e("    s_cmp_eq_u32 s3, 0")
    e("    s_cbranch_scc1 L_wave0")
    e("    s_cmp_eq_u32 s3, 3")
    e("    s_cbranch_scc1 L_wave3")
    if tx:
        e("    s_lshr_b32 s42, s2, 3")
        e("    s_and_b32 s43, s42, 15")
        e("    s_add_u32 s43, s43, 32")
        e("    s_cmp_eq_u32 s3, 1")
        e("    s_cselect_b32 s42, s42, s43")
        e("    s_lshl_b32 s42, s42, 21")
        e("    s_load_dword s4, s[16:17], s42")
    e("    s_branch L_norole")
    e("L_wave3:")
    e("    s_load_dword s4, s[12:13], 0")
    e("    s_load_dword s5, s[14:15], 0")
    e("    s_branch L_norole")
    e("L_wave0:")
    e(f"    s_load_dword s28, s[24:25], {EPOCH}")
    if zr == 1:
        e("    v_and_b32 v36, 3, v2")
        e("    v_lshlrev_b32 v36, 4, v36")
        e("    v_lshrrev_b32 v37, 2, v2")
        e(f"    v_mul_u32_u24 v37, {rep}, v37")
        e("    v_add_u32 v36, v36, v37")
        for i in range(4):
            e(f"    v_mov_b32 v{32+i}, 0")
        e("    s_lshl_b32 s42, s2, 6")
        e("    s_mov_b32 exec_hi, 0")
        e("    buffer_store_dwordx4 v[32:35], v36, s[24:27], s42 offen sc1")
        e("    s_mov_b32 exec_hi, -1")
    e("    s_getreg_b32 s89, hwreg(HW_REG_XCC_ID)")
    e("    s_and_b32 s89, s89, 7")
    e("    s_mov_b32 s38, 0")
    e("    s_mov_b32 s86, 2")
    e("    s_bitcmp1_b32 s89, 0")
    e("    s_cbranch_scc1 L_pubvote0" if zr == 1 else "    s_cbranch_scc1 L_pubvote")
    e("    s_mov_b32 s86, 1")
    e("    s_bfe_u32 s42, s2, 0x10006")
    e("    s_add_u32 s42, s42, 1")
    e(f"    s_mul_i32 s42, s42, {40<<20}")
    e("    s_bfe_u32 s43, s2, 0x30003")
    e("    s_lshl_b32 s43, s43, 21")
    e("    s_add_u32 s42, s42, s43")
    e("    s_lshr_b32 s43, s2, 7")
    e("    s_lshl_b32 s43, s43, 19")
    e("    s_add_u32 s42, s42, s43")
    e("    s_and_b32 s43, s2, 7")
    e("    s_lshl_b32 s43, s43, 16")
    e("    s_add_u32 s42, s42, s43")
    e("    s_and_b32 s43, s20, 0xffe00000")
    e("    s_add_u32 s6, s43, s42")
    e("    s_addc_u32 s7, s21, 0")
    e("    s_load_dword s4, s[6:7], 4096")
    for sl in range(lvm, pre):
        load(sl, track=False)
    e("    s_waitcnt lgkmcnt(0)")
    offs = [0, 8192, 24576 + 256, 16384 + 256, 32768 + 512, 40960 + 512][:2 * pairs]
    e("    s_memtime s[32:33]")
    e("    s_waitcnt lgkmcnt(0)")
    for i, of in enumerate(offs):
        a_, b_ = (32, 34) if i % 2 == 0 else (34, 32)
        e(f"    s_load_dword s4, s[6:7], {of}")
        e("    s_waitcnt lgkmcnt(0)")
        e(f"    s_memtime s[{b_}:{b_+1}]")
        e("    s_waitcnt lgkmcnt(0)")
        e(f"    s_sub_u32 s{8+(i&1)}, s{b_}, s{a_}")
        if i % 2 == 1:
            e("    s_cmp_gt_u32 s9, s8" if (i // 2) % 2 == 0 else "    s_cmp_gt_u32 s8, s9")
            e("    s_cselect_b32 s39, 16, -16")
            e("    s_add_i32 s38, s38, s39")
    e("    s_lshr_b32 s42, s2, 1")
    e("    s_xor_b32 s42, s42, s89")
    e("    s_sub_i32 s39, 0, s38")
    e("    s_bitcmp1_b32 s42, 2")
    e("    s_cselect_b32 s38, s39, s38")
    if zr == 1:
        e(f"    s_waitcnt vmcnt({pre-lvm})")
        e("    s_branch L_pubvote")
        e("L_pubvote0:")
        e("    s_waitcnt vmcnt(0)")
    e("L_pubvote:")
    e("    s_waitcnt lgkmcnt(0)")
    e("    s_or_b32 s38, s38, s89")
    e("    s_add_u32 s39, s28, 1")
    e("    s_xor_b32 s39, s39, 0x%08x" % MAGIC2)
    e("    s_xor_b32 s39, s39, s38")
    e("    s_lshl_b32 s42, s2, 3")
    e("    v_mov_b32 v32, s38")
    e("    v_mov_b32 v33, s39")
    e("    v_mov_b32 v34, s42")
    e("    s_mov_b64 exec, 1")
    e("    buffer_store_dwordx2 v[32:33], v34, s[24:27], s87 offen sc1")
    e("    s_mov_b64 exec, -1")
    e("L_norole:")
    if mfma:
        e("    v_and_b32 v16, 1, v4")
        e("    v_lshlrev_b32 v16, 4, v16")
        e("    v_mov_b32 v17, 0x3f80")
        e("    v_lshlrev_b32 v16, v16, v17          ; 0x3f80 << 16*(n&1)")
        e("    v_lshrrev_b32 v17, 1, v4             ; n>>1")
        for d in range(4):
            e(f"    v_cmp_eq_u32 vcc, {d}, v17")
            e(f"    v_mov_b32 v{8+d}, 0")
            e("    s_nop 0")
            e(f"    v_cndmask_b32 v{12+d}, 0, v16, vcc")
    e("    v_lshlrev_b32 v1, 4, v2              ; lane*16")

    def acc(slot):
        d = dreg(slot)
        if mfma:
            e(f"    v_mfma_f32_16x16x32_bf16 v[8:11], v[12:15], v[{d}:{d+3}], v[8:11]")
            return
        for i in range(4):
            if slot == 0:
                e(f"    v_lshlrev_b32 v{8+2*i}, 16, v{d+i}")
                e(f"    v_and_b32 v{9+2*i}, s30, v{d+i}")
            else:
                e(f"    v_lshlrev_b32 v{16+2*i}, 16, v{d+i}")
                e(f"    v_and_b32 v{17+2*i}, s30, v{d+i}")
        if slot:
            for i in range(4):
                e(f"    v_pk_add_f32 v[{8+2*i}:{9+2*i}], v[{8+2*i}:{9+2*i}], v[{16+2*i}:{17+2*i}]")

    for j in range(32):
        younger = len(q) - 1 - q.index(j)
        e(f"    s_waitcnt vmcnt({younger})")
        if j == sdiag - 1:
            stamp(7, True)
        if j == A0 - lvm:
            e("    s_waitcnt lgkmcnt(0)")
            e("    s_add_u32 s28, s28, 1                ; epoch + 1")
            e("    s_xor_b32 s29, s28, 0x%08x           ; tag key" % MAGIC)
            e(f"    s_cmp_lg_u32 s3, {gw}")
            e("    s_cbranch_scc1 L_decbar")
            e("    s_xor_b32 s88, s28, 0x%08x           ; vote key" % MAGIC2)
            if gd:
                e(f"    s_waitcnt vmcnt({max(0, lvm - gd)})")
            e("L_vchk:")
            e("    v_bitop3_b32 v28, v32, v33, s88 bitop3:0x96")
            e("    v_bitop3_b32 v29, v34, v35, s88 bitop3:0x96")
            e("    v_bitop3_b32 v30, v36, v37, s88 bitop3:0x96")
            e("    v_bitop3_b32 v27, v38, v39, s88 bitop3:0x96")
            e("    v_or3_b32 v28, v28, v29, v30")
            e("    v_or_b32 v28, v28, v27")
            e("    v_cmp_ne_u32 vcc, 0, v28")
            e("    s_cbranch_vccz L_vok")
            e("    s_sub_u32 s31, s31, 1")
            e("    s_cbranch_scc1 L_vok")
            e("    buffer_load_dwordx4 v[32:35], v1, s[24:27], s87 offen sc1")
            e("    buffer_load_dwordx4 v[36:39], v1, s[24:27], s87 offen offset:1024 sc1")
            e("    s_waitcnt vmcnt(0)")
            e("    s_branch L_vchk")
            e("L_vok:")
            e("    s_and_b32 s42, s2, 0x7b")
            e("    s_lshr_b32 s42, s42, 1")
            e("    v_readlane_b32 s4, v32, s42")
            e("    v_readlane_b32 s5, v34, s42")
            e("    v_readlane_b32 s6, v36, s42")
            e("    v_readlane_b32 s7, v38, s42")
            e("    v_ashrrev_i32 v28, 4, v32")
            e("    v_ashrrev_i32 v29, 4, v34")
            e("    v_ashrrev_i32 v30, 4, v36")
            e("    v_ashrrev_i32 v27, 4, v38")
            e("    v_add3_u32 v28, v28, v29, v30")
            e("    v_add_u32 v28, v28, v27")
            e("    s_bitcmp1_b32 s2, 0")
            e("    s_cselect_b32 s4, s5, s4")
            e("    s_cselect_b32 s6, s7, s6")
            e("    s_bitcmp1_b32 s2, 7")
            e("    s_cselect_b32 s4, s6, s4")
            for sh in (1, 2, 4, 8):
                e("    s_nop 1")
                e(f"    v_add_u32_dpp v28, v28, v28 row_shr:{sh} row_mask:0xf bank_mask:0xf bound_ctrl:0")
            e("    s_nop 1")
            e("    v_add_u32_dpp v28, v28, v28 row_bcast:15 row_mask:0xa bank_mask:0xf")
            e("    v_lshrrev_b32 v30, 3, v2")
            e("    v_and_b32 v30, 4, v30                ; (lane>=32)*4")
            e("    v_mov_b32 v29, s4")
            e("    s_mov_b32 exec_lo, 0x80000000")
            e("    s_mov_b32 exec_hi, 0x80000000")
            e(f"    ds_write_b32 v30, v28 offset:{L_DEC}")
            e(f"    ds_write_b32 v30, v29 offset:{L_DEC+8}")
            e("    s_mov_b64 exec, -1")
            e("    s_waitcnt lgkmcnt(0)")
            stamp(1)
            e("L_decbar:")
            e("    s_barrier")
            e("    v_mov_b32 v28, 0")
            e(f"    ds_read_b96 v[28:30], v28 offset:{L_DEC}")
            e("    s_and_b32 s42, s20, 0x1fffff")
            e("    s_add_u32 s43, s42, 1536")
            e("    s_lshr_b32 s43, s43, 10              ; c")
            e("    s_lshl_b32 s78, s40, 1")
            e("    s_sub_u32 s78, s78, s43              ; u - c (u = 2*grp)")
            e("    s_mul_i32 s78, s78, 11")
            e("    s_add_u32 s79, s78, 11")
            e("    s_and_b32 s78, s78, 15")
            e("    s_and_b32 s79, s79, 15")
            e("    s_xor_b32 s80, s78, 8")
            e("    s_xor_b32 s81, s79, 8")
            for r in (78, 79, 80, 81):
                e(f"    s_mul_i32 s{r}, s{r}, 3072")
                e(f"    s_add_u32 s{r}, s{r}, s76")
            e("    s_add_u32 s77, s76, 24576")
            e("    s_add_u32 s77, s77, s42")
            e("    s_lshr_b32 s77, s77, 19")
            e("    s_xor_b32 s77, s77, s2")
            e("    s_waitcnt lgkmcnt(0)")
            e("    v_readfirstlane_b32 s4, v28")
            e("    v_readfirstlane_b32 s5, v29")
            e("    v_readfirstlane_b32 s6, v30")
            if dbgout:
                e("    s_mov_b32 s76, s4")
                e("    s_mov_b32 s89, s5")
            if allpar:
                e("    s_xor_b32 s42, s16, s20")
                e("    s_lshr_b32 s42, s42, 12")
                e("    s_or_b32 s42, s42, s6")
                e("    s_bitcmp1_b32 s42, 0")
            else:
                e("    s_bitcmp1_b32 s6, 0")
            e("    s_cbranch_scc0 L_nodec")
            e("    s_xor_b32 s77, s77, s6")
            for r in range(2):
                wins = [(k, pp) for k, pp in enumerate(lorder) if pp in adaptive and region(pp) == r]
                if not wins:
                    continue
                e(f"    s_abs_i32 s42, s{4+r}")
                e(f"    s_cmp_lt_u32 s42, {thr}")
                e(f"    s_cbranch_scc1 L_keep{r}")
                e(f"    s_lshr_b32 s42, s{4+r}, 29")
                e("    s_xor_b32 s42, s42, s77")
                e("    s_bitcmp1_b32 s42, 2")
                e("    s_cselect_b32 s82, s80, s78")
                e("    s_cselect_b32 s83, s81, s79")
                e("    s_cselect_b32 s84, s78, s80")
                e("    s_cselect_b32 s85, s79, s81")
                for k, pp in wins:
                    soff(k, pp, 0)
                e(f"L_keep{r}:")
            e("L_nodec:")
        if ow and j + lvm == 32 - ow:
            for k in range(32 - ow, 32):
                load(k)
        if j + lvm < 32 - ow:
            k = j + lvm
            if evw >= 0 and k >= pre and (k % evs == 0) and k < eve:
                e("    s_bitcmp1_b32 s11, 0")
                e(f"    s_cbranch_scc1 L_ev{k}")
                e(f"    s_waitcnt vmcnt({evw})")
                e(f"L_ev{k}:")
            if k < pre:
                e("    s_cmp_eq_u32 s86, 1")
                e(f"    s_cbranch_scc1 L_sk{k}")
                load(k)
                e(f"L_sk{k}:")
            else:
                load(k)
            if k == G:
                e(f"    s_cmp_lg_u32 s3, {gw}")
                e("    s_cbranch_scc1 L_nog")
                e("    buffer_load_dwordx4 v[32:35], v1, s[24:27], s87 offen sc1")
                e("    buffer_load_dwordx4 v[36:39], v1, s[24:27], s87 offen offset:1024 sc1")
                e("L_nog:")
        acc(j)
        if j == wstep:
            e("    s_cmp_lt_u32 s3, 5")
            e("    s_cselect_b32 s36, s14, s12")
            e("    s_cselect_b32 s37, s15, s13")
            e("    s_cselect_b32 s42, 0, 5120")
            e("    s_mov_b32 s38, 4608")
            e("    s_mov_b32 s39, 0x00020000")
            e("    s_lshl_b32 s43, s3, 10")
            e(f"    s_add_u32 m0, s43, {L_W}")
            e("    s_sub_u32 s43, s43, s42")
            e("    buffer_load_dwordx4 v1, s[36:39], s43 offen lds")
            q.append("w")
        if zr >= 2 and j == zr:
            e("    s_cmp_lg_u32 s3, 4")
            e("    s_cbranch_scc1 L_nozr")
            e("    v_and_b32 v36, 48, v1")
            e("    v_lshrrev_b32 v37, 2, v2")
            e(f"    v_mul_u32_u24 v37, {rep}, v37")
            e("    v_add_u32 v36, v36, v37")
            for i in range(4):
                e(f"    v_mov_b32 v{32+i}, 0")
            e("    s_lshl_b32 s42, s2, 6")
            e("    s_mov_b32 exec_hi, 0")
            e("    buffer_store_dwordx4 v[32:35], v36, s[24:27], s42 offen sc1")
            e("    s_mov_b32 exec_hi, -1")
            e("L_nozr:")
        if j == txs:
            e("    s_sub_u32 s42, s3, 1")
            e("    s_cmp_gt_u32 s42, 1")
            e("    s_cbranch_scc1 L_notx")
            e("    s_lshr_b32 s42, s2, 3")
            e("    s_and_b32 s43, s42, 15")
            e("    s_add_u32 s43, s43, 32")
            e("    s_cmp_eq_u32 s3, 1")
            e("    s_cselect_b32 s42, s42, s43")
            e("    s_lshl_b32 s42, s42, 21")
            e("    s_load_dword s10, s[16:17], s42")
            e("L_notx:")
        if j == tstep:
            e(f"    s_load_dword s28, s[24:25], {EPOCH}")
            if to:
                e("    s_cmp_gt_u32 s3, 2")
                e("    s_cbranch_scc1 L_noto")
                e("    s_lshr_b32 s42, s2, 3")
                e("    s_and_b32 s43, s42, 15")
                e("    s_add_u32 s43, s43, 32")
                e("    s_cmp_eq_u32 s3, 1")
                e("    s_cselect_b32 s42, s42, s43")
                e("    s_lshl_b32 s42, s42, 21")
                e("    s_load_dword s10, s[20:21], s42")
                e("L_noto:")
        if stub and j == stub:
            e("    s_cmp_eq_u32 s3, 5")
            e("    s_cbranch_scc1 L_stub")
            e("L_stubret:")
        if j == 18:
            e("    s_mul_i32 s42, s41, 1536")
            e("    s_mul_i32 s43, s40, 6")
            e("    s_add_u32 s42, s42, s43")
            e("    v_mul_u32_u24 v27, 24, v2")
            e("    v_add_u32 v27, s42, v27")
            for i in range(3):
                e(f"    ds_read_u16 v{24+i}, v27 offset:{L_W+5120+2*i}")
            e("    s_mul_i32 s42, s40, 1536")
            e("    s_lshl_b32 s43, s41, 9")
            e("    s_add_u32 s42, s42, s43")
            e("    v_lshlrev_b32 v6, 5, v4")
            e(f"    v_lshl_add_u32 v6, v3, {4 if mfma else 3}, v6")
            e("    v_add_u32 v6, s42, v6")
            e("    s_lshl_b32 s43, s41, 7")
            e("    v_lshlrev_b32 v7, 3, v4")
            e("    v_add_u32 v7, s43, v7")
            e("    v_subrev_u32 v27, 192, v7")
            e("    v_min_u32 v7, v7, v27")
            e("    v_lshlrev_b32 v7, 2, v7")
            e("    v_and_b32 v27, 1, v3")
            e("    v_lshrrev_b32 v31, 1, v3")
            e("    v_lshl_add_u32 v31, v27, 1, v31")
            e("    v_lshlrev_b32 v31, 2, v31            ; i(row)*4")
            e("    s_lshl_b32 s42, s41, 6")
            e("    s_lshl_b32 s43, s40, 4")
            e("    s_add_u32 s42, s42, s43")
            e("    v_add_u32 v4, s42, v31")
            e("    s_lshl_b32 s42, s41, 8")
            e("    v_lshlrev_b32 v3, 2, v2")
            e("    v_add_u32 v3, s42, v3")
            if rep:
                e("    v_and_b32 v32, 48, v1                ; (lane&3)*16")
                e("    v_lshrrev_b32 v33, 2, v2")
                e(f"    v_mul_u32_u24 v33, {rep}, v33")
                e("    v_add_u32 v33, v33, v32")
            e("    s_waitcnt lgkmcnt(0)")
            for r in (24, 25, 26):
                e(f"    v_lshlrev_b32 v{r}, 16, v{r}")
    if mfma:
        e("    s_mov_b32 exec_hi, 0")
        e("    s_nop 7")
        e(f"    ds_write_b128 v6, v[8:11] offset:{L_M}")
        e("    s_mov_b32 exec_hi, -1")
    else:
        e("    s_nop 1")
        for i in range(4):
            e(f"    v_permlane32_swap_b32 v{8+i}, v{12+i}")
        for i in range(4):
            e(f"    v_add_f32 v{8+i}, v{8+i}, v{12+i}")
        e("    s_nop 0")
        e("    v_permlane16_swap_b32 v8, v10")
        e("    v_permlane16_swap_b32 v9, v11")
        e("    v_add_f32 v8, v8, v10")
        e("    v_add_f32 v9, v9, v11")
        e(f"    ds_write_b64 v6, v[8:9] offset:{L_M}")
    e("    s_waitcnt lgkmcnt(0)")
    e("    s_barrier")
    stamp(3)
    for k in range(4):
        e(f"    ds_read2st64_b32 v[{16+2*k}:{17+2*k}], v3 offset0:{6*k} offset1:{6*k+3}")
    e("    s_waitcnt lgkmcnt(2)" if not (diag or enc) else "    s_waitcnt lgkmcnt(0)")
    e("    v_pk_add_f32 v[16:17], v[16:17], v[18:19]")
    e("    s_waitcnt lgkmcnt(0)")
    e("    v_pk_add_f32 v[20:21], v[20:21], v[22:23]")
    e("    v_pk_add_f32 v[16:17], v[16:17], v[20:21]")
    e("    v_add_f32 v16, v16, v17")
    e("    v_mul_f32 v10, v16, v26")
    e("    v_mul_f32 v11, v16, v26")
    e("    v_mul_f32 v8, v16, v24")
    e("    v_mul_f32 v9, v16, v25")
    e("    v_permlane32_swap_b32 v10, v11")
    e("    s_nop 0")
    e("    v_permlane32_swap_b32 v8, v9")
    e("    v_add_f32 v10, v10, v11              ; [c | c]")
    e("    v_add_f32 v8, v8, v9                 ; [a | b]")
    e("    s_nop 1")
    e("    v_permlane16_swap_b32 v8, v10")
    e("    v_add_f32 v8, v8, v10                ; rows: a, c, b, c")
    e("    s_nop 1")
    e("    v_add_f32_dpp v9, v8, v8 row_shr:1 row_mask:0xf bank_mask:0xf bound_ctrl:0")
    e("    v_add_f32_dpp v9, v8, v9 row_shr:2 row_mask:0xf bank_mask:0xf bound_ctrl:0")
    e("    v_add_f32_dpp v9, v8, v9 row_shr:3 row_mask:0xf bank_mask:0xf bound_ctrl:0")
    e("    s_nop 1")
    e("    v_add_f32_dpp v9, v9, v9 row_shr:4 row_mask:0xf bank_mask:0xf bound_ctrl:0")
    e("    s_nop 1")
    e("    v_add_f32_dpp v9, v9, v9 row_shr:8 row_mask:0xf bank_mask:0xf bound_ctrl:0")
    e("    s_mov_b32 exec_lo, 0x80008000")
    e("    s_mov_b32 exec_hi, 0x00008000")
    e(f"    ds_write_b32 v4, v9 offset:{L_HP}")
    e("    s_mov_b64 exec, -1")
    e("    s_lshl_b32 s42, s2, 6")
    e("    s_cmp_lg_u32 s3, 4")
    e("    s_waitcnt lgkmcnt(0)")
    e("    s_barrier")
    e("    s_cbranch_scc1 L_notpub")
    if rep:
        e("    s_mov_b32 exec_hi, 0")
        e(f"    ds_read_b128 v[8:11], v32 offset:{L_HP}")
        e(f"    ds_read_b128 v[12:15], v32 offset:{L_HP+64}")
        e(f"    ds_read_b128 v[16:19], v32 offset:{L_HP+128}")
    else:
        e("    s_mov_b64 exec, 15")
        e(f"    ds_read_b128 v[8:11], v1 offset:{L_HP}")
        e(f"    ds_read_b128 v[12:15], v1 offset:{L_HP+64}")
        e(f"    ds_read_b128 v[16:19], v1 offset:{L_HP+128}")
    e("    s_waitcnt lgkmcnt(1)")
    e("    v_pk_add_f32 v[8:9], v[8:9], v[12:13]")
    e("    v_add_f32 v10, v10, v14")
    e("    s_waitcnt lgkmcnt(0)")
    e("    v_pk_add_f32 v[8:9], v[8:9], v[16:17]")
    e("    v_add_f32 v10, v10, v18")
    e("    v_bitop3_b32 v11, v8, v9, s29 bitop3:0x96")
    e("    v_xor_b32 v11, v11, v10")
    e(f"    buffer_store_dwordx4 v[8:11], v{33 if rep else 1}, s[24:27], s42 offen {pubf}")
    e("    s_mov_b64 exec, -1")
    stamp(7)
    e("    s_branch L_b3")
    e("L_notpub:")
    e("    s_cmp_lt_u32 s3, 4")
    e("    s_cbranch_scc1 L_poll_start")
    e("    s_cmp_gt_u32 s3, 7")
    e("    s_cbranch_scc1 L_poll_start" if np8 else "    s_cbranch_scc1 L_b3")
    e("    v_subrev_u32 v1, 320, v0")
    e("    v_lshlrev_b32 v21, 2, v1")
    e("    v_lshlrev_b32 v1, 1, v1")
    for r in range(12):
        e(f"    ds_read_u16 v{8+r}, v1 offset:{L_W+384*r}")
    e("    v_and_b32 v20, 15, v2")
    e("    v_lshlrev_b32 v20, 2, v20")
    e(f"    v_add_u32 v20, {L_P}, v20")
    e("    s_waitcnt lgkmcnt(0)")
    for r in range(12):
        e(f"    v_lshlrev_b32 v{8+r}, 16, v{8+r}")
    e("    s_barrier")
    e("    ds_read2_b32 v[22:23], v20 offset0:0 offset1:16")
    e("    ds_read2_b32 v[24:25], v20 offset0:32 offset1:48")
    if np8:
        e("    ds_read2_b32 v[26:27], v20 offset0:64 offset1:80")
        e("    ds_read2_b32 v[28:29], v20 offset0:96 offset1:112")
        e("    s_waitcnt lgkmcnt(2)")
        e("    v_pk_add_f32 v[22:23], v[22:23], v[24:25]")
        e("    s_waitcnt lgkmcnt(0)")
        e("    v_pk_add_f32 v[24:25], v[26:27], v[28:29]")
    else:
        e("    s_waitcnt lgkmcnt(0)")
    e("    v_pk_add_f32 v[22:23], v[22:23], v[24:25]")
    e("    v_add_f32 v22, v22, v23")
    e("    v_mul_f32 v22, 0x36800000, v22       ; * 2^-18")
    e("    v_cvt_pk_bf16_f32 v22, v22, v22")
    e("    v_lshlrev_b32 v22, 16, v22")
    e("    v_mul_f32 v23, 0xbfb8aa3b, v22       ; -log2e * x")
    e("    v_exp_f32 v23, v23")
    e("    s_nop 0")
    e("    v_add_f32 v23, 1.0, v23")
    e("    v_rcp_f32 v23, v23")
    e("    s_nop 0")
    e("    v_mul_f32 v22, v22, v23")
    e("    v_cvt_pk_bf16_f32 v22, v22, v22")
    e("    v_lshlrev_b32 v22, 16, v22")
    e("    s_nop 1")
    for r in range(12):
        a = 23 + (r % 3)
        op = "v_mul_f32_dpp" if r < 3 else "v_fmac_f32_dpp"
        e(f"    {op} v{a}, v22, v{8+r} row_newbcast:{r} row_mask:0xf bank_mask:0xf")
    e("    v_add_f32 v23, v23, v24")
    e("    v_add_f32 v23, v23, v25")
    e("    v_cvt_pk_bf16_f32 v23, v23, v23")
    e("    v_lshlrev_b32 v23, 16, v23")
    e("    v_mul_f32 v23, 0xbfb8aa3b, v23")
    e("    v_exp_f32 v23, v23")
    e("    s_nop 0")
    e("    v_add_f32 v23, 1.0, v23")
    e("    v_rcp_f32 v23, v23")
    e("    s_nop 0")
    e("    v_cvt_pk_bf16_f32 v23, v23, v23")
    e("    v_lshlrev_b32 v23, 16, v23")
    e(f"    ds_write_b32 v21, v23 offset:{L_G}")
    e("    s_waitcnt lgkmcnt(0)")
    e("    s_branch L_b4")

    e("L_poll_start:")
    NL = 2 if np8 else 4
    if np8:
        e("    s_sub_u32 s10, s3, 4")
        e("    s_cmp_lt_u32 s3, 4")
        e("    s_cselect_b32 s10, s3, s10")
        e("    s_lshl_b32 s42, s10, 11")
    else:
        e("    s_mov_b32 s10, s3")
        e("    s_lshl_b32 s42, s3, 12")
    if rep:
        e("    s_getreg_b32 s43, hwreg(HW_REG_XCC_ID)")
        e("    s_and_b32 s43, s43, 7")
        e(f"    s_mul_i32 s43, s43, {rep}")
        e("    s_add_u32 s42, s42, s43")
    e("    v_and_b32 v27, 3, v2")
    e("    v_mul_u32_u24 v27, 12, v27")
    e("    s_lshl_b32 s43, s10, 6")
    e("    v_add3_u32 v31, v31, v27, s43")
    regs = (8, 12, 16, 20)
    for k in range(NL):
        e(f"    s_mov_b64 s[{4+2*k}:{5+2*k}], -1")
    e("L_poll:")
    for k in range(NL):
        e(f"    s_mov_b64 exec, s[{4+2*k}:{5+2*k}]")
        e(f"    s_cbranch_execz L_skip{k}")
        e(f"    buffer_load_dwordx4 v[{regs[k]}:{regs[k]+3}], v1, s[24:27], s42 offen offset:{1024*k} {pollf}")
        e(f"L_skip{k}:")
    e("    s_mov_b64 exec, -1")
    e("    s_waitcnt vmcnt(0)")
    for k in range(NL):
        r = regs[k]
        e(f"    v_bitop3_b32 v{27+k}, v{r}, v{r+1}, s29 bitop3:0x96")
    for k in range(NL):
        r = regs[k]
        e(f"    v_bitop3_b32 v{27+k}, v{27+k}, v{r+2}, v{r+3} bitop3:0x96")
    for k in range(NL):
        e(f"    v_cmp_ne_u32 s[{4+2*k}:{5+2*k}], 0, v{27+k}")
    e("    s_or_b64 s[82:83], s[4:5], s[6:7]")
    if NL == 4:
        e("    s_or_b64 vcc, s[8:9], s[10:11]")
        e("    s_or_b64 s[82:83], s[82:83], vcc")
    e("    s_cbranch_scc0 L_poll_ok")
    e("    s_sub_u32 s31, s31, 1")
    e("    s_cbranch_scc1 L_poll_ok")
    if sleep:
        e(f"    s_sleep {sleep}")
    e("    s_branch L_poll")
    e("L_poll_ok:")
    stamp(7)
    if NL == 4:
        e("    v_add_f32 v10, v10, v14")
        e("    v_add_f32 v18, v18, v22")
        e("    v_pk_add_f32 v[8:9], v[8:9], v[12:13]")
        e("    v_pk_add_f32 v[16:17], v[16:17], v[20:21]")
        e("    v_add_f32 v11, v10, v18")
        e("    v_add_f32 v10, v10, v18")
        e("    v_pk_add_f32 v[8:9], v[8:9], v[16:17]")
    else:
        e("    v_add_f32 v11, v10, v14")
        e("    v_add_f32 v10, v10, v14")
        e("    v_pk_add_f32 v[8:9], v[8:9], v[12:13]")
    e("    s_nop 0")
    e("    v_permlane32_swap_b32 v10, v11")
    e("    v_permlane32_swap_b32 v8, v9")
    e("    v_add_f32 v10, v10, v11              ; [c | c]")
    e("    v_add_f32 v8, v8, v9                 ; [a | b]")
    e("    s_nop 1")
    e("    v_permlane16_swap_b32 v8, v10")
    e("    v_add_f32 v8, v8, v10                ; rows: a, c, b, c")
    e("    s_nop 1")
    e("    v_add_f32_dpp v8, v8, v8 row_shr:4 row_mask:0xf bank_mask:0xf bound_ctrl:0")
    e("    s_nop 1")
    e("    v_add_f32_dpp v8, v8, v8 row_shr:8 row_mask:0xf bank_mask:0xf bound_ctrl:0")
    e("    s_mov_b32 exec_lo, 0xf000f000")
    e("    s_mov_b32 exec_hi, 0x0000f000")
    e(f"    ds_write_b32 v31, v8 offset:{L_P}")
    e("    s_mov_b64 exec, -1")
    e("    s_waitcnt lgkmcnt(0)")
    if pg:
        e("    s_branch L_b3")
        if stub:
            e("L_stub:")
            e("    s_branch L_stub2")
        e(".p2align 12")
        if stub:
            e("L_stub2:")
            e("    s_branch L_stubret")
    e("L_b3:")
    e("    s_barrier")
    e("L_b4:")
    e("    s_barrier")
    e(f"    ds_read_b128 v[8:11], v7 offset:{L_G}")
    e(f"    ds_read_b128 v[12:15], v7 offset:{L_G+16}")

    cnt = [0]

    def scale_store(slot, first=False):
        t = 16 + 8 * (cnt[0] & 1)
        cnt[0] += 1
        if dot:
            if first:
                e("    s_waitcnt lgkmcnt(0)")
                stamp(5)
                for i in range(4):
                    e(f"    v_lshrrev_b32 v{8+2*i}, 16, v{8+2*i}     ; (g_lo, 0)")
            for i in range(4):
                d = dreg(slot) + i
                e(f"    v_dot2_f32_bf16 v{t+2*i}, v{d}, v{8+2*i}, 0")
                e(f"    v_dot2_f32_bf16 v{t+1+2*i}, v{d}, v{9+2*i}, 0")
            e("    s_nop 0")
            for i in range(4):
                d = dreg(slot) + i
                e(f"    v_cvt_pk_bf16_f32 v{d}, v{t+2*i}, v{t+1+2*i}")
            d = dreg(slot)
            e(f"    buffer_store_dwordx4 v[{d}:{d+3}], v5, s[20:23], s{SO+slot} offen{stf}")
            return
        for i in range(4):
            d = dreg(slot) + i
            e(f"    v_lshlrev_b32 v{t+2*i}, 16, v{d}")
            e(f"    v_and_b32 v{t+1+2*i}, s30, v{d}")
        if first:
            e("    s_waitcnt lgkmcnt(0)")
            stamp(5)
        for i in range(4):
            e(f"    v_pk_mul_f32 v[{t+2*i}:{t+1+2*i}], v[{t+2*i}:{t+1+2*i}], v[{8+2*i}:{9+2*i}]")
        for i in range(4):
            d = dreg(slot) + i
            e(f"    v_cvt_pk_bf16_f32 v{d}, v{t+2*i}, v{t+1+2*i}")
        d = dreg(slot)
        e(f"    buffer_store_dwordx4 v[{d}:{d+3}], v5, s[20:23], s{SO+slot} offen{stf}")

    sslots = []
    for pp in sorder:
        k = lorder.index(pp)
        sslots += [2 * k, 2 * k + 1]
    if fine:
        S_ = list(range(A0)); A_ = list(range(A0, 32))
        sslots = []
        si, ai = 0, 0
        for k in range(32):
            if (si < len(S_) and (si + 0.5) * len(A_) <= (ai + 0.5) * len(S_)) or ai >= len(A_):
                sslots.append(S_[si]); si += 1
            else:
                sslots.append(A_[ai]); ai += 1
        assert sorted(sslots) == list(range(32))
    for j in range(32):
        scale_store(sslots[j], first=(j == 0))
        if j == 1:
            e("    s_cmp_lg_u32 s2, 0")
            e("    s_cbranch_scc1 L_noep")
            e("    s_cmp_lg_u32 s3, 11")
            e("    s_cbranch_scc1 L_noep")
            e(f"    v_mov_b32 v1, {EPOCH}")
            e("    v_mov_b32 v3, s28")
            e("    s_mov_b64 exec, 1")
            e("    buffer_store_dword v3, v1, s[24:27], 0 offen sc1")
            if dbgout:
                e("    s_load_dwordx2 s[32:33], s[0:1], 32")
                e("    s_mov_b32 s34, 256")
                e("    s_mov_b32 s35, 0x00020000")
                e("    v_mov_b32 v2, s76")
                e("    v_mov_b32 v3, s89")
                e("    v_mov_b32 v1, 0")
                e("    s_waitcnt lgkmcnt(0)")
                e("    buffer_store_dwordx2 v[2:3], v1, s[32:35], 0 offen")
            e("    s_mov_b64 exec, -1")
            e("L_noep:")
        if sbar and (j + 1) % sbar == 0 and j != 31:
            e("    s_barrier")
    if enc:
        e("    s_waitcnt vmcnt(0)")
        stamp(6)
        e("    s_waitcnt lgkmcnt(0)")
        a, b = {1: (0, 0), 2: (0, 3), 3: (0, 5), 4: (5, 6), 5: (0, 6)}[enc]
        e(f"    s_sub_u32 s42, s{ST+2*smap[b]}, s{ST+2*smap[a]}")
        e("L_enc:")
        e("    s_memrealtime s[4:5]")
        e("    s_waitcnt lgkmcnt(0)")
        e(f"    s_sub_u32 s43, s4, s{ST+2*smap[6]}")
        e("    s_cmp_lt_u32 s43, s42")
        e("    s_cbranch_scc1 L_enc")
    if diag:
        e("    s_waitcnt vmcnt(0)")
        stamp(6)
        e("    s_waitcnt lgkmcnt(0)")
        e("    s_mul_i32 s42, s2, 12")
        e("    s_add_u32 s42, s42, s3")
        e("    s_lshl_b32 s42, s42, 7")
        e(f"    s_add_u32 s42, s42, {DIAG}")
        e("    v_mov_b32 v1, s42")
        e("    s_mov_b64 exec, 1")
        inv = {v: k for k, v in smap.items()}
        for k in range(6):
            e(f"    v_mov_b32 v16, s{ST+2*k}")
            e(f"    v_mov_b32 v17, s{ST+2*k+1}")
            e(f"    buffer_store_dwordx2 v[16:17], v1, s[24:27], 0 offen offset:{8*inv[k]}")
            e("    s_nop 2")
        e("    s_getreg_b32 s42, hwreg(HW_REG_XCC_ID)")
        e("    v_mov_b32 v16, s42")
        e("    v_mov_b32 v17, s31")
        e("    buffer_store_dwordx2 v[16:17], v1, s[24:27], 0 offen offset:88")
    e("L_exit:")
    e("    s_endpgm")
    e('.section .rodata,"a"')
    e(".p2align 6")
    e(f".amdhsa_kernel {NAME}")
    e("  .amdhsa_next_free_vgpr 168")
    e("  .amdhsa_next_free_sgpr 102")
    e("  .amdhsa_accum_offset 168")
    e("  .amdhsa_group_segment_fixed_size 0")
    e("  .amdhsa_kernarg_size 48")
    e("  .amdhsa_user_sgpr_count 2")
    e("  .amdhsa_user_sgpr_kernarg_segment_ptr 1")
    e("  .amdhsa_system_sgpr_workgroup_id_x 1")
    e("  .amdhsa_float_denorm_mode_32 3")
    e(".end_amdhsa_kernel")
    return "\n".join(o) + "\n"


if __name__ == "__main__":
    ap = argparse.ArgumentParser()
    ap.add_argument("-o", default="-")
    ap.add_argument("--ld", default="nt")
    ap.add_argument("--st", default="sc0 sc1")
    ap.add_argument("--diag", action="store_true")
    for name, dv in (("sleep", 0), ("sbar", 1), ("lvm", 3), ("ns", 8), ("pre", 9), ("pairs", 2), ("thr", 14), ("dbgout", 0),
                     ("enc", 0), ("sdiag", 0), ("tx", 0), ("to", 1), ("tstep", 7), ("wstep", 4), ("allpar", 0), ("mfma", 0), ("prio", 0), ("gw", 0), ("gd", 0), ("clk", 0), ("dot", 0), ("pg", 0), ("stub", 0), ("evw", -1), ("evs", 1), ("rep", 0), ("np8", 0), ("zr", 0), ("fine", 0), ("ow", 0), ("eve", 32), ("txs", -1)):
        ap.add_argument("--" + name, type=int, default=dv)
    ap.add_argument("--pubf", default="sc1")
    ap.add_argument("--pollf", default="sc1")
    a = ap.parse_args()
    kw = vars(a).copy()
    out = kw.pop("o")
    s = gen(**kw)
    if out == "-":
        sys.stdout.write(s)
    else:
        open(out, "w").write(s)
```

```python
import sys, argparse

HEADER = """; Kernarg layout for this problem (48 bytes, ptrs only, base s[0:1]):
"""

NAME = "standalone__channel_attn_se__vision_kernel"
XBYTES = 100663296
MAGIC = 0x5BD1E995
MAGIC2 = 0x2C1B3C6D

L_M = 0
L_HP = 6144
L_P = 7488
L_G = 6656
L_DEC = 7424
L_W = 8192
LDS = 20480
VOTE = 262144
EPOCH = 270336
DIAG = 1 << 20
WS_BYTES = 2 << 20
SB = 49152
WIN = 128 * SB


def gen(ld="nt", st="sc0 sc1", diag=False, sleep=0, spin=400000, pubf="sc1", pollf="sc1", sbar=1,
        lvm=3, ns=8, pre=9, pairs=2, thr=14, dbgout=0, enc=0, sdiag=0, tx=0, to=1, tstep=7, wstep=4, allpar=0,
        mfma=0, prio=0, gw=0, gd=0, clk=0, dot=0, pg=0, stub=0, evw=-1, evs=1, rep=0, np8=0, zr=0, fine=0, ow=0, eve=32, txs=-1, cpf=-1):
    o = []
    e = o.append
    ldf = (" " + ld) if ld else ""
    stf = (" " + st) if st else ""
    D0 = 40
    SO = 44
    ST = 90
    na = 16 - ns
    adaptive = [(15 - i // 2) if i % 2 == 0 else (9 - i // 2) for i in range(na)][::-1]
    static = [pp for pp in range(16) if pp not in adaptive]
    lorder = static + adaptive
    sorder = []
    si, ai = 0, 0
    for k in range(16):
        if (ai < na and (ai + 1) * 16 <= (k + 1) * na) or si >= len(static):
            sorder.append(adaptive[ai]); ai += 1
        else:
            sorder.append(static[si]); si += 1
    assert sorted(sorder) == list(range(16))
    region = lambda pp: 0 if pp < 10 else 1
    A0 = 2 * ns
    G = A0 - lvm - 1 + gd
    e(HEADER.rstrip())
    e(f"; @launch grid=(256,1,1) block=(768,1,1) lds={LDS}")
    e('.amdgcn_target "amdgcn-amd-amdhsa--gfx950"')
    e(".text")
    e(f".globl {NAME}")
    e(".p2align 8")
    e(f".type {NAME},@function")
    e(f"{NAME}:")
    smap = {0: 0, 1: 1, 3: 2, 5: 3, 6: 4, 7: 5}

    def stamp(i, sd=False):
        if clk and i in (1, 7):
            return
        if clk and diag and i == (5 if clk == 1 else 0):
            e(f"    s_memtime s[{ST+2*smap[1]}:{ST+1+2*smap[1]}]")
        if clk and diag and i == (6 if clk == 1 else 3):
            e(f"    s_memtime s[{ST+2*smap[7]}:{ST+1+2*smap[7]}]")
        if sdiag and i in (1, 7) and not sd:
            return
        if sd and not sdiag:
            return
        if (diag or enc) and i in smap:
            k = smap[i]
            e(f"    s_memrealtime s[{ST+2*k}:{ST+1+2*k}]")

    def dreg(slot):
        return D0 + 4 * slot

    q = []

    def load(slot, track=True):
        d = dreg(slot)
        e(f"    buffer_load_dwordx4 v[{d}:{d+3}], v5, s[16:19], s{SO+slot} offen{ldf}")
        if track:
            q.append(slot)

    def soff(k, pp, u):
        b = 84 if ((pp ^ u) & 1) else 82
        e(f"    s_add_u32 s{SO+2*k}, s{b}, {pp*WIN}")
        e(f"    s_add_u32 s{SO+2*k+1}, s{b+1}, {pp*WIN}")

    us = []
    seen = [0, 0]
    for pp in lorder:
        us.append(seen[region(pp)] & 1)
        seen[region(pp)] += 1

    e("    s_cmp_ge_u32 s2, 256")
    e("    s_cbranch_scc1 L_exit")
    e("    s_load_dwordx2 s[16:17], s[0:1], 0       ; x")
    e("    s_load_dwordx2 s[20:21], s[0:1], 24      ; out")
    e("    s_load_dwordx2 s[24:25], s[0:1], 40      ; ws")
    e("    s_load_dwordx4 s[12:15], s[0:1], 8")
    if diag or enc:
        for i in range(6):
            e(f"    s_mov_b64 s[{ST+2*i}:{ST+1+2*i}], 0")
    stamp(0)
    e("    v_lshrrev_b32 v1, 6, v0")
    e("    v_and_b32 v2, 63, v0                 ; lane")
    e("    v_readfirstlane_b32 s3, v1")
    e("    v_lshrrev_b32 v3, 4, v2              ; q (row)")
    e("    v_and_b32 v4, 15, v2                 ; n")
    e("    v_mul_u32_u24 v5, 768, v3")
    e("    s_mul_i32 s40, s3, 11")
    e("    s_lshr_b32 s40, s40, 5")
    e("    s_mul_i32 s41, s40, 3")
    e("    s_sub_u32 s41, s3, s41               ; seg = wave%3")
    e("    s_lshl_b32 s43, s41, 8")
    e("    v_lshl_add_u32 v5, v4, 4, v5")
    e("    v_add_u32 v5, s43, v5                ; v5 = q*768 + seg*256 + n*16")
    e("    s_mov_b32 s18, %d" % XBYTES)
    e("    s_mov_b32 s19, 0x00020000")
    e("    s_lshr_b32 s42, s2, 3")
    e("    s_and_b32 s43, s2, 3")
    e("    s_lshl2_add_u32 s42, s42, s43")
    e(f"    s_mul_i32 s76, s42, {SB}")
    e("    s_mul_i32 s78, s40, 6144")
    e("    s_add_u32 s78, s78, s76              ; half 0, t0")
    e("    s_add_u32 s80, s78, 24576            ; half 1, t0")
    e("    s_bitcmp1_b32 s2, 2")
    e("    s_cselect_b32 s82, s80, s78")
    e("    s_add_u32 s83, s82, 3072")
    for k in range(2):
        e(f"    s_add_u32 s{SO+2*k}, s82, {lorder[k]*WIN}")
        e(f"    s_add_u32 s{SO+2*k+1}, s83, {lorder[k]*WIN}")
    assert lvm <= 4
    e("    s_waitcnt lgkmcnt(0)")
    for s in range(lvm):
        load(s)
    stamp(1, True)
    for k in range(2, 16):
        e(f"    s_add_u32 s{SO+2*k}, s82, {lorder[k]*WIN}")
        e(f"    s_add_u32 s{SO+2*k+1}, s83, {lorder[k]*WIN}")
    e("    s_mov_b32 s22, %d" % XBYTES)
    e("    s_mov_b32 s23, 0x00020000")
    e("    s_mov_b32 s26, %d" % WS_BYTES)
    e("    s_mov_b32 s27, 0x00020000")
    e("    s_mov_b32 s30, 0xffff0000")
    e("    s_mov_b32 s31, %d" % spin)
    e(f"    s_mov_b32 s87, {VOTE}")
    e("    s_mov_b32 s86, 0")
    if evw >= 0:
        e("    s_getreg_b32 s11, hwreg(HW_REG_XCC_ID)")
    e("    s_cmp_gt_u32 s3, 3")
    e("    s_cbranch_scc1 L_norole")
    e("    s_cmp_eq_u32 s3, 0")
    e("    s_cbranch_scc1 L_wave0")
    e("    s_cmp_eq_u32 s3, 3")
    e("    s_cbranch_scc1 L_wave3")
    if tx:
        e("    s_lshr_b32 s42, s2, 3")
        e("    s_and_b32 s43, s42, 15")
        e("    s_add_u32 s43, s43, 32")
        e("    s_cmp_eq_u32 s3, 1")
        e("    s_cselect_b32 s42, s42, s43")
        e("    s_lshl_b32 s42, s42, 21")
        e("    s_load_dword s4, s[16:17], s42")
    e("    s_branch L_norole")
    e("L_wave3:")
    e("    s_load_dword s4, s[12:13], 0")
    e("    s_load_dword s5, s[14:15], 0")
    e("    s_branch L_norole")
    e("L_wave0:")
    e(f"    s_load_dword s28, s[24:25], {EPOCH}")
    if zr == 1:
        e("    v_and_b32 v36, 3, v2")
        e("    v_lshlrev_b32 v36, 4, v36")
        e("    v_lshrrev_b32 v37, 2, v2")
        e(f"    v_mul_u32_u24 v37, {rep}, v37")
        e("    v_add_u32 v36, v36, v37")
        for i in range(4):
            e(f"    v_mov_b32 v{32+i}, 0")
        e("    s_lshl_b32 s42, s2, 6")
        e("    s_mov_b32 exec_hi, 0")
        e("    buffer_store_dwordx4 v[32:35], v36, s[24:27], s42 offen sc1")
        e("    s_mov_b32 exec_hi, -1")
    e("    s_getreg_b32 s89, hwreg(HW_REG_XCC_ID)")
    e("    s_and_b32 s89, s89, 7")
    e("    s_mov_b32 s38, 0")
    e("    s_mov_b32 s86, 2")
    e("    s_bitcmp1_b32 s89, 0")
    e("    s_cbranch_scc1 L_pubvote0" if zr == 1 else "    s_cbranch_scc1 L_pubvote")
    e("    s_mov_b32 s86, 1")
    e("    s_bfe_u32 s42, s2, 0x10006")
    e("    s_add_u32 s42, s42, 1")
    e(f"    s_mul_i32 s42, s42, {40<<20}")
    e("    s_bfe_u32 s43, s2, 0x30003")
    e("    s_lshl_b32 s43, s43, 21")
    e("    s_add_u32 s42, s42, s43")
    e("    s_lshr_b32 s43, s2, 7")
    e("    s_lshl_b32 s43, s43, 19")
    e("    s_add_u32 s42, s42, s43")
    e("    s_and_b32 s43, s2, 7")
    e("    s_lshl_b32 s43, s43, 16")
    e("    s_add_u32 s42, s42, s43")
    e("    s_and_b32 s43, s20, 0xffe00000")
    e("    s_add_u32 s6, s43, s42")
    e("    s_addc_u32 s7, s21, 0")
    e("    s_load_dword s4, s[6:7], 4096")
    for sl in range(lvm, pre):
        load(sl, track=False)
    e("    s_waitcnt lgkmcnt(0)")
    offs = [0, 8192, 24576 + 256, 16384 + 256, 32768 + 512, 40960 + 512][:2 * pairs]
    e("    s_memtime s[32:33]")
    e("    s_waitcnt lgkmcnt(0)")
    for i, of in enumerate(offs):
        a_, b_ = (32, 34) if i % 2 == 0 else (34, 32)
        e(f"    s_load_dword s4, s[6:7], {of}")
        e("    s_waitcnt lgkmcnt(0)")
        e(f"    s_memtime s[{b_}:{b_+1}]")
        e("    s_waitcnt lgkmcnt(0)")
        e(f"    s_sub_u32 s{8+(i&1)}, s{b_}, s{a_}")
        if i % 2 == 1:
            e("    s_cmp_gt_u32 s9, s8" if (i // 2) % 2 == 0 else "    s_cmp_gt_u32 s8, s9")
            e("    s_cselect_b32 s39, 16, -16")
            e("    s_add_i32 s38, s38, s39")
    e("    s_lshr_b32 s42, s2, 1")
    e("    s_xor_b32 s42, s42, s89")
    e("    s_sub_i32 s39, 0, s38")
    e("    s_bitcmp1_b32 s42, 2")
    e("    s_cselect_b32 s38, s39, s38")
    if zr == 1:
        e(f"    s_waitcnt vmcnt({pre-lvm})")
        e("    s_branch L_pubvote")
        e("L_pubvote0:")
        e("    s_waitcnt vmcnt(0)")
    e("L_pubvote:")
    e("    s_waitcnt lgkmcnt(0)")
    e("    s_or_b32 s38, s38, s89")
    e("    s_add_u32 s39, s28, 1")
    e("    s_xor_b32 s39, s39, 0x%08x" % MAGIC2)
    e("    s_xor_b32 s39, s39, s38")
    e("    s_lshl_b32 s42, s2, 3")
    e("    v_mov_b32 v32, s38")
    e("    v_mov_b32 v33, s39")
    e("    v_mov_b32 v34, s42")
    e("    s_mov_b64 exec, 1")
    e("    buffer_store_dwordx2 v[32:33], v34, s[24:27], s87 offen sc1")
    e("    s_mov_b64 exec, -1")
    e("L_norole:")
    if mfma:
        e("    v_and_b32 v16, 1, v4")
        e("    v_lshlrev_b32 v16, 4, v16")
        e("    v_mov_b32 v17, 0x3f80")
        e("    v_lshlrev_b32 v16, v16, v17          ; 0x3f80 << 16*(n&1)")
        e("    v_lshrrev_b32 v17, 1, v4             ; n>>1")
        for d in range(4):
            e(f"    v_cmp_eq_u32 vcc, {d}, v17")
            e(f"    v_mov_b32 v{8+d}, 0")
            e("    s_nop 0")
            e(f"    v_cndmask_b32 v{12+d}, 0, v16, vcc")
    e("    v_lshlrev_b32 v1, 4, v2              ; lane*16")

    def acc(slot):
        d = dreg(slot)
        if mfma:
            e(f"    v_mfma_f32_16x16x32_bf16 v[8:11], v[12:15], v[{d}:{d+3}], v[8:11]")
            return
        for i in range(4):
            if slot == 0:
                e(f"    v_lshlrev_b32 v{8+2*i}, 16, v{d+i}")
                e(f"    v_and_b32 v{9+2*i}, s30, v{d+i}")
            else:
                e(f"    v_lshlrev_b32 v{16+2*i}, 16, v{d+i}")
                e(f"    v_and_b32 v{17+2*i}, s30, v{d+i}")
        if slot:
            for i in range(4):
                e(f"    v_pk_add_f32 v[{8+2*i}:{9+2*i}], v[{8+2*i}:{9+2*i}], v[{16+2*i}:{17+2*i}]")

    for j in range(32):
        younger = len(q) - 1 - q.index(j)
        e(f"    s_waitcnt vmcnt({younger})")
        if j == sdiag - 1:
            stamp(7, True)
        if j == A0 - lvm:
            e("    s_waitcnt lgkmcnt(0)")
            e("    s_add_u32 s28, s28, 1                ; epoch + 1")
            e("    s_xor_b32 s29, s28, 0x%08x           ; tag key" % MAGIC)
            e(f"    s_cmp_lg_u32 s3, {gw}")
            e("    s_cbranch_scc1 L_decbar")
            e("    s_xor_b32 s88, s28, 0x%08x           ; vote key" % MAGIC2)
            if gd:
                e(f"    s_waitcnt vmcnt({max(0, lvm - gd)})")
            e("L_vchk:")
            e("    v_bitop3_b32 v28, v32, v33, s88 bitop3:0x96")
            e("    v_bitop3_b32 v29, v34, v35, s88 bitop3:0x96")
            e("    v_bitop3_b32 v30, v36, v37, s88 bitop3:0x96")
            e("    v_bitop3_b32 v27, v38, v39, s88 bitop3:0x96")
            e("    v_or3_b32 v28, v28, v29, v30")
            e("    v_or_b32 v28, v28, v27")
            e("    v_cmp_ne_u32 vcc, 0, v28")
            e("    s_cbranch_vccz L_vok")
            e("    s_sub_u32 s31, s31, 1")
            e("    s_cbranch_scc1 L_vok")
            e("    buffer_load_dwordx4 v[32:35], v1, s[24:27], s87 offen sc1")
            e("    buffer_load_dwordx4 v[36:39], v1, s[24:27], s87 offen offset:1024 sc1")
            e("    s_waitcnt vmcnt(0)")
            e("    s_branch L_vchk")
            e("L_vok:")
            e("    s_and_b32 s42, s2, 0x7b")
            e("    s_lshr_b32 s42, s42, 1")
            e("    v_readlane_b32 s4, v32, s42")
            e("    v_readlane_b32 s5, v34, s42")
            e("    v_readlane_b32 s6, v36, s42")
            e("    v_readlane_b32 s7, v38, s42")
            e("    v_ashrrev_i32 v28, 4, v32")
            e("    v_ashrrev_i32 v29, 4, v34")
            e("    v_ashrrev_i32 v30, 4, v36")
            e("    v_ashrrev_i32 v27, 4, v38")
            e("    v_add3_u32 v28, v28, v29, v30")
            e("    v_add_u32 v28, v28, v27")
            e("    s_bitcmp1_b32 s2, 0")
            e("    s_cselect_b32 s4, s5, s4")
            e("    s_cselect_b32 s6, s7, s6")
            e("    s_bitcmp1_b32 s2, 7")
            e("    s_cselect_b32 s4, s6, s4")
            for sh in (1, 2, 4, 8):
                e("    s_nop 1")
                e(f"    v_add_u32_dpp v28, v28, v28 row_shr:{sh} row_mask:0xf bank_mask:0xf bound_ctrl:0")
            e("    s_nop 1")
            e("    v_add_u32_dpp v28, v28, v28 row_bcast:15 row_mask:0xa bank_mask:0xf")
            e("    v_lshrrev_b32 v30, 3, v2")
            e("    v_and_b32 v30, 4, v30                ; (lane>=32)*4")
            e("    v_mov_b32 v29, s4")
            e("    s_mov_b32 exec_lo, 0x80000000")
            e("    s_mov_b32 exec_hi, 0x80000000")
            e(f"    ds_write_b32 v30, v28 offset:{L_DEC}")
            e(f"    ds_write_b32 v30, v29 offset:{L_DEC+8}")
            e("    s_mov_b64 exec, -1")
            e("    s_waitcnt lgkmcnt(0)")
            stamp(1)
            e("L_decbar:")
            e("    s_barrier")
            e("    v_mov_b32 v28, 0")
            e(f"    ds_read_b96 v[28:30], v28 offset:{L_DEC}")
            e("    s_and_b32 s42, s20, 0x1fffff")
            e("    s_add_u32 s43, s42, 1536")
            e("    s_lshr_b32 s43, s43, 10              ; c")
            e("    s_lshl_b32 s78, s40, 1")
            e("    s_sub_u32 s78, s78, s43              ; u - c (u = 2*grp)")
            e("    s_mul_i32 s78, s78, 11")
            e("    s_add_u32 s79, s78, 11")
            e("    s_and_b32 s78, s78, 15")
            e("    s_and_b32 s79, s79, 15")
            e("    s_xor_b32 s80, s78, 8")
            e("    s_xor_b32 s81, s79, 8")
            for r in (78, 79, 80, 81):
                e(f"    s_mul_i32 s{r}, s{r}, 3072")
                e(f"    s_add_u32 s{r}, s{r}, s76")
            e("    s_add_u32 s77, s76, 24576")
            e("    s_add_u32 s77, s77, s42")
            e("    s_lshr_b32 s77, s77, 19")
            e("    s_xor_b32 s77, s77, s2")
            e("    s_waitcnt lgkmcnt(0)")
            e("    v_readfirstlane_b32 s4, v28")
            e("    v_readfirstlane_b32 s5, v29")
            e("    v_readfirstlane_b32 s6, v30")
            if dbgout:
                e("    s_mov_b32 s76, s4")
                e("    s_mov_b32 s89, s5")
            if allpar:
                e("    s_xor_b32 s42, s16, s20")
                e("    s_lshr_b32 s42, s42, 12")
                e("    s_or_b32 s42, s42, s6")
                e("    s_bitcmp1_b32 s42, 0")
            else:
                e("    s_bitcmp1_b32 s6, 0")
            e("    s_cbranch_scc0 L_nodec")
            e("    s_xor_b32 s77, s77, s6")
            for r in range(2):
                wins = [(k, pp) for k, pp in enumerate(lorder) if pp in adaptive and region(pp) == r]
                if not wins:
                    continue
                e(f"    s_abs_i32 s42, s{4+r}")
                e(f"    s_cmp_lt_u32 s42, {thr}")
                e(f"    s_cbranch_scc1 L_keep{r}")
                e(f"    s_lshr_b32 s42, s{4+r}, 29")
                e("    s_xor_b32 s42, s42, s77")
                e("    s_bitcmp1_b32 s42, 2")
                e("    s_cselect_b32 s82, s80, s78")
                e("    s_cselect_b32 s83, s81, s79")
                e("    s_cselect_b32 s84, s78, s80")
                e("    s_cselect_b32 s85, s79, s81")
                for k, pp in wins:
                    soff(k, pp, 0)
                e(f"L_keep{r}:")
            e("L_nodec:")
        if ow and j + lvm == 32 - ow:
            for k in range(32 - ow, 32):
                load(k)
        if j + lvm < 32 - ow:
            k = j + lvm
            if evw >= 0 and k >= pre and (k % evs == 0) and k < eve:
                e("    s_bitcmp1_b32 s11, 0")
                e(f"    s_cbranch_scc1 L_ev{k}")
                e(f"    s_waitcnt vmcnt({evw})")
                e(f"L_ev{k}:")
            if k < pre:
                e("    s_cmp_eq_u32 s86, 1")
                e(f"    s_cbranch_scc1 L_sk{k}")
                load(k)
                e(f"L_sk{k}:")
            else:
                load(k)
            if k == G:
                e(f"    s_cmp_lg_u32 s3, {gw}")
                e("    s_cbranch_scc1 L_nog")
                e("    buffer_load_dwordx4 v[32:35], v1, s[24:27], s87 offen sc1")
                e("    buffer_load_dwordx4 v[36:39], v1, s[24:27], s87 offen offset:1024 sc1")
                e("L_nog:")
        acc(j)
        if j == wstep:
            e("    s_cmp_lt_u32 s3, 5")
            e("    s_cselect_b32 s36, s14, s12")
            e("    s_cselect_b32 s37, s15, s13")
            e("    s_cselect_b32 s42, 0, 5120")
            e("    s_mov_b32 s38, 4608")
            e("    s_mov_b32 s39, 0x00020000")
            e("    s_lshl_b32 s43, s3, 10")
            e(f"    s_add_u32 m0, s43, {L_W}")
            e("    s_sub_u32 s43, s43, s42")
            e("    buffer_load_dwordx4 v1, s[36:39], s43 offen lds")
            q.append("w")
        if zr >= 2 and j == zr:
            e("    s_cmp_lg_u32 s3, 4")
            e("    s_cbranch_scc1 L_nozr")
            e("    v_and_b32 v36, 48, v1")
            e("    v_lshrrev_b32 v37, 2, v2")
            e(f"    v_mul_u32_u24 v37, {rep}, v37")
            e("    v_add_u32 v36, v36, v37")
            for i in range(4):
                e(f"    v_mov_b32 v{32+i}, 0")
            e("    s_lshl_b32 s42, s2, 6")
            e("    s_mov_b32 exec_hi, 0")
            e("    buffer_store_dwordx4 v[32:35], v36, s[24:27], s42 offen sc1")
            e("    s_mov_b32 exec_hi, -1")
            e("L_nozr:")
        if j == cpf:
            e("    s_cmp_lg_u32 s3, 6")
            e("    s_cbranch_scc1 L_nocpf")
            e("    s_getpc_b64 s[8:9]")
            e("L_pcbase:")
            e("    v_lshlrev_b32 v36, 7, v2")
            e("    v_mov_b32 v37, L_exit-L_pcbase")
            e("    v_min_u32 v38, v36, v37")
            e("    global_load_dword v39, v38, s[8:9]")
            e("    v_add_u32 v36, 8192, v36")
            e("    v_min_u32 v38, v36, v37")
            e("    global_load_dword v39, v38, s[8:9]")
            e("L_nocpf:")
        if j == txs:
            e("    s_sub_u32 s42, s3, 1")
            e("    s_cmp_gt_u32 s42, 1")
            e("    s_cbranch_scc1 L_notx")
            e("    s_lshr_b32 s42, s2, 3")
            e("    s_and_b32 s43, s42, 15")
            e("    s_add_u32 s43, s43, 32")
            e("    s_cmp_eq_u32 s3, 1")
            e("    s_cselect_b32 s42, s42, s43")
            e("    s_lshl_b32 s42, s42, 21")
            e("    s_load_dword s10, s[16:17], s42")
            e("L_notx:")
        if j == tstep:
            e(f"    s_load_dword s28, s[24:25], {EPOCH}")
            if to:
                e("    s_cmp_gt_u32 s3, 2")
                e("    s_cbranch_scc1 L_noto")
                e("    s_lshr_b32 s42, s2, 3")
                e("    s_and_b32 s43, s42, 15")
                e("    s_add_u32 s43, s43, 32")
                e("    s_cmp_eq_u32 s3, 1")
                e("    s_cselect_b32 s42, s42, s43")
                e("    s_lshl_b32 s42, s42, 21")
                e("    s_load_dword s10, s[20:21], s42")
                e("L_noto:")
        if stub and j == stub:
            e("    s_cmp_eq_u32 s3, 5")
            e("    s_cbranch_scc1 L_stub")
            e("L_stubret:")
        if j == 18:
            e("    s_mul_i32 s42, s41, 1536")
            e("    s_mul_i32 s43, s40, 6")
            e("    s_add_u32 s42, s42, s43")
            e("    v_mul_u32_u24 v27, 24, v2")
            e("    v_add_u32 v27, s42, v27")
            for i in range(3):
                e(f"    ds_read_u16 v{24+i}, v27 offset:{L_W+5120+2*i}")
            e("    s_mul_i32 s42, s40, 1536")
            e("    s_lshl_b32 s43, s41, 9")
            e("    s_add_u32 s42, s42, s43")
            e("    v_lshlrev_b32 v6, 5, v4")
            e(f"    v_lshl_add_u32 v6, v3, {4 if mfma else 3}, v6")
            e("    v_add_u32 v6, s42, v6")
            e("    s_lshl_b32 s43, s41, 7")
            e("    v_lshlrev_b32 v7, 3, v4")
            e("    v_add_u32 v7, s43, v7")
            e("    v_subrev_u32 v27, 192, v7")
            e("    v_min_u32 v7, v7, v27")
            e("    v_lshlrev_b32 v7, 2, v7")
            e("    v_and_b32 v27, 1, v3")
            e("    v_lshrrev_b32 v31, 1, v3")
            e("    v_lshl_add_u32 v31, v27, 1, v31")
            e("    v_lshlrev_b32 v31, 2, v31            ; i(row)*4")
            e("    s_lshl_b32 s42, s41, 6")
            e("    s_lshl_b32 s43, s40, 4")
            e("    s_add_u32 s42, s42, s43")
            e("    v_add_u32 v4, s42, v31")
            e("    s_lshl_b32 s42, s41, 8")
            e("    v_lshlrev_b32 v3, 2, v2")
            e("    v_add_u32 v3, s42, v3")
            if rep:
                e("    v_and_b32 v32, 48, v1                ; (lane&3)*16")
                e("    v_lshrrev_b32 v33, 2, v2")
                e(f"    v_mul_u32_u24 v33, {rep}, v33")
                e("    v_add_u32 v33, v33, v32")
            e("    s_waitcnt lgkmcnt(0)")
            for r in (24, 25, 26):
                e(f"    v_lshlrev_b32 v{r}, 16, v{r}")
    if mfma:
        e("    s_mov_b32 exec_hi, 0")
        e("    s_nop 7")
        e(f"    ds_write_b128 v6, v[8:11] offset:{L_M}")
        e("    s_mov_b32 exec_hi, -1")
    else:
        e("    s_nop 1")
        for i in range(4):
            e(f"    v_permlane32_swap_b32 v{8+i}, v{12+i}")
        for i in range(4):
            e(f"    v_add_f32 v{8+i}, v{8+i}, v{12+i}")
        e("    s_nop 0")
        e("    v_permlane16_swap_b32 v8, v10")
        e("    v_permlane16_swap_b32 v9, v11")
        e("    v_add_f32 v8, v8, v10")
        e("    v_add_f32 v9, v9, v11")
        e(f"    ds_write_b64 v6, v[8:9] offset:{L_M}")
    e("    s_waitcnt lgkmcnt(0)")
    e("    s_barrier")
    stamp(3)
    for k in range(4):
        e(f"    ds_read2st64_b32 v[{16+2*k}:{17+2*k}], v3 offset0:{6*k} offset1:{6*k+3}")
    e("    s_waitcnt lgkmcnt(2)" if not (diag or enc) else "    s_waitcnt lgkmcnt(0)")
    e("    v_pk_add_f32 v[16:17], v[16:17], v[18:19]")
    e("    s_waitcnt lgkmcnt(0)")
    e("    v_pk_add_f32 v[20:21], v[20:21], v[22:23]")
    e("    v_pk_add_f32 v[16:17], v[16:17], v[20:21]")
    e("    v_add_f32 v16, v16, v17")
    e("    v_mul_f32 v10, v16, v26")
    e("    v_mul_f32 v11, v16, v26")
    e("    v_mul_f32 v8, v16, v24")
    e("    v_mul_f32 v9, v16, v25")
    e("    v_permlane32_swap_b32 v10, v11")
    e("    s_nop 0")
    e("    v_permlane32_swap_b32 v8, v9")
    e("    v_add_f32 v10, v10, v11              ; [c | c]")
    e("    v_add_f32 v8, v8, v9                 ; [a | b]")
    e("    s_nop 1")
    e("    v_permlane16_swap_b32 v8, v10")
    e("    v_add_f32 v8, v8, v10                ; rows: a, c, b, c")
    e("    s_nop 1")
    e("    v_add_f32_dpp v9, v8, v8 row_shr:1 row_mask:0xf bank_mask:0xf bound_ctrl:0")
    e("    v_add_f32_dpp v9, v8, v9 row_shr:2 row_mask:0xf bank_mask:0xf bound_ctrl:0")
    e("    v_add_f32_dpp v9, v8, v9 row_shr:3 row_mask:0xf bank_mask:0xf bound_ctrl:0")
    e("    s_nop 1")
    e("    v_add_f32_dpp v9, v9, v9 row_shr:4 row_mask:0xf bank_mask:0xf bound_ctrl:0")
    e("    s_nop 1")
    e("    v_add_f32_dpp v9, v9, v9 row_shr:8 row_mask:0xf bank_mask:0xf bound_ctrl:0")
    e("    s_mov_b32 exec_lo, 0x80008000")
    e("    s_mov_b32 exec_hi, 0x00008000")
    e(f"    ds_write_b32 v4, v9 offset:{L_HP}")
    e("    s_mov_b64 exec, -1")
    e("    s_lshl_b32 s42, s2, 6")
    e("    s_cmp_lg_u32 s3, 4")
    e("    s_waitcnt lgkmcnt(0)")
    e("    s_barrier")
    e("    s_cbranch_scc1 L_notpub")
    if rep:
        e("    s_mov_b32 exec_hi, 0")
        e(f"    ds_read_b128 v[8:11], v32 offset:{L_HP}")
        e(f"    ds_read_b128 v[12:15], v32 offset:{L_HP+64}")
        e(f"    ds_read_b128 v[16:19], v32 offset:{L_HP+128}")
    else:
        e("    s_mov_b64 exec, 15")
        e(f"    ds_read_b128 v[8:11], v1 offset:{L_HP}")
        e(f"    ds_read_b128 v[12:15], v1 offset:{L_HP+64}")
        e(f"    ds_read_b128 v[16:19], v1 offset:{L_HP+128}")
    e("    s_waitcnt lgkmcnt(1)")
    e("    v_pk_add_f32 v[8:9], v[8:9], v[12:13]")
    e("    v_add_f32 v10, v10, v14")
    e("    s_waitcnt lgkmcnt(0)")
    e("    v_pk_add_f32 v[8:9], v[8:9], v[16:17]")
    e("    v_add_f32 v10, v10, v18")
    e("    v_bitop3_b32 v11, v8, v9, s29 bitop3:0x96")
    e("    v_xor_b32 v11, v11, v10")
    e(f"    buffer_store_dwordx4 v[8:11], v{33 if rep else 1}, s[24:27], s42 offen {pubf}")
    e("    s_mov_b64 exec, -1")
    stamp(7)
    e("    s_branch L_b3")
    e("L_notpub:")
    e("    s_cmp_lt_u32 s3, 4")
    e("    s_cbranch_scc1 L_poll_start")
    e("    s_cmp_gt_u32 s3, 7")
    e("    s_cbranch_scc1 L_poll_start" if np8 else "    s_cbranch_scc1 L_b3")
    e("    v_subrev_u32 v1, 320, v0")
    e("    v_lshlrev_b32 v21, 2, v1")
    e("    v_lshlrev_b32 v1, 1, v1")
    for r in range(12):
        e(f"    ds_read_u16 v{8+r}, v1 offset:{L_W+384*r}")
    e("    v_and_b32 v20, 15, v2")
    e("    v_lshlrev_b32 v20, 2, v20")
    e(f"    v_add_u32 v20, {L_P}, v20")
    e("    s_waitcnt lgkmcnt(0)")
    for r in range(12):
        e(f"    v_lshlrev_b32 v{8+r}, 16, v{8+r}")
    e("    s_barrier")
    e("    ds_read2_b32 v[22:23], v20 offset0:0 offset1:16")
    e("    ds_read2_b32 v[24:25], v20 offset0:32 offset1:48")
    if np8:
        e("    ds_read2_b32 v[26:27], v20 offset0:64 offset1:80")
        e("    ds_read2_b32 v[28:29], v20 offset0:96 offset1:112")
        e("    s_waitcnt lgkmcnt(2)")
        e("    v_pk_add_f32 v[22:23], v[22:23], v[24:25]")
        e("    s_waitcnt lgkmcnt(0)")
        e("    v_pk_add_f32 v[24:25], v[26:27], v[28:29]")
    else:
        e("    s_waitcnt lgkmcnt(0)")
    e("    v_pk_add_f32 v[22:23], v[22:23], v[24:25]")
    e("    v_add_f32 v22, v22, v23")
    e("    v_mul_f32 v22, 0x36800000, v22       ; * 2^-18")
    e("    v_cvt_pk_bf16_f32 v22, v22, v22")
    e("    v_lshlrev_b32 v22, 16, v22")
    e("    v_mul_f32 v23, 0xbfb8aa3b, v22       ; -log2e * x")
    e("    v_exp_f32 v23, v23")
    e("    s_nop 0")
    e("    v_add_f32 v23, 1.0, v23")
    e("    v_rcp_f32 v23, v23")
    e("    s_nop 0")
    e("    v_mul_f32 v22, v22, v23")
    e("    v_cvt_pk_bf16_f32 v22, v22, v22")
    e("    v_lshlrev_b32 v22, 16, v22")
    e("    s_nop 1")
    for r in range(12):
        a = 23 + (r % 3)
        op = "v_mul_f32_dpp" if r < 3 else "v_fmac_f32_dpp"
        e(f"    {op} v{a}, v22, v{8+r} row_newbcast:{r} row_mask:0xf bank_mask:0xf")
    e("    v_add_f32 v23, v23, v24")
    e("    v_add_f32 v23, v23, v25")
    e("    v_cvt_pk_bf16_f32 v23, v23, v23")
    e("    v_lshlrev_b32 v23, 16, v23")
    e("    v_mul_f32 v23, 0xbfb8aa3b, v23")
    e("    v_exp_f32 v23, v23")
    e("    s_nop 0")
    e("    v_add_f32 v23, 1.0, v23")
    e("    v_rcp_f32 v23, v23")
    e("    s_nop 0")
    e("    v_cvt_pk_bf16_f32 v23, v23, v23")
    e("    v_lshlrev_b32 v23, 16, v23")
    e(f"    ds_write_b32 v21, v23 offset:{L_G}")
    e("    s_waitcnt lgkmcnt(0)")
    e("    s_branch L_b4")

    e("L_poll_start:")
    NL = 2 if np8 else 4
    if np8:
        e("    s_sub_u32 s10, s3, 4")
        e("    s_cmp_lt_u32 s3, 4")
        e("    s_cselect_b32 s10, s3, s10")
        e("    s_lshl_b32 s42, s10, 11")
    else:
        e("    s_mov_b32 s10, s3")
        e("    s_lshl_b32 s42, s3, 12")
    if rep:
        e("    s_getreg_b32 s43, hwreg(HW_REG_XCC_ID)")
        e("    s_and_b32 s43, s43, 7")
        e(f"    s_mul_i32 s43, s43, {rep}")
        e("    s_add_u32 s42, s42, s43")
    e("    v_and_b32 v27, 3, v2")
    e("    v_mul_u32_u24 v27, 12, v27")
    e("    s_lshl_b32 s43, s10, 6")
    e("    v_add3_u32 v31, v31, v27, s43")
    regs = (8, 12, 16, 20)
    for k in range(NL):
        e(f"    s_mov_b64 s[{4+2*k}:{5+2*k}], -1")
    e("L_poll:")
    for k in range(NL):
        e(f"    s_mov_b64 exec, s[{4+2*k}:{5+2*k}]")
        e(f"    s_cbranch_execz L_skip{k}")
        e(f"    buffer_load_dwordx4 v[{regs[k]}:{regs[k]+3}], v1, s[24:27], s42 offen offset:{1024*k} {pollf}")
        e(f"L_skip{k}:")
    e("    s_mov_b64 exec, -1")
    e("    s_waitcnt vmcnt(0)")
    for k in range(NL):
        r = regs[k]
        e(f"    v_bitop3_b32 v{27+k}, v{r}, v{r+1}, s29 bitop3:0x96")
    for k in range(NL):
        r = regs[k]
        e(f"    v_bitop3_b32 v{27+k}, v{27+k}, v{r+2}, v{r+3} bitop3:0x96")
    for k in range(NL):
        e(f"    v_cmp_ne_u32 s[{4+2*k}:{5+2*k}], 0, v{27+k}")
    e("    s_or_b64 s[82:83], s[4:5], s[6:7]")
    if NL == 4:
        e("    s_or_b64 vcc, s[8:9], s[10:11]")
        e("    s_or_b64 s[82:83], s[82:83], vcc")
    e("    s_cbranch_scc0 L_poll_ok")
    e("    s_sub_u32 s31, s31, 1")
    e("    s_cbranch_scc1 L_poll_ok")
    if sleep:
        e(f"    s_sleep {sleep}")
    e("    s_branch L_poll")
    e("L_poll_ok:")
    stamp(7)
    if NL == 4:
        e("    v_add_f32 v10, v10, v14")
        e("    v_add_f32 v18, v18, v22")
        e("    v_pk_add_f32 v[8:9], v[8:9], v[12:13]")
        e("    v_pk_add_f32 v[16:17], v[16:17], v[20:21]")
        e("    v_add_f32 v11, v10, v18")
        e("    v_add_f32 v10, v10, v18")
        e("    v_pk_add_f32 v[8:9], v[8:9], v[16:17]")
    else:
        e("    v_add_f32 v11, v10, v14")
        e("    v_add_f32 v10, v10, v14")
        e("    v_pk_add_f32 v[8:9], v[8:9], v[12:13]")
    e("    s_nop 0")
    e("    v_permlane32_swap_b32 v10, v11")
    e("    v_permlane32_swap_b32 v8, v9")
    e("    v_add_f32 v10, v10, v11              ; [c | c]")
    e("    v_add_f32 v8, v8, v9                 ; [a | b]")
    e("    s_nop 1")
    e("    v_permlane16_swap_b32 v8, v10")
    e("    v_add_f32 v8, v8, v10                ; rows: a, c, b, c")
    e("    s_nop 1")
    e("    v_add_f32_dpp v8, v8, v8 row_shr:4 row_mask:0xf bank_mask:0xf bound_ctrl:0")
    e("    s_nop 1")
    e("    v_add_f32_dpp v8, v8, v8 row_shr:8 row_mask:0xf bank_mask:0xf bound_ctrl:0")
    e("    s_mov_b32 exec_lo, 0xf000f000")
    e("    s_mov_b32 exec_hi, 0x0000f000")
    e(f"    ds_write_b32 v31, v8 offset:{L_P}")
    e("    s_mov_b64 exec, -1")
    e("    s_waitcnt lgkmcnt(0)")
    if pg:
        e("    s_branch L_b3")
        if stub:
            e("L_stub:")
            e("    s_branch L_stub2")
        e(".p2align 12")
        if stub:
            e("L_stub2:")
            e("    s_branch L_stubret")
    e("L_b3:")
    e("    s_barrier")
    e("L_b4:")
    e("    s_barrier")
    e(f"    ds_read_b128 v[8:11], v7 offset:{L_G}")
    e(f"    ds_read_b128 v[12:15], v7 offset:{L_G+16}")

    cnt = [0]

    def scale_store(slot, first=False):
        t = 16 + 8 * (cnt[0] & 1)
        cnt[0] += 1
        if dot:
            if first:
                e("    s_waitcnt lgkmcnt(0)")
                stamp(5)
                for i in range(4):
                    e(f"    v_lshrrev_b32 v{8+2*i}, 16, v{8+2*i}     ; (g_lo, 0)")
            for i in range(4):
                d = dreg(slot) + i
                e(f"    v_dot2_f32_bf16 v{t+2*i}, v{d}, v{8+2*i}, 0")
                e(f"    v_dot2_f32_bf16 v{t+1+2*i}, v{d}, v{9+2*i}, 0")
            e("    s_nop 0")
            for i in range(4):
                d = dreg(slot) + i
                e(f"    v_cvt_pk_bf16_f32 v{d}, v{t+2*i}, v{t+1+2*i}")
            d = dreg(slot)
            e(f"    buffer_store_dwordx4 v[{d}:{d+3}], v5, s[20:23], s{SO+slot} offen{stf}")
            return
        for i in range(4):
            d = dreg(slot) + i
            e(f"    v_lshlrev_b32 v{t+2*i}, 16, v{d}")
            e(f"    v_and_b32 v{t+1+2*i}, s30, v{d}")
        if first:
            e("    s_waitcnt lgkmcnt(0)")
            stamp(5)
        for i in range(4):
            e(f"    v_pk_mul_f32 v[{t+2*i}:{t+1+2*i}], v[{t+2*i}:{t+1+2*i}], v[{8+2*i}:{9+2*i}]")
        for i in range(4):
            d = dreg(slot) + i
            e(f"    v_cvt_pk_bf16_f32 v{d}, v{t+2*i}, v{t+1+2*i}")
        d = dreg(slot)
        e(f"    buffer_store_dwordx4 v[{d}:{d+3}], v5, s[20:23], s{SO+slot} offen{stf}")

    sslots = []
    for pp in sorder:
        k = lorder.index(pp)
        sslots += [2 * k, 2 * k + 1]
    if fine:
        S_ = list(range(A0)); A_ = list(range(A0, 32))
        sslots = []
        si, ai = 0, 0
        for k in range(32):
            if (si < len(S_) and (si + 0.5) * len(A_) <= (ai + 0.5) * len(S_)) or ai >= len(A_):
                sslots.append(S_[si]); si += 1
            else:
                sslots.append(A_[ai]); ai += 1
        assert sorted(sslots) == list(range(32))
    for j in range(32):
        scale_store(sslots[j], first=(j == 0))
        if j == 1:
            e("    s_cmp_lg_u32 s2, 0")
            e("    s_cbranch_scc1 L_noep")
            e("    s_cmp_lg_u32 s3, 11")
            e("    s_cbranch_scc1 L_noep")
            e(f"    v_mov_b32 v1, {EPOCH}")
            e("    v_mov_b32 v3, s28")
            e("    s_mov_b64 exec, 1")
            e("    buffer_store_dword v3, v1, s[24:27], 0 offen sc1")
            if dbgout:
                e("    s_load_dwordx2 s[32:33], s[0:1], 32")
                e("    s_mov_b32 s34, 256")
                e("    s_mov_b32 s35, 0x00020000")
                e("    v_mov_b32 v2, s76")
                e("    v_mov_b32 v3, s89")
                e("    v_mov_b32 v1, 0")
                e("    s_waitcnt lgkmcnt(0)")
                e("    buffer_store_dwordx2 v[2:3], v1, s[32:35], 0 offen")
            e("    s_mov_b64 exec, -1")
            e("L_noep:")
        if sbar and (j + 1) % sbar == 0 and j != 31:
            e("    s_barrier")
    if enc:
        e("    s_waitcnt vmcnt(0)")
        stamp(6)
        e("    s_waitcnt lgkmcnt(0)")
        a, b = {1: (0, 0), 2: (0, 3), 3: (0, 5), 4: (5, 6), 5: (0, 6)}[enc]
        e(f"    s_sub_u32 s42, s{ST+2*smap[b]}, s{ST+2*smap[a]}")
        e("L_enc:")
        e("    s_memrealtime s[4:5]")
        e("    s_waitcnt lgkmcnt(0)")
        e(f"    s_sub_u32 s43, s4, s{ST+2*smap[6]}")
        e("    s_cmp_lt_u32 s43, s42")
        e("    s_cbranch_scc1 L_enc")
    if diag:
        e("    s_waitcnt vmcnt(0)")
        stamp(6)
        e("    s_waitcnt lgkmcnt(0)")
        e("    s_mul_i32 s42, s2, 12")
        e("    s_add_u32 s42, s42, s3")
        e("    s_lshl_b32 s42, s42, 7")
        e(f"    s_add_u32 s42, s42, {DIAG}")
        e("    v_mov_b32 v1, s42")
        e("    s_mov_b64 exec, 1")
        inv = {v: k for k, v in smap.items()}
        for k in range(6):
            e(f"    v_mov_b32 v16, s{ST+2*k}")
            e(f"    v_mov_b32 v17, s{ST+2*k+1}")
            e(f"    buffer_store_dwordx2 v[16:17], v1, s[24:27], 0 offen offset:{8*inv[k]}")
            e("    s_nop 2")
        e("    s_getreg_b32 s42, hwreg(HW_REG_XCC_ID)")
        e("    v_mov_b32 v16, s42")
        e("    v_mov_b32 v17, s31")
        e("    buffer_store_dwordx2 v[16:17], v1, s[24:27], 0 offen offset:88")
    e("L_exit:")
    e("    s_endpgm")
    e('.section .rodata,"a"')
    e(".p2align 6")
    e(f".amdhsa_kernel {NAME}")
    e("  .amdhsa_next_free_vgpr 168")
    e("  .amdhsa_next_free_sgpr 102")
    e("  .amdhsa_accum_offset 168")
    e("  .amdhsa_group_segment_fixed_size 0")
    e("  .amdhsa_kernarg_size 48")
    e("  .amdhsa_user_sgpr_count 2")
    e("  .amdhsa_user_sgpr_kernarg_segment_ptr 1")
    e("  .amdhsa_system_sgpr_workgroup_id_x 1")
    e("  .amdhsa_float_denorm_mode_32 3")
    e(".end_amdhsa_kernel")
    return "\n".join(o) + "\n"


if __name__ == "__main__":
    ap = argparse.ArgumentParser()
    ap.add_argument("-o", default="-")
    ap.add_argument("--ld", default="nt")
    ap.add_argument("--st", default="sc0 sc1")
    ap.add_argument("--diag", action="store_true")
    for name, dv in (("sleep", 0), ("sbar", 1), ("lvm", 3), ("ns", 8), ("pre", 9), ("pairs", 2), ("thr", 14), ("dbgout", 0),
                     ("enc", 0), ("sdiag", 0), ("tx", 0), ("to", 1), ("tstep", 7), ("wstep", 4), ("allpar", 0), ("mfma", 0), ("prio", 0), ("gw", 0), ("gd", 0), ("clk", 0), ("dot", 0), ("pg", 0), ("stub", 0), ("evw", -1), ("evs", 1), ("rep", 0), ("np8", 0), ("zr", 0), ("fine", 0), ("ow", 0), ("eve", 32), ("txs", -1), ("cpf", -1)):
        ap.add_argument("--" + name, type=int, default=dv)
    ap.add_argument("--pubf", default="sc1")
    ap.add_argument("--pollf", default="sc1")
    a = ap.parse_args()
    kw = vars(a).copy()
    out = kw.pop("o")
    s = gen(**kw)
    if out == "-":
        sys.stdout.write(s)
    else:
        open(out, "w").write(s)
```

```python
import sys, argparse

HEADER = """; Kernarg layout for this problem (48 bytes, ptrs only, base s[0:1]):
"""

NAME = "standalone__channel_attn_se__vision_kernel"
XBYTES = 100663296
MAGIC = 0x5BD1E995
MAGIC2 = 0x2C1B3C6D

L_M = 0
L_HP = 6144
L_P = 7488
L_G = 6656
L_DEC = 7424
L_W = 8192
LDS = 20480
VOTE = 262144
EPOCH = 270336
DIAG = 1 << 20
WS_BYTES = 2 << 20
SB = 49152
WIN = 128 * SB


def gen(ld="nt", st="sc0 sc1", diag=False, sleep=0, spin=400000, pubf="sc1", pollf="sc1", sbar=1,
        lvm=3, ns=8, pre=9, pairs=2, thr=14, dbgout=0, enc=0, sdiag=0, tx=0, to=1, tstep=7, wstep=4, allpar=0,
        mfma=0, prio=0, gw=0, gd=0, clk=0, dot=0, pg=0, stub=0, evw=-1, evs=1, rep=0, np8=0, zr=0, fine=0, ow=0, eve=32, txs=-1, cpf=-1):
    o = []
    e = o.append
    ldf = (" " + ld) if ld else ""
    stf = (" " + st) if st else ""
    D0 = 40
    SO = 44
    ST = 90
    na = 16 - ns
    adaptive = [(15 - i // 2) if i % 2 == 0 else (9 - i // 2) for i in range(na)][::-1]
    static = [pp for pp in range(16) if pp not in adaptive]
    lorder = static + adaptive
    sorder = []
    si, ai = 0, 0
    for k in range(16):
        if (ai < na and (ai + 1) * 16 <= (k + 1) * na) or si >= len(static):
            sorder.append(adaptive[ai]); ai += 1
        else:
            sorder.append(static[si]); si += 1
    assert sorted(sorder) == list(range(16))
    region = lambda pp: 0 if pp < 10 else 1
    A0 = 2 * ns
    G = A0 - lvm - 1 + gd
    e(HEADER.rstrip())
    e(f"; @launch grid=(256,1,1) block=(768,1,1) lds={LDS}")
    e('.amdgcn_target "amdgcn-amd-amdhsa--gfx950"')
    e(".text")
    e(f".globl {NAME}")
    e(".p2align 8")
    e(f".type {NAME},@function")
    e(f"{NAME}:")
    smap = {0: 0, 1: 1, 3: 2, 5: 3, 6: 4, 7: 5}

    def stamp(i, sd=False):
        if (clk or enc in (8, 9)) and i in (1, 7):
            return
        if clk and diag and i == (5 if clk == 1 else 0):
            e(f"    s_memtime s[{ST+2*smap[1]}:{ST+1+2*smap[1]}]")
        if clk and diag and i == (6 if clk == 1 else 3):
            e(f"    s_memtime s[{ST+2*smap[7]}:{ST+1+2*smap[7]}]")
        if sdiag and i in (1, 7) and not sd:
            return
        if sd and not sdiag:
            return
        if (diag or enc) and i in smap:
            k = smap[i]
            e(f"    s_memrealtime s[{ST+2*k}:{ST+1+2*k}]")

    def dreg(slot):
        return D0 + 4 * slot

    q = []

    def load(slot, track=True):
        d = dreg(slot)
        e(f"    buffer_load_dwordx4 v[{d}:{d+3}], v5, s[16:19], s{SO+slot} offen{ldf}")
        if track:
            q.append(slot)

    def soff(k, pp, u):
        b = 84 if ((pp ^ u) & 1) else 82
        e(f"    s_add_u32 s{SO+2*k}, s{b}, {pp*WIN}")
        e(f"    s_add_u32 s{SO+2*k+1}, s{b+1}, {pp*WIN}")

    us = []
    seen = [0, 0]
    for pp in lorder:
        us.append(seen[region(pp)] & 1)
        seen[region(pp)] += 1

    e("    s_cmp_ge_u32 s2, 256")
    e("    s_cbranch_scc1 L_exit")
    if enc in (8, 9):
        e("    s_memrealtime s[98:99]")
        e("    s_waitcnt lgkmcnt(0)")
        e("    s_mov_b32 s11, s98")
    e("    s_load_dwordx2 s[16:17], s[0:1], 0       ; x")
    e("    s_load_dwordx2 s[20:21], s[0:1], 24      ; out")
    e("    s_load_dwordx2 s[24:25], s[0:1], 40      ; ws")
    e("    s_load_dwordx4 s[12:15], s[0:1], 8")
    if diag or enc:
        for i in range(6):
            e(f"    s_mov_b64 s[{ST+2*i}:{ST+1+2*i}], 0")
    stamp(0)
    e("    v_lshrrev_b32 v1, 6, v0")
    e("    v_and_b32 v2, 63, v0                 ; lane")
    e("    v_readfirstlane_b32 s3, v1")
    e("    v_lshrrev_b32 v3, 4, v2              ; q (row)")
    e("    v_and_b32 v4, 15, v2                 ; n")
    e("    v_mul_u32_u24 v5, 768, v3")
    e("    s_mul_i32 s40, s3, 11")
    e("    s_lshr_b32 s40, s40, 5")
    e("    s_mul_i32 s41, s40, 3")
    e("    s_sub_u32 s41, s3, s41               ; seg = wave%3")
    e("    s_lshl_b32 s43, s41, 8")
    e("    v_lshl_add_u32 v5, v4, 4, v5")
    e("    v_add_u32 v5, s43, v5                ; v5 = q*768 + seg*256 + n*16")
    e("    s_mov_b32 s18, %d" % XBYTES)
    e("    s_mov_b32 s19, 0x00020000")
    e("    s_lshr_b32 s42, s2, 3")
    e("    s_and_b32 s43, s2, 3")
    e("    s_lshl2_add_u32 s42, s42, s43")
    e(f"    s_mul_i32 s76, s42, {SB}")
    e("    s_mul_i32 s78, s40, 6144")
    e("    s_add_u32 s78, s78, s76              ; half 0, t0")
    e("    s_add_u32 s80, s78, 24576            ; half 1, t0")
    e("    s_bitcmp1_b32 s2, 2")
    e("    s_cselect_b32 s82, s80, s78")
    e("    s_add_u32 s83, s82, 3072")
    for k in range(2):
        e(f"    s_add_u32 s{SO+2*k}, s82, {lorder[k]*WIN}")
        e(f"    s_add_u32 s{SO+2*k+1}, s83, {lorder[k]*WIN}")
    assert lvm <= 4
    e("    s_waitcnt lgkmcnt(0)")
    if enc == 8:
        e("    s_memrealtime s[98:99]")
        e("    s_waitcnt lgkmcnt(0)")
        e("    s_sub_u32 s101, s98, s11")
    if enc == 9:
        e("    s_mov_b32 s101, s11")
    for s in range(lvm):
        load(s)
    stamp(1, True)
    for k in range(2, 16):
        e(f"    s_add_u32 s{SO+2*k}, s82, {lorder[k]*WIN}")
        e(f"    s_add_u32 s{SO+2*k+1}, s83, {lorder[k]*WIN}")
    e("    s_mov_b32 s22, %d" % XBYTES)
    e("    s_mov_b32 s23, 0x00020000")
    e("    s_mov_b32 s26, %d" % WS_BYTES)
    e("    s_mov_b32 s27, 0x00020000")
    e("    s_mov_b32 s30, 0xffff0000")
    e("    s_mov_b32 s31, %d" % spin)
    e(f"    s_mov_b32 s87, {VOTE}")
    e("    s_mov_b32 s86, 0")
    if evw >= 0:
        e("    s_getreg_b32 s11, hwreg(HW_REG_XCC_ID)")
    e("    s_cmp_gt_u32 s3, 3")
    e("    s_cbranch_scc1 L_norole")
    e("    s_cmp_eq_u32 s3, 0")
    e("    s_cbranch_scc1 L_wave0")
    e("    s_cmp_eq_u32 s3, 3")
    e("    s_cbranch_scc1 L_wave3")
    if tx:
        e("    s_lshr_b32 s42, s2, 3")
        e("    s_and_b32 s43, s42, 15")
        e("    s_add_u32 s43, s43, 32")
        e("    s_cmp_eq_u32 s3, 1")
        e("    s_cselect_b32 s42, s42, s43")
        e("    s_lshl_b32 s42, s42, 21")
        e("    s_load_dword s4, s[16:17], s42")
    e("    s_branch L_norole")
    e("L_wave3:")
    e("    s_load_dword s4, s[12:13], 0")
    e("    s_load_dword s5, s[14:15], 0")
    e("    s_branch L_norole")
    e("L_wave0:")
    e(f"    s_load_dword s28, s[24:25], {EPOCH}")
    if zr == 1:
        e("    v_and_b32 v36, 3, v2")
        e("    v_lshlrev_b32 v36, 4, v36")
        e("    v_lshrrev_b32 v37, 2, v2")
        e(f"    v_mul_u32_u24 v37, {rep}, v37")
        e("    v_add_u32 v36, v36, v37")
        for i in range(4):
            e(f"    v_mov_b32 v{32+i}, 0")
        e("    s_lshl_b32 s42, s2, 6")
        e("    s_mov_b32 exec_hi, 0")
        e("    buffer_store_dwordx4 v[32:35], v36, s[24:27], s42 offen sc1")
        e("    s_mov_b32 exec_hi, -1")
    e("    s_getreg_b32 s89, hwreg(HW_REG_XCC_ID)")
    e("    s_and_b32 s89, s89, 7")
    e("    s_mov_b32 s38, 0")
    e("    s_mov_b32 s86, 2")
    e("    s_bitcmp1_b32 s89, 0")
    e("    s_cbranch_scc1 L_pubvote0" if zr == 1 else "    s_cbranch_scc1 L_pubvote")
    e("    s_mov_b32 s86, 1")
    e("    s_bfe_u32 s42, s2, 0x10006")
    e("    s_add_u32 s42, s42, 1")
    e(f"    s_mul_i32 s42, s42, {40<<20}")
    e("    s_bfe_u32 s43, s2, 0x30003")
    e("    s_lshl_b32 s43, s43, 21")
    e("    s_add_u32 s42, s42, s43")
    e("    s_lshr_b32 s43, s2, 7")
    e("    s_lshl_b32 s43, s43, 19")
    e("    s_add_u32 s42, s42, s43")
    e("    s_and_b32 s43, s2, 7")
    e("    s_lshl_b32 s43, s43, 16")
    e("    s_add_u32 s42, s42, s43")
    e("    s_and_b32 s43, s20, 0xffe00000")
    e("    s_add_u32 s6, s43, s42")
    e("    s_addc_u32 s7, s21, 0")
    e("    s_load_dword s4, s[6:7], 4096")
    for sl in range(lvm, pre):
        load(sl, track=False)
    e("    s_waitcnt lgkmcnt(0)")
    offs = [0, 8192, 24576 + 256, 16384 + 256, 32768 + 512, 40960 + 512][:2 * pairs]
    e("    s_memtime s[32:33]")
    e("    s_waitcnt lgkmcnt(0)")
    for i, of in enumerate(offs):
        a_, b_ = (32, 34) if i % 2 == 0 else (34, 32)
        e(f"    s_load_dword s4, s[6:7], {of}")
        e("    s_waitcnt lgkmcnt(0)")
        e(f"    s_memtime s[{b_}:{b_+1}]")
        e("    s_waitcnt lgkmcnt(0)")
        e(f"    s_sub_u32 s{8+(i&1)}, s{b_}, s{a_}")
        if i % 2 == 1:
            e("    s_cmp_gt_u32 s9, s8" if (i // 2) % 2 == 0 else "    s_cmp_gt_u32 s8, s9")
            e("    s_cselect_b32 s39, 16, -16")
            e("    s_add_i32 s38, s38, s39")
    e("    s_lshr_b32 s42, s2, 1")
    e("    s_xor_b32 s42, s42, s89")
    e("    s_sub_i32 s39, 0, s38")
    e("    s_bitcmp1_b32 s42, 2")
    e("    s_cselect_b32 s38, s39, s38")
    if zr == 1:
        e(f"    s_waitcnt vmcnt({pre-lvm})")
        e("    s_branch L_pubvote")
        e("L_pubvote0:")
        e("    s_waitcnt vmcnt(0)")
    e("L_pubvote:")
    e("    s_waitcnt lgkmcnt(0)")
    e("    s_or_b32 s38, s38, s89")
    e("    s_add_u32 s39, s28, 1")
    e("    s_xor_b32 s39, s39, 0x%08x" % MAGIC2)
    e("    s_xor_b32 s39, s39, s38")
    e("    s_lshl_b32 s42, s2, 3")
    e("    v_mov_b32 v32, s38")
    e("    v_mov_b32 v33, s39")
    e("    v_mov_b32 v34, s42")
    e("    s_mov_b64 exec, 1")
    e("    buffer_store_dwordx2 v[32:33], v34, s[24:27], s87 offen sc1")
    e("    s_mov_b64 exec, -1")
    e("L_norole:")
    if mfma:
        e("    v_and_b32 v16, 1, v4")
        e("    v_lshlrev_b32 v16, 4, v16")
        e("    v_mov_b32 v17, 0x3f80")
        e("    v_lshlrev_b32 v16, v16, v17          ; 0x3f80 << 16*(n&1)")
        e("    v_lshrrev_b32 v17, 1, v4             ; n>>1")
        for d in range(4):
            e(f"    v_cmp_eq_u32 vcc, {d}, v17")
            e(f"    v_mov_b32 v{8+d}, 0")
            e("    s_nop 0")
            e(f"    v_cndmask_b32 v{12+d}, 0, v16, vcc")
    e("    v_lshlrev_b32 v1, 4, v2              ; lane*16")

    def acc(slot):
        d = dreg(slot)
        if mfma:
            e(f"    v_mfma_f32_16x16x32_bf16 v[8:11], v[12:15], v[{d}:{d+3}], v[8:11]")
            return
        for i in range(4):
            if slot == 0:
                e(f"    v_lshlrev_b32 v{8+2*i}, 16, v{d+i}")
                e(f"    v_and_b32 v{9+2*i}, s30, v{d+i}")
            else:
                e(f"    v_lshlrev_b32 v{16+2*i}, 16, v{d+i}")
                e(f"    v_and_b32 v{17+2*i}, s30, v{d+i}")
        if slot:
            for i in range(4):
                e(f"    v_pk_add_f32 v[{8+2*i}:{9+2*i}], v[{8+2*i}:{9+2*i}], v[{16+2*i}:{17+2*i}]")

    for j in range(32):
        younger = len(q) - 1 - q.index(j)
        e(f"    s_waitcnt vmcnt({younger})")
        if j == sdiag - 1:
            stamp(7, True)
        if j == A0 - lvm:
            e("    s_waitcnt lgkmcnt(0)")
            e("    s_add_u32 s28, s28, 1                ; epoch + 1")
            e("    s_xor_b32 s29, s28, 0x%08x           ; tag key" % MAGIC)
            e(f"    s_cmp_lg_u32 s3, {gw}")
            e("    s_cbranch_scc1 L_decbar")
            e("    s_xor_b32 s88, s28, 0x%08x           ; vote key" % MAGIC2)
            if gd:
                e(f"    s_waitcnt vmcnt({max(0, lvm - gd)})")
            e("L_vchk:")
            e("    v_bitop3_b32 v28, v32, v33, s88 bitop3:0x96")
            e("    v_bitop3_b32 v29, v34, v35, s88 bitop3:0x96")
            e("    v_bitop3_b32 v30, v36, v37, s88 bitop3:0x96")
            e("    v_bitop3_b32 v27, v38, v39, s88 bitop3:0x96")
            e("    v_or3_b32 v28, v28, v29, v30")
            e("    v_or_b32 v28, v28, v27")
            e("    v_cmp_ne_u32 vcc, 0, v28")
            e("    s_cbranch_vccz L_vok")
            e("    s_sub_u32 s31, s31, 1")
            e("    s_cbranch_scc1 L_vok")
            e("    buffer_load_dwordx4 v[32:35], v1, s[24:27], s87 offen sc1")
            e("    buffer_load_dwordx4 v[36:39], v1, s[24:27], s87 offen offset:1024 sc1")
            e("    s_waitcnt vmcnt(0)")
            e("    s_branch L_vchk")
            e("L_vok:")
            e("    s_and_b32 s42, s2, 0x7b")
            e("    s_lshr_b32 s42, s42, 1")
            e("    v_readlane_b32 s4, v32, s42")
            e("    v_readlane_b32 s5, v34, s42")
            e("    v_readlane_b32 s6, v36, s42")
            e("    v_readlane_b32 s7, v38, s42")
            e("    v_ashrrev_i32 v28, 4, v32")
            e("    v_ashrrev_i32 v29, 4, v34")
            e("    v_ashrrev_i32 v30, 4, v36")
            e("    v_ashrrev_i32 v27, 4, v38")
            e("    v_add3_u32 v28, v28, v29, v30")
            e("    v_add_u32 v28, v28, v27")
            e("    s_bitcmp1_b32 s2, 0")
            e("    s_cselect_b32 s4, s5, s4")
            e("    s_cselect_b32 s6, s7, s6")
            e("    s_bitcmp1_b32 s2, 7")
            e("    s_cselect_b32 s4, s6, s4")
            for sh in (1, 2, 4, 8):
                e("    s_nop 1")
                e(f"    v_add_u32_dpp v28, v28, v28 row_shr:{sh} row_mask:0xf bank_mask:0xf bound_ctrl:0")
            e("    s_nop 1")
            e("    v_add_u32_dpp v28, v28, v28 row_bcast:15 row_mask:0xa bank_mask:0xf")
            e("    v_lshrrev_b32 v30, 3, v2")
            e("    v_and_b32 v30, 4, v30                ; (lane>=32)*4")
            e("    v_mov_b32 v29, s4")
            e("    s_mov_b32 exec_lo, 0x80000000")
            e("    s_mov_b32 exec_hi, 0x80000000")
            e(f"    ds_write_b32 v30, v28 offset:{L_DEC}")
            e(f"    ds_write_b32 v30, v29 offset:{L_DEC+8}")
            e("    s_mov_b64 exec, -1")
            e("    s_waitcnt lgkmcnt(0)")
            stamp(1)
            e("L_decbar:")
            e("    s_barrier")
            e("    v_mov_b32 v28, 0")
            e(f"    ds_read_b96 v[28:30], v28 offset:{L_DEC}")
            e("    s_and_b32 s42, s20, 0x1fffff")
            e("    s_add_u32 s43, s42, 1536")
            e("    s_lshr_b32 s43, s43, 10              ; c")
            e("    s_lshl_b32 s78, s40, 1")
            e("    s_sub_u32 s78, s78, s43              ; u - c (u = 2*grp)")
            e("    s_mul_i32 s78, s78, 11")
            e("    s_add_u32 s79, s78, 11")
            e("    s_and_b32 s78, s78, 15")
            e("    s_and_b32 s79, s79, 15")
            e("    s_xor_b32 s80, s78, 8")
            e("    s_xor_b32 s81, s79, 8")
            for r in (78, 79, 80, 81):
                e(f"    s_mul_i32 s{r}, s{r}, 3072")
                e(f"    s_add_u32 s{r}, s{r}, s76")
            e("    s_add_u32 s77, s76, 24576")
            e("    s_add_u32 s77, s77, s42")
            e("    s_lshr_b32 s77, s77, 19")
            e("    s_xor_b32 s77, s77, s2")
            e("    s_waitcnt lgkmcnt(0)")
            e("    v_readfirstlane_b32 s4, v28")
            e("    v_readfirstlane_b32 s5, v29")
            e("    v_readfirstlane_b32 s6, v30")
            if dbgout:
                e("    s_mov_b32 s76, s4")
                e("    s_mov_b32 s89, s5")
            if allpar:
                e("    s_xor_b32 s42, s16, s20")
                e("    s_lshr_b32 s42, s42, 12")
                e("    s_or_b32 s42, s42, s6")
                e("    s_bitcmp1_b32 s42, 0")
            else:
                e("    s_bitcmp1_b32 s6, 0")
            e("    s_cbranch_scc0 L_nodec")
            e("    s_xor_b32 s77, s77, s6")
            for r in range(2):
                wins = [(k, pp) for k, pp in enumerate(lorder) if pp in adaptive and region(pp) == r]
                if not wins:
                    continue
                e(f"    s_abs_i32 s42, s{4+r}")
                e(f"    s_cmp_lt_u32 s42, {thr}")
                e(f"    s_cbranch_scc1 L_keep{r}")
                e(f"    s_lshr_b32 s42, s{4+r}, 29")
                e("    s_xor_b32 s42, s42, s77")
                e("    s_bitcmp1_b32 s42, 2")
                e("    s_cselect_b32 s82, s80, s78")
                e("    s_cselect_b32 s83, s81, s79")
                e("    s_cselect_b32 s84, s78, s80")
                e("    s_cselect_b32 s85, s79, s81")
                for k, pp in wins:
                    soff(k, pp, 0)
                e(f"L_keep{r}:")
            e("L_nodec:")
        if ow and j + lvm == 32 - ow:
            for k in range(32 - ow, 32):
                load(k)
        if j + lvm < 32 - ow:
            k = j + lvm
            if evw >= 0 and k >= pre and (k % evs == 0) and k < eve:
                e("    s_bitcmp1_b32 s11, 0")
                e(f"    s_cbranch_scc1 L_ev{k}")
                e(f"    s_waitcnt vmcnt({evw})")
                e(f"L_ev{k}:")
            if k < pre:
                e("    s_cmp_eq_u32 s86, 1")
                e(f"    s_cbranch_scc1 L_sk{k}")
                load(k)
                e(f"L_sk{k}:")
            else:
                load(k)
            if k == G:
                e(f"    s_cmp_lg_u32 s3, {gw}")
                e("    s_cbranch_scc1 L_nog")
                e("    buffer_load_dwordx4 v[32:35], v1, s[24:27], s87 offen sc1")
                e("    buffer_load_dwordx4 v[36:39], v1, s[24:27], s87 offen offset:1024 sc1")
                e("L_nog:")
        acc(j)
        if j == wstep:
            e("    s_cmp_lt_u32 s3, 5")
            e("    s_cselect_b32 s36, s14, s12")
            e("    s_cselect_b32 s37, s15, s13")
            e("    s_cselect_b32 s42, 0, 5120")
            e("    s_mov_b32 s38, 4608")
            e("    s_mov_b32 s39, 0x00020000")
            e("    s_lshl_b32 s43, s3, 10")
            e(f"    s_add_u32 m0, s43, {L_W}")
            e("    s_sub_u32 s43, s43, s42")
            e("    buffer_load_dwordx4 v1, s[36:39], s43 offen lds")
            q.append("w")
        if zr >= 2 and j == zr:
            e("    s_cmp_lg_u32 s3, 4")
            e("    s_cbranch_scc1 L_nozr")
            e("    v_and_b32 v36, 48, v1")
            e("    v_lshrrev_b32 v37, 2, v2")
            e(f"    v_mul_u32_u24 v37, {rep}, v37")
            e("    v_add_u32 v36, v36, v37")
            for i in range(4):
                e(f"    v_mov_b32 v{32+i}, 0")
            e("    s_lshl_b32 s42, s2, 6")
            e("    s_mov_b32 exec_hi, 0")
            e("    buffer_store_dwordx4 v[32:35], v36, s[24:27], s42 offen sc1")
            e("    s_mov_b32 exec_hi, -1")
            e("L_nozr:")
        if j == cpf:
            e("    s_cmp_lg_u32 s3, 6")
            e("    s_cbranch_scc1 L_nocpf")
            e("    s_getpc_b64 s[8:9]")
            e("L_pcbase:")
            e("    v_lshlrev_b32 v36, 7, v2")
            e("    v_mov_b32 v37, L_exit-L_pcbase")
            e("    v_min_u32 v38, v36, v37")
            e("    global_load_dword v39, v38, s[8:9]")
            e("    v_add_u32 v36, 8192, v36")
            e("    v_min_u32 v38, v36, v37")
            e("    global_load_dword v39, v38, s[8:9]")
            e("L_nocpf:")
        if j == txs:
            e("    s_sub_u32 s42, s3, 1")
            e("    s_cmp_gt_u32 s42, 1")
            e("    s_cbranch_scc1 L_notx")
            e("    s_lshr_b32 s42, s2, 3")
            e("    s_and_b32 s43, s42, 15")
            e("    s_add_u32 s43, s43, 32")
            e("    s_cmp_eq_u32 s3, 1")
            e("    s_cselect_b32 s42, s42, s43")
            e("    s_lshl_b32 s42, s42, 21")
            e("    s_load_dword s10, s[16:17], s42")
            e("L_notx:")
        if j == tstep:
            e(f"    s_load_dword s28, s[24:25], {EPOCH}")
            if to:
                e("    s_cmp_gt_u32 s3, 2")
                e("    s_cbranch_scc1 L_noto")
                e("    s_lshr_b32 s42, s2, 3")
                e("    s_and_b32 s43, s42, 15")
                e("    s_add_u32 s43, s43, 32")
                e("    s_cmp_eq_u32 s3, 1")
                e("    s_cselect_b32 s42, s42, s43")
                e("    s_lshl_b32 s42, s42, 21")
                e("    s_load_dword s10, s[20:21], s42")
                e("L_noto:")
        if stub and j == stub:
            e("    s_cmp_eq_u32 s3, 5")
            e("    s_cbranch_scc1 L_stub")
            e("L_stubret:")
        if j == 18:
            e("    s_mul_i32 s42, s41, 1536")
            e("    s_mul_i32 s43, s40, 6")
            e("    s_add_u32 s42, s42, s43")
            e("    v_mul_u32_u24 v27, 24, v2")
            e("    v_add_u32 v27, s42, v27")
            for i in range(3):
                e(f"    ds_read_u16 v{24+i}, v27 offset:{L_W+5120+2*i}")
            e("    s_mul_i32 s42, s40, 1536")
            e("    s_lshl_b32 s43, s41, 9")
            e("    s_add_u32 s42, s42, s43")
            e("    v_lshlrev_b32 v6, 5, v4")
            e(f"    v_lshl_add_u32 v6, v3, {4 if mfma else 3}, v6")
            e("    v_add_u32 v6, s42, v6")
            e("    s_lshl_b32 s43, s41, 7")
            e("    v_lshlrev_b32 v7, 3, v4")
            e("    v_add_u32 v7, s43, v7")
            e("    v_subrev_u32 v27, 192, v7")
            e("    v_min_u32 v7, v7, v27")
            e("    v_lshlrev_b32 v7, 2, v7")
            e("    v_and_b32 v27, 1, v3")
            e("    v_lshrrev_b32 v31, 1, v3")
            e("    v_lshl_add_u32 v31, v27, 1, v31")
            e("    v_lshlrev_b32 v31, 2, v31            ; i(row)*4")
            e("    s_lshl_b32 s42, s41, 6")
            e("    s_lshl_b32 s43, s40, 4")
            e("    s_add_u32 s42, s42, s43")
            e("    v_add_u32 v4, s42, v31")
            e("    s_lshl_b32 s42, s41, 8")
            e("    v_lshlrev_b32 v3, 2, v2")
            e("    v_add_u32 v3, s42, v3")
            if rep:
                e("    v_and_b32 v32, 48, v1                ; (lane&3)*16")
                e("    v_lshrrev_b32 v33, 2, v2")
                e(f"    v_mul_u32_u24 v33, {rep}, v33")
                e("    v_add_u32 v33, v33, v32")
            e("    s_waitcnt lgkmcnt(0)")
            for r in (24, 25, 26):
                e(f"    v_lshlrev_b32 v{r}, 16, v{r}")
    if mfma:
        e("    s_mov_b32 exec_hi, 0")
        e("    s_nop 7")
        e(f"    ds_write_b128 v6, v[8:11] offset:{L_M}")
        e("    s_mov_b32 exec_hi, -1")
    else:
        e("    s_nop 1")
        for i in range(4):
            e(f"    v_permlane32_swap_b32 v{8+i}, v{12+i}")
        for i in range(4):
            e(f"    v_add_f32 v{8+i}, v{8+i}, v{12+i}")
        e("    s_nop 0")
        e("    v_permlane16_swap_b32 v8, v10")
        e("    v_permlane16_swap_b32 v9, v11")
        e("    v_add_f32 v8, v8, v10")
        e("    v_add_f32 v9, v9, v11")
        e(f"    ds_write_b64 v6, v[8:9] offset:{L_M}")
    e("    s_waitcnt lgkmcnt(0)")
    e("    s_barrier")
    stamp(3)
    for k in range(4):
        e(f"    ds_read2st64_b32 v[{16+2*k}:{17+2*k}], v3 offset0:{6*k} offset1:{6*k+3}")
    e("    s_waitcnt lgkmcnt(2)" if not (diag or enc) else "    s_waitcnt lgkmcnt(0)")
    e("    v_pk_add_f32 v[16:17], v[16:17], v[18:19]")
    e("    s_waitcnt lgkmcnt(0)")
    e("    v_pk_add_f32 v[20:21], v[20:21], v[22:23]")
    e("    v_pk_add_f32 v[16:17], v[16:17], v[20:21]")
    e("    v_add_f32 v16, v16, v17")
    e("    v_mul_f32 v10, v16, v26")
    e("    v_mul_f32 v11, v16, v26")
    e("    v_mul_f32 v8, v16, v24")
    e("    v_mul_f32 v9, v16, v25")
    e("    v_permlane32_swap_b32 v10, v11")
    e("    s_nop 0")
    e("    v_permlane32_swap_b32 v8, v9")
    e("    v_add_f32 v10, v10, v11              ; [c | c]")
    e("    v_add_f32 v8, v8, v9                 ; [a | b]")
    e("    s_nop 1")
    e("    v_permlane16_swap_b32 v8, v10")
    e("    v_add_f32 v8, v8, v10                ; rows: a, c, b, c")
    e("    s_nop 1")
    e("    v_add_f32_dpp v9, v8, v8 row_shr:1 row_mask:0xf bank_mask:0xf bound_ctrl:0")
    e("    v_add_f32_dpp v9, v8, v9 row_shr:2 row_mask:0xf bank_mask:0xf bound_ctrl:0")
    e("    v_add_f32_dpp v9, v8, v9 row_shr:3 row_mask:0xf bank_mask:0xf bound_ctrl:0")
    e("    s_nop 1")
    e("    v_add_f32_dpp v9, v9, v9 row_shr:4 row_mask:0xf bank_mask:0xf bound_ctrl:0")
    e("    s_nop 1")
    e("    v_add_f32_dpp v9, v9, v9 row_shr:8 row_mask:0xf bank_mask:0xf bound_ctrl:0")
    e("    s_mov_b32 exec_lo, 0x80008000")
    e("    s_mov_b32 exec_hi, 0x00008000")
    e(f"    ds_write_b32 v4, v9 offset:{L_HP}")
    e("    s_mov_b64 exec, -1")
    e("    s_lshl_b32 s42, s2, 6")
    e("    s_cmp_lg_u32 s3, 4")
    e("    s_waitcnt lgkmcnt(0)")
    e("    s_barrier")
    e("    s_cbranch_scc1 L_notpub")
    if rep:
        e("    s_mov_b32 exec_hi, 0")
        e(f"    ds_read_b128 v[8:11], v32 offset:{L_HP}")
        e(f"    ds_read_b128 v[12:15], v32 offset:{L_HP+64}")
        e(f"    ds_read_b128 v[16:19], v32 offset:{L_HP+128}")
    else:
        e("    s_mov_b64 exec, 15")
        e(f"    ds_read_b128 v[8:11], v1 offset:{L_HP}")
        e(f"    ds_read_b128 v[12:15], v1 offset:{L_HP+64}")
        e(f"    ds_read_b128 v[16:19], v1 offset:{L_HP+128}")
    e("    s_waitcnt lgkmcnt(1)")
    e("    v_pk_add_f32 v[8:9], v[8:9], v[12:13]")
    e("    v_add_f32 v10, v10, v14")
    e("    s_waitcnt lgkmcnt(0)")
    e("    v_pk_add_f32 v[8:9], v[8:9], v[16:17]")
    e("    v_add_f32 v10, v10, v18")
    e("    v_bitop3_b32 v11, v8, v9, s29 bitop3:0x96")
    e("    v_xor_b32 v11, v11, v10")
    e(f"    buffer_store_dwordx4 v[8:11], v{33 if rep else 1}, s[24:27], s42 offen {pubf}")
    e("    s_mov_b64 exec, -1")
    stamp(7)
    e("    s_branch L_b3")
    e("L_notpub:")
    e("    s_cmp_lt_u32 s3, 4")
    e("    s_cbranch_scc1 L_poll_start")
    e("    s_cmp_gt_u32 s3, 7")
    e("    s_cbranch_scc1 L_poll_start" if np8 else "    s_cbranch_scc1 L_b3")
    e("    v_subrev_u32 v1, 320, v0")
    e("    v_lshlrev_b32 v21, 2, v1")
    e("    v_lshlrev_b32 v1, 1, v1")
    for r in range(12):
        e(f"    ds_read_u16 v{8+r}, v1 offset:{L_W+384*r}")
    e("    v_and_b32 v20, 15, v2")
    e("    v_lshlrev_b32 v20, 2, v20")
    e(f"    v_add_u32 v20, {L_P}, v20")
    e("    s_waitcnt lgkmcnt(0)")
    for r in range(12):
        e(f"    v_lshlrev_b32 v{8+r}, 16, v{8+r}")
    e("    s_barrier")
    e("    ds_read2_b32 v[22:23], v20 offset0:0 offset1:16")
    e("    ds_read2_b32 v[24:25], v20 offset0:32 offset1:48")
    if np8:
        e("    ds_read2_b32 v[26:27], v20 offset0:64 offset1:80")
        e("    ds_read2_b32 v[28:29], v20 offset0:96 offset1:112")
        e("    s_waitcnt lgkmcnt(2)")
        e("    v_pk_add_f32 v[22:23], v[22:23], v[24:25]")
        e("    s_waitcnt lgkmcnt(0)")
        e("    v_pk_add_f32 v[24:25], v[26:27], v[28:29]")
    else:
        e("    s_waitcnt lgkmcnt(0)")
    e("    v_pk_add_f32 v[22:23], v[22:23], v[24:25]")
    e("    v_add_f32 v22, v22, v23")
    e("    v_mul_f32 v22, 0x36800000, v22       ; * 2^-18")
    e("    v_cvt_pk_bf16_f32 v22, v22, v22")
    e("    v_lshlrev_b32 v22, 16, v22")
    e("    v_mul_f32 v23, 0xbfb8aa3b, v22       ; -log2e * x")
    e("    v_exp_f32 v23, v23")
    e("    s_nop 0")
    e("    v_add_f32 v23, 1.0, v23")
    e("    v_rcp_f32 v23, v23")
    e("    s_nop 0")
    e("    v_mul_f32 v22, v22, v23")
    e("    v_cvt_pk_bf16_f32 v22, v22, v22")
    e("    v_lshlrev_b32 v22, 16, v22")
    e("    s_nop 1")
    for r in range(12):
        a = 23 + (r % 3)
        op = "v_mul_f32_dpp" if r < 3 else "v_fmac_f32_dpp"
        e(f"    {op} v{a}, v22, v{8+r} row_newbcast:{r} row_mask:0xf bank_mask:0xf")
    e("    v_add_f32 v23, v23, v24")
    e("    v_add_f32 v23, v23, v25")
    e("    v_cvt_pk_bf16_f32 v23, v23, v23")
    e("    v_lshlrev_b32 v23, 16, v23")
    e("    v_mul_f32 v23, 0xbfb8aa3b, v23")
    e("    v_exp_f32 v23, v23")
    e("    s_nop 0")
    e("    v_add_f32 v23, 1.0, v23")
    e("    v_rcp_f32 v23, v23")
    e("    s_nop 0")
    e("    v_cvt_pk_bf16_f32 v23, v23, v23")
    e("    v_lshlrev_b32 v23, 16, v23")
    e(f"    ds_write_b32 v21, v23 offset:{L_G}")
    e("    s_waitcnt lgkmcnt(0)")
    e("    s_branch L_b4")

    e("L_poll_start:")
    NL = 2 if np8 else 4
    if np8:
        e("    s_sub_u32 s10, s3, 4")
        e("    s_cmp_lt_u32 s3, 4")
        e("    s_cselect_b32 s10, s3, s10")
        e("    s_lshl_b32 s42, s10, 11")
    else:
        e("    s_mov_b32 s10, s3")
        e("    s_lshl_b32 s42, s3, 12")
    if rep:
        e("    s_getreg_b32 s43, hwreg(HW_REG_XCC_ID)")
        e("    s_and_b32 s43, s43, 7")
        e(f"    s_mul_i32 s43, s43, {rep}")
        e("    s_add_u32 s42, s42, s43")
    e("    v_and_b32 v27, 3, v2")
    e("    v_mul_u32_u24 v27, 12, v27")
    e("    s_lshl_b32 s43, s10, 6")
    e("    v_add3_u32 v31, v31, v27, s43")
    regs = (8, 12, 16, 20)
    for k in range(NL):
        e(f"    s_mov_b64 s[{4+2*k}:{5+2*k}], -1")
    e("L_poll:")
    for k in range(NL):
        e(f"    s_mov_b64 exec, s[{4+2*k}:{5+2*k}]")
        e(f"    s_cbranch_execz L_skip{k}")
        e(f"    buffer_load_dwordx4 v[{regs[k]}:{regs[k]+3}], v1, s[24:27], s42 offen offset:{1024*k} {pollf}")
        e(f"L_skip{k}:")
    e("    s_mov_b64 exec, -1")
    e("    s_waitcnt vmcnt(0)")
    for k in range(NL):
        r = regs[k]
        e(f"    v_bitop3_b32 v{27+k}, v{r}, v{r+1}, s29 bitop3:0x96")
    for k in range(NL):
        r = regs[k]
        e(f"    v_bitop3_b32 v{27+k}, v{27+k}, v{r+2}, v{r+3} bitop3:0x96")
    for k in range(NL):
        e(f"    v_cmp_ne_u32 s[{4+2*k}:{5+2*k}], 0, v{27+k}")
    e("    s_or_b64 s[82:83], s[4:5], s[6:7]")
    if NL == 4:
        e("    s_or_b64 vcc, s[8:9], s[10:11]")
        e("    s_or_b64 s[82:83], s[82:83], vcc")
    e("    s_cbranch_scc0 L_poll_ok")
    e("    s_sub_u32 s31, s31, 1")
    e("    s_cbranch_scc1 L_poll_ok")
    if sleep:
        e(f"    s_sleep {sleep}")
    e("    s_branch L_poll")
    e("L_poll_ok:")
    stamp(7)
    if NL == 4:
        e("    v_add_f32 v10, v10, v14")
        e("    v_add_f32 v18, v18, v22")
        e("    v_pk_add_f32 v[8:9], v[8:9], v[12:13]")
        e("    v_pk_add_f32 v[16:17], v[16:17], v[20:21]")
        e("    v_add_f32 v11, v10, v18")
        e("    v_add_f32 v10, v10, v18")
        e("    v_pk_add_f32 v[8:9], v[8:9], v[16:17]")
    else:
        e("    v_add_f32 v11, v10, v14")
        e("    v_add_f32 v10, v10, v14")
        e("    v_pk_add_f32 v[8:9], v[8:9], v[12:13]")
    e("    s_nop 0")
    e("    v_permlane32_swap_b32 v10, v11")
    e("    v_permlane32_swap_b32 v8, v9")
    e("    v_add_f32 v10, v10, v11              ; [c | c]")
    e("    v_add_f32 v8, v8, v9                 ; [a | b]")
    e("    s_nop 1")
    e("    v_permlane16_swap_b32 v8, v10")
    e("    v_add_f32 v8, v8, v10                ; rows: a, c, b, c")
    e("    s_nop 1")
    e("    v_add_f32_dpp v8, v8, v8 row_shr:4 row_mask:0xf bank_mask:0xf bound_ctrl:0")
    e("    s_nop 1")
    e("    v_add_f32_dpp v8, v8, v8 row_shr:8 row_mask:0xf bank_mask:0xf bound_ctrl:0")
    e("    s_mov_b32 exec_lo, 0xf000f000")
    e("    s_mov_b32 exec_hi, 0x0000f000")
    e(f"    ds_write_b32 v31, v8 offset:{L_P}")
    e("    s_mov_b64 exec, -1")
    e("    s_waitcnt lgkmcnt(0)")
    if pg:
        e("    s_branch L_b3")
        if stub:
            e("L_stub:")
            e("    s_branch L_stub2")
        e(".p2align 12")
        if stub:
            e("L_stub2:")
            e("    s_branch L_stubret")
    e("L_b3:")
    e("    s_barrier")
    e("L_b4:")
    e("    s_barrier")
    e(f"    ds_read_b128 v[8:11], v7 offset:{L_G}")
    e(f"    ds_read_b128 v[12:15], v7 offset:{L_G+16}")

    cnt = [0]

    def scale_store(slot, first=False):
        t = 16 + 8 * (cnt[0] & 1)
        cnt[0] += 1
        if dot:
            if first:
                e("    s_waitcnt lgkmcnt(0)")
                stamp(5)
                for i in range(4):
                    e(f"    v_lshrrev_b32 v{8+2*i}, 16, v{8+2*i}     ; (g_lo, 0)")
            for i in range(4):
                d = dreg(slot) + i
                e(f"    v_dot2_f32_bf16 v{t+2*i}, v{d}, v{8+2*i}, 0")
                e(f"    v_dot2_f32_bf16 v{t+1+2*i}, v{d}, v{9+2*i}, 0")
            e("    s_nop 0")
            for i in range(4):
                d = dreg(slot) + i
                e(f"    v_cvt_pk_bf16_f32 v{d}, v{t+2*i}, v{t+1+2*i}")
            d = dreg(slot)
            e(f"    buffer_store_dwordx4 v[{d}:{d+3}], v5, s[20:23], s{SO+slot} offen{stf}")
            return
        for i in range(4):
            d = dreg(slot) + i
            e(f"    v_lshlrev_b32 v{t+2*i}, 16, v{d}")
            e(f"    v_and_b32 v{t+1+2*i}, s30, v{d}")
        if first:
            e("    s_waitcnt lgkmcnt(0)")
            stamp(5)
        for i in range(4):
            e(f"    v_pk_mul_f32 v[{t+2*i}:{t+1+2*i}], v[{t+2*i}:{t+1+2*i}], v[{8+2*i}:{9+2*i}]")
        for i in range(4):
            d = dreg(slot) + i
            e(f"    v_cvt_pk_bf16_f32 v{d}, v{t+2*i}, v{t+1+2*i}")
        d = dreg(slot)
        e(f"    buffer_store_dwordx4 v[{d}:{d+3}], v5, s[20:23], s{SO+slot} offen{stf}")

    sslots = []
    for pp in sorder:
        k = lorder.index(pp)
        sslots += [2 * k, 2 * k + 1]
    if fine:
        S_ = list(range(A0)); A_ = list(range(A0, 32))
        sslots = []
        si, ai = 0, 0
        for k in range(32):
            if (si < len(S_) and (si + 0.5) * len(A_) <= (ai + 0.5) * len(S_)) or ai >= len(A_):
                sslots.append(S_[si]); si += 1
            else:
                sslots.append(A_[ai]); ai += 1
        assert sorted(sslots) == list(range(32))
    for j in range(32):
        scale_store(sslots[j], first=(j == 0))
        if j == 1:
            e("    s_cmp_lg_u32 s2, 0")
            e("    s_cbranch_scc1 L_noep")
            e("    s_cmp_lg_u32 s3, 11")
            e("    s_cbranch_scc1 L_noep")
            e(f"    v_mov_b32 v1, {EPOCH}")
            e("    v_mov_b32 v3, s28")
            e("    s_mov_b64 exec, 1")
            e("    buffer_store_dword v3, v1, s[24:27], 0 offen sc1")
            if dbgout:
                e("    s_load_dwordx2 s[32:33], s[0:1], 32")
                e("    s_mov_b32 s34, 256")
                e("    s_mov_b32 s35, 0x00020000")
                e("    v_mov_b32 v2, s76")
                e("    v_mov_b32 v3, s89")
                e("    v_mov_b32 v1, 0")
                e("    s_waitcnt lgkmcnt(0)")
                e("    buffer_store_dwordx2 v[2:3], v1, s[32:35], 0 offen")
            e("    s_mov_b64 exec, -1")
            e("L_noep:")
        if sbar and (j + 1) % sbar == 0 and j != 31:
            e("    s_barrier")
    if enc:
        e("    s_waitcnt vmcnt(0)")
        stamp(6)
        e("    s_waitcnt lgkmcnt(0)")
        a, b = {1: (0, 0), 2: (0, 3), 3: (0, 5), 4: (5, 6), 5: (0, 6), 8: (0, 0), 9: (0, 0)}[enc]
        e(f"    s_sub_u32 s42, s{ST+2*smap[b]}, s{ST+2*smap[a]}")
        if enc == 8:
            e("    s_lshl_b32 s42, s101, 2")
        if enc == 9:
            e(f"    s_sub_u32 s42, s{ST+2*smap[6]}, s101")
        e("L_enc:")
        e("    s_memrealtime s[4:5]")
        e("    s_waitcnt lgkmcnt(0)")
        e(f"    s_sub_u32 s43, s4, s{ST+2*smap[6]}")
        e("    s_cmp_lt_u32 s43, s42")
        e("    s_cbranch_scc1 L_enc")
    if diag:
        e("    s_waitcnt vmcnt(0)")
        stamp(6)
        e("    s_waitcnt lgkmcnt(0)")
        e("    s_mul_i32 s42, s2, 12")
        e("    s_add_u32 s42, s42, s3")
        e("    s_lshl_b32 s42, s42, 7")
        e(f"    s_add_u32 s42, s42, {DIAG}")
        e("    v_mov_b32 v1, s42")
        e("    s_mov_b64 exec, 1")
        inv = {v: k for k, v in smap.items()}
        for k in range(6):
            e(f"    v_mov_b32 v16, s{ST+2*k}")
            e(f"    v_mov_b32 v17, s{ST+2*k+1}")
            e(f"    buffer_store_dwordx2 v[16:17], v1, s[24:27], 0 offen offset:{8*inv[k]}")
            e("    s_nop 2")
        e("    s_getreg_b32 s42, hwreg(HW_REG_XCC_ID)")
        e("    v_mov_b32 v16, s42")
        e("    v_mov_b32 v17, s31")
        e("    buffer_store_dwordx2 v[16:17], v1, s[24:27], 0 offen offset:88")
    e("L_exit:")
    e("    s_endpgm")
    e('.section .rodata,"a"')
    e(".p2align 6")
    e(f".amdhsa_kernel {NAME}")
    e("  .amdhsa_next_free_vgpr 168")
    e("  .amdhsa_next_free_sgpr 102")
    e("  .amdhsa_accum_offset 168")
    e("  .amdhsa_group_segment_fixed_size 0")
    e("  .amdhsa_kernarg_size 48")
    e("  .amdhsa_user_sgpr_count 2")
    e("  .amdhsa_user_sgpr_kernarg_segment_ptr 1")
    e("  .amdhsa_system_sgpr_workgroup_id_x 1")
    e("  .amdhsa_float_denorm_mode_32 3")
    e(".end_amdhsa_kernel")
    return "\n".join(o) + "\n"


if __name__ == "__main__":
    ap = argparse.ArgumentParser()
    ap.add_argument("-o", default="-")
    ap.add_argument("--ld", default="nt")
    ap.add_argument("--st", default="sc0 sc1")
    ap.add_argument("--diag", action="store_true")
    for name, dv in (("sleep", 0), ("sbar", 1), ("lvm", 3), ("ns", 8), ("pre", 9), ("pairs", 2), ("thr", 14), ("dbgout", 0),
                     ("enc", 0), ("sdiag", 0), ("tx", 0), ("to", 1), ("tstep", 7), ("wstep", 4), ("allpar", 0), ("mfma", 0), ("prio", 0), ("gw", 0), ("gd", 0), ("clk", 0), ("dot", 0), ("pg", 0), ("stub", 0), ("evw", -1), ("evs", 1), ("rep", 0), ("np8", 0), ("zr", 0), ("fine", 0), ("ow", 0), ("eve", 32), ("txs", -1), ("cpf", -1)):
        ap.add_argument("--" + name, type=int, default=dv)
    ap.add_argument("--pubf", default="sc1")
    ap.add_argument("--pollf", default="sc1")
    a = ap.parse_args()
    kw = vars(a).copy()
    out = kw.pop("o")
    s = gen(**kw)
    if out == "-":
        sys.stdout.write(s)
    else:
        open(out, "w").write(s)
```

```python
import sys, argparse

HEADER = """; Kernarg layout for this problem (48 bytes, ptrs only, base s[0:1]):
"""

DOC = """;
"""

NAME = "standalone__channel_attn_se__vision_kernel"
XBYTES = 100663296
MAGIC = 0x5BD1E995
MAGIC2 = 0x2C1B3C6D

L_M = 0
L_HP = 6144
L_P = 7488
L_G = 6656
L_DEC = 7424
L_W = 8192
LDS = 20480
VOTE = 262144
EPOCH = 270336
DIAG = 1 << 20
WS_BYTES = 2 << 20
SB = 49152
WIN = 128 * SB


def gen(ld="nt", st="sc0 sc1", diag=False, sleep=0, spin=400000, pubf="sc1", pollf="sc1", sbar=1,
        lvm=3, ns=8, pre=9, pairs=2, thr=14, dbgout=0, enc=0, sdiag=0, tx=0, to=1, tstep=7, wstep=4, allpar=0,
        mfma=0, prio=0, gw=0, gd=0, clk=0, dot=0, pg=0, stub=0, evw=-1, evs=1, rep=0, np8=0, zr=0, fine=0, ow=0, eve=32, txs=-1, cpf=-1, b2b=0, gpre=0, lead=0, oddp=70):
    o = []
    e = o.append
    ldf = (" " + ld) if ld else ""
    stf = (" " + st) if st else ""
    D0 = 40
    SO = 44
    ST = 90
    na = 16 - ns
    adaptive = [(15 - i // 2) if i % 2 == 0 else (9 - i // 2) for i in range(na)][::-1]
    static = [pp for pp in range(16) if pp not in adaptive]
    lorder = static + adaptive
    sorder = []
    si, ai = 0, 0
    for k in range(16):
        if (ai < na and (ai + 1) * 16 <= (k + 1) * na) or si >= len(static):
            sorder.append(adaptive[ai]); ai += 1
        else:
            sorder.append(static[si]); si += 1
    assert sorted(sorder) == list(range(16))
    region = lambda pp: 0 if pp < 10 else 1
    A0 = 2 * ns
    G = A0 - lvm - 1 + gd
    e(HEADER.rstrip())
    e(f"; @launch grid=(256,1,1) block=(768,1,1) lds={LDS}")
    e(DOC.rstrip())
    e('.amdgcn_target "amdgcn-amd-amdhsa--gfx950"')
    e(".text")
    e(f".globl {NAME}")
    e(".p2align 8")
    e(f".type {NAME},@function")
    e(f"{NAME}:")
    smap = {0: 0, 1: 1, 3: 2, 5: 3, 6: 4, 7: 5}

    def stamp(i, sd=False):
        if (clk or enc in (8, 9)) and i in (1, 7):
            return
        if clk and diag and i == (5 if clk == 1 else 0):
            e(f"    s_memtime s[{ST+2*smap[1]}:{ST+1+2*smap[1]}]")
        if clk and diag and i == (6 if clk == 1 else 3):
            e(f"    s_memtime s[{ST+2*smap[7]}:{ST+1+2*smap[7]}]")
        if sdiag and i in (1, 7) and not sd:
            return
        if sd and not sdiag:
            return
        if (diag or enc) and i in smap:
            k = smap[i]
            e(f"    s_memrealtime s[{ST+2*k}:{ST+1+2*k}]")

    def dreg(slot):
        return D0 + 4 * slot

    q = []

    def load(slot, track=True):
        d = dreg(slot)
        e(f"    buffer_load_dwordx4 v[{d}:{d+3}], v5, s[16:19], s{SO+slot} offen{ldf}")
        if track:
            q.append(slot)

    def soff(k, pp, u):
        b = 84 if ((pp ^ u) & 1) else 82
        e(f"    s_add_u32 s{SO+2*k}, s{b}, {pp*WIN}")
        e(f"    s_add_u32 s{SO+2*k+1}, s{b+1}, {pp*WIN}")

    us = []
    seen = [0, 0]
    for pp in lorder:
        us.append(seen[region(pp)] & 1)
        seen[region(pp)] += 1

    e("    s_cmp_ge_u32 s2, 256")
    e("    s_cbranch_scc1 L_exit")
    if enc in (8, 9):
        e("    s_memrealtime s[98:99]")
        e("    s_waitcnt lgkmcnt(0)")
        e("    s_mov_b32 s11, s98")
    e("    s_load_dwordx2 s[16:17], s[0:1], 0       ; x")
    e("    s_load_dwordx2 s[20:21], s[0:1], 24      ; out")
    e("    s_load_dwordx2 s[24:25], s[0:1], 40      ; ws")
    e("    s_load_dwordx4 s[12:15], s[0:1], 8")
    if diag or enc:
        for i in range(6):
            e(f"    s_mov_b64 s[{ST+2*i}:{ST+1+2*i}], 0")
    stamp(0)
    e("    v_lshrrev_b32 v1, 6, v0")
    e("    v_and_b32 v2, 63, v0                 ; lane")
    e("    v_readfirstlane_b32 s3, v1")
    e("    v_lshrrev_b32 v3, 4, v2              ; q (row)")
    e("    v_and_b32 v4, 15, v2                 ; n")
    e("    v_mul_u32_u24 v5, 768, v3")
    e("    s_mul_i32 s40, s3, 11")
    e("    s_lshr_b32 s40, s40, 5")
    e("    s_mul_i32 s41, s40, 3")
    e("    s_sub_u32 s41, s3, s41               ; seg = wave%3")
    e("    s_lshl_b32 s43, s41, 8")
    e("    v_lshl_add_u32 v5, v4, 4, v5")
    e("    v_add_u32 v5, s43, v5                ; v5 = q*768 + seg*256 + n*16")
    e("    s_mov_b32 s18, %d" % XBYTES)
    e("    s_mov_b32 s19, 0x00020000")
    e("    s_lshr_b32 s42, s2, 3")
    e("    s_and_b32 s43, s2, 3")
    e("    s_lshl2_add_u32 s42, s42, s43")
    e(f"    s_mul_i32 s76, s42, {SB}")
    e("    s_mul_i32 s78, s40, 6144")
    e("    s_add_u32 s78, s78, s76              ; half 0, t0")
    e("    s_add_u32 s80, s78, 24576            ; half 1, t0")
    e("    s_bitcmp1_b32 s2, 2")
    e("    s_cselect_b32 s82, s80, s78")
    e("    s_add_u32 s83, s82, 3072")
    for k in range(2):
        e(f"    s_add_u32 s{SO+2*k}, s82, {lorder[k]*WIN}")
        e(f"    s_add_u32 s{SO+2*k+1}, s83, {lorder[k]*WIN}")
    assert lvm <= 4
    e("    s_waitcnt lgkmcnt(0)")
    if enc == 8:
        e("    s_memrealtime s[98:99]")
        e("    s_waitcnt lgkmcnt(0)")
        e("    s_sub_u32 s101, s98, s11")
    if enc == 9:
        e("    s_mov_b32 s101, s11")
    for s in range(lvm):
        load(s)
    stamp(1, True)
    for k in range(2, 16):
        e(f"    s_add_u32 s{SO+2*k}, s82, {lorder[k]*WIN}")
        e(f"    s_add_u32 s{SO+2*k+1}, s83, {lorder[k]*WIN}")
    e("    s_mov_b32 s22, %d" % XBYTES)
    e("    s_mov_b32 s23, 0x00020000")
    e("    s_mov_b32 s26, %d" % WS_BYTES)
    e("    s_mov_b32 s27, 0x00020000")
    e("    s_mov_b32 s30, 0xffff0000")
    e("    s_mov_b32 s31, %d" % spin)
    e(f"    s_mov_b32 s87, {VOTE}")
    e("    s_mov_b32 s86, 0")
    if evw >= 0:
        e("    s_getreg_b32 s11, hwreg(HW_REG_XCC_ID)")
    e("    s_cmp_gt_u32 s3, 3")
    e("    s_cbranch_scc1 L_norole")
    e("    s_cmp_eq_u32 s3, 0")
    e("    s_cbranch_scc1 L_wave0")
    e("    s_cmp_eq_u32 s3, 3")
    e("    s_cbranch_scc1 L_wave3")
    if tx:
        e("    s_lshr_b32 s42, s2, 3")
        e("    s_and_b32 s43, s42, 15")
        e("    s_add_u32 s43, s43, 32")
        e("    s_cmp_eq_u32 s3, 1")
        e("    s_cselect_b32 s42, s42, s43")
        e("    s_lshl_b32 s42, s42, 21")
        e("    s_load_dword s4, s[16:17], s42")
    e("    s_branch L_norole")
    e("L_wave3:")
    e("    s_load_dword s4, s[12:13], 0")
    e("    s_load_dword s5, s[14:15], 0")
    e("    s_branch L_norole")
    e("L_wave0:")
    if lead:
        e("    s_memrealtime s[10:11]")
    e(f"    s_load_dword s28, s[24:25], {EPOCH}")
    if zr == 1:
        e("    v_and_b32 v36, 3, v2")
        e("    v_lshlrev_b32 v36, 4, v36")
        e("    v_lshrrev_b32 v37, 2, v2")
        e(f"    v_mul_u32_u24 v37, {rep}, v37")
        e("    v_add_u32 v36, v36, v37")
        for i in range(4):
            e(f"    v_mov_b32 v{32+i}, 0")
        e("    s_lshl_b32 s42, s2, 6")
        e("    s_mov_b32 exec_hi, 0")
        e("    buffer_store_dwordx4 v[32:35], v36, s[24:27], s42 offen sc1")
        e("    s_mov_b32 exec_hi, -1")
    e("    s_getreg_b32 s89, hwreg(HW_REG_XCC_ID)")
    e("    s_and_b32 s89, s89, 7")
    e("    s_mov_b32 s38, 0")
    e("    s_mov_b32 s86, 2")
    e("    s_bitcmp1_b32 s89, 0")
    e("    s_cbranch_scc1 L_pubvote0" if zr == 1 else "    s_cbranch_scc1 L_pubvote")
    e("    s_mov_b32 s86, 1")
    e("    s_bfe_u32 s42, s2, 0x10006")
    e("    s_add_u32 s42, s42, 1")
    e(f"    s_mul_i32 s42, s42, {40<<20}")
    e("    s_bfe_u32 s43, s2, 0x30003")
    e("    s_lshl_b32 s43, s43, 21")
    e("    s_add_u32 s42, s42, s43")
    e("    s_lshr_b32 s43, s2, 7")
    e("    s_lshl_b32 s43, s43, 19")
    e("    s_add_u32 s42, s42, s43")
    e("    s_and_b32 s43, s2, 7")
    e("    s_lshl_b32 s43, s43, 16")
    e("    s_add_u32 s42, s42, s43")
    e("    s_and_b32 s43, s20, 0xffe00000")
    e("    s_add_u32 s6, s43, s42")
    e("    s_addc_u32 s7, s21, 0")
    e("    s_load_dword s4, s[6:7], 4096")
    for sl in range(lvm, pre):
        load(sl, track=False)
    e("    s_waitcnt lgkmcnt(0)")
    offs = [0, 8192, 24576 + 256, 16384 + 256, 32768 + 512, 40960 + 512][:2 * pairs]
    e("    s_memtime s[32:33]")
    e("    s_waitcnt lgkmcnt(0)")
    for i, of in enumerate(offs):
        a_, b_ = (32, 34) if i % 2 == 0 else (34, 32)
        e(f"    s_load_dword s4, s[6:7], {of}")
        e("    s_waitcnt lgkmcnt(0)")
        e(f"    s_memtime s[{b_}:{b_+1}]")
        e("    s_waitcnt lgkmcnt(0)")
        e(f"    s_sub_u32 s{8+(i&1)}, s{b_}, s{a_}")
        if i % 2 == 1:
            e("    s_cmp_gt_u32 s9, s8" if (i // 2) % 2 == 0 else "    s_cmp_gt_u32 s8, s9")
            e("    s_cselect_b32 s39, 16, -16")
            e("    s_add_i32 s38, s38, s39")
    e("    s_lshr_b32 s42, s2, 1")
    e("    s_xor_b32 s42, s42, s89")
    e("    s_sub_i32 s39, 0, s38")
    e("    s_bitcmp1_b32 s42, 2")
    e("    s_cselect_b32 s38, s39, s38")
    if zr == 1:
        e(f"    s_waitcnt vmcnt({pre-lvm})")
        e("    s_branch L_pubvote")
        e("L_pubvote0:")
        e("    s_waitcnt vmcnt(0)")
    e("L_pubvote:")
    e("    s_waitcnt lgkmcnt(0)")
    e("    s_or_b32 s38, s38, s89")
    if lead:
        e("    s_and_b32 s38, s38, 0xff")
        e("    s_and_b32 s42, s89, 1")
        e(f"    s_mul_i32 s42, s42, {oddp}")
        e("    s_add_u32 s42, s42, s10")
        e("    s_lshl_b32 s42, s42, 16")
        e("    s_or_b32 s38, s38, s42")
    e("    s_add_u32 s39, s28, 1")
    e("    s_xor_b32 s39, s39, 0x%08x" % MAGIC2)
    e("    s_xor_b32 s39, s39, s38")
    e("    s_lshl_b32 s42, s2, 3")
    e("    v_mov_b32 v32, s38")
    e("    v_mov_b32 v33, s39")
    e("    v_mov_b32 v34, s42")
    e("    s_mov_b64 exec, 1")
    e("    buffer_store_dwordx2 v[32:33], v34, s[24:27], s87 offen sc1")
    e("    s_mov_b64 exec, -1")
    e("L_norole:")
    if mfma:
        e("    v_and_b32 v16, 1, v4")
        e("    v_lshlrev_b32 v16, 4, v16")
        e("    v_mov_b32 v17, 0x3f80")
        e("    v_lshlrev_b32 v16, v16, v17          ; 0x3f80 << 16*(n&1)")
        e("    v_lshrrev_b32 v17, 1, v4             ; n>>1")
        for d in range(4):
            e(f"    v_cmp_eq_u32 vcc, {d}, v17")
            e(f"    v_mov_b32 v{8+d}, 0")
            e("    s_nop 0")
            e(f"    v_cndmask_b32 v{12+d}, 0, v16, vcc")
    e("    v_lshlrev_b32 v1, 4, v2              ; lane*16")

    def acc(slot):
        d = dreg(slot)
        if mfma:
            e(f"    v_mfma_f32_16x16x32_bf16 v[8:11], v[12:15], v[{d}:{d+3}], v[8:11]")
            return
        for i in range(4):
            if slot == 0:
                e(f"    v_lshlrev_b32 v{8+2*i}, 16, v{d+i}")
                e(f"    v_and_b32 v{9+2*i}, s30, v{d+i}")
            else:
                e(f"    v_lshlrev_b32 v{16+2*i}, 16, v{d+i}")
                e(f"    v_and_b32 v{17+2*i}, s30, v{d+i}")
        if slot:
            for i in range(4):
                e(f"    v_pk_add_f32 v[{8+2*i}:{9+2*i}], v[{8+2*i}:{9+2*i}], v[{16+2*i}:{17+2*i}]")

    for j in range(32):
        younger = len(q) - 1 - q.index(j)
        e(f"    s_waitcnt vmcnt({younger})")
        if j == sdiag - 1:
            stamp(7, True)
        if j == A0 - lvm:
            e("    s_waitcnt lgkmcnt(0)")
            e("    s_add_u32 s28, s28, 1                ; epoch + 1")
            e("    s_xor_b32 s29, s28, 0x%08x           ; tag key" % MAGIC)
            e(f"    s_cmp_lg_u32 s3, {gw}")
            e("    s_cbranch_scc1 L_decbar")
            e("    s_xor_b32 s88, s28, 0x%08x           ; vote key" % MAGIC2)
            if gd:
                e(f"    s_waitcnt vmcnt({max(0, lvm - gd)})")
            e("L_vchk:")
            e("    v_bitop3_b32 v28, v32, v33, s88 bitop3:0x96")
            e("    v_bitop3_b32 v29, v34, v35, s88 bitop3:0x96")
            e("    v_bitop3_b32 v30, v36, v37, s88 bitop3:0x96")
            e("    v_bitop3_b32 v27, v38, v39, s88 bitop3:0x96")
            e("    v_or3_b32 v28, v28, v29, v30")
            e("    v_or_b32 v28, v28, v27")
            e("    v_cmp_ne_u32 vcc, 0, v28")
            e("    s_cbranch_vccz L_vok")
            e("    s_sub_u32 s31, s31, 1")
            e("    s_cbranch_scc1 L_vok")
            e("    buffer_load_dwordx4 v[32:35], v1, s[24:27], s87 offen sc1")
            e("    buffer_load_dwordx4 v[36:39], v1, s[24:27], s87 offen offset:1024 sc1")
            e("    s_waitcnt vmcnt(0)")
            e("    s_branch L_vchk")
            e("L_vok:")
            e("    s_and_b32 s42, s2, 0x7b")
            e("    s_lshr_b32 s42, s42, 1")
            e("    v_readlane_b32 s4, v32, s42")
            e("    v_readlane_b32 s5, v34, s42")
            e("    v_readlane_b32 s6, v36, s42")
            e("    v_readlane_b32 s7, v38, s42")
            if lead:
                e("    s_and_b32 s43, s2, 0x7f")
                e("    s_lshr_b32 s43, s43, 1")
                e("    v_readlane_b32 s8, v32, s43")
                e("    v_readlane_b32 s9, v34, s43")
                e("    v_readlane_b32 s10, v36, s43")
                e("    v_readlane_b32 s11, v38, s43")
                e("    s_bitcmp1_b32 s2, 0")
                e("    s_cselect_b32 s8, s9, s8")
                e("    s_cselect_b32 s10, s11, s10")
                e("    s_bitcmp1_b32 s2, 7")
                e("    s_cselect_b32 s8, s10, s8")
                e("    v_subrev_u32 v33, s8, v32")
                e("    v_subrev_u32 v35, s8, v34")
                e("    v_subrev_u32 v37, s8, v36")
                e("    v_subrev_u32 v39, s8, v38")
                e("    v_max3_i32 v33, v33, v35, v37")
                e("    v_max_i32 v33, v33, v39")
                e(f"    v_cmp_lt_i32 vcc, {lead << 16}, v33")
                e("    v_bfe_i32 v28, v32, 4, 4")
                e("    v_bfe_i32 v29, v34, 4, 4")
                e("    v_bfe_i32 v30, v36, 4, 4")
                e("    v_bfe_i32 v27, v38, 4, 4")
                e("    s_bcnt1_i32_b64 s9, vcc")
            else:
                e("    v_ashrrev_i32 v28, 4, v32")
                e("    v_ashrrev_i32 v29, 4, v34")
                e("    v_ashrrev_i32 v30, 4, v36")
                e("    v_ashrrev_i32 v27, 4, v38")
            e("    v_add3_u32 v28, v28, v29, v30")
            e("    v_add_u32 v28, v28, v27")
            e("    s_bitcmp1_b32 s2, 0")
            e("    s_cselect_b32 s4, s5, s4")
            e("    s_cselect_b32 s6, s7, s6")
            e("    s_bitcmp1_b32 s2, 7")
            e("    s_cselect_b32 s4, s6, s4")
            if lead:
                e("    s_and_b32 s4, s4, 7")
                e("    s_cmp_ge_u32 s9, 8")
                e("    s_cselect_b32 s9, 8, 0")
                e("    s_or_b32 s4, s4, s9")
            for sh in (1, 2, 4, 8):
                e("    s_nop 1")
                e(f"    v_add_u32_dpp v28, v28, v28 row_shr:{sh} row_mask:0xf bank_mask:0xf bound_ctrl:0")
            e("    s_nop 1")
            e("    v_add_u32_dpp v28, v28, v28 row_bcast:15 row_mask:0xa bank_mask:0xf")
            e("    v_lshrrev_b32 v30, 3, v2")
            e("    v_and_b32 v30, 4, v30                ; (lane>=32)*4")
            e("    v_mov_b32 v29, s4")
            e("    s_mov_b32 exec_lo, 0x80000000")
            e("    s_mov_b32 exec_hi, 0x80000000")
            e(f"    ds_write_b32 v30, v28 offset:{L_DEC}")
            e(f"    ds_write_b32 v30, v29 offset:{L_DEC+8}")
            e("    s_mov_b64 exec, -1")
            e("    s_waitcnt lgkmcnt(0)")
            stamp(1)
            e("L_decbar:")
            e("    s_barrier")
            e("    v_mov_b32 v28, 0")
            e(f"    ds_read_b96 v[28:30], v28 offset:{L_DEC}")
            e("    s_waitcnt lgkmcnt(0)")
            e("    v_readfirstlane_b32 s4, v28")
            e("    v_readfirstlane_b32 s5, v29")
            e("    v_readfirstlane_b32 s6, v30")
            if lead:
                e("    s_mov_b32 s11, s6")
            if dbgout:
                e("    s_mov_b32 s76, s4")
                e("    s_mov_b32 s89, s5")
            if allpar:
                e("    s_xor_b32 s42, s16, s20")
                e("    s_lshr_b32 s42, s42, 12")
                e("    s_or_b32 s42, s42, s6")
                e("    s_bitcmp1_b32 s42, 0")
            else:
                e("    s_bitcmp1_b32 s6, 0")
            e("    s_cbranch_scc0 L_nodec")
            e("    s_xor_b32 s77, s77, s6")
            for r in range(2):
                wins = [(k, pp) for k, pp in enumerate(lorder) if pp in adaptive and region(pp) == r]
                if not wins:
                    continue
                e(f"    s_abs_i32 s42, s{4+r}")
                e(f"    s_cmp_lt_u32 s42, {thr}")
                e(f"    s_cbranch_scc1 L_keep{r}")
                e(f"    s_lshr_b32 s42, s{4+r}, 29")
                e("    s_xor_b32 s42, s42, s77")
                e("    s_bitcmp1_b32 s42, 2")
                e("    s_cselect_b32 s82, s80, s78")
                e("    s_cselect_b32 s83, s81, s79")
                e("    s_cselect_b32 s84, s78, s80")
                e("    s_cselect_b32 s85, s79, s81")
                for k, pp in wins:
                    soff(k, pp, 0)
                e(f"L_keep{r}:")
            e("L_nodec:")
        if ow and j + lvm == 32 - ow:
            for k in range(32 - ow, 32):
                load(k)
        if j + lvm < 32 - ow:
            k = j + lvm
            if evw >= 0 and k >= pre and (k % evs == 0) and k < eve:
                e("    s_bitcmp1_b32 s11, 0")
                e(f"    s_cbranch_scc1 L_ev{k}")
                e(f"    s_waitcnt vmcnt({evw})")
                e(f"L_ev{k}:")
            if lead and k > A0 and k < eve:
                e("    s_bitcmp0_b32 s11, 3")
                e(f"    s_cbranch_scc1 L_ld{k}")
                e(f"    s_waitcnt vmcnt({lvm-2})")
                e(f"L_ld{k}:")
            if k < pre:
                e("    s_cmp_eq_u32 s86, 1")
                e(f"    s_cbranch_scc1 L_sk{k}")
                load(k)
                e(f"L_sk{k}:")
            else:
                load(k)
            if k == G:
                e(f"    s_cmp_lg_u32 s3, {gw}")
                e("    s_cbranch_scc1 L_nog")
                e("    buffer_load_dwordx4 v[32:35], v1, s[24:27], s87 offen sc1")
                e("    buffer_load_dwordx4 v[36:39], v1, s[24:27], s87 offen offset:1024 sc1")
                e("L_nog:")
        acc(j)
        if j == wstep:
            e("    s_cmp_lt_u32 s3, 5")
            e("    s_cselect_b32 s36, s14, s12")
            e("    s_cselect_b32 s37, s15, s13")
            e("    s_cselect_b32 s42, 0, 5120")
            e("    s_mov_b32 s38, 4608")
            e("    s_mov_b32 s39, 0x00020000")
            e("    s_lshl_b32 s43, s3, 10")
            e(f"    s_add_u32 m0, s43, {L_W}")
            e("    s_sub_u32 s43, s43, s42")
            e("    buffer_load_dwordx4 v1, s[36:39], s43 offen lds")
        if j == 8:
            e("    s_and_b32 s42, s20, 0x1fffff")
            e("    s_add_u32 s43, s42, 1536")
            e("    s_lshr_b32 s43, s43, 10              ; c")
            e("    s_lshl_b32 s78, s40, 1")
            e("    s_sub_u32 s78, s78, s43              ; u - c (u = 2*grp)")
            e("    s_mul_i32 s78, s78, 11")
            e("    s_add_u32 s79, s78, 11")
            e("    s_and_b32 s78, s78, 15")
            e("    s_and_b32 s79, s79, 15")
            e("    s_xor_b32 s80, s78, 8")
            e("    s_xor_b32 s81, s79, 8")
            for r in (78, 79, 80, 81):
                e(f"    s_mul_i32 s{r}, s{r}, 3072")
                e(f"    s_add_u32 s{r}, s{r}, s76")
            e("    s_add_u32 s77, s76, 24576")
            e("    s_add_u32 s77, s77, s42")
            e("    s_lshr_b32 s77, s77, 19")
            e("    s_xor_b32 s77, s77, s2")
        if zr >= 2 and j == zr:
            e("    s_cmp_lg_u32 s3, 4")
            e("    s_cbranch_scc1 L_nozr")
            e("    v_and_b32 v36, 48, v1")
            e("    v_lshrrev_b32 v37, 2, v2")
            e(f"    v_mul_u32_u24 v37, {rep}, v37")
            e("    v_add_u32 v36, v36, v37")
            for i in range(4):
                e(f"    v_mov_b32 v{32+i}, 0")
            e("    s_lshl_b32 s42, s2, 6")
            e("    s_mov_b32 exec_hi, 0")
            e("    buffer_store_dwordx4 v[32:35], v36, s[24:27], s42 offen sc1")
            e("    s_mov_b32 exec_hi, -1")
            e("L_nozr:")
        if j == cpf:
            e("    s_cmp_lg_u32 s3, 6")
            e("    s_cbranch_scc1 L_nocpf")
            e("    s_getpc_b64 s[8:9]")
            e("L_pcbase:")
            e("    v_lshlrev_b32 v36, 7, v2")
            e("    v_mov_b32 v37, L_exit-L_pcbase")
            e("    v_min_u32 v38, v36, v37")
            e("    global_load_dword v39, v38, s[8:9]")
            e("    v_add_u32 v36, 8192, v36")
            e("    v_min_u32 v38, v36, v37")
            e("    global_load_dword v39, v38, s[8:9]")
            e("L_nocpf:")
        if gpre and j == 21:
            e("    s_sub_u32 s42, s3, 5")
            e("    s_cmp_gt_u32 s42, 2")
            e("    s_cbranch_scc1 L_nogpre")
            e("    v_subrev_u32 v39, 320, v0")
            e("    v_lshlrev_b32 v31, 2, v39")
            e("    v_lshlrev_b32 v39, 1, v39")
            for r in range(12):
                e(f"    ds_read_u16 v{27+r}, v39 offset:{L_W+384*r}")
            e("    s_waitcnt lgkmcnt(0)")
            for r in range(12):
                e(f"    v_lshlrev_b32 v{27+r}, 16, v{27+r}")
            e("    v_and_b32 v39, 15, v2")
            e("    v_lshlrev_b32 v39, 2, v39")
            e(f"    v_add_u32 v39, {L_P}, v39")
            e("L_nogpre:")
        if j == txs:
            e("    s_sub_u32 s42, s3, 1")
            e("    s_cmp_gt_u32 s42, 1")
            e("    s_cbranch_scc1 L_notx")
            e("    s_lshr_b32 s42, s2, 3")
            e("    s_and_b32 s43, s42, 15")
            e("    s_add_u32 s43, s43, 32")
            e("    s_cmp_eq_u32 s3, 1")
            e("    s_cselect_b32 s42, s42, s43")
            e("    s_lshl_b32 s42, s42, 21")
            e("    s_load_dword s10, s[16:17], s42")
            e("L_notx:")
        if j == tstep:
            e(f"    s_load_dword s28, s[24:25], {EPOCH}")
            if to:
                e("    s_cmp_gt_u32 s3, 2")
                e("    s_cbranch_scc1 L_noto")
                e("    s_lshr_b32 s42, s2, 3")
                e("    s_and_b32 s43, s42, 15")
                e("    s_add_u32 s43, s43, 32")
                e("    s_cmp_eq_u32 s3, 1")
                e("    s_cselect_b32 s42, s42, s43")
                e("    s_lshl_b32 s42, s42, 21")
                e("    s_load_dword s10, s[20:21], s42")
                e("L_noto:")
        if stub and j == stub:
            e("    s_cmp_eq_u32 s3, 5")
            e("    s_cbranch_scc1 L_stub")
            e("L_stubret:")
        if j == 18:
            e("    s_mul_i32 s42, s41, 1536")
            e("    s_mul_i32 s43, s40, 6")
            e("    s_add_u32 s42, s42, s43")
            e("    v_mul_u32_u24 v27, 24, v2")
            e("    v_add_u32 v27, s42, v27")
            for i in range(3):
                e(f"    ds_read_u16 v{24+i}, v27 offset:{L_W+5120+2*i}")
            e("    s_mul_i32 s42, s40, 1536")
            e("    s_lshl_b32 s43, s41, 9")
            e("    s_add_u32 s42, s42, s43")
            e("    v_lshlrev_b32 v6, 5, v4")
            e(f"    v_lshl_add_u32 v6, v3, {4 if mfma else 3}, v6")
            e("    v_add_u32 v6, s42, v6")
            e("    s_lshl_b32 s43, s41, 7")
            e("    v_lshlrev_b32 v7, 3, v4")
            e("    v_add_u32 v7, s43, v7")
            e("    v_subrev_u32 v27, 192, v7")
            e("    v_min_u32 v7, v7, v27")
            e("    v_lshlrev_b32 v7, 2, v7")
            e("    v_and_b32 v27, 1, v3")
            e("    v_lshrrev_b32 v31, 1, v3")
            e("    v_lshl_add_u32 v31, v27, 1, v31")
            e("    v_lshlrev_b32 v31, 2, v31            ; i(row)*4")
            e("    s_lshl_b32 s42, s41, 6")
            e("    s_lshl_b32 s43, s40, 4")
            e("    s_add_u32 s42, s42, s43")
            e("    v_add_u32 v4, s42, v31")
            e("    s_lshl_b32 s42, s41, 8")
            e("    v_lshlrev_b32 v3, 2, v2")
            e("    v_add_u32 v3, s42, v3")
            if rep:
                e("    v_and_b32 v32, 48, v1                ; (lane&3)*16")
                e("    v_lshrrev_b32 v33, 2, v2")
                e(f"    v_mul_u32_u24 v33, {rep}, v33")
                e("    v_add_u32 v33, v33, v32")
            e("    s_waitcnt lgkmcnt(0)")
            for r in (24, 25, 26):
                e(f"    v_lshlrev_b32 v{r}, 16, v{r}")
            for r in (24, 25, 26):
                e(f"    v_mul_f32 v{r}, 0x36800000, v{r}       ; * 2^-18 = 1/(H*W), exact")
    if mfma:
        e("    s_mov_b32 exec_hi, 0")
        e("    s_nop 7")
        e(f"    ds_write_b128 v6, v[8:11] offset:{L_M}")
        e("    s_mov_b32 exec_hi, -1")
    else:
        e("    s_nop 1")
        for i in range(4):
            e(f"    v_permlane32_swap_b32 v{8+i}, v{12+i}")
        for i in range(4):
            e(f"    v_add_f32 v{8+i}, v{8+i}, v{12+i}")
        e("    s_nop 0")
        e("    v_permlane16_swap_b32 v8, v10")
        e("    v_permlane16_swap_b32 v9, v11")
        e("    v_add_f32 v8, v8, v10")
        e("    v_add_f32 v9, v9, v11")
        e(f"    ds_write_b64 v6, v[8:9] offset:{L_M}")
    e("    s_waitcnt lgkmcnt(0)")
    e("    s_barrier")
    stamp(3)
    for k in range(4):
        e(f"    ds_read2st64_b32 v[{16+2*k}:{17+2*k}], v3 offset0:{6*k} offset1:{6*k+3}")
    e("    s_waitcnt lgkmcnt(2)" if not (diag or enc) else "    s_waitcnt lgkmcnt(0)")
    e("    v_pk_add_f32 v[16:17], v[16:17], v[18:19]")
    e("    s_waitcnt lgkmcnt(0)")
    e("    v_pk_add_f32 v[20:21], v[20:21], v[22:23]")
    e("    v_pk_add_f32 v[16:17], v[16:17], v[20:21]")
    e("    v_add_f32 v16, v16, v17")
    e("    v_mul_f32 v10, v16, v26")
    e("    v_mul_f32 v11, v16, v26")
    e("    v_mul_f32 v8, v16, v24")
    e("    v_mul_f32 v9, v16, v25")
    e("    v_permlane32_swap_b32 v10, v11")
    e("    s_nop 0")
    e("    v_permlane32_swap_b32 v8, v9")
    e("    v_add_f32 v10, v10, v11              ; [c | c]")
    e("    v_add_f32 v8, v8, v9                 ; [a | b]")
    e("    s_nop 1")
    e("    v_permlane16_swap_b32 v8, v10")
    e("    v_add_f32 v8, v8, v10                ; rows: a, c, b, c")
    e("    s_nop 1")
    e("    v_add_f32_dpp v9, v8, v8 row_shr:1 row_mask:0xf bank_mask:0xf bound_ctrl:0")
    for sh in (2, 4, 8):
        e("    s_nop 1")
        e(f"    v_add_f32_dpp v9, v9, v9 row_shr:{sh} row_mask:0xf bank_mask:0xf bound_ctrl:0")
    e("    s_mov_b32 exec_lo, 0x80008000")
    e("    s_mov_b32 exec_hi, 0x00008000")
    e(f"    ds_write_b32 v4, v9 offset:{L_HP}")
    e("    s_mov_b64 exec, -1")
    e("    s_lshl_b32 s42, s2, 6")
    e("    s_cmp_lg_u32 s3, 4")
    e("    s_waitcnt lgkmcnt(0)")
    e("    s_barrier")
    e("    s_cbranch_scc1 L_notpub")
    if rep:
        e("    s_mov_b32 exec_hi, 0")
        e(f"    ds_read_b128 v[8:11], v32 offset:{L_HP}")
        e(f"    ds_read_b128 v[12:15], v32 offset:{L_HP+64}")
        e(f"    ds_read_b128 v[16:19], v32 offset:{L_HP+128}")
    else:
        e("    s_mov_b64 exec, 15")
        e(f"    ds_read_b128 v[8:11], v1 offset:{L_HP}")
        e(f"    ds_read_b128 v[12:15], v1 offset:{L_HP+64}")
        e(f"    ds_read_b128 v[16:19], v1 offset:{L_HP+128}")
    e("    s_waitcnt lgkmcnt(1)")
    e("    v_pk_add_f32 v[8:9], v[8:9], v[12:13]")
    e("    v_add_f32 v10, v10, v14")
    e("    s_waitcnt lgkmcnt(0)")
    e("    v_pk_add_f32 v[8:9], v[8:9], v[16:17]")
    e("    v_add_f32 v10, v10, v18")
    e("    v_bitop3_b32 v11, v8, v9, s29 bitop3:0x96")
    e("    v_xor_b32 v11, v11, v10")
    e(f"    buffer_store_dwordx4 v[8:11], v{33 if rep else 1}, s[24:27], s42 offen {pubf}")
    e("    s_mov_b64 exec, -1")
    stamp(7)
    if b2b:
        e("    s_barrier")
    e("    s_branch L_b3")
    e("L_notpub:")
    if b2b:
        e("    s_barrier")
    e("    s_cmp_lt_u32 s3, 4")
    e("    s_cbranch_scc1 L_poll_start")
    e("    s_cmp_gt_u32 s3, 7")
    e("    s_cbranch_scc1 L_poll_start" if np8 else "    s_cbranch_scc1 L_b3")
    if not gpre:
        e("    v_subrev_u32 v1, 320, v0")
        e("    v_lshlrev_b32 v21, 2, v1")
        e("    v_lshlrev_b32 v1, 1, v1")
        for r in range(12):
            e(f"    ds_read_u16 v{8+r}, v1 offset:{L_W+384*r}")
        e("    v_and_b32 v20, 15, v2")
        e("    v_lshlrev_b32 v20, 2, v20")
        e(f"    v_add_u32 v20, {L_P}, v20")
        e("    s_waitcnt lgkmcnt(0)")
        for r in range(12):
            e(f"    v_lshlrev_b32 v{8+r}, 16, v{8+r}")
    else:
        e("    v_mov_b32 v20, v39")
        e("    v_mov_b32 v21, v31")
    e("    s_barrier")
    e("    ds_read2_b32 v[22:23], v20 offset0:0 offset1:16")
    e("    ds_read2_b32 v[24:25], v20 offset0:32 offset1:48")
    if np8:
        e("    ds_read2_b32 v[26:27], v20 offset0:64 offset1:80")
        e("    ds_read2_b32 v[28:29], v20 offset0:96 offset1:112")
        e("    s_waitcnt lgkmcnt(2)")
        e("    v_pk_add_f32 v[22:23], v[22:23], v[24:25]")
        e("    s_waitcnt lgkmcnt(0)")
        e("    v_pk_add_f32 v[24:25], v[26:27], v[28:29]")
    else:
        e("    s_waitcnt lgkmcnt(0)")
    e("    v_pk_add_f32 v[22:23], v[22:23], v[24:25]")
    e("    v_add_f32 v22, v22, v23")
    e("    v_cvt_pk_bf16_f32 v22, 0, v22")
    e("    v_mul_f32 v23, 0xbfb8aa3b, v22       ; -log2e * x")
    e("    v_exp_f32 v23, v23")
    e("    s_nop 0")
    e("    v_add_f32 v23, 1.0, v23")
    e("    v_rcp_f32 v23, v23")
    e("    s_nop 0")
    e("    v_mul_f32 v22, v22, v23")
    e("    v_cvt_pk_bf16_f32 v22, 0, v22")
    e("    s_nop 1")
    for r in range(12):
        a = 23 + (r % 3)
        op = "v_mul_f32_dpp" if r < 3 else "v_fmac_f32_dpp"
        e(f"    {op} v{a}, v22, v{(27 if gpre else 8)+r} row_newbcast:{r} row_mask:0xf bank_mask:0xf")
    e("    v_add_f32 v23, v23, v24")
    e("    v_add_f32 v23, v23, v25")
    e("    v_cvt_pk_bf16_f32 v23, 0, v23")
    e("    v_mul_f32 v23, 0xbfb8aa3b, v23")
    e("    v_exp_f32 v23, v23")
    e("    s_nop 0")
    e("    v_add_f32 v23, 1.0, v23")
    e("    v_rcp_f32 v23, v23")
    e("    s_nop 0")
    e("    v_cvt_pk_bf16_f32 v23, 0, v23")
    e(f"    ds_write_b32 v21, v23 offset:{L_G}")
    e("    s_waitcnt lgkmcnt(0)")
    e("    s_barrier")
    e("    s_branch L_b5")

    e("L_poll_start:")
    NL = 2 if np8 else 4
    if np8:
        e("    s_sub_u32 s10, s3, 4")
        e("    s_cmp_lt_u32 s3, 4")
        e("    s_cselect_b32 s10, s3, s10")
        e("    s_lshl_b32 s42, s10, 11")
    else:
        e("    s_mov_b32 s10, s3")
        e("    s_lshl_b32 s42, s3, 12")
    if rep:
        e("    s_getreg_b32 s43, hwreg(HW_REG_XCC_ID)")
        e("    s_and_b32 s43, s43, 7")
        e(f"    s_mul_i32 s43, s43, {rep}")
        e("    s_add_u32 s42, s42, s43")
    e("    v_and_b32 v27, 3, v2")
    e("    v_mul_u32_u24 v27, 12, v27")
    e("    s_lshl_b32 s43, s10, 6")
    e("    v_add3_u32 v31, v31, v27, s43")
    regs = (8, 12, 16, 20)
    for k in range(NL):
        e(f"    s_mov_b64 s[{4+2*k}:{5+2*k}], -1")
    e("    s_mov_b32 s31, %d" % spin)
    e("L_poll:")
    for k in range(NL):
        e(f"    s_mov_b64 exec, s[{4+2*k}:{5+2*k}]")
        e(f"    s_cbranch_execz L_skip{k}")
        e(f"    buffer_load_dwordx4 v[{regs[k]}:{regs[k]+3}], v1, s[24:27], s42 offen offset:{1024*k} {pollf}")
        e(f"L_skip{k}:")
    e("    s_mov_b64 exec, -1")
    e("    s_waitcnt vmcnt(0)")
    for k in range(NL):
        r = regs[k]
        e(f"    v_bitop3_b32 v{27+k}, v{r}, v{r+1}, s29 bitop3:0x96")
    for k in range(NL):
        r = regs[k]
        e(f"    v_bitop3_b32 v{27+k}, v{27+k}, v{r+2}, v{r+3} bitop3:0x96")
    for k in range(NL):
        e(f"    v_cmp_ne_u32 s[{4+2*k}:{5+2*k}], 0, v{27+k}")
    e("    s_or_b64 s[82:83], s[4:5], s[6:7]")
    if NL == 4:
        e("    s_or_b64 vcc, s[8:9], s[10:11]")
        e("    s_or_b64 s[82:83], s[82:83], vcc")
    e("    s_cbranch_scc0 L_poll_ok")
    e("    s_sub_u32 s31, s31, 1")
    e("    s_cbranch_scc1 L_poll_ok")
    if sleep:
        e(f"    s_sleep {sleep}")
    e("    s_branch L_poll")
    e("L_poll_ok:")
    stamp(7)
    if NL == 4:
        e("    v_add_f32 v10, v10, v14")
        e("    v_add_f32 v18, v18, v22")
        e("    v_pk_add_f32 v[8:9], v[8:9], v[12:13]")
        e("    v_pk_add_f32 v[16:17], v[16:17], v[20:21]")
        e("    v_add_f32 v11, v10, v18")
        e("    v_add_f32 v10, v10, v18")
        e("    v_pk_add_f32 v[8:9], v[8:9], v[16:17]")
    else:
        e("    v_add_f32 v11, v10, v14")
        e("    v_add_f32 v10, v10, v14")
        e("    v_pk_add_f32 v[8:9], v[8:9], v[12:13]")
    e("    s_nop 0")
    e("    v_permlane32_swap_b32 v10, v11")
    e("    v_permlane32_swap_b32 v8, v9")
    e("    v_add_f32 v10, v10, v11              ; [c | c]")
    e("    v_add_f32 v8, v8, v9                 ; [a | b]")
    e("    s_nop 1")
    e("    v_permlane16_swap_b32 v8, v10")
    e("    v_add_f32 v8, v8, v10                ; rows: a, c, b, c")
    e("    s_nop 1")
    e("    v_add_f32_dpp v8, v8, v8 row_shr:4 row_mask:0xf bank_mask:0xf bound_ctrl:0")
    e("    s_nop 1")
    e("    v_add_f32_dpp v8, v8, v8 row_shr:8 row_mask:0xf bank_mask:0xf bound_ctrl:0")
    e("    s_mov_b32 exec_lo, 0xf000f000")
    e("    s_mov_b32 exec_hi, 0x0000f000")
    e(f"    ds_write_b32 v31, v8 offset:{L_P}")
    e("    s_mov_b64 exec, -1")
    e("    s_waitcnt lgkmcnt(0)")
    if pg:
        e("    s_barrier")
        e("    s_branch L_b4")
        if stub:
            e("L_stub:")
            e("    s_branch L_stub2")
        e(".p2align 12")
        if stub:
            e("L_stub2:")
            e("    s_branch L_stubret")
    e("L_b3:")
    e("    s_barrier")
    e("L_b4:")
    e("    s_barrier")
    e("L_b5:")
    e(f"    ds_read_b128 v[8:11], v7 offset:{L_G}")
    e(f"    ds_read_b128 v[12:15], v7 offset:{L_G+16}")

    cnt = [0]

    def scale_store(slot, first=False):
        t = 16 + 8 * (cnt[0] & 1)
        cnt[0] += 1
        if dot:
            if first:
                e("    s_waitcnt lgkmcnt(0)")
                stamp(5)
                for i in range(4):
                    e(f"    v_lshrrev_b32 v{8+2*i}, 16, v{8+2*i}     ; (g_lo, 0)")
            for i in range(4):
                d = dreg(slot) + i
                e(f"    v_dot2_f32_bf16 v{t+2*i}, v{d}, v{8+2*i}, 0")
                e(f"    v_dot2_f32_bf16 v{t+1+2*i}, v{d}, v{9+2*i}, 0")
            e("    s_nop 0")
            for i in range(4):
                d = dreg(slot) + i
                e(f"    v_cvt_pk_bf16_f32 v{d}, v{t+2*i}, v{t+1+2*i}")
            d = dreg(slot)
            e(f"    buffer_store_dwordx4 v[{d}:{d+3}], v5, s[20:23], s{SO+slot} offen{stf}")
            return
        for i in range(4):
            d = dreg(slot) + i
            e(f"    v_lshlrev_b32 v{t+2*i}, 16, v{d}")
            e(f"    v_and_b32 v{t+1+2*i}, s30, v{d}")
        if first:
            e("    s_waitcnt lgkmcnt(0)")
            stamp(5)
        for i in range(4):
            e(f"    v_pk_mul_f32 v[{t+2*i}:{t+1+2*i}], v[{t+2*i}:{t+1+2*i}], v[{8+2*i}:{9+2*i}]")
        for i in range(4):
            d = dreg(slot) + i
            e(f"    v_cvt_pk_bf16_f32 v{d}, v{t+2*i}, v{t+1+2*i}")
        d = dreg(slot)
        e(f"    buffer_store_dwordx4 v[{d}:{d+3}], v5, s[20:23], s{SO+slot} offen{stf}")

    sslots = []
    for pp in sorder:
        k = lorder.index(pp)
        sslots += [2 * k, 2 * k + 1]
    if fine:
        S_ = list(range(A0)); A_ = list(range(A0, 32))
        sslots = []
        si, ai = 0, 0
        for k in range(32):
            if (si < len(S_) and (si + 0.5) * len(A_) <= (ai + 0.5) * len(S_)) or ai >= len(A_):
                sslots.append(S_[si]); si += 1
            else:
                sslots.append(A_[ai]); ai += 1
        assert sorted(sslots) == list(range(32))
    for j in range(32):
        scale_store(sslots[j], first=(j == 0))
        if j == 1:
            e("    s_cmp_lg_u32 s2, 0")
            e("    s_cbranch_scc1 L_noep")
            e("    s_cmp_lg_u32 s3, 11")
            e("    s_cbranch_scc1 L_noep")
            e(f"    v_mov_b32 v1, {EPOCH}")
            e("    v_mov_b32 v3, s28")
            e("    s_mov_b64 exec, 1")
            e("    buffer_store_dword v3, v1, s[24:27], 0 offen sc1")
            if dbgout:
                e("    s_load_dwordx2 s[32:33], s[0:1], 32")
                e("    s_mov_b32 s34, 256")
                e("    s_mov_b32 s35, 0x00020000")
                e("    v_mov_b32 v2, s76")
                e("    v_mov_b32 v3, s89")
                e("    v_mov_b32 v1, 0")
                e("    s_waitcnt lgkmcnt(0)")
                e("    buffer_store_dwordx2 v[2:3], v1, s[32:35], 0 offen")
            e("    s_mov_b64 exec, -1")
            e("L_noep:")
        if sbar and (j + 1) % sbar == 0 and j != 31:
            e("    s_barrier")
    if enc:
        e("    s_waitcnt vmcnt(0)")
        stamp(6)
        e("    s_waitcnt lgkmcnt(0)")
        a, b = {1: (0, 0), 2: (0, 3), 3: (0, 5), 4: (5, 6), 5: (0, 6), 8: (0, 0), 9: (0, 0)}[enc]
        e(f"    s_sub_u32 s42, s{ST+2*smap[b]}, s{ST+2*smap[a]}")
        if enc == 8:
            e("    s_lshl_b32 s42, s101, 2")
        if enc == 9:
            e(f"    s_sub_u32 s42, s{ST+2*smap[6]}, s101")
        e("L_enc:")
        e("    s_memrealtime s[4:5]")
        e("    s_waitcnt lgkmcnt(0)")
        e(f"    s_sub_u32 s43, s4, s{ST+2*smap[6]}")
        e("    s_cmp_lt_u32 s43, s42")
        e("    s_cbranch_scc1 L_enc")
    if diag:
        e("    s_waitcnt vmcnt(0)")
        stamp(6)
        e("    s_waitcnt lgkmcnt(0)")
        e("    s_mul_i32 s42, s2, 12")
        e("    s_add_u32 s42, s42, s3")
        e("    s_lshl_b32 s42, s42, 7")
        e(f"    s_add_u32 s42, s42, {DIAG}")
        e("    v_mov_b32 v1, s42")
        e("    s_mov_b64 exec, 1")
        inv = {v: k for k, v in smap.items()}
        for k in range(6):
            e(f"    v_mov_b32 v16, s{ST+2*k}")
            e(f"    v_mov_b32 v17, s{ST+2*k+1}")
            e(f"    buffer_store_dwordx2 v[16:17], v1, s[24:27], 0 offen offset:{8*inv[k]}")
            e("    s_nop 2")
        e("    s_getreg_b32 s42, hwreg(HW_REG_XCC_ID)")
        e("    v_mov_b32 v16, s42")
        e("    v_mov_b32 v17, s31")
        e("    buffer_store_dwordx2 v[16:17], v1, s[24:27], 0 offen offset:88")
    e("L_exit:")
    e("    s_endpgm")
    e('.section .rodata,"a"')
    e(".p2align 6")
    e(f".amdhsa_kernel {NAME}")
    e("  .amdhsa_next_free_vgpr 168")
    e("  .amdhsa_next_free_sgpr 102")
    e("  .amdhsa_accum_offset 168")
    e("  .amdhsa_group_segment_fixed_size 0")
    e("  .amdhsa_kernarg_size 48")
    e("  .amdhsa_user_sgpr_count 2")
    e("  .amdhsa_user_sgpr_kernarg_segment_ptr 1")
    e("  .amdhsa_system_sgpr_workgroup_id_x 1")
    e("  .amdhsa_float_denorm_mode_32 3")
    e(".end_amdhsa_kernel")
    return "\n".join(o) + "\n"


if __name__ == "__main__":
    ap = argparse.ArgumentParser()
    ap.add_argument("-o", default="-")
    ap.add_argument("--ld", default="nt")
    ap.add_argument("--st", default="sc0 sc1")
    ap.add_argument("--diag", action="store_true")
    for name, dv in (("sleep", 0), ("sbar", 1), ("lvm", 3), ("ns", 8), ("pre", 9), ("pairs", 2), ("thr", 14), ("dbgout", 0),
                     ("enc", 0), ("sdiag", 0), ("tx", 0), ("to", 1), ("tstep", 7), ("wstep", 4), ("allpar", 0), ("mfma", 0), ("prio", 0), ("gw", 0), ("gd", 0), ("clk", 0), ("dot", 0), ("pg", 0), ("stub", 0), ("evw", -1), ("evs", 1), ("rep", 0), ("np8", 0), ("zr", 0), ("fine", 0), ("ow", 0), ("eve", 32), ("txs", -1), ("cpf", -1), ("b2b", 0), ("gpre", 0), ("lead", 0), ("oddp", 70)):
        ap.add_argument("--" + name, type=int, default=dv)
    ap.add_argument("--pubf", default="sc1")
    ap.add_argument("--pollf", default="sc1")
    a = ap.parse_args()
    kw = vars(a).copy()
    out = kw.pop("o")
    s = gen(**kw)
    if out == "-":
        sys.stdout.write(s)
    else:
        open(out, "w").write(s)
```

```python
import sys, argparse

HEADER = """; Kernarg layout for this problem (48 bytes, ptrs only, base s[0:1]):
"""

DOC = """;
"""

NAME = "standalone__channel_attn_se__vision_kernel"
XBYTES = 100663296
MAGIC = 0x5BD1E995
MAGIC2 = 0x2C1B3C6D

L_M = 0
L_HP = 6144
L_P = 7488
L_G = 6656
L_DEC = 7424
L_W = 8192
LDS = 20480
VOTE = 393216
EPOCH = 401408
DIAG = 1 << 20
WS_BYTES = 2 << 20
SB = 49152
WIN = 128 * SB


def gen(ld="nt", st="sc0 sc1", diag=False, sleep=0, spin=4000000, pubf="sc1", pollf="sc1", sbar=1,
        lvm=3, ns=8, pre=9, pairs=2, thr=14, dbgout=0, enc=0, sdiag=0, tx=0, to=1, tstep=7, wstep=4, allpar=0,
        mfma=0, prio=0, gw=0, gd=0, clk=0, dot=0, pg=0, stub=0, evw=-1, evs=1, rep=0, np8=0, zr=0, fine=0, ow=0, eve=32, txs=-1, cpf=-1, b2b=0, gpre=0, lead=0, oddp=70, rs=64):
    o = []
    e = o.append
    ldf = (" " + ld) if ld else ""
    stf = (" " + st) if st else ""
    D0 = 40
    SO = 44
    ST = 90
    na = 16 - ns
    adaptive = [(15 - i // 2) if i % 2 == 0 else (9 - i // 2) for i in range(na)][::-1]
    static = [pp for pp in range(16) if pp not in adaptive]
    lorder = static + adaptive
    sorder = []
    si, ai = 0, 0
    for k in range(16):
        if (ai < na and (ai + 1) * 16 <= (k + 1) * na) or si >= len(static):
            sorder.append(adaptive[ai]); ai += 1
        else:
            sorder.append(static[si]); si += 1
    assert sorted(sorder) == list(range(16))
    region = lambda pp: 0 if pp < 10 else 1
    A0 = 2 * ns
    G = A0 - lvm - 1 + gd
    e(HEADER.rstrip())
    e(f"; @launch grid=(256,1,1) block=(768,1,1) lds={LDS}")
    e(DOC.rstrip())
    e('.amdgcn_target "amdgcn-amd-amdhsa--gfx950"')
    e(".text")
    e(f".globl {NAME}")
    e(".p2align 8")
    e(f".type {NAME},@function")
    e(f"{NAME}:")
    smap = {0: 0, 1: 1, 3: 2, 5: 3, 6: 4, 7: 5}

    def stamp(i, sd=False):
        if (clk or enc in (8, 9)) and i in (1, 7):
            return
        if clk and diag and i == (5 if clk == 1 else 0):
            e(f"    s_memtime s[{ST+2*smap[1]}:{ST+1+2*smap[1]}]")
        if clk and diag and i == (6 if clk == 1 else 3):
            e(f"    s_memtime s[{ST+2*smap[7]}:{ST+1+2*smap[7]}]")
        if sdiag and i in (1, 7) and not sd:
            return
        if sd and not sdiag:
            return
        if (diag or enc) and i in smap:
            k = smap[i]
            e(f"    s_memrealtime s[{ST+2*k}:{ST+1+2*k}]")

    def dreg(slot):
        return D0 + 4 * slot

    q = []

    def load(slot, track=True):
        d = dreg(slot)
        e(f"    buffer_load_dwordx4 v[{d}:{d+3}], v5, s[16:19], s{SO+slot} offen{ldf}")
        if track:
            q.append(slot)

    def soff(k, pp, u):
        b = 84 if ((pp ^ u) & 1) else 82
        e(f"    s_add_u32 s{SO+2*k}, s{b}, {pp*WIN}")
        e(f"    s_add_u32 s{SO+2*k+1}, s{b+1}, {pp*WIN}")

    us = []
    seen = [0, 0]
    for pp in lorder:
        us.append(seen[region(pp)] & 1)
        seen[region(pp)] += 1

    e("    s_cmp_ge_u32 s2, 256")
    e("    s_cbranch_scc1 L_exit")
    if enc in (8, 9):
        e("    s_memrealtime s[98:99]")
        e("    s_waitcnt lgkmcnt(0)")
        e("    s_mov_b32 s11, s98")
    e("    s_load_dwordx2 s[16:17], s[0:1], 0       ; x")
    e("    s_load_dwordx2 s[20:21], s[0:1], 24      ; out")
    e("    s_load_dwordx2 s[24:25], s[0:1], 40      ; ws")
    e("    s_load_dwordx4 s[12:15], s[0:1], 8")
    if diag or enc:
        for i in range(6):
            e(f"    s_mov_b64 s[{ST+2*i}:{ST+1+2*i}], 0")
    stamp(0)
    e("    v_lshrrev_b32 v1, 6, v0")
    e("    v_and_b32 v2, 63, v0                 ; lane")
    e("    v_readfirstlane_b32 s3, v1")
    e("    v_lshrrev_b32 v3, 4, v2              ; q (row)")
    e("    v_and_b32 v4, 15, v2                 ; n")
    e("    v_mul_u32_u24 v5, 768, v3")
    e("    s_mul_i32 s40, s3, 11")
    e("    s_lshr_b32 s40, s40, 5")
    e("    s_mul_i32 s41, s40, 3")
    e("    s_sub_u32 s41, s3, s41               ; seg = wave%3")
    e("    s_lshl_b32 s43, s41, 8")
    e("    v_lshl_add_u32 v5, v4, 4, v5")
    e("    v_add_u32 v5, s43, v5                ; v5 = q*768 + seg*256 + n*16")
    e("    s_mov_b32 s18, %d" % XBYTES)
    e("    s_mov_b32 s19, 0x00020000")
    e("    s_lshr_b32 s42, s2, 3")
    e("    s_and_b32 s43, s2, 3")
    e("    s_lshl2_add_u32 s42, s42, s43")
    e(f"    s_mul_i32 s76, s42, {SB}")
    e("    s_mul_i32 s78, s40, 6144")
    e("    s_add_u32 s78, s78, s76              ; half 0, t0")
    e("    s_add_u32 s80, s78, 24576            ; half 1, t0")
    e("    s_bitcmp1_b32 s2, 2")
    e("    s_cselect_b32 s82, s80, s78")
    e("    s_add_u32 s83, s82, 3072")
    for k in range(2):
        e(f"    s_add_u32 s{SO+2*k}, s82, {lorder[k]*WIN}")
        e(f"    s_add_u32 s{SO+2*k+1}, s83, {lorder[k]*WIN}")
    assert lvm <= 4
    e("    s_waitcnt lgkmcnt(0)")
    if enc == 8:
        e("    s_memrealtime s[98:99]")
        e("    s_waitcnt lgkmcnt(0)")
        e("    s_sub_u32 s101, s98, s11")
    if enc == 9:
        e("    s_mov_b32 s101, s11")
    for s in range(lvm):
        load(s)
    stamp(1, True)
    for k in range(2, 16):
        e(f"    s_add_u32 s{SO+2*k}, s82, {lorder[k]*WIN}")
        e(f"    s_add_u32 s{SO+2*k+1}, s83, {lorder[k]*WIN}")
    e("    s_mov_b32 s22, %d" % XBYTES)
    e("    s_mov_b32 s23, 0x00020000")
    e("    s_mov_b32 s26, %d" % WS_BYTES)
    e("    s_mov_b32 s27, 0x00020000")
    e("    s_mov_b32 s30, 0xffff0000")
    e("    s_mov_b32 s31, %d" % spin)
    e(f"    s_mov_b32 s87, {VOTE}")
    e("    s_mov_b32 s86, 0")
    if evw >= 0:
        e("    s_getreg_b32 s11, hwreg(HW_REG_XCC_ID)")
    e("    s_cmp_gt_u32 s3, 3")
    e("    s_cbranch_scc1 L_norole")
    e("    s_cmp_eq_u32 s3, 0")
    e("    s_cbranch_scc1 L_wave0")
    e("    s_cmp_eq_u32 s3, 3")
    e("    s_cbranch_scc1 L_wave3")
    if tx:
        e("    s_lshr_b32 s42, s2, 3")
        e("    s_and_b32 s43, s42, 15")
        e("    s_add_u32 s43, s43, 32")
        e("    s_cmp_eq_u32 s3, 1")
        e("    s_cselect_b32 s42, s42, s43")
        e("    s_lshl_b32 s42, s42, 21")
        e("    s_load_dword s4, s[16:17], s42")
    e("    s_branch L_norole")
    e("L_wave3:")
    e("    s_load_dword s4, s[12:13], 0")
    e("    s_load_dword s5, s[14:15], 0")
    e("    s_branch L_norole")
    e("L_wave0:")
    if lead:
        e("    s_memrealtime s[10:11]")
    e(f"    s_load_dword s28, s[24:25], {EPOCH}")
    if zr == 1:
        e("    v_and_b32 v36, 3, v2")
        e("    v_lshlrev_b32 v36, 4, v36")
        e("    v_lshrrev_b32 v37, 2, v2")
        e(f"    v_mul_u32_u24 v37, {rep}, v37")
        e("    v_add_u32 v36, v36, v37")
        for i in range(4):
            e(f"    v_mov_b32 v{32+i}, 0")
        e("    s_lshl_b32 s42, s2, 6")
        e("    s_mov_b32 exec_hi, 0")
        e("    buffer_store_dwordx4 v[32:35], v36, s[24:27], s42 offen sc1")
        e("    s_mov_b32 exec_hi, -1")
    e("    s_getreg_b32 s89, hwreg(HW_REG_XCC_ID)")
    e("    s_and_b32 s89, s89, 7")
    e("    s_mov_b32 s38, 0")
    e("    s_mov_b32 s86, 2")
    e("    s_bitcmp1_b32 s89, 0")
    e("    s_cbranch_scc1 L_pubvote0" if zr == 1 else "    s_cbranch_scc1 L_pubvote")
    e("    s_mov_b32 s86, 1")
    e("    s_bfe_u32 s42, s2, 0x10006")
    e("    s_add_u32 s42, s42, 1")
    e(f"    s_mul_i32 s42, s42, {40<<20}")
    e("    s_bfe_u32 s43, s2, 0x30003")
    e("    s_lshl_b32 s43, s43, 21")
    e("    s_add_u32 s42, s42, s43")
    e("    s_lshr_b32 s43, s2, 7")
    e("    s_lshl_b32 s43, s43, 19")
    e("    s_add_u32 s42, s42, s43")
    e("    s_and_b32 s43, s2, 7")
    e("    s_lshl_b32 s43, s43, 16")
    e("    s_add_u32 s42, s42, s43")
    e("    s_and_b32 s43, s20, 0xffe00000")
    e("    s_add_u32 s6, s43, s42")
    e("    s_addc_u32 s7, s21, 0")
    e("    s_load_dword s4, s[6:7], 4096")
    for sl in range(lvm, pre):
        load(sl, track=False)
    e("    s_waitcnt lgkmcnt(0)")
    offs = [0, 8192, 24576 + 256, 16384 + 256, 32768 + 512, 40960 + 512][:2 * pairs]
    e("    s_memtime s[32:33]")
    e("    s_waitcnt lgkmcnt(0)")
    for i, of in enumerate(offs):
        a_, b_ = (32, 34) if i % 2 == 0 else (34, 32)
        e(f"    s_load_dword s4, s[6:7], {of}")
        e("    s_waitcnt lgkmcnt(0)")
        e(f"    s_memtime s[{b_}:{b_+1}]")
        e("    s_waitcnt lgkmcnt(0)")
        e(f"    s_sub_u32 s{8+(i&1)}, s{b_}, s{a_}")
        if i % 2 == 1:
            e("    s_cmp_gt_u32 s9, s8" if (i // 2) % 2 == 0 else "    s_cmp_gt_u32 s8, s9")
            e("    s_cselect_b32 s39, 16, -16")
            e("    s_add_i32 s38, s38, s39")
    e("    s_lshr_b32 s42, s2, 1")
    e("    s_xor_b32 s42, s42, s89")
    e("    s_sub_i32 s39, 0, s38")
    e("    s_bitcmp1_b32 s42, 2")
    e("    s_cselect_b32 s38, s39, s38")
    if zr == 1:
        e(f"    s_waitcnt vmcnt({pre-lvm})")
        e("    s_branch L_pubvote")
        e("L_pubvote0:")
        e("    s_waitcnt vmcnt(0)")
    e("L_pubvote:")
    e("    s_waitcnt lgkmcnt(0)")
    e("    s_or_b32 s38, s38, s89")
    if lead:
        e("    s_and_b32 s38, s38, 0xff")
        e("    s_and_b32 s42, s89, 1")
        e(f"    s_mul_i32 s42, s42, {oddp}")
        e("    s_add_u32 s42, s42, s10")
        e("    s_lshl_b32 s42, s42, 16")
        e("    s_or_b32 s38, s38, s42")
    e("    s_add_u32 s39, s28, 1")
    e("    s_xor_b32 s39, s39, 0x%08x" % MAGIC2)
    e("    s_xor_b32 s39, s39, s38")
    e("    s_lshl_b32 s42, s2, 3")
    e("    v_mov_b32 v32, s38")
    e("    v_mov_b32 v33, s39")
    e("    v_mov_b32 v34, s42")
    e("    s_mov_b64 exec, 1")
    e("    buffer_store_dwordx2 v[32:33], v34, s[24:27], s87 offen sc1")
    e("    s_mov_b64 exec, -1")
    e("L_norole:")
    if mfma:
        e("    v_and_b32 v16, 1, v4")
        e("    v_lshlrev_b32 v16, 4, v16")
        e("    v_mov_b32 v17, 0x3f80")
        e("    v_lshlrev_b32 v16, v16, v17          ; 0x3f80 << 16*(n&1)")
        e("    v_lshrrev_b32 v17, 1, v4             ; n>>1")
        for d in range(4):
            e(f"    v_cmp_eq_u32 vcc, {d}, v17")
            e(f"    v_mov_b32 v{8+d}, 0")
            e("    s_nop 0")
            e(f"    v_cndmask_b32 v{12+d}, 0, v16, vcc")
    e("    v_lshlrev_b32 v1, 4, v2              ; lane*16")

    def acc(slot):
        d = dreg(slot)
        if mfma:
            e(f"    v_mfma_f32_16x16x32_bf16 v[8:11], v[12:15], v[{d}:{d+3}], v[8:11]")
            return
        for i in range(4):
            if slot == 0:
                e(f"    v_lshlrev_b32 v{8+2*i}, 16, v{d+i}")
                e(f"    v_and_b32 v{9+2*i}, s30, v{d+i}")
            else:
                e(f"    v_lshlrev_b32 v{16+2*i}, 16, v{d+i}")
                e(f"    v_and_b32 v{17+2*i}, s30, v{d+i}")
        if slot:
            for i in range(4):
                e(f"    v_pk_add_f32 v[{8+2*i}:{9+2*i}], v[{8+2*i}:{9+2*i}], v[{16+2*i}:{17+2*i}]")

    for j in range(32):
        younger = len(q) - 1 - q.index(j)
        e(f"    s_waitcnt vmcnt({younger})")
        if j == sdiag - 1:
            stamp(7, True)
        if j == A0 - lvm:
            e("    s_waitcnt lgkmcnt(0)")
            e("    s_add_u32 s28, s28, 1                ; epoch + 1")
            e("    s_xor_b32 s29, s28, 0x%08x           ; tag key" % MAGIC)
            e(f"    s_cmp_lg_u32 s3, {gw}")
            e("    s_cbranch_scc1 L_decbar")
            e("    s_xor_b32 s88, s28, 0x%08x           ; vote key" % MAGIC2)
            if gd:
                e(f"    s_waitcnt vmcnt({max(0, lvm - gd)})")
            e("L_vchk:")
            e("    v_bitop3_b32 v28, v32, v33, s88 bitop3:0x96")
            e("    v_bitop3_b32 v29, v34, v35, s88 bitop3:0x96")
            e("    v_bitop3_b32 v30, v36, v37, s88 bitop3:0x96")
            e("    v_bitop3_b32 v27, v38, v39, s88 bitop3:0x96")
            e("    v_or3_b32 v28, v28, v29, v30")
            e("    v_or_b32 v28, v28, v27")
            e("    v_cmp_ne_u32 vcc, 0, v28")
            e("    s_cbranch_vccz L_vok")
            e("    s_sub_u32 s31, s31, 1")
            e("    s_cbranch_scc1 L_vok")
            e("    buffer_load_dwordx4 v[32:35], v1, s[24:27], s87 offen sc1")
            e("    buffer_load_dwordx4 v[36:39], v1, s[24:27], s87 offen offset:1024 sc1")
            e("    s_waitcnt vmcnt(0)")
            e("    s_branch L_vchk")
            e("L_vok:")
            e("    s_and_b32 s42, s2, 0x7b")
            e("    s_lshr_b32 s42, s42, 1")
            e("    v_readlane_b32 s4, v32, s42")
            e("    v_readlane_b32 s5, v34, s42")
            e("    v_readlane_b32 s6, v36, s42")
            e("    v_readlane_b32 s7, v38, s42")
            if lead:
                e("    s_and_b32 s43, s2, 0x7f")
                e("    s_lshr_b32 s43, s43, 1")
                e("    v_readlane_b32 s8, v32, s43")
                e("    v_readlane_b32 s9, v34, s43")
                e("    v_readlane_b32 s10, v36, s43")
                e("    v_readlane_b32 s11, v38, s43")
                e("    s_bitcmp1_b32 s2, 0")
                e("    s_cselect_b32 s8, s9, s8")
                e("    s_cselect_b32 s10, s11, s10")
                e("    s_bitcmp1_b32 s2, 7")
                e("    s_cselect_b32 s8, s10, s8")
                e("    v_subrev_u32 v33, s8, v32")
                e("    v_subrev_u32 v35, s8, v34")
                e("    v_subrev_u32 v37, s8, v36")
                e("    v_subrev_u32 v39, s8, v38")
                e("    v_max3_i32 v33, v33, v35, v37")
                e("    v_max_i32 v33, v33, v39")
                e(f"    v_cmp_lt_i32 vcc, {lead << 16}, v33")
                e("    v_bfe_i32 v28, v32, 4, 4")
                e("    v_bfe_i32 v29, v34, 4, 4")
                e("    v_bfe_i32 v30, v36, 4, 4")
                e("    v_bfe_i32 v27, v38, 4, 4")
                e("    s_bcnt1_i32_b64 s9, vcc")
            else:
                e("    v_ashrrev_i32 v28, 4, v32")
                e("    v_ashrrev_i32 v29, 4, v34")
                e("    v_ashrrev_i32 v30, 4, v36")
                e("    v_ashrrev_i32 v27, 4, v38")
            e("    v_add3_u32 v28, v28, v29, v30")
            e("    v_add_u32 v28, v28, v27")
            e("    s_bitcmp1_b32 s2, 0")
            e("    s_cselect_b32 s4, s5, s4")
            e("    s_cselect_b32 s6, s7, s6")
            e("    s_bitcmp1_b32 s2, 7")
            e("    s_cselect_b32 s4, s6, s4")
            if lead:
                e("    s_and_b32 s4, s4, 7")
                e("    s_cmp_ge_u32 s9, 8")
                e("    s_cselect_b32 s9, 8, 0")
                e("    s_or_b32 s4, s4, s9")
            for sh in (1, 2, 4, 8):
                e("    s_nop 1")
                e(f"    v_add_u32_dpp v28, v28, v28 row_shr:{sh} row_mask:0xf bank_mask:0xf bound_ctrl:0")
            e("    s_nop 1")
            e("    v_add_u32_dpp v28, v28, v28 row_bcast:15 row_mask:0xa bank_mask:0xf")
            e("    v_lshrrev_b32 v30, 3, v2")
            e("    v_and_b32 v30, 4, v30                ; (lane>=32)*4")
            e("    v_mov_b32 v29, s4")
            e("    s_mov_b32 exec_lo, 0x80000000")
            e("    s_mov_b32 exec_hi, 0x80000000")
            e(f"    ds_write_b32 v30, v28 offset:{L_DEC}")
            e(f"    ds_write_b32 v30, v29 offset:{L_DEC+8}")
            e("    s_mov_b64 exec, -1")
            e("    s_waitcnt lgkmcnt(0)")
            stamp(1)
            e("L_decbar:")
            e("    s_barrier")
            e("    v_mov_b32 v28, 0")
            e(f"    ds_read_b96 v[28:30], v28 offset:{L_DEC}")
            e("    s_waitcnt lgkmcnt(0)")
            e("    v_readfirstlane_b32 s4, v28")
            e("    v_readfirstlane_b32 s5, v29")
            e("    v_readfirstlane_b32 s6, v30")
            if lead:
                e("    s_mov_b32 s11, s6")
            if dbgout:
                e("    s_mov_b32 s76, s4")
                e("    s_mov_b32 s89, s5")
            if allpar:
                e("    s_xor_b32 s42, s16, s20")
                e("    s_lshr_b32 s42, s42, 12")
                e("    s_or_b32 s42, s42, s6")
                e("    s_bitcmp1_b32 s42, 0")
            else:
                e("    s_bitcmp1_b32 s6, 0")
            e("    s_cbranch_scc0 L_nodec")
            e("    s_xor_b32 s77, s77, s6")
            for r in range(2):
                wins = [(k, pp) for k, pp in enumerate(lorder) if pp in adaptive and region(pp) == r]
                if not wins:
                    continue
                e(f"    s_abs_i32 s42, s{4+r}")
                e(f"    s_cmp_lt_u32 s42, {thr}")
                e(f"    s_cbranch_scc1 L_keep{r}")
                e(f"    s_lshr_b32 s42, s{4+r}, 29")
                e("    s_xor_b32 s42, s42, s77")
                e("    s_bitcmp1_b32 s42, 2")
                e("    s_cselect_b32 s82, s80, s78")
                e("    s_cselect_b32 s83, s81, s79")
                e("    s_cselect_b32 s84, s78, s80")
                e("    s_cselect_b32 s85, s79, s81")
                for k, pp in wins:
                    soff(k, pp, 0)
                e(f"L_keep{r}:")
            e("L_nodec:")
        if ow and j + lvm == 32 - ow:
            for k in range(32 - ow, 32):
                load(k)
        if j + lvm < 32 - ow:
            k = j + lvm
            if evw >= 0 and k >= pre and (k % evs == 0) and k < eve:
                e("    s_bitcmp1_b32 s11, 0")
                e(f"    s_cbranch_scc1 L_ev{k}")
                e(f"    s_waitcnt vmcnt({evw})")
                e(f"L_ev{k}:")
            if lead and k > A0 and k < eve:
                e("    s_bitcmp0_b32 s11, 3")
                e(f"    s_cbranch_scc1 L_ld{k}")
                e(f"    s_waitcnt vmcnt({lvm-2})")
                e(f"L_ld{k}:")
            if k < pre:
                e("    s_cmp_eq_u32 s86, 1")
                e(f"    s_cbranch_scc1 L_sk{k}")
                load(k)
                e(f"L_sk{k}:")
            else:
                load(k)
            if k == G:
                e(f"    s_cmp_lg_u32 s3, {gw}")
                e("    s_cbranch_scc1 L_nog")
                e("    buffer_load_dwordx4 v[32:35], v1, s[24:27], s87 offen sc1")
                e("    buffer_load_dwordx4 v[36:39], v1, s[24:27], s87 offen offset:1024 sc1")
                e("L_nog:")
        acc(j)
        if j == wstep:
            e("    s_cmp_lt_u32 s3, 5")
            e("    s_cselect_b32 s36, s14, s12")
            e("    s_cselect_b32 s37, s15, s13")
            e("    s_cselect_b32 s42, 0, 5120")
            e("    s_mov_b32 s38, 4608")
            e("    s_mov_b32 s39, 0x00020000")
            e("    s_lshl_b32 s43, s3, 10")
            e(f"    s_add_u32 m0, s43, {L_W}")
            e("    s_sub_u32 s43, s43, s42")
            e("    buffer_load_dwordx4 v1, s[36:39], s43 offen lds")
        if j == 8:
            e("    s_and_b32 s42, s20, 0x1fffff")
            e("    s_add_u32 s43, s42, 1536")
            e("    s_lshr_b32 s43, s43, 10              ; c")
            e("    s_lshl_b32 s78, s40, 1")
            e("    s_sub_u32 s78, s78, s43              ; u - c (u = 2*grp)")
            e("    s_mul_i32 s78, s78, 11")
            e("    s_add_u32 s79, s78, 11")
            e("    s_and_b32 s78, s78, 15")
            e("    s_and_b32 s79, s79, 15")
            e("    s_xor_b32 s80, s78, 8")
            e("    s_xor_b32 s81, s79, 8")
            for r in (78, 79, 80, 81):
                e(f"    s_mul_i32 s{r}, s{r}, 3072")
                e(f"    s_add_u32 s{r}, s{r}, s76")
            e("    s_add_u32 s77, s76, 24576")
            e("    s_add_u32 s77, s77, s42")
            e("    s_lshr_b32 s77, s77, 19")
            e("    s_xor_b32 s77, s77, s2")
        if zr >= 2 and j == zr:
            e("    s_cmp_lg_u32 s3, 4")
            e("    s_cbranch_scc1 L_nozr")
            e("    v_and_b32 v36, 48, v1")
            e("    v_lshrrev_b32 v37, 2, v2")
            e(f"    v_mul_u32_u24 v37, {rep}, v37")
            e("    v_add_u32 v36, v36, v37")
            for i in range(4):
                e(f"    v_mov_b32 v{32+i}, 0")
            e(f"    s_lshl_b32 s42, s2, {6 if rs == 64 else 7}")
            e("    s_mov_b32 exec_hi, 0")
            e("    buffer_store_dwordx4 v[32:35], v36, s[24:27], s42 offen sc1")
            e("    s_mov_b32 exec_hi, -1")
            e("L_nozr:")
        if j == cpf:
            e("    s_cmp_lg_u32 s3, 6")
            e("    s_cbranch_scc1 L_nocpf")
            e("    s_getpc_b64 s[8:9]")
            e("L_pcbase:")
            e("    v_lshlrev_b32 v36, 7, v2")
            e("    v_mov_b32 v37, L_exit-L_pcbase")
            e("    v_min_u32 v38, v36, v37")
            e("    global_load_dword v39, v38, s[8:9]")
            e("    v_add_u32 v36, 8192, v36")
            e("    v_min_u32 v38, v36, v37")
            e("    global_load_dword v39, v38, s[8:9]")
            e("L_nocpf:")
        if gpre and j == 21:
            e("    s_sub_u32 s42, s3, 5")
            e("    s_cmp_gt_u32 s42, 2")
            e("    s_cbranch_scc1 L_nogpre")
            e("    v_subrev_u32 v39, 320, v0")
            e("    v_lshlrev_b32 v31, 2, v39")
            e("    v_lshlrev_b32 v39, 1, v39")
            for r in range(12):
                e(f"    ds_read_u16 v{27+r}, v39 offset:{L_W+384*r}")
            e("    s_waitcnt lgkmcnt(0)")
            for r in range(12):
                e(f"    v_lshlrev_b32 v{27+r}, 16, v{27+r}")
            e("    v_and_b32 v39, 15, v2")
            e("    v_lshlrev_b32 v39, 2, v39")
            e(f"    v_add_u32 v39, {L_P}, v39")
            e("L_nogpre:")
        if j == txs:
            e("    s_sub_u32 s42, s3, 1")
            e("    s_cmp_gt_u32 s42, 1")
            e("    s_cbranch_scc1 L_notx")
            e("    s_lshr_b32 s42, s2, 3")
            e("    s_and_b32 s43, s42, 15")
            e("    s_add_u32 s43, s43, 32")
            e("    s_cmp_eq_u32 s3, 1")
            e("    s_cselect_b32 s42, s42, s43")
            e("    s_lshl_b32 s42, s42, 21")
            e("    s_load_dword s10, s[16:17], s42")
            e("L_notx:")
        if j == tstep:
            e(f"    s_load_dword s28, s[24:25], {EPOCH}")
            if to:
                e("    s_cmp_gt_u32 s3, 2")
                e("    s_cbranch_scc1 L_noto")
                e("    s_lshr_b32 s42, s2, 3")
                e("    s_and_b32 s43, s42, 15")
                e("    s_add_u32 s43, s43, 32")
                e("    s_cmp_eq_u32 s3, 1")
                e("    s_cselect_b32 s42, s42, s43")
                e("    s_lshl_b32 s42, s42, 21")
                e("    s_load_dword s10, s[20:21], s42")
                e("L_noto:")
        if stub and j == stub:
            e("    s_cmp_eq_u32 s3, 5")
            e("    s_cbranch_scc1 L_stub")
            e("L_stubret:")
        if j == 18:
            e("    s_mul_i32 s42, s41, 1536")
            e("    s_mul_i32 s43, s40, 6")
            e("    s_add_u32 s42, s42, s43")
            e("    v_mul_u32_u24 v27, 24, v2")
            e("    v_add_u32 v27, s42, v27")
            for i in range(3):
                e(f"    ds_read_u16 v{24+i}, v27 offset:{L_W+5120+2*i}")
            e("    s_mul_i32 s42, s40, 1536")
            e("    s_lshl_b32 s43, s41, 9")
            e("    s_add_u32 s42, s42, s43")
            e("    v_lshlrev_b32 v6, 5, v4")
            e(f"    v_lshl_add_u32 v6, v3, {4 if mfma else 3}, v6")
            e("    v_add_u32 v6, s42, v6")
            e("    s_lshl_b32 s43, s41, 7")
            e("    v_lshlrev_b32 v7, 3, v4")
            e("    v_add_u32 v7, s43, v7")
            e("    v_subrev_u32 v27, 192, v7")
            e("    v_min_u32 v7, v7, v27")
            e("    v_lshlrev_b32 v7, 2, v7")
            e("    v_and_b32 v27, 1, v3")
            e("    v_lshrrev_b32 v31, 1, v3")
            e("    v_lshl_add_u32 v31, v27, 1, v31")
            e("    v_lshlrev_b32 v31, 2, v31            ; i(row)*4")
            e("    s_lshl_b32 s42, s41, 6")
            e("    s_lshl_b32 s43, s40, 4")
            e("    s_add_u32 s42, s42, s43")
            e("    v_add_u32 v4, s42, v31")
            e("    s_lshl_b32 s42, s41, 8")
            e("    v_lshlrev_b32 v3, 2, v2")
            e("    v_add_u32 v3, s42, v3")
            if rep:
                e("    v_and_b32 v32, 48, v1                ; (lane&3)*16")
                e("    v_lshrrev_b32 v33, 2, v2")
                e(f"    v_mul_u32_u24 v33, {rep}, v33")
                e("    v_add_u32 v33, v33, v32")
            e("    s_waitcnt lgkmcnt(0)")
            for r in (24, 25, 26):
                e(f"    v_lshlrev_b32 v{r}, 16, v{r}")
            for r in (24, 25, 26):
                e(f"    v_mul_f32 v{r}, 0x36800000, v{r}       ; * 2^-18 = 1/(H*W), exact")
    if mfma:
        e("    s_mov_b32 exec_hi, 0")
        e("    s_nop 7")
        e(f"    ds_write_b128 v6, v[8:11] offset:{L_M}")
        e("    s_mov_b32 exec_hi, -1")
    else:
        e("    s_nop 1")
        for i in range(4):
            e(f"    v_permlane32_swap_b32 v{8+i}, v{12+i}")
        for i in range(4):
            e(f"    v_add_f32 v{8+i}, v{8+i}, v{12+i}")
        e("    s_nop 0")
        e("    v_permlane16_swap_b32 v8, v10")
        e("    v_permlane16_swap_b32 v9, v11")
        e("    v_add_f32 v8, v8, v10")
        e("    v_add_f32 v9, v9, v11")
        e(f"    ds_write_b64 v6, v[8:9] offset:{L_M}")
    e("    s_waitcnt lgkmcnt(0)")
    e("    s_barrier")
    stamp(3)
    for k in range(4):
        e(f"    ds_read2st64_b32 v[{16+2*k}:{17+2*k}], v3 offset0:{6*k} offset1:{6*k+3}")
    e("    s_waitcnt lgkmcnt(2)" if not (diag or enc) else "    s_waitcnt lgkmcnt(0)")
    e("    v_pk_add_f32 v[16:17], v[16:17], v[18:19]")
    e("    s_waitcnt lgkmcnt(0)")
    e("    v_pk_add_f32 v[20:21], v[20:21], v[22:23]")
    e("    v_pk_add_f32 v[16:17], v[16:17], v[20:21]")
    e("    v_add_f32 v16, v16, v17")
    e("    v_mul_f32 v10, v16, v26")
    e("    v_mul_f32 v11, v16, v26")
    e("    v_mul_f32 v8, v16, v24")
    e("    v_mul_f32 v9, v16, v25")
    e("    v_permlane32_swap_b32 v10, v11")
    e("    s_nop 0")
    e("    v_permlane32_swap_b32 v8, v9")
    e("    v_add_f32 v10, v10, v11              ; [c | c]")
    e("    v_add_f32 v8, v8, v9                 ; [a | b]")
    e("    s_nop 1")
    e("    v_permlane16_swap_b32 v8, v10")
    e("    v_add_f32 v8, v8, v10                ; rows: a, c, b, c")
    e("    s_nop 1")
    e("    v_add_f32_dpp v9, v8, v8 row_shr:1 row_mask:0xf bank_mask:0xf bound_ctrl:0")
    for sh in (2, 4, 8):
        e("    s_nop 1")
        e(f"    v_add_f32_dpp v9, v9, v9 row_shr:{sh} row_mask:0xf bank_mask:0xf bound_ctrl:0")
    e("    s_mov_b32 exec_lo, 0x80008000")
    e("    s_mov_b32 exec_hi, 0x00008000")
    e(f"    ds_write_b32 v4, v9 offset:{L_HP}")
    e("    s_mov_b64 exec, -1")
    e(f"    s_lshl_b32 s42, s2, {6 if rs == 64 else 7}")
    e("    s_cmp_lg_u32 s3, 4")
    e("    s_waitcnt lgkmcnt(0)")
    e("    s_barrier")
    e("    s_cbranch_scc1 L_notpub")
    if rep:
        e("    s_mov_b32 exec_hi, 0")
        e(f"    ds_read_b128 v[8:11], v32 offset:{L_HP}")
        e(f"    ds_read_b128 v[12:15], v32 offset:{L_HP+64}")
        e(f"    ds_read_b128 v[16:19], v32 offset:{L_HP+128}")
    else:
        e("    s_mov_b64 exec, 15")
        e(f"    ds_read_b128 v[8:11], v1 offset:{L_HP}")
        e(f"    ds_read_b128 v[12:15], v1 offset:{L_HP+64}")
        e(f"    ds_read_b128 v[16:19], v1 offset:{L_HP+128}")
    e("    s_waitcnt lgkmcnt(1)")
    e("    v_pk_add_f32 v[8:9], v[8:9], v[12:13]")
    e("    v_add_f32 v10, v10, v14")
    e("    s_waitcnt lgkmcnt(0)")
    e("    v_pk_add_f32 v[8:9], v[8:9], v[16:17]")
    e("    v_add_f32 v10, v10, v18")
    e("    v_bitop3_b32 v11, v8, v9, s29 bitop3:0x96")
    e("    v_xor_b32 v11, v11, v10")
    e(f"    buffer_store_dwordx4 v[8:11], v{33 if rep else 1}, s[24:27], s42 offen {pubf}")
    e("    s_mov_b64 exec, -1")
    stamp(7)
    if b2b:
        e("    s_barrier")
    e("    s_branch L_b3")
    e("L_notpub:")
    if b2b:
        e("    s_barrier")
    e("    s_cmp_lt_u32 s3, 4")
    e("    s_cbranch_scc1 L_poll_start")
    e("    s_cmp_gt_u32 s3, 7")
    e("    s_cbranch_scc1 L_poll_start" if np8 else "    s_cbranch_scc1 L_b3")
    if not gpre:
        e("    v_subrev_u32 v1, 320, v0")
        e("    v_lshlrev_b32 v21, 2, v1")
        e("    v_lshlrev_b32 v1, 1, v1")
        for r in range(12):
            e(f"    ds_read_u16 v{8+r}, v1 offset:{L_W+384*r}")
        e("    v_and_b32 v20, 15, v2")
        e("    v_lshlrev_b32 v20, 2, v20")
        e(f"    v_add_u32 v20, {L_P}, v20")
        e("    s_waitcnt lgkmcnt(0)")
        for r in range(12):
            e(f"    v_lshlrev_b32 v{8+r}, 16, v{8+r}")
    else:
        e("    v_mov_b32 v20, v39")
        e("    v_mov_b32 v21, v31")
    e("    s_barrier")
    e("    ds_read2_b32 v[22:23], v20 offset0:0 offset1:16")
    e("    ds_read2_b32 v[24:25], v20 offset0:32 offset1:48")
    if np8:
        e("    ds_read2_b32 v[26:27], v20 offset0:64 offset1:80")
        e("    ds_read2_b32 v[28:29], v20 offset0:96 offset1:112")
        e("    s_waitcnt lgkmcnt(2)")
        e("    v_pk_add_f32 v[22:23], v[22:23], v[24:25]")
        e("    s_waitcnt lgkmcnt(0)")
        e("    v_pk_add_f32 v[24:25], v[26:27], v[28:29]")
    else:
        e("    s_waitcnt lgkmcnt(0)")
    e("    v_pk_add_f32 v[22:23], v[22:23], v[24:25]")
    e("    v_add_f32 v22, v22, v23")
    e("    v_cvt_pk_bf16_f32 v22, 0, v22")
    e("    v_mul_f32 v23, 0xbfb8aa3b, v22       ; -log2e * x")
    e("    v_exp_f32 v23, v23")
    e("    s_nop 0")
    e("    v_add_f32 v23, 1.0, v23")
    e("    v_rcp_f32 v23, v23")
    e("    s_nop 0")
    e("    v_mul_f32 v22, v22, v23")
    e("    v_cvt_pk_bf16_f32 v22, 0, v22")
    e("    s_nop 1")
    for r in range(12):
        a = 23 + (r % 3)
        op = "v_mul_f32_dpp" if r < 3 else "v_fmac_f32_dpp"
        e(f"    {op} v{a}, v22, v{(27 if gpre else 8)+r} row_newbcast:{r} row_mask:0xf bank_mask:0xf")
    e("    v_add_f32 v23, v23, v24")
    e("    v_add_f32 v23, v23, v25")
    e("    v_cvt_pk_bf16_f32 v23, 0, v23")
    e("    v_mul_f32 v23, 0xbfb8aa3b, v23")
    e("    v_exp_f32 v23, v23")
    e("    s_nop 0")
    e("    v_add_f32 v23, 1.0, v23")
    e("    v_rcp_f32 v23, v23")
    e("    s_nop 0")
    e("    v_cvt_pk_bf16_f32 v23, 0, v23")
    e(f"    ds_write_b32 v21, v23 offset:{L_G}")
    e("    s_waitcnt lgkmcnt(0)")
    e("    s_barrier")
    e("    s_branch L_b5")

    e("L_poll_start:")
    NL = 2 if np8 else 4
    if np8:
        e("    s_sub_u32 s10, s3, 4")
        e("    s_cmp_lt_u32 s3, 4")
        e("    s_cselect_b32 s10, s3, s10")
        e(f"    s_lshl_b32 s42, s10, {11 if rs == 64 else 12}")
        if rs == 128:
            e("    v_and_b32 v27, 0x3c0, v1")
            e("    v_add_u32 v1, v1, v27")
    else:
        e("    s_mov_b32 s10, s3")
        e("    s_lshl_b32 s42, s3, 12")
    if rep:
        e("    s_getreg_b32 s43, hwreg(HW_REG_XCC_ID)")
        e("    s_and_b32 s43, s43, 7")
        e(f"    s_mul_i32 s43, s43, {rep}")
        e("    s_add_u32 s42, s42, s43")
    e("    v_and_b32 v27, 3, v2")
    e("    v_mul_u32_u24 v27, 12, v27")
    e("    s_lshl_b32 s43, s10, 6")
    e("    v_add3_u32 v31, v31, v27, s43")
    regs = (8, 12, 16, 20)
    for k in range(NL):
        e(f"    s_mov_b64 s[{4+2*k}:{5+2*k}], -1")
    e("    s_mov_b32 s31, %d" % spin)
    e("L_poll:")
    for k in range(NL):
        e(f"    s_mov_b64 exec, s[{4+2*k}:{5+2*k}]")
        e(f"    s_cbranch_execz L_skip{k}")
        e(f"    buffer_load_dwordx4 v[{regs[k]}:{regs[k]+3}], v1, s[24:27], s42 offen offset:{16*rs*k} {pollf}")
        e(f"L_skip{k}:")
    e("    s_mov_b64 exec, -1")
    e("    s_waitcnt vmcnt(0)")
    for k in range(NL):
        r = regs[k]
        e(f"    v_bitop3_b32 v{27+k}, v{r}, v{r+1}, s29 bitop3:0x96")
    for k in range(NL):
        r = regs[k]
        e(f"    v_bitop3_b32 v{27+k}, v{27+k}, v{r+2}, v{r+3} bitop3:0x96")
    for k in range(NL):
        e(f"    v_cmp_ne_u32 s[{4+2*k}:{5+2*k}], 0, v{27+k}")
    e("    s_or_b64 s[82:83], s[4:5], s[6:7]")
    if NL == 4:
        e("    s_or_b64 vcc, s[8:9], s[10:11]")
        e("    s_or_b64 s[82:83], s[82:83], vcc")
    e("    s_cbranch_scc0 L_poll_ok")
    e("    s_sub_u32 s31, s31, 1")
    e("    s_cbranch_scc1 L_poll_ok")
    if sleep:
        e(f"    s_sleep {sleep}")
    e("    s_branch L_poll")
    e("L_poll_ok:")
    stamp(7)
    if NL == 4:
        e("    v_add_f32 v10, v10, v14")
        e("    v_add_f32 v18, v18, v22")
        e("    v_pk_add_f32 v[8:9], v[8:9], v[12:13]")
        e("    v_pk_add_f32 v[16:17], v[16:17], v[20:21]")
        e("    v_add_f32 v11, v10, v18")
        e("    v_add_f32 v10, v10, v18")
        e("    v_pk_add_f32 v[8:9], v[8:9], v[16:17]")
    else:
        e("    v_add_f32 v11, v10, v14")
        e("    v_add_f32 v10, v10, v14")
        e("    v_pk_add_f32 v[8:9], v[8:9], v[12:13]")
    e("    s_nop 0")
    e("    v_permlane32_swap_b32 v10, v11")
    e("    v_permlane32_swap_b32 v8, v9")
    e("    v_add_f32 v10, v10, v11              ; [c | c]")
    e("    v_add_f32 v8, v8, v9                 ; [a | b]")
    e("    s_nop 1")
    e("    v_permlane16_swap_b32 v8, v10")
    e("    v_add_f32 v8, v8, v10                ; rows: a, c, b, c")
    e("    s_nop 1")
    e("    v_add_f32_dpp v8, v8, v8 row_shr:4 row_mask:0xf bank_mask:0xf bound_ctrl:0")
    e("    s_nop 1")
    e("    v_add_f32_dpp v8, v8, v8 row_shr:8 row_mask:0xf bank_mask:0xf bound_ctrl:0")
    e("    s_mov_b32 exec_lo, 0xf000f000")
    e("    s_mov_b32 exec_hi, 0x0000f000")
    e(f"    ds_write_b32 v31, v8 offset:{L_P}")
    e("    s_mov_b64 exec, -1")
    e("    s_waitcnt lgkmcnt(0)")
    if pg:
        e("    s_barrier")
        e("    s_branch L_b4")
        if stub:
            e("L_stub:")
            e("    s_branch L_stub2")
        e(".p2align 12")
        if stub:
            e("L_stub2:")
            e("    s_branch L_stubret")
    e("L_b3:")
    e("    s_barrier")
    e("L_b4:")
    e("    s_barrier")
    e("L_b5:")
    e(f"    ds_read_b128 v[8:11], v7 offset:{L_G}")
    e(f"    ds_read_b128 v[12:15], v7 offset:{L_G+16}")

    cnt = [0]

    def scale_store(slot, first=False):
        t = 16 + 8 * (cnt[0] & 1)
        cnt[0] += 1
        if dot:
            if first:
                e("    s_waitcnt lgkmcnt(0)")
                stamp(5)
                for i in range(4):
                    e(f"    v_lshrrev_b32 v{8+2*i}, 16, v{8+2*i}     ; (g_lo, 0)")
            for i in range(4):
                d = dreg(slot) + i
                e(f"    v_dot2_f32_bf16 v{t+2*i}, v{d}, v{8+2*i}, 0")
                e(f"    v_dot2_f32_bf16 v{t+1+2*i}, v{d}, v{9+2*i}, 0")
            e("    s_nop 0")
            for i in range(4):
                d = dreg(slot) + i
                e(f"    v_cvt_pk_bf16_f32 v{d}, v{t+2*i}, v{t+1+2*i}")
            d = dreg(slot)
            e(f"    buffer_store_dwordx4 v[{d}:{d+3}], v5, s[20:23], s{SO+slot} offen{stf}")
            return
        for i in range(4):
            d = dreg(slot) + i
            e(f"    v_lshlrev_b32 v{t+2*i}, 16, v{d}")
            e(f"    v_and_b32 v{t+1+2*i}, s30, v{d}")
        if first:
            e("    s_waitcnt lgkmcnt(0)")
            stamp(5)
        for i in range(4):
            e(f"    v_pk_mul_f32 v[{t+2*i}:{t+1+2*i}], v[{t+2*i}:{t+1+2*i}], v[{8+2*i}:{9+2*i}]")
        for i in range(4):
            d = dreg(slot) + i
            e(f"    v_cvt_pk_bf16_f32 v{d}, v{t+2*i}, v{t+1+2*i}")
        d = dreg(slot)
        e(f"    buffer_store_dwordx4 v[{d}:{d+3}], v5, s[20:23], s{SO+slot} offen{stf}")

    sslots = []
    for pp in sorder:
        k = lorder.index(pp)
        sslots += [2 * k, 2 * k + 1]
    if fine:
        S_ = list(range(A0)); A_ = list(range(A0, 32))
        sslots = []
        si, ai = 0, 0
        for k in range(32):
            if (si < len(S_) and (si + 0.5) * len(A_) <= (ai + 0.5) * len(S_)) or ai >= len(A_):
                sslots.append(S_[si]); si += 1
            else:
                sslots.append(A_[ai]); ai += 1
        assert sorted(sslots) == list(range(32))
    for j in range(32):
        scale_store(sslots[j], first=(j == 0))
        if j == 1:
            e("    s_cmp_lg_u32 s2, 0")
            e("    s_cbranch_scc1 L_noep")
            e("    s_cmp_lg_u32 s3, 11")
            e("    s_cbranch_scc1 L_noep")
            e(f"    v_mov_b32 v1, {EPOCH}")
            e("    v_mov_b32 v3, s28")
            e("    s_mov_b64 exec, 1")
            e("    buffer_store_dword v3, v1, s[24:27], 0 offen sc1")
            if dbgout:
                e("    s_load_dwordx2 s[32:33], s[0:1], 32")
                e("    s_mov_b32 s34, 256")
                e("    s_mov_b32 s35, 0x00020000")
                e("    v_mov_b32 v2, s76")
                e("    v_mov_b32 v3, s89")
                e("    v_mov_b32 v1, 0")
                e("    s_waitcnt lgkmcnt(0)")
                e("    buffer_store_dwordx2 v[2:3], v1, s[32:35], 0 offen")
            e("    s_mov_b64 exec, -1")
            e("L_noep:")
        if sbar and (j + 1) % sbar == 0 and j != 31:
            e("    s_barrier")
    if enc:
        e("    s_waitcnt vmcnt(0)")
        stamp(6)
        e("    s_waitcnt lgkmcnt(0)")
        a, b = {1: (0, 0), 2: (0, 3), 3: (0, 5), 4: (5, 6), 5: (0, 6), 8: (0, 0), 9: (0, 0)}[enc]
        e(f"    s_sub_u32 s42, s{ST+2*smap[b]}, s{ST+2*smap[a]}")
        if enc == 8:
            e("    s_lshl_b32 s42, s101, 2")
        if enc == 9:
            e(f"    s_sub_u32 s42, s{ST+2*smap[6]}, s101")
        e("L_enc:")
        e("    s_memrealtime s[4:5]")
        e("    s_waitcnt lgkmcnt(0)")
        e(f"    s_sub_u32 s43, s4, s{ST+2*smap[6]}")
        e("    s_cmp_lt_u32 s43, s42")
        e("    s_cbranch_scc1 L_enc")
    if diag:
        e("    s_waitcnt vmcnt(0)")
        stamp(6)
        e("    s_waitcnt lgkmcnt(0)")
        e("    s_mul_i32 s42, s2, 12")
        e("    s_add_u32 s42, s42, s3")
        e("    s_lshl_b32 s42, s42, 7")
        e(f"    s_add_u32 s42, s42, {DIAG}")
        e("    v_mov_b32 v1, s42")
        e("    s_mov_b64 exec, 1")
        inv = {v: k for k, v in smap.items()}
        for k in range(6):
            e(f"    v_mov_b32 v16, s{ST+2*k}")
            e(f"    v_mov_b32 v17, s{ST+2*k+1}")
            e(f"    buffer_store_dwordx2 v[16:17], v1, s[24:27], 0 offen offset:{8*inv[k]}")
            e("    s_nop 2")
        e("    s_getreg_b32 s42, hwreg(HW_REG_XCC_ID)")
        e("    v_mov_b32 v16, s42")
        e("    v_mov_b32 v17, s31")
        e("    buffer_store_dwordx2 v[16:17], v1, s[24:27], 0 offen offset:88")
    e("L_exit:")
    e("    s_endpgm")
    e('.section .rodata,"a"')
    e(".p2align 6")
    e(f".amdhsa_kernel {NAME}")
    e("  .amdhsa_next_free_vgpr 168")
    e("  .amdhsa_next_free_sgpr 102")
    e("  .amdhsa_accum_offset 168")
    e("  .amdhsa_group_segment_fixed_size 0")
    e("  .amdhsa_kernarg_size 48")
    e("  .amdhsa_user_sgpr_count 2")
    e("  .amdhsa_user_sgpr_kernarg_segment_ptr 1")
    e("  .amdhsa_system_sgpr_workgroup_id_x 1")
    e("  .amdhsa_float_denorm_mode_32 3")
    e(".end_amdhsa_kernel")
    return "\n".join(o) + "\n"


if __name__ == "__main__":
    ap = argparse.ArgumentParser()
    ap.add_argument("-o", default="-")
    ap.add_argument("--ld", default="nt")
    ap.add_argument("--st", default="sc0 sc1")
    ap.add_argument("--diag", action="store_true")
    for name, dv in (("sleep", 0), ("sbar", 1), ("lvm", 3), ("ns", 8), ("pre", 9), ("pairs", 2), ("thr", 14), ("dbgout", 0),
                     ("enc", 0), ("sdiag", 0), ("tx", 0), ("to", 1), ("tstep", 7), ("wstep", 4), ("allpar", 0), ("mfma", 0), ("prio", 0), ("gw", 0), ("gd", 0), ("clk", 0), ("dot", 0), ("pg", 0), ("stub", 0), ("evw", -1), ("evs", 1), ("rep", 0), ("np8", 0), ("zr", 0), ("fine", 0), ("ow", 0), ("eve", 32), ("txs", -1), ("cpf", -1), ("b2b", 0), ("gpre", 0), ("lead", 0), ("oddp", 70), ("rs", 64)):
        ap.add_argument("--" + name, type=int, default=dv)
    ap.add_argument("--pubf", default="sc1")
    ap.add_argument("--pollf", default="sc1")
    a = ap.parse_args()
    kw = vars(a).copy()
    out = kw.pop("o")
    s = gen(**kw)
    if out == "-":
        sys.stdout.write(s)
    else:
        open(out, "w").write(s)
```
